```python
import torch

def _softmax(x, axis=-1):
    return torch.softmax(x, dim=axis)

def _gelu(x):
    return torch.nn.functional.gelu(x, approximate='tanh')

def _silu(x):
    return torch.nn.functional.silu(x)

def _sigmoid(x):
    return torch.sigmoid(x)

def _layernorm(x, axis=-1, eps=1e-05):
    m = x.mean(dim=axis, keepdim=True)
    v = x.var(dim=axis, keepdim=True, unbiased=False)
    return (x - m) / torch.sqrt(v + eps)

def _scatter_add(tgt, idx, src, axis=0):
    return tgt.clone().index_add_(axis, idx, src)

def _segment_sum(src, seg, n):
    out = torch.zeros((n,) + src.shape[1:], dtype=src.dtype)
    return out.index_add_(0, seg, src)

def _pad(x, pw):
    flat = tuple((v for pair in reversed(pw) for v in pair))
    return torch.nn.functional.pad(x, flat)
kernel_name = 'adaLN_cond__linear_kernel_hedgehog__glu_gated_bilinear__prompt'

def setup_inputs():

    _w = lambda a: (lambda t: t.to(torch.bfloat16) if t.is_floating_point() else t)(torch.as_tensor(a))

    def _A_setup():
        B, S, D, H = (1, 2048, 512, 32)
        Dh = D // H
        return {'x': _w((lambda *s: torch.randn(*s, dtype=torch.bfloat16) * 0.1)(B, S, D)), 'wqkv': _w((lambda *s: torch.randn(*s, dtype=torch.bfloat16) * 0.2)(D, 3 * D)), 'w_phi': _w((lambda *s: torch.randn(*s, dtype=torch.bfloat16) * 0.2)(H, Dh, Dh) * Dh ** (-0.5)), 'wo': _w((lambda *s: torch.randn(*s, dtype=torch.bfloat16) * 0.2)(D, D))}
    _A_in = _A_setup()

    def _B_setup():
        B, S, D, F = (1, 2048, 512, 1376)
        return {'x': _w((lambda *s: torch.randn(*s, dtype=torch.bfloat16) * 0.1)(B, S, D)), 'w_gate': _w((lambda *s: torch.randn(*s, dtype=torch.bfloat16) * 3.2)(D, F) * D ** (-0.5)), 'w_up': _w((lambda *s: torch.randn(*s, dtype=torch.bfloat16) * 3.2)(D, F) * D ** (-0.5)), 'w_down': _w((lambda *s: torch.randn(*s, dtype=torch.bfloat16) * 3.2)(F, D) * F ** (-0.5))}
    _B_in = _B_setup()
    return {'A_x': _A_in['x'], 'A_wqkv': _A_in['wqkv'], 'A_w_phi': _A_in['w_phi'], 'A_wo': _A_in['wo'], 'B_x': _B_in['x'], 'B_w_gate': _B_in['w_gate'], 'B_w_up': _B_in['w_up'], 'B_w_down': _B_in['w_down'], 'c': _w((lambda *s: torch.randn(*s, dtype=torch.bfloat16) * 0.4)(1, 512) * 8.0), 'w_mod': _w((lambda *s: torch.randn(*s, dtype=torch.bfloat16) * 0.4)(512, 6 * 512) * 512 ** (-0.5) * 8.0)}

def reference(A_x, A_wqkv, A_w_phi, A_wo, B_x, B_w_gate, B_w_up, B_w_down, c, w_mod):

    def _A_ref(x, wqkv, w_phi, wo):
        B, S, D = x.shape
        H = 32
        Dh = D // H
        qkv = (lambda x, *d: x.permute(*d))((x @ wqkv).reshape(B, S, 3, H, Dh), 2, 0, 3, 1, 4)
        q, k, v = (qkv[0], qkv[1], qkv[2])
        pq = torch.einsum('bhsd,hdf->bhsf', q, w_phi)
        pk = torch.einsum('bhsd,hdf->bhsf', k, w_phi)
        phi_q = torch.concatenate([_softmax(pq, axis=-1), _softmax(-pq, axis=-1)], axis=-1)
        phi_k = torch.concatenate([_softmax(pk, axis=-1), _softmax(-pk, axis=-1)], axis=-1)
        kv = torch.einsum('bhsf,bhsd->bhfd', phi_k, v)
        z = torch.einsum('bhsf->bhf', phi_k)
        num = torch.einsum('bhqf,bhfd->bhqd', phi_q, kv)
        den = torch.einsum('bhqf,bhf->bhq', phi_q, z)[..., None] + 1e-06
        o = num / den
        return (lambda x, *d: x.permute(*d))(o, 0, 2, 1, 3).reshape(B, S, D) @ wo

    def _B_ref(x, w_gate, w_up, w_down):
        g = torch.einsum('bsd,df->bsf', x, w_gate)
        u = torch.einsum('bsd,df->bsf', x, w_up)
        h = g * u
        return torch.einsum('bsf,fd->bsd', h, w_down)
    x = A_x
    mod = (_silu(c) @ w_mod).reshape(c.shape[0], 6, 1, -1)
    sa, ca, ga, sb, cb, gb = (mod[:, 0].clone(), mod[:, 1].clone(), mod[:, 2].clone(), mod[:, 3].clone(), mod[:, 4].clone(), mod[:, 5].clone())
    h = _layernorm(x, axis=-1) * (1 + ca) + sa
    x = x + ga * _A_ref(h, A_wqkv, A_w_phi, A_wo)
    h = _layernorm(x, axis=-1) * (1 + cb) + sb
    x = x + gb * _B_ref(h, B_w_gate, B_w_up, B_w_down)
    return x
```

```python
import re

def vr(i, n=1):
    return f"v{i}" if n == 1 else f"v[{i}:{i+n-1}]"
def ar(i, n=1):
    return f"a{i}" if n == 1 else f"a[{i}:{i+n-1}]"
def sr(i, n=1):
    return f"s{i}" if n == 1 else f"s[{i}:{i+n-1}]"

_REG = re.compile(r"\b([vas])(?:(\d+)\b|\[(\d+):(\d+)\])")

def regs_of(tok):
    out = set()
    for m in _REG.finditer(tok):
        k = m.group(1)
        if m.group(2) is not None:
            out.add((k, int(m.group(2))))
        else:
            for i in range(int(m.group(3)), int(m.group(4)) + 1):
                out.add((k, i))
    if re.search(r"\bvcc\b", tok): out.add(("s", 106)); out.add(("s", 107))
    if re.search(r"\bexec\b", tok): out.add(("s", 126)); out.add(("s", 127))
    if re.search(r"\bm0\b", tok): out.add(("s", 124))
    return out

TRANS = ("v_exp_f32", "v_log_f32", "v_rcp_f32", "v_rsq_f32", "v_sqrt_f32", "v_sin_f32", "v_cos_f32")

class Ins:
    __slots__ = ("text", "op", "w", "r", "kind", "srcC", "srcAB", "passes", "sdata", "dpp", "states")
    def __init__(self, text):
        self.text = text
        t = text.split(";")[0].strip()
        parts = t.split(None, 1)
        self.op = op = parts[0]
        rest = parts[1] if len(parts) > 1 else ""
        ops = [o.strip() for o in re.split(r",(?![^\[]*\])", rest)] if rest else []
        self.w = set(); self.r = set(); self.srcC = set(); self.srcAB = set(); self.passes = 0
        self.sdata = set(); self.dpp = False; self.states = 1
        if op == "s_nop":
            self.kind = "nop"; self.states = int(ops[0], 0) + 1; return
        if op.startswith("v_mfma"):
            self.kind = "mfma"
            self.w = regs_of(ops[0]); self.srcAB = regs_of(ops[1]) | regs_of(ops[2]); self.srcC = regs_of(ops[3])
            self.r = self.srcAB | self.srcC
            self.passes = 8 if "32x32" in op else 4
            return
        if op.startswith("v_"):
            self.kind = "trans" if op.replace("_e32", "").replace("_e64", "") in TRANS else "valu"
            self.dpp = ("_dpp" in op) or ("row_" in rest) or ("quad_perm" in rest)
            if op.startswith("v_permlane") and "swap" in op:
                self.kind = "permlane"
                self.w = regs_of(ops[0]) | regs_of(ops[1]); self.r = set(self.w); return
            if op.startswith("v_cmp"):
                self.w = regs_of(ops[0])
                if op.startswith("v_cmpx"): self.w |= {("s", 126), ("s", 127)}
                for o in ops[1:]: self.r |= regs_of(o)
                return
            self.w = regs_of(ops[0])
            k = 1
            if op.startswith(("v_add_co", "v_sub_co", "v_addc_co", "v_subb_co", "v_subrev_co", "v_div_scale", "v_mad_u64")):
                self.w |= regs_of(ops[1]); k = 2
            for o in ops[k:]: self.r |= regs_of(o)
            if op.startswith(("v_fmac", "v_pk_fmac", "v_dot2c")) or self.dpp: self.r |= regs_of(ops[0])
            if op.startswith("v_cndmask") and len(ops) == 3: self.r |= {("s", 106), ("s", 107)}
            if op.startswith(("v_readfirstlane", "v_readlane")): self.kind = "readlane"
            return
        if op.startswith(("buffer_", "global_")):
            self.kind = "vmem"
            is_lds = bool(re.search(r"\blds\b", rest)) or "load_lds" in op
            if "load" in op and not is_lds:
                self.w = regs_of(ops[0])
                for o in ops[1:]: self.r |= regs_of(o)
                if "d16" in op: self.r |= regs_of(ops[0])
            else:
                for o in ops: self.r |= regs_of(o)
                if is_lds: self.r |= {("s", 124)}; self.kind = "vmem_lds"
                if "store" in op or "atomic" in op:
                    d = ops[0] if op.startswith("buffer_") else ops[1]
                    if ("x4" in op or "x3" in op): self.sdata = regs_of(d)
            return
        if op.startswith("ds_"):
            self.kind = "ds"
            if "read" in op or "permute" in op or "swizzle" in op:
                self.w = regs_of(ops[0])
                for o in ops[1:]: self.r |= regs_of(o)
            else:
                for o in ops: self.r |= regs_of(o)
            return
        if op.startswith("s_"):
            self.kind = "salu"
            if op.startswith(("s_cmp", "s_cbranch", "s_branch", "s_waitcnt", "s_barrier", "s_endpgm", "s_sleep", "s_setprio", "s_bitcmp")):
                for o in ops: self.r |= regs_of(o)
            else:
                if ops: self.w = regs_of(ops[0])
                for o in ops[1:]: self.r |= regs_of(o)
                if "saveexec" in op: self.w |= {("s", 126), ("s", 127)}
            return
        raise ValueError("unknown instr " + text)

def isv(x): return x[0] in "va"

def need_states(p, c):
    n = 0
    pv = p.kind in ("valu", "trans", "permlane", "readlane")
    cv = c.kind in ("valu", "trans", "permlane", "readlane")
    pw_v = {x for x in p.w if isv(x)}
    pw_s = {x for x in p.w if x[0] == "s"}
    if pv:
        if c.kind == "mfma" and (pw_v & c.r): n = max(n, 2)
        if c.kind == "permlane" and (pw_v & c.r): n = max(n, 2)
        if c.dpp and (pw_v & c.r): n = max(n, 2)
        if c.kind == "readlane" and (pw_v & c.r): n = max(n, 1)
        if p.kind == "trans" and cv and (pw_v & c.r): n = max(n, 1)
        if p.kind == "trans" and c.kind in ("vmem", "ds") and (pw_v & c.r): n = max(n, 1)
        if pw_s:
            if cv and (pw_s & c.r): n = max(n, 4 if c.kind == "readlane" else 2)
            if c.kind in ("vmem", "vmem_lds") and (pw_s & c.r): n = max(n, 5)
            if c.kind == "salu" and (pw_s & c.r): n = max(n, 1)
            if ("s", 126) in pw_s:
                if c.kind == "mfma": n = max(n, 4)
                if c.dpp: n = max(n, 5)
                if c.kind in ("readlane", "permlane"): n = max(n, 4)
    if p.kind == "mfma":
        big = {4: 8, 8: 12}[p.passes]
        if c.kind == "mfma":
            if p.w & c.srcAB: n = max(n, big)
            if (p.w & c.srcC):
                if not (p.w == c.srcC and p.passes == c.passes): n = max(n, big - 2)
            elif (p.w & c.w): n = max(n, big)
        elif c.kind in ("valu", "trans", "permlane", "readlane", "vmem", "vmem_lds", "ds"):
            if p.w & (c.r | c.w): n = max(n, big)
            if cv and (p.srcC & c.w): n = max(n, {4: 3, 8: 7}[p.passes])
    if p.kind == "salu" and ("s", 124) in p.w and c.kind == "vmem_lds": n = max(n, 1)
    if p.kind == "salu" and ("s", 126) in p.w:
        pass
    if p.kind == "vmem" and p.sdata and (p.sdata & c.w): n = max(n, 2)
    return n

class Asm:
    def __init__(self):
        self.out = []
        self.hist = []
        self.vm = []
        self.lg = []
        self.nid = 0
        self.lab = 0
        self.ninstr = 0
    def raw(self, s):
        self.out.append(s)
    def comment(self, s):
        self.out.append("    ; " + s)
    def label(self, name):
        self.out.append(name + ":")
    def newlabel(self, p="L"):
        self.lab += 1
        return f"{p}_{self.lab}"
    def I(self, text):
        ins = Ins(text)
        need = 0
        dist = 0
        for p in reversed(self.hist):
            k = need_states(p, ins)
            if k > dist: need = max(need, k - dist)
            dist += p.states
            if dist > 24: break
        while need > 0:
            k = min(need, 16)
            nop = Ins(f"s_nop {k-1}")
            self.out.append("    " + nop.text); self.hist.append(nop); need -= k
        self.out.append("    " + text)
        self.hist.append(ins)
        if len(self.hist) > 64: self.hist = self.hist[-40:]
        self.ninstr += 1
        self.nid += 1
        if ins.kind in ("vmem", "vmem_lds"): self.vm.append(self.nid)
        elif ins.kind == "ds": self.lg.append(self.nid)
        return self.nid
    def fence(self, n=16):
        self.I(f"s_nop {n-1}")
    def wait_vm(self, oid=None):
        if oid is None:
            if self.vm: self.I("s_waitcnt vmcnt(0)")
            self.vm = []
            return
        if oid not in self.vm: return
        idx = self.vm.index(oid)
        n = len(self.vm) - 1 - idx
        self.I(f"s_waitcnt vmcnt({min(n, 63)})")
        self.vm = self.vm[idx + 1:]
    def wait_lg(self, oid=None):
        if oid is None:
            if self.lg: self.I("s_waitcnt lgkmcnt(0)")
            self.lg = []
            return
        if oid not in self.lg: return
        idx = self.lg.index(oid)
        n = len(self.lg) - 1 - idx
        self.I(f"s_waitcnt lgkmcnt({min(n, 15)})")
        self.lg = self.lg[idx + 1:]
    def wait_all(self):
        self.I("s_waitcnt vmcnt(0) lgkmcnt(0)")
        self.vm = []; self.lg = []
    def barrier(self):
        self.wait_lg()
        self.I("s_barrier")
    def text(self):
        return "\n".join(self.out) + "\n"
```

```python
import sys
from asmlib import *

NAME = "adaLN_cond__linear_kernel_hedgehog__glu_gated_bilinear__prompt"
STOP = int(sys.argv[2]) if len(sys.argv) > 2 else 99
STAMP = int(sys.argv[3]) if len(sys.argv) > 3 else 0

WS_EPOCH = 0
WS_FQ = 0x1000
WS_FX = 0x2000
WS_FH = 0x3000
WS_MODP = 0x10000
WS_KVF = 0x20000
WS_STAT = 0x40000
WS_KVP = 0x100000
WS_PHIQ = 0x400000
WS_X1P = 0x800000
WS_HH = 0xA00000
WS_DBG = 0x1000000
WS_STAMP = 0x1F00000
WS_SIZE = 0x2000000
OOB = 0x7ffffff0
KVREC = 2176
L_MODV = 147456
L_MISC = 147456 + 12288
LDS_BYTES = 163840
SPIN = 400000

sTag, sCt, sRb, sGrp, sM, sW, sRot = 4, 5, 6, 7, 8, 9, 10
sT0, sT1, sT2, sT3, sCnt = 11, 12, 13, 14, 15
SX, SWQKV, SWPHI, SWO, SWG, SWU, SWD, SC, SWMOD, SOUT, SWS = 44, 48, 52, 56, 60, 64, 68, 72, 76, 80, 84
sSel = 88
sSelA, sSelB = 92, 93
sL, sL2 = 94, 95
sNL, sNL2 = 96, 97
sHi = 98
sK = 16
sKW = 20
sKM = 24
sW4096 = 28
sP0, sP1, sP2, sP3 = 29, 30, 31, 32
sFt0 = 33
sStampN = 34

A = Asm()
I = A.I

def srd(base, ptr, nbytes):
    I(f"s_mov_b32 s{base}, s{ptr}")
    I(f"s_and_b32 s{base+1}, s{ptr+1}, 0xffff")
    I(f"s_mov_b32 s{base+2}, {nbytes}")
    I(f"s_mov_b32 s{base+3}, 0x20000")

def S(b): return sr(b, 4)

vTid, vL, vG, vT, vTag = 0, 1, 2, 3, 4
vA0 = 5

stamp_idx = [0]
def stamp():
    if not STAMP: return
    n = stamp_idx[0]; stamp_idx[0] += 1
    I("s_memrealtime s[100:101]")
    I("s_waitcnt lgkmcnt(0)")
    A.lg = []
    I("v_mov_b32 v30, s100")
    I(f"v_lshlrev_b32 v31, 1, v{vTid}")
    I(f"v_and_b32 v31, 0x180, v31")
    I(f"s_lshl_b32 s100, s2, 9")
    I(f"s_add_u32 s100, s100, {WS_STAMP + 4*n}")
    I(f"buffer_store_dword v30, v31, {S(SWS)}, s100 offen")

def tag4(b):
    for i in range(4):
        I(f"v_perm_b32 v{b+i}, v{b+i}, v{vTag}, s{sSel+i}")

def check4(bad, b, t0, t1, first):
    I(f"v_perm_b32 v{t0}, v{b+1}, v{b}, s{sSelA}")
    I(f"v_perm_b32 v{t1}, v{b+3}, v{b+2}, s{sSelB}")
    I(f"v_xor_b32 v{t0}, v{t0}, v{t1}")
    if first:
        I(f"v_xor_b32 v{bad}, v{t0}, v{vTag}")
    else:
        I(f"v_xor_b32 v{t0}, v{t0}, v{vTag}")
        I(f"v_or_b32 v{bad}, v{bad}, v{t0}")

def spin_loop(body):
    A.wait_all()
    lab = A.newlabel("Lspin"); done = A.newlabel("Ldone")
    I(f"s_mov_b32 s{sCnt}, 0")
    A.fence(8)
    A.label(lab)
    body()
    I(f"s_cbranch_vccz {done}")
    I(f"s_add_u32 s{sCnt}, s{sCnt}, 1")
    I(f"s_cmp_lt_u32 s{sCnt}, {SPIN}")
    I("s_sleep 1")
    I(f"s_cbranch_scc1 {lab}")
    A.label(done)
    A.fence(4)

def poll_flags(vaddr, vtmp):
    def body():
        I(f"buffer_load_dword v{vtmp}, v{vaddr}, {S(SWS)}, 0 offen sc1")
        A.wait_vm()
        I(f"v_cmp_ne_u32 vcc, v{vtmp}, v{vTag}")
    spin_loop(body)

def set_flag(soff_reg):
    A.wait_vm()
    I(f"v_cmp_eq_u32 vcc, 0, v{vL}")
    I(f"v_mov_b32 v30, {OOB}")
    I(f"v_cndmask_b32 v30, v30, 0, vcc")
    I(f"buffer_store_dword v{vTag}, v30, {S(SWS)}, s{soff_reg} offen sc1")

def xlane4(vals, op, mid=None):
    a, b, c, d = vals
    I(f"v_permlane32_swap_b32 v{a}, v{b}")
    I(f"v_permlane32_swap_b32 v{c}, v{d}")
    I(f"{op} v{a}, v{a}, v{b}")
    I(f"{op} v{c}, v{c}, v{d}")
    I(f"v_permlane16_swap_b32 v{a}, v{c}")
    I(f"{op} v{a}, v{a}, v{c}")
    if mid: mid(a)
    I(f"v_mov_b32 v{c}, v{a}")
    I(f"v_permlane16_swap_b32 v{a}, v{c}")
    I(f"v_mov_b32 v{b}, v{a}")
    I(f"v_mov_b32 v{d}, v{c}")
    I(f"v_permlane32_swap_b32 v{a}, v{b}")
    I(f"v_permlane32_swap_b32 v{c}, v{d}")

def finish():
    A.raw("L_end:")
    I("s_endpgm")

def dbg_dump(regs, slot):
    I(f"v_lshlrev_b32 v30, 4, v{vTid}")
    for k, r in enumerate(regs):
        I(f"s_lshl_b32 s{sT0}, s2, 12")
        I(f"s_add_u32 s{sT0}, s{sT0}, {WS_DBG + (slot + k) * 256 * 4096}")
        I(f"buffer_store_dwordx4 {r}, v30, {S(SWS)}, s{sT0} offen")
    A.wait_vm()

def prologue():
    I("s_cmp_ge_u32 s2, 256")
    I("s_cbranch_scc1 L_end")
    I("s_load_dwordx16 s[16:31], s[0:1], 0")
    I("s_load_dwordx8 s[32:39], s[0:1], 64")
    I("s_load_dwordx2 s[40:41], s[0:1], 96")
    I(f"v_and_b32 v{vL}, 63, v0")
    I(f"v_lshrrev_b32 v5, 6, v0")
    I(f"v_lshrrev_b32 v{vG}, 4, v{vL}")
    I(f"v_and_b32 v{vT}, 15, v0")
    I(f"v_readfirstlane_b32 s{sW}, v5")
    I(f"s_and_b32 s{sT0}, s2, 7")
    I(f"s_lshr_b32 s{sT1}, s2, 3")
    I(f"s_lshr_b32 s{sT2}, s{sT1}, 4")
    I(f"s_lshl_b32 s{sGrp}, s{sT0}, 1")
    I(f"s_add_u32 s{sGrp}, s{sGrp}, s{sT2}")
    I(f"s_and_b32 s{sM}, s{sT1}, 15")
    I(f"s_and_b32 s{sCt}, s{sM}, 7")
    I(f"s_lshr_b32 s{sT2}, s{sM}, 3")
    I(f"s_lshl_b32 s{sRb}, s{sGrp}, 1")
    I(f"s_add_u32 s{sRb}, s{sRb}, s{sT2}")
    I(f"s_and_b32 s{sRot}, s{sRb}, 3")
    I("s_waitcnt lgkmcnt(0)")
    I(f"s_load_dword s{sTag}, s[40:41], {WS_EPOCH}")
    srd(SC, 32, 1024)
    srd(SWMOD, 34, 512 * 3072 * 2)
    srd(SX, 16, 2048 * 512 * 2)
    srd(SWQKV, 18, 512 * 1536 * 2)
    srd(SWPHI, 20, 32 * 512)
    srd(SWO, 22, 512 * 512 * 2)
    srd(SWG, 26, 512 * 1376 * 2)
    srd(SWU, 28, 512 * 1376 * 2)
    srd(SWD, 30, 1376 * 512 * 2)
    srd(SOUT, 36, 2048 * 512 * 2)
    srd(SWS, 40, WS_SIZE)
    for i in range(4):
        I(f"s_mov_b32 s{sSel+i}, {0x07060500 | i:#x}")
    I(f"s_mov_b32 s{sSelA}, 0x0c0c0400")
    I(f"s_mov_b32 s{sSelB}, 0x04000c0c")
    I(f"s_mov_b32 s{sL}, 0x3fb8aa3b")
    I(f"s_mov_b32 s{sL2}, 0x3fb8aa3b")
    I(f"s_mov_b32 s{sNL}, 0xbfb8aa3b")
    I(f"s_mov_b32 s{sNL2}, 0xbfb8aa3b")
    I(f"s_mov_b32 s{sHi}, 0xffff0000")
    for u in range(4):
        I(f"s_add_u32 s{sT0}, s{sRot}, {u}")
        I(f"s_and_b32 s{sT0}, s{sT0}, 3")
        I(f"s_lshl_b32 s{sK+u}, s{sT0}, 8")
        I(f"s_mul_i32 s{sKW+u}, s{sT0}, {128*3072}")
        I(f"s_lshl_b32 s{sKM+u}, s{sT0}, 9")
    I(f"s_lshl_b32 s{sW4096}, s{sW}, 12")

XH = 64
RAW = 192
def phaseA_issue():
    I(f"s_sub_u32 s{sT0}, s2, 192")
    I(f"s_cmp_ge_u32 s2, 192")
    I(f"s_cselect_b32 s{sP0}, s{sT0}, s2")
    I(f"s_lshr_b32 s{sP1}, s{sP0}, 2")
    I(f"s_and_b32 s{sP2}, s{sP0}, 3")
    I(f"s_lshl_b32 s{sT0}, s{sP2}, 7")
    I(f"s_lshl_b32 s{sT1}, s{sW}, 5")
    I(f"s_add_u32 s{sT0}, s{sT0}, s{sT1}")
    I(f"v_lshrrev_b32 v5, 3, v{vL}")
    I(f"v_add_u32 v5, s{sT0}, v5")
    I(f"v_lshlrev_b32 v6, 1, v5")
    I(f"v_mul_u32_u24 v7, 6144, v5")
    I(f"v_and_b32 v8, 7, v{vL}")
    I(f"v_lshl_add_u32 v7, v8, 4, v7")
    I(f"s_lshl_b32 s{sT0}, s{sP1}, 7")
    ids = []
    for i in range(4):
        ids.append(I(f"buffer_load_ushort v{48+i}, v6, {S(SC)}, 0 offen offset:{16*i}"))
    for i in range(4):
        I(f"s_add_u32 s{sT1}, s{sT0}, {i*8*6144}")
        ids.append(I(f"buffer_load_dwordx4 {vr(32+4*i,4)}, v7, {S(SWMOD)}, s{sT1} offen"))
    return ids

def x_issue():
    ids = {}
    I(f"s_lshl_b32 s{sT0}, s{sRb}, 6")
    I(f"s_lshl_b32 s{sT1}, s{sW}, 4")
    I(f"s_add_u32 s{sT0}, s{sT0}, s{sT1}")
    for i in range(4):
        I(f"s_add_u32 s{sT2}, s{sCt}, {i}")
        I(f"s_and_b32 s{sT2}, s{sT2}, 3")
        I(f"s_lshl_b32 s{sT2}, s{sT2}, 2")
        I(f"v_add_u32 v{12+i}, s{sT2}, v{vG}")
        I(f"v_add_u32 v9, s{sT0}, v{12+i}")
        I(f"v_lshlrev_b32 v9, 10, v9")
        I(f"v_lshl_add_u32 v9, v{vT}, 4, v9")
        for u in range(4):
            ids[(i, u)] = I(f"buffer_load_dwordx4 {vr(RAW + (i*4+u)*4, 4)}, v9, {S(SX)}, s{sK+u} offen")
    return ids

def phaseA_compute(ids):
    A.wait_vm(ids[3])
    for i in range(4):
        I(f"v_lshlrev_b32 v{48+i}, 16, v{48+i}")
    for i in range(4):
        I(f"v_mul_f32 v{52+i}, s{sNL}, v{48+i}")
    for i in range(4):
        I(f"v_min_f32 v{52+i}, 0x42f00000, v{52+i}")
    for i in range(4):
        I(f"v_exp_f32 v{52+i}, v{52+i}")
    for i in range(4):
        I(f"v_add_f32 v{52+i}, 1.0, v{52+i}")
    for i in range(4):
        I(f"v_rcp_f32 v{56+i}, v{52+i}")
    for i in range(4):
        I(f"v_mul_f32 v{60+i}, v{48+i}, v{56+i}")
    for i in range(4):
        I(f"v_fma_f32 v{48+i}, -v{60+i}, v{52+i}, v{48+i}")
    for i in range(4):
        I(f"v_fma_f32 v{48+i}, v{48+i}, v{56+i}, v{60+i}")
    I("v_cvt_pk_bf16_f32 v52, v48, v49")
    I("v_cvt_pk_bf16_f32 v53, v50, v51")
    I("v_lshlrev_b32 v48, 16, v52")
    I(f"v_and_b32 v49, s{sHi}, v52")
    I("v_lshlrev_b32 v50, 16, v53")
    I(f"v_and_b32 v51, s{sHi}, v53")
    for i in range(4):
        A.wait_vm(ids[4 + i])
        for d in range(4):
            I(f"v_lshlrev_b32 v52, 16, v{32+4*i+d}")
            I(f"v_and_b32 v53, s{sHi}, v{32+4*i+d}")
            if i == 0:
                I(f"v_mul_f32 v{56+2*d}, v{48+i}, v52")
                I(f"v_mul_f32 v{57+2*d}, v{48+i}, v53")
            else:
                I(f"v_fmac_f32 v{56+2*d}, v{48+i}, v52")
                I(f"v_fmac_f32 v{57+2*d}, v{48+i}, v53")
    for jx in range(8):
        I(f"v_add_f32_dpp v{56+jx}, v{56+jx}, v{56+jx} row_ror:8 row_mask:0xf bank_mask:0xf")
    for jx in range(4):
        I(f"v_permlane16_swap_b32 v{56+jx}, v{60+jx}")
    for jx in range(4):
        I(f"v_add_f32 v{56+jx}, v{56+jx}, v{60+jx}")
    for jx in range(4):
        I(f"v_mov_b32 v{60+jx}, v{56+jx}")
    for jx in range(4):
        I(f"v_permlane32_swap_b32 v{56+jx}, v{60+jx}")
    for jx in range(4):
        I(f"v_add_f32 v{56+jx}, v{56+jx}, v{60+jx}")
    I(f"v_and_b32 v5, 7, v{vL}")
    I(f"v_and_b32 v6, 1, v{vG}")
    I(f"v_lshl_add_u32 v5, v5, 1, v6")
    I(f"v_lshlrev_b32 v5, 4, v5")
    I(f"s_lshl_b32 s{sT0}, s{sW}, 8")
    I(f"v_add_u32 v5, s{sT0}, v5")
    I(f"v_add_u32 v5, {L_MISC}, v5")
    I(f"ds_write_b128 v5, v[56:59]")
    I("s_waitcnt lgkmcnt(0)")
    A.lg = []
    I(f"s_add_u32 s{sTag}, s{sTag}, 0x9e3779b1")
    I(f"v_mov_b32 v{vTag}, s{sTag}")
    A.barrier()
    I(f"v_lshlrev_b32 v5, 4, v{vT}")
    I(f"v_add_u32 v6, {L_MISC}, v5")
    for w in range(4):
        I(f"ds_read_b128 {vr(32+4*w,4)}, v6 offset:{256*w}")
    A.wait_lg()
    for e in range(4):
        I(f"v_add_f32 v{32+e}, v{32+e}, v{36+e}")
        I(f"v_add_f32 v{40+e}, v{40+e}, v{44+e}")
    for e in range(4):
        I(f"v_add_f32 v{32+e}, v{32+e}, v{40+e}")
    tag4(32)
    I(f"v_cmp_gt_u32 vcc, 16, v{vTid}")
    I(f"v_mov_b32 v6, {OOB}")
    I(f"v_cndmask_b32 v5, v6, v5, vcc")
    I(f"s_mul_i32 s{sT0}, s{sP2}, 12288")
    I(f"s_lshl_b32 s{sT1}, s{sP1}, 8")
    I(f"s_add_u32 s{sT0}, s{sT0}, s{sT1}")
    I(f"s_add_u32 s{sT0}, s{sT0}, {WS_MODP}")
    I(f"buffer_store_dwordx4 v[32:35], v5, {S(SWS)}, s{sT0} offen sc1")

WSLOT = [0, 49152, 98304, 0]
vWe, vWo = 16, 17
def wq_addr():
    I(f"v_lshrrev_b32 v5, 3, v{vL}")
    I(f"v_bfe_u32 v6, v{vL}, 4, 1")
    I(f"v_bfe_u32 v7, v{vL}, 1, 2")
    I(f"v_xor_b32 v7, v7, v6")
    I(f"v_and_b32 v8, 1, v{vL}")
    I(f"v_lshlrev_b32 v8, 4, v8")
    I(f"v_lshl_add_u32 v8, v7, 5, v8")
    I(f"s_lshl_b32 s{sT0}, s{sW}, 5")
    I(f"v_add_u32 v5, s{sT0}, v5")
    I(f"v_mul_u32_u24 v5, 3072, v5")
    I(f"s_lshl_b32 s{sT0}, s{sCt}, 7")
    I(f"v_add_u32 v5, s{sT0}, v5")
    I(f"v_add_u32 v{vWe}, v5, v8")
    I(f"v_xor_b32 v8, 64, v8")
    I(f"v_add_u32 v{vWo}, v5, v8")

def wq_dma(u):
    last = None
    for sg in range(3):
        for i in range(4):
            I(f"s_add_u32 m0, s{sW4096}, {WSLOT[u] + sg*16384 + i*1024}")
            I(f"s_add_u32 s{sT0}, s{sKW+u}, {i*8*3072 + sg*1024}")
            last = I(f"buffer_load_dwordx4 v{vWo if i & 1 else vWe}, {S(SWQKV)}, s{sT0} offen lds")
    return last

vTR = 18
def wq_tr_addr():
    I(f"v_bfe_u32 v5, v{vL}, 2, 2")
    I(f"v_lshl_add_u32 v5, v{vG}, 3, v5")
    I(f"v_lshlrev_b32 v5, 7, v5")
    I(f"v_bfe_u32 v6, v{vL}, 3, 2")
    I(f"v_xor_b32 v6, s{sW}, v6")
    I(f"v_lshl_add_u32 v5, v6, 5, v5")
    I(f"v_and_b32 v6, 3, v{vL}")
    I(f"v_lshl_add_u32 v{vTR}, v6, 3, v5")
    I(f"v_add_u32 v{vTR+1}, 49152, v{vTR}")
    I(f"v_add_u32 v{vTR+2}, 98304, v{vTR}")

def WF(sg, u, s): return ((u * 4 + s) * 3 + sg) * 4
def wq_tr(u):
    base = vTR + (u % 3)
    for sg in range(3):
        for s in range(4):
            f = WF(sg, u, s)
            I(f"ds_read_b64_tr_b16 {ar(f,2)}, v{base} offset:{sg*16384 + s*4096}")
            I(f"ds_read_b64_tr_b16 {ar(f+2,2)}, v{base} offset:{sg*16384 + s*4096 + 512}")

def layernorm(xids):
    for i in range(4):
        A.wait_vm(xids[(i, 3)])
        xb = XH + i * 32
        for q in range(16):
            I(f"v_lshlrev_b32 v{xb+2*q}, 16, v{RAW+i*16+q}")
            I(f"v_and_b32 v{xb+2*q+1}, s{sHi}, v{RAW+i*16+q}")
        I(f"v_pk_add_f32 v[32:33], {vr(xb,2)}, {vr(xb+2,2)}")
        I(f"v_pk_add_f32 v[34:35], {vr(xb+4,2)}, {vr(xb+6,2)}")
        for q in range(4, 16, 2):
            I(f"v_pk_add_f32 v[32:33], v[32:33], {vr(xb+2*q,2)}")
            I(f"v_pk_add_f32 v[34:35], v[34:35], {vr(xb+2*q+2,2)}")
        I("v_pk_add_f32 v[32:33], v[32:33], v[34:35]")
        I("v_add_f32 v32, v32, v33")
        for r in (8, 4, 2, 1):
            I(f"v_add_f32_dpp v32, v32, v32 row_ror:{r} row_mask:0xf bank_mask:0xf")
        I("v_mul_f32 v32, 0xbb000000, v32")
        for q in range(16):
            I(f"v_pk_add_f32 {vr(xb+2*q,2)}, {vr(xb+2*q,2)}, v[32:33] op_sel_hi:[1,0]")
        I(f"v_pk_mul_f32 v[34:35], {vr(xb,2)}, {vr(xb,2)}")
        I(f"v_pk_mul_f32 v[36:37], {vr(xb+2,2)}, {vr(xb+2,2)}")
        for q in range(2, 16, 2):
            I(f"v_pk_fma_f32 v[34:35], {vr(xb+2*q,2)}, {vr(xb+2*q,2)}, v[34:35]")
            I(f"v_pk_fma_f32 v[36:37], {vr(xb+2*q+2,2)}, {vr(xb+2*q+2,2)}, v[36:37]")
        I("v_pk_add_f32 v[34:35], v[34:35], v[36:37]")
        I("v_add_f32 v34, v34, v35")
        for r in (8, 4, 2, 1):
            I(f"v_add_f32_dpp v34, v34, v34 row_ror:{r} row_mask:0xf bank_mask:0xf")
        I("v_mov_b32 v35, 0x3727c5ac")
        I("v_fmac_f32 v35, 0x3b000000, v34")
        I("v_rsq_f32 v34, v35")
        for q in range(16):
            I(f"v_pk_mul_f32 {vr(xb+2*q,2)}, {vr(xb+2*q,2)}, v[34:35] op_sel_hi:[1,0]")

def gather_mod():
    G0 = 192
    I(f"v_lshlrev_b32 v5, 4, v{vTid}")
    I(f"v_add_u32 v6, {WS_MODP}, v5")
    for kq in range(4):
        I(f"s_mov_b32 s{sP0+kq}, {kq*12288}")
    def body():
        for n in range(3):
            for kq in range(4):
                if n == 0:
                    I(f"buffer_load_dwordx4 {vr(G0+(n*4+kq)*4,4)}, v6, {S(SWS)}, s{sP0+kq} offen sc1")
                else:
                    I(f"s_add_u32 s{sT0}, s{sP0+kq}, {n*4096}")
                    I(f"buffer_load_dwordx4 {vr(G0+(n*4+kq)*4,4)}, v6, {S(SWS)}, s{sT0} offen sc1")
        A.wait_vm()
        for q in range(12):
            check4(7, G0 + q * 4, 8, 9, q == 0)
        I("v_cmp_ne_u32 vcc, 0, v7")
    spin_loop(body)
    I(f"s_cmp_ge_u32 s{sW}, 2")
    I(f"s_cselect_b32 s{sT0}, 1.0, 0")
    I(f"s_cselect_b32 s{sT1}, 0, 1.0")
    I(f"v_add_u32 v5, {L_MODV}, v5")
    for n in range(3):
        b = G0 + n * 16
        for e in range(4):
            I(f"v_add_f32 v{b+e}, v{b+e}, v{b+4+e}")
            I(f"v_add_f32 v{b+8+e}, v{b+8+e}, v{b+12+e}")
        for e in range(4):
            I(f"v_add_f32 v{b+e}, v{b+e}, v{b+8+e}")
        for rnd in range(2 if n != 1 else 1):
            I(f"v_cvt_pk_bf16_f32 v{b+4}, v{b}, v{b+1}")
            I(f"v_cvt_pk_bf16_f32 v{b+5}, v{b+2}, v{b+3}")
            I(f"v_lshlrev_b32 v{b}, 16, v{b+4}")
            I(f"v_and_b32 v{b+1}, s{sHi}, v{b+4}")
            I(f"v_lshlrev_b32 v{b+2}, 16, v{b+5}")
            I(f"v_and_b32 v{b+3}, s{sHi}, v{b+5}")
            if rnd == 0 and n != 1:
                for e in range(4):
                    I(f"v_add_f32 v{b+e}, s{sT0 if n == 0 else sT1}, v{b+e}")
        I(f"ds_write_b128 v5, {vr(b,4)} offset:{n*4096}")
    A.barrier()

L_H = 0
def make_h():
    for i in range(4):
        I(f"v_xor_b32 v5, v{vT}, v{12+i}")
        I(f"v_lshlrev_b32 v5, 4, v5")
        I(f"v_lshl_add_u32 v5, v{12+i}, 8, v5")
        I(f"v_add_u32 v{12+i}, s{sW4096}, v5")
    I(f"v_lshlrev_b32 v6, 5, v{vT}")
    I(f"v_add_u32 v6, {L_MODV}, v6")
    for u in range(4):
        I(f"v_add_u32 v7, s{sKM+u}, v6")
        I(f"ds_read_b128 v[240:243], v7 offset:2048")
        I(f"ds_read_b128 v[244:247], v7 offset:2064")
        I(f"ds_read_b128 v[248:251], v7")
        I(f"ds_read_b128 v[252:255], v7 offset:16")
        A.wait_lg()
        for i in range(4):
            b = XH + (i * 4 + u) * 8
            for e in range(0, 8, 2):
                I(f"v_pk_fma_f32 {vr(b+e,2)}, {vr(b+e,2)}, {vr(240+e,2)}, {vr(248+e,2)}")
            for e in range(4):
                I(f"v_cvt_pk_bf16_f32 v{b+e}, v{b+2*e}, v{b+2*e+1}")
            I(f"ds_write_b128 v{12+i}, {vr(b,4)} offset:{L_H + u*16384}")
    A.barrier()

ACC = 192
def accQ(rt): return ACC + rt * 4
def accK(rt): return ACC + 16 + rt * 4
def accV(rt): return ACC + 32 + rt * 4
def gemmB():
    for s in range(4):
        I(f"v_add_u32 v5, {4*s}, v{vG}")
        I(f"v_xor_b32 v5, v5, v{vT}")
        I(f"v_lshlrev_b32 v5, 4, v5")
        I(f"v_lshl_add_u32 v{8+s}, v{vT}, 8, v5")
    steps = [(u, s) for u in range(4) for s in range(4)]
    def rd(k):
        u, s = steps[k]
        b = 32 + (k & 1) * 16
        return [I(f"ds_read_b128 {vr(b+4*rt,4)}, v{8+s} offset:{L_H + u*16384 + rt*4096}") for rt in range(4)]
    cur = rd(0)
    for k, (u, s) in enumerate(steps):
        nxt = rd(k + 1) if k + 1 < 16 else None
        b = 32 + (k & 1) * 16
        for rt in range(4):
            A.wait_lg(cur[rt])
            h = vr(b + 4 * rt, 4)
            for sg, acc in ((1, accK(rt)), (2, accV(rt)), (0, accQ(rt))):
                wf = ar(WF(sg, u, s), 4)
                c = vr(acc, 4) if k else "0"
                if sg == 2: I(f"v_mfma_f32_16x16x32_bf16 {vr(acc,4)}, {h}, {wf}, {c}")
                else: I(f"v_mfma_f32_16x16x32_bf16 {vr(acc,4)}, {wf}, {h}, {c}")
        cur = nxt

vPHI = 22
def wphi_issue():
    I(f"s_lshl_b32 s{sT0}, s{sCt}, 2")
    I(f"s_add_u32 s{sT0}, s{sT0}, s{sW}")
    I(f"s_lshl_b32 s{sT0}, s{sT0}, 9")
    I(f"v_lshlrev_b32 v5, 7, v{vG}")
    I(f"v_lshl_add_u32 v5, v{vT}, 1, v5")
    for j in range(4):
        last = I(f"buffer_load_ushort v{24+j}, v5, {S(SWPHI)}, s{sT0} offen offset:{32*j}")
    return last

def wphi_pack():
    I(f"v_lshl_or_b32 v{vPHI}, v25, 16, v24")
    I(f"v_lshl_or_b32 v{vPHI+1}, v27, 16, v26")

def softmax(acc, OUT):
    P = 64
    EP = 80
    EN = 96
    XB = 112
    ST = [120, 122, 124, 126]; SN = [128, 130, 132, 134]
    for rt in range(4):
        I(f"v_cvt_pk_bf16_f32 v{XB+2*rt}, v{acc(rt)}, v{acc(rt)+1}")
        I(f"v_cvt_pk_bf16_f32 v{XB+2*rt+1}, v{acc(rt)+2}, v{acc(rt)+3}")
    for rt in range(4):
        I(f"v_mfma_f32_16x16x16_bf16 {vr(P+4*rt,4)}, {vr(vPHI,2)}, {vr(XB+2*rt,2)}, 0")
    for rt in range(4):
        p = P + 4 * rt
        I(f"v_max3_f32 v{ST[rt]}, v{p}, v{p+1}, v{p+2}")
        I(f"v_min3_f32 v{SN[rt]}, v{p}, v{p+1}, v{p+2}")
        I(f"v_max_f32 v{ST[rt]}, v{ST[rt]}, v{p+3}")
        I(f"v_min_f32 v{SN[rt]}, v{SN[rt]}, v{p+3}")
    xlane4(ST, "v_max_f32", lambda r: I(f"v_mul_f32 v{r}, s{sNL}, v{r}"))
    xlane4(SN, "v_min_f32", lambda r: I(f"v_mul_f32 v{r}, s{sL}, v{r}"))
    for rt in range(4):
        for e in (0, 2):
            I(f"v_pk_fma_f32 {vr(EP+4*rt+e,2)}, {vr(P+4*rt+e,2)}, {sr(sL,2)}, {vr(ST[rt],2)} op_sel_hi:[1,1,0]")
            I(f"v_pk_fma_f32 {vr(EN+4*rt+e,2)}, {vr(P+4*rt+e,2)}, {sr(sNL,2)}, {vr(SN[rt],2)} op_sel_hi:[1,1,0]")
    for q in range(16):
        I(f"v_exp_f32 v{EP+q}, v{EP+q}")
        I(f"v_exp_f32 v{EN+q}, v{EN+q}")
    for rt in range(4):
        I(f"v_pk_add_f32 {vr(ST[rt],2)}, {vr(EP+4*rt,2)}, {vr(EP+4*rt+2,2)}")
        I(f"v_pk_add_f32 {vr(SN[rt],2)}, {vr(EN+4*rt,2)}, {vr(EN+4*rt+2,2)}")
    for rt in range(4):
        I(f"v_add_f32 v{ST[rt]}, v{ST[rt]}, v{ST[rt]+1}")
        I(f"v_add_f32 v{SN[rt]}, v{SN[rt]}, v{SN[rt]+1}")
    xlane4(ST, "v_add_f32", lambda r: I(f"v_rcp_f32 v{r}, v{r}"))
    xlane4(SN, "v_add_f32", lambda r: I(f"v_rcp_f32 v{r}, v{r}"))
    for rt in range(4):
        for e in (0, 2):
            I(f"v_pk_mul_f32 {vr(EP+4*rt+e,2)}, {vr(EP+4*rt+e,2)}, {vr(ST[rt],2)} op_sel_hi:[1,0]")
            I(f"v_pk_mul_f32 {vr(EN+4*rt+e,2)}, {vr(EN+4*rt+e,2)}, {vr(SN[rt],2)} op_sel_hi:[1,0]")
    for rt in range(4):
        I(f"v_cvt_pk_bf16_f32 v{OUT+4*rt}, v{EP+4*rt}, v{EP+4*rt+1}")
        I(f"v_cvt_pk_bf16_f32 v{OUT+4*rt+1}, v{EP+4*rt+2}, v{EP+4*rt+3}")
        I(f"v_cvt_pk_bf16_f32 v{OUT+4*rt+2}, v{EN+4*rt}, v{EN+4*rt+1}")
        I(f"v_cvt_pk_bf16_f32 v{OUT+4*rt+3}, v{EN+4*rt+2}, v{EN+4*rt+3}")

L_PT = 65536
sHead = 35
def epilogueB():
    I(f"s_lshl_b32 s{sHead}, s{sCt}, 2")
    I(f"s_add_u32 s{sHead}, s{sHead}, s{sW}")
    PK = 144
    softmax(accK, PK)
    I(f"v_lshlrev_b32 v5, 6, v{vT}")
    I(f"v_lshl_add_u32 v5, v{vG}, 3, v5")
    I(f"v_add_u32 v5, s{sW4096}, v5")
    I(f"v_add_u32 v5, {L_PT}, v5")
    for rt in range(4):
        I(f"ds_write_b64 v5, {vr(PK+4*rt,2)} offset:{rt*1024}")
        I(f"ds_write_b64 v5, {vr(PK+4*rt+2,2)} offset:{rt*1024+32}")
    VF = 160
    for kp in range(2):
        for hh in range(2):
            a = accV(2 * kp + hh)
            I(f"v_cvt_pk_bf16_f32 v{VF+4*kp+2*hh}, v{a}, v{a+1}")
            I(f"v_cvt_pk_bf16_f32 v{VF+4*kp+2*hh+1}, v{a+2}, v{a+3}")
    ONES = 168
    for e in range(4):
        I(f"v_mov_b32 v{ONES+e}, 0x3f803f80")
    I(f"v_lshrrev_b32 v6, 2, v{vL}")
    I(f"v_lshlrev_b32 v6, 6, v6")
    I(f"v_and_b32 v7, 3, v{vL}")
    I(f"v_lshl_add_u32 v6, v7, 3, v6")
    I(f"v_add_u32 v6, s{sW4096}, v6")
    I(f"v_add_u32 v6, {L_PT}, v6")
    A.wait_lg()
    PT = 64
    for T in range(2):
        for kp in range(2):
            f = PT + (T * 2 + kp) * 4
            I(f"ds_read_b64_tr_b16 {vr(f,2)}, v6 offset:{kp*2048 + T*32}")
            I(f"ds_read_b64_tr_b16 {vr(f+2,2)}, v6 offset:{kp*2048 + 1024 + T*32}")
    A.wait_lg()
    KV = 80; Z = 88
    for kp in range(2):
        for T in range(2):
            f = vr(PT + (T * 2 + kp) * 4, 4)
            I(f"v_mfma_f32_16x16x32_bf16 {vr(KV+4*T,4)}, {f}, {vr(VF+4*kp,4)}, {vr(KV+4*T,4) if kp else 0}")
            I(f"v_mfma_f32_16x16x32_bf16 {vr(Z+4*T,4)}, {f}, {vr(ONES,4)}, {vr(Z+4*T,4) if kp else 0}")
    I(f"s_lshl_b32 s{sT0}, s{sHead}, 5")
    I(f"s_add_u32 s{sT0}, s{sT0}, s{sRb}")
    I(f"s_mul_i32 s{sT0}, s{sT0}, {KVREC}")
    I(f"s_add_u32 s{sT0}, s{sT0}, {WS_KVP}")
    I(f"v_lshlrev_b32 v5, 4, v{vL}")
    I(f"v_lshlrev_b32 v6, 5, v{vG}")
    I(f"v_lshl_add_u32 v6, v{vT}, 4, v6")
    I(f"v_mov_b32 v7, {OOB}")
    I(f"v_cmp_gt_u32 vcc, 2, v{vT}")
    I(f"v_cndmask_b32 v6, v7, v6, vcc")
    I(f"v_cmp_eq_u32 vcc, 1, v{vT}")
    for e in range(4):
        I(f"v_cndmask_b32 v{Z+e}, v{Z+e}, v{Z+4+e}, vcc")
    tag4(KV); tag4(KV + 4); tag4(Z)
    I(f"buffer_store_dwordx4 {vr(KV,4)}, v5, {S(SWS)}, s{sT0} offen sc1")
    I(f"buffer_store_dwordx4 {vr(KV+4,4)}, v5, {S(SWS)}, s{sT0} offen offset:1024 sc1")
    I(f"buffer_store_dwordx4 {vr(Z,4)}, v6, {S(SWS)}, s{sT0} offen offset:2048 sc1")
    A.fence(4)
    PQ = 144
    softmax(accQ, PQ)
    I(f"s_lshl_b32 s{sT0}, s{sRb}, 7")
    I(f"s_add_u32 s{sT0}, s{sT0}, s{sHead}")
    I(f"s_lshl_b32 s{sT0}, s{sT0}, 10")
    I(f"s_add_u32 s{sT0}, s{sT0}, {WS_PHIQ}")
    for rt in range(4):
        I(f"buffer_store_dwordx4 {vr(PQ+4*rt,4)}, v5, {S(SWS)}, s{sT0} offen sc1")
        if rt < 3: I(f"s_add_u32 s{sT0}, s{sT0}, 32768")
    I(f"s_lshl_b32 s{sT0}, s{sRb}, 5")
    I(f"s_add_u32 s{sT0}, s{sT0}, s{sHead}")
    I(f"s_lshl_b32 s{sT0}, s{sT0}, 2")
    I(f"s_add_u32 s{sT0}, s{sT0}, {WS_FQ}")
    set_flag(sT0)

def kv_reduce():
    skip = A.newlabel("Lskipred")
    A.wait_all()
    I(f"s_and_b32 s{sT0}, s2, 7")
    I(f"s_lshl_b32 s{sT1}, s{sT0}, 8")
    I(f"s_cmp_eq_u32 s{sW}, 0")
    I(f"s_cselect_b32 s{sT2}, 0, 1")
    I(f"s_cselect_b32 s{sT3}, 15, 7")
    I(f"s_cselect_b32 s{sT1}, s{sT1}, 2048")
    I(f"s_lshl_b32 s{sT0}, s{sT0}, 2")
    I(f"s_add_u32 s{sT0}, s{sT0}, s{sW}")
    I(f"s_cmp_eq_u32 s{sT0}, 1")
    I(f"s_cselect_b32 s{sT2}, 0, s{sT2}")
    I(f"s_cmp_lg_u32 s{sT2}, 0")
    I(f"s_cbranch_scc1 {skip}")
    I(f"s_lshr_b32 s{sT0}, s2, 3")
    I(f"s_mul_i32 s{sP0}, s{sT0}, {32*KVREC}")
    I(f"s_add_u32 s{sP0}, s{sP0}, s{sT1}")
    I(f"s_add_u32 s{sP0}, s{sP0}, {WS_KVP}")
    I(f"s_mul_i32 s{sP1}, s{sT0}, {KVREC}")
    I(f"s_add_u32 s{sP1}, s{sP1}, s{sT1}")
    I(f"s_add_u32 s{sP1}, s{sP1}, {WS_KVF}")
    I(f"v_and_b32 v5, s{sT3}, v{vT}")
    I(f"v_lshlrev_b32 v5, 4, v5")
    I(f"v_mul_u32_u24 v6, {KVREC}, v{vG}")
    I(f"v_add_u32 v6, v6, v5")
    R = 64
    def body():
        for n in range(8):
            I(f"s_add_u32 s{sT0}, s{sP0}, {n*4*KVREC}")
            I(f"buffer_load_dwordx4 {vr(R+4*n,4)}, v6, {S(SWS)}, s{sT0} offen sc1")
        A.wait_vm()
        for n in range(8):
            check4(7, R + 4 * n, 8, 9, n == 0)
        I("v_cmp_ne_u32 vcc, 0, v7")
    spin_loop(body)
    for st in (16, 8, 4):
        for q in range(0, st, 2):
            I(f"v_pk_add_f32 {vr(R+q,2)}, {vr(R+q,2)}, {vr(R+st+q,2)}")
    for op in ("v_permlane16_swap_b32", "v_permlane32_swap_b32"):
        for e in range(4):
            I(f"v_mov_b32 v{R+4+e}, v{R+e}")
        for e in range(4):
            I(f"{op} v{R+e}, v{R+4+e}")
        for e in range(4):
            I(f"v_add_f32 v{R+e}, v{R+e}, v{R+4+e}")
    tag4(R)
    I(f"v_cmp_ge_u32 vcc, s{sT3}, v{vL}")
    I(f"v_mov_b32 v7, {OOB}")
    I(f"v_cndmask_b32 v5, v7, v5, vcc")
    I(f"buffer_store_dwordx4 {vr(R,4)}, v5, {S(SWS)}, s{sP1} offen sc1")
    A.wait_all()
    A.label(skip)
    A.fence(4)

WOF = 192
def wo_stage(lbase):
    I(f"v_lshrrev_b32 v5, 3, v{vL}")
    I(f"v_bfe_u32 v6, v{vL}, 4, 2")
    I(f"v_bfe_u32 v7, v{vL}, 1, 2")
    I(f"v_xor_b32 v7, v7, v6")
    I(f"v_and_b32 v8, 1, v{vL}")
    I(f"v_lshlrev_b32 v8, 4, v8")
    I(f"v_lshl_add_u32 v8, v7, 5, v8")
    I(f"v_lshl_add_u32 v5, v5, 10, v8")
    I(f"s_lshl_b32 s{sT1}, s{sW}, 17")
    I(f"s_lshl_b32 s{sT2}, s{sCt}, 7")
    I(f"s_add_u32 s{sT1}, s{sT1}, s{sT2}")
    I(f"s_lshl_b32 s{sT2}, s{sW}, 14")
    for i in range(16):
        I(f"s_add_u32 m0, s{sT2}, {lbase + i*1024}")
        I(f"s_add_u32 s{sT0}, s{sT1}, {i*8192}")
        last = I(f"buffer_load_dwordx4 v5, {S(SWO)}, s{sT0} offen lds")
    I(f"v_lshrrev_b32 v6, 2, v{vL}")
    I(f"v_lshlrev_b32 v6, 7, v6")
    I(f"v_bfe_u32 v7, v{vL}, 3, 2")
    I(f"v_lshl_add_u32 v6, v7, 5, v6")
    I(f"v_and_b32 v7, 3, v{vL}")
    I(f"v_lshl_add_u32 v6, v7, 3, v6")
    I(f"v_add_u32 v6, s{sT2}, v6")
    I(f"v_add_u32 v6, {lbase}, v6")
    for c in range(4):
        I(f"v_xor_b32 v{8+c}, {c*32}, v6")
    A.wait_vm(last)
    for s in range(4):
        for c in range(4):
            f = WOF + (s * 4 + c) * 4
            I(f"ds_read_b64_tr_b16 {ar(f,2)}, v{8+c} offset:{s*4096}")
            I(f"ds_read_b64_tr_b16 {ar(f+2,2)}, v{8+c} offset:{s*4096+2048}")
    A.wait_lg()

def GF(c, ks): return (ks * 3 + c) * 4
def wgu_stage():
    I(f"s_lshl_b32 s{sT0}, s{sM}, 4")
    I(f"s_mul_i32 s{sT0}, s{sT0}, 21846")
    I(f"s_lshr_b32 s{sFt0}, s{sT0}, 16")
    for n in range(3):
        I(f"v_add_u32 v5, {64*n}, v{vL}")
        I(f"v_mul_u32_u24 v6, 5462, v5")
        I(f"v_lshrrev_b32 v6, 16, v6")
        I(f"v_mul_u32_u24 v7, 12, v6")
        I(f"v_sub_u32 v7, v5, v7")
        I(f"v_bfe_u32 v8, v6, 2, 1")
        I(f"v_lshlrev_b32 v8, 1, v8")
        I(f"v_xor_b32 v7, v7, v8")
        I(f"v_mul_u32_u24 v6, 2752, v6")
        I(f"v_lshl_add_u32 v{12+n}, v7, 4, v6")
    I(f"s_and_b32 s{sT1}, s{sW}, 1")
    I(f"s_mul_i32 s{sP0}, s{sT1}, {64*2752}")
    I(f"s_lshl_b32 s{sT2}, s{sFt0}, 5")
    I(f"s_add_u32 s{sP0}, s{sP0}, s{sT2}")
    I(f"s_mul_i32 s{sP1}, s{sW}, 12288")
    I(f"s_cmp_ge_u32 s{sW}, 2")
    I(f"s_cselect_b32 s36, s{SWU}, s{SWG}")
    I(f"s_cselect_b32 s37, s{SWU+1}, s{SWG+1}")
    I(f"s_mov_b32 s38, {512*1376*2}")
    I(f"s_mov_b32 s39, 0x20000")
    I(f"s_lshr_b32 s{sT2}, s{sW}, 1")
    I(f"s_mul_i32 s{sT2}, s{sT2}, 3")
    I(f"s_lshl_b32 s{sT3}, s{sT1}, 1")
    I(f"s_add_u32 s{sP2}, s{sT2}, s{sT3}")
    I(f"s_add_u32 s{sP3}, s{sT2}, 1")
    I(f"v_lshrrev_b32 v5, 2, v{vL}")
    I(f"v_mul_u32_u24 v5, 192, v5")
    I(f"v_and_b32 v6, 3, v{vL}")
    I(f"v_lshl_add_u32 v5, v6, 3, v5")
    I(f"v_and_b32 v6, 1, v{vG}")
    I(f"v_xor_b32 v7, s{sP2}, v6")
    I(f"v_lshl_add_u32 v16, v7, 5, v5")
    I(f"v_add_u32 v17, 24576, v16")
    I(f"v_xor_b32 v7, s{sP3}, v6")
    I(f"v_lshl_add_u32 v18, v7, 5, v5")
    I(f"s_mul_i32 s{sT3}, s{sT1}, 24576")
    I(f"v_add_u32 v18, s{sT3}, v18")
    slots = [0, 49152, 98304, 0]
    def dma(q):
        for p in range(4):
            for n in range(3):
                I(f"s_add_u32 m0, s{sP1}, {slots[q] + (p*3+n)*1024}")
                I(f"s_add_u32 s{sT0}, s{sP0}, {(q*128 + p*16)*2752}")
                last = I(f"buffer_load_dwordx4 v{12+n}, s[36:39], s{sT0} offen lds")
        return last
    def tr(q):
        for c in range(3):
            I(f"v_add_u32 v5, {slots[q]}, v{16+c}")
            for s in range(4):
                f = GF(c, q * 4 + s)
                I(f"ds_read_b64_tr_b16 {ar(f,2)}, v5 offset:{s*6144}")
                I(f"ds_read_b64_tr_b16 {ar(f+2,2)}, v5 offset:{s*6144+3072}")
    A.barrier()
    ids = [dma(q) for q in range(3)]
    A.wait_vm(ids[0]); A.barrier(); tr(0); A.barrier()
    ids.append(dma(3))
    for q in (1, 2, 3):
        A.wait_vm(ids[q]); A.barrier(); tr(q)
    A.barrier()

X1R = 24
def phaseC():
    PH = 64
    RK = 192
    KB = 32
    ZB = 16
    I(f"s_lshl_b32 s{sT0}, s{sRb}, 5")
    I(f"s_lshl_b32 s{sT1}, s{sW}, 3")
    I(f"s_add_u32 s{sT0}, s{sT0}, s{sT1}")
    I(f"v_and_b32 v5, 7, v{vL}")
    I(f"v_add_u32 v5, s{sT0}, v5")
    I(f"v_lshlrev_b32 v5, 2, v5")
    I(f"v_add_u32 v5, {WS_FQ}, v5")
    poll_flags(5, 6)
    I(f"v_lshlrev_b32 v5, 4, v{vL}")
    I(f"s_lshl_b32 s{sT0}, s{sRb}, 7")
    I(f"s_add_u32 s{sT0}, s{sT0}, s{sT1}")
    I(f"s_lshl_b32 s{sT0}, s{sT0}, 10")
    I(f"s_add_u32 s{sP0}, s{sT0}, {WS_PHIQ}")
    for n in range(8):
        for rt in range(4):
            I(f"s_add_u32 s{sT0}, s{sP0}, {rt*32768 + n*1024}")
            I(f"buffer_load_dwordx4 {vr(PH+(n*4+rt)*4,4)}, v5, {S(SWS)}, s{sT0} offen sc1")
    I(f"s_mul_i32 s{sP1}, s{sT1}, {KVREC}")
    I(f"s_add_u32 s{sP1}, s{sP1}, {WS_KVF}")
    I(f"v_and_b32 v6, 3, v{vT}")
    I(f"v_mul_u32_u24 v6, {KVREC}, v6")
    I(f"v_lshl_add_u32 v6, v{vG}, 5, v6")
    RZ = 32
    def body():
        for n in range(8):
            I(f"s_add_u32 s{sT0}, s{sP1}, {n*KVREC}")
            I(f"buffer_load_dwordx4 {vr(RK+8*n,4)}, v5, {S(SWS)}, s{sT0} offen sc1")
            I(f"buffer_load_dwordx4 {vr(RK+8*n+4,4)}, v5, {S(SWS)}, s{sT0} offen offset:1024 sc1")
        for q in range(2):
            I(f"s_add_u32 s{sT0}, s{sP1}, {q*4*KVREC}")
            I(f"buffer_load_dwordx4 {vr(RZ+8*q,4)}, v6, {S(SWS)}, s{sT0} offen offset:2048 sc1")
            I(f"buffer_load_dwordx4 {vr(RZ+8*q+4,4)}, v6, {S(SWS)}, s{sT0} offen offset:2064 sc1")
        A.wait_vm()
        for k in range(16):
            check4(7, RK + 4 * k, 8, 9, k == 0)
        for k in range(4):
            check4(7, RZ + 4 * k, 8, 9, False)
        I("v_cmp_ne_u32 vcc, 0, v7")
    spin_loop(body)
    for k in range(8):
        I(f"v_cvt_pk_bf16_f32 v{ZB+k}, v{RZ+2*k}, v{RZ+2*k+1}")
    for k in range(32):
        I(f"v_cvt_pk_bf16_f32 v{KB+k}, v{RK+2*k}, v{RK+2*k+1}")
    CA = 192
    for s in range(4):
        for rt in range(4):
            f0 = PH + ((2 * s) * 4 + rt) * 4; f1 = PH + ((2 * s + 1) * 4 + rt) * 4
            N0, D0, N1, D1 = 8, 12, 24, 28
            I(f"v_mfma_f32_16x16x32_bf16 {vr(N0,4)}, {vr(KB+8*s,4)}, {vr(f0,4)}, 0")
            I(f"v_mfma_f32_16x16x32_bf16 {vr(D0,4)}, {vr(ZB+4*(s>>1),4)}, {vr(f0,4)}, 0")
            I(f"v_mfma_f32_16x16x32_bf16 {vr(N1,4)}, {vr(KB+8*s+4,4)}, {vr(f1,4)}, 0")
            I(f"v_mfma_f32_16x16x32_bf16 {vr(D1,4)}, {vr(ZB+4*(s>>1),4)}, {vr(f1,4)}, 0")
            d0 = D0 + ((2 * s) & 3); d1 = D1 + ((2 * s + 1) & 3)
            I(f"v_add_f32 v6, 0x358637bd, v{d0}")
            I(f"v_add_f32 v7, 0x358637bd, v{d1}")
            I(f"v_rcp_f32 v6, v6")
            I(f"v_rcp_f32 v7, v7")
            for e in range(4):
                I(f"v_mul_f32 v{N0+e}, v{N0+e}, v6")
            for e in range(4):
                I(f"v_mul_f32 v{N1+e}, v{N1+e}, v7")
            I(f"v_cvt_pk_bf16_f32 v{f0}, v{N0}, v{N0+1}")
            I(f"v_cvt_pk_bf16_f32 v{f0+1}, v{N0+2}, v{N0+3}")
            I(f"v_cvt_pk_bf16_f32 v{f0+2}, v{N1}, v{N1+1}")
            I(f"v_cvt_pk_bf16_f32 v{f0+3}, v{N1+2}, v{N1+3}")
            for c in range(4):
                acc = vr(CA + (c * 4 + rt) * 4, 4)
                I(f"v_mfma_f32_16x16x32_bf16 {acc}, {ar(WOF+(s*4+c)*4,4)}, {vr(f0,4)}, {acc if s else 0}")
    return CA

L_RED = 0
def reduce_scatter(CA, OUT):
    A.barrier()
    I(f"v_lshlrev_b32 v5, 4, v{vL}")
    I(f"v_add_u32 v6, s{sW4096}, v5")
    for rt in range(4):
        for c in range(4):
            I(f"ds_write_b128 v6, {vr(CA+(c*4+rt)*4,4)} offset:{L_RED + rt*16384 + c*1024}")
    A.barrier()
    I(f"s_lshl_b32 s{sT0}, s{sW}, 14")
    I(f"v_add_u32 v6, s{sT0}, v5")
    for sw in range(4):
        for c in range(4):
            I(f"ds_read_b128 {vr(OUT+(sw*4+c)*4,4)}, v6 offset:{L_RED + sw*4096 + c*1024}")
    A.wait_lg()
    for q in range(0, 16, 2):
        I(f"v_pk_add_f32 {vr(OUT+q,2)}, {vr(OUT+q,2)}, {vr(OUT+16+q,2)}")
        I(f"v_pk_add_f32 {vr(OUT+32+q,2)}, {vr(OUT+32+q,2)}, {vr(OUT+48+q,2)}")
    for q in range(0, 16, 2):
        I(f"v_pk_add_f32 {vr(OUT+q,2)}, {vr(OUT+q,2)}, {vr(OUT+32+q,2)}")

X1K = 248
def epilogueC(CA):
    O = 64
    XR = 144
    I(f"s_lshl_b32 s{sT0}, s{sRb}, 6")
    I(f"s_lshl_b32 s{sT1}, s{sW}, 4")
    I(f"s_add_u32 s{sT0}, s{sT0}, s{sT1}")
    I(f"v_add_u32 v10, s{sT0}, v{vT}")
    I(f"v_lshlrev_b32 v7, 10, v10")
    I(f"v_lshl_add_u32 v7, v{vG}, 3, v7")
    I(f"s_lshl_b32 s{sT1}, s{sCt}, 7")
    for c in range(4):
        I(f"buffer_load_dwordx2 {vr(XR+2*c,2)}, v7, {S(SX)}, s{sT1} offen offset:{32*c}")
    reduce_scatter(CA, O)
    GA = 160; CB = 176
    I(f"s_lshl_b32 s{sT1}, s{sCt}, 8")
    I(f"v_lshlrev_b32 v8, 4, v{vG}")
    I(f"v_add_u32 v8, s{sT1}, v8")
    I(f"v_add_u32 v8, {L_MODV}, v8")
    for c in range(4):
        I(f"ds_read_b128 {vr(GA+4*c,4)}, v8 offset:{4096 + 64*c}")
        I(f"ds_read_b128 {vr(CB+4*c,4)}, v8 offset:{8192 + 64*c}")
    A.wait_vm()
    XF = 80
    for q in range(8):
        I(f"v_lshlrev_b32 v{XF+2*q}, 16, v{XR+q}")
        I(f"v_and_b32 v{XF+2*q+1}, s{sHi}, v{XR+q}")
    A.wait_lg()
    for q in range(0, 16, 2):
        I(f"v_pk_fma_f32 {vr(O+q,2)}, {vr(O+q,2)}, {vr(GA+q,2)}, {vr(XF+q,2)}")
    for q in range(8):
        I(f"v_cvt_pk_bf16_f32 v{X1K+q}, v{O+2*q}, v{O+2*q+1}")
    for q in range(8):
        I(f"v_lshlrev_b32 v{O+2*q}, 16, v{X1K+q}")
        I(f"v_and_b32 v{O+2*q+1}, s{sHi}, v{X1K+q}")
    for q in range(0, 16, 2):
        I(f"v_pk_mul_f32 {vr(XF+q,2)}, {vr(O+q,2)}, {vr(CB+q,2)}")
    for q in range(8):
        I(f"v_cvt_pk_bf16_f32 v{XF+q}, v{XF+2*q}, v{XF+2*q+1}")
    I(f"s_lshl_b32 s{sT0}, s{sRb}, 2")
    I(f"s_add_u32 s{sT0}, s{sT0}, s{sW}")
    I(f"s_lshl_b32 s{sT0}, s{sT0}, 14")
    I(f"s_lshl_b32 s{sT1}, s{sCt}, 11")
    I(f"s_add_u32 s{sT0}, s{sT0}, s{sT1}")
    I(f"s_add_u32 s{sT0}, s{sT0}, {WS_X1P}")
    I(f"v_lshlrev_b32 v5, 4, v{vL}")
    I(f"buffer_store_dwordx4 {vr(XF,4)}, v5, {S(SWS)}, s{sT0} offen sc1")
    I(f"buffer_store_dwordx4 {vr(XF+4,4)}, v5, {S(SWS)}, s{sT0} offen offset:1024 sc1")
    T = 96
    I(f"v_pk_add_f32 v[{T}:{T+1}], {vr(O,2)}, {vr(O+2,2)}")
    for q in range(4, 16, 2):
        I(f"v_pk_add_f32 v[{T}:{T+1}], v[{T}:{T+1}], {vr(O+q,2)}")
    I(f"v_add_f32 v{T}, v{T}, v{T+1}")
    I(f"v_mul_f32 v{T+2}, 0xbd800000, v{T}")
    for q in range(0, 16, 2):
        I(f"v_pk_add_f32 {vr(O+q,2)}, {vr(O+q,2)}, v[{T+2}:{T+3}] op_sel_hi:[1,0]")
    I(f"v_pk_mul_f32 v[{T+4}:{T+5}], {vr(O,2)}, {vr(O,2)}")
    for q in range(2, 16, 2):
        I(f"v_pk_fma_f32 v[{T+4}:{T+5}], {vr(O+q,2)}, {vr(O+q,2)}, v[{T+4}:{T+5}]")
    I(f"v_add_f32 v{T+1}, v{T+4}, v{T+5}")
    for op, inv in (("v_permlane16_swap_b32", 0x3d000000), ("v_permlane32_swap_b32", 0x3c800000)):
        I(f"v_mov_b32 v{T+2}, v{T}")
        I(f"v_mov_b32 v{T+3}, v{T+1}")
        I(f"{op} v{T}, v{T+2}")
        I(f"{op} v{T+1}, v{T+3}")
        I(f"v_sub_f32 v{T+4}, v{T}, v{T+2}")
        I(f"v_add_f32 v{T}, v{T}, v{T+2}")
        I(f"v_add_f32 v{T+1}, v{T+1}, v{T+3}")
        I(f"v_mul_f32 v{T+4}, v{T+4}, v{T+4}")
        I(f"v_fmac_f32 v{T+1}, {inv:#x}, v{T+4}")
    I(f"v_lshlrev_b32 v6, 6, v10")
    I(f"v_mov_b32 v7, {OOB}")
    I(f"v_cmp_gt_u32 vcc, 16, v{vL}")
    I(f"v_cndmask_b32 v6, v7, v6, vcc")
    I(f"s_lshl_b32 s{sT0}, s{sCt}, 3")
    I(f"s_add_u32 s{sT0}, s{sT0}, {WS_STAT}")
    I(f"buffer_store_dwordx2 v[{T}:{T+1}], v6, {S(SWS)}, s{sT0} offen sc1")
    I(f"s_lshl_b32 s{sT0}, s{sGrp}, 6")
    I(f"s_lshl_b32 s{sT1}, s{sM}, 2")
    I(f"s_add_u32 s{sT0}, s{sT0}, s{sT1}")
    I(f"s_add_u32 s{sT0}, s{sT0}, s{sW}")
    I(f"s_lshl_b32 s{sT0}, s{sT0}, 2")
    I(f"s_add_u32 s{sT0}, s{sT0}, {WS_FX}")
    set_flag(sT0)

U1 = 224
def u12():
    I(f"v_lshlrev_b32 v5, 4, v{vG}")
    I(f"v_add_u32 v5, {L_MODV + 8192}, v5")
    I(f"v_subrev_u32 v6, 2048, v5")
    I(f"v_cmp_gt_u32 vcc, 8, v{vT}")
    I(f"v_cndmask_b32 v5, v6, v5, vcc")
    R = 64
    for ks in range(16):
        I(f"ds_read_b128 {vr(R+8*ks,4)}, v5 offset:{128*ks}")
        I(f"ds_read_b128 {vr(R+8*ks+4,4)}, v5 offset:{128*ks+64}")
    A.wait_lg()
    for ks in range(16):
        for e in range(4):
            I(f"v_cvt_pk_bf16_f32 v{R+8*ks+e}, v{R+8*ks+2*e}, v{R+8*ks+2*e+1}")
    for ks in range(16):
        for c in range(3):
            acc = vr(U1 + 4 * c, 4)
            I(f"v_mfma_f32_16x16x32_bf16 {acc}, {ar(GF(c,ks),4)}, {vr(R+8*ks,4)}, {acc if ks else 0}")
    for q in range(12):
        I(f"v_mov_b32_dpp v{U1+12+q}, v{U1+q} row_ror:8 row_mask:0xf bank_mask:0xf")
    for q in range(12):
        I(f"v_cndmask_b32 v6, v{U1+12+q}, v{U1+q}, vcc")
        I(f"v_cndmask_b32 v{U1+12+q}, v{U1+q}, v{U1+12+q}, vcc")
        I(f"v_mov_b32 v{U1+q}, v6")

L_XCH = 131072
L_RS = L_MISC
def phaseD():
    I(f"s_lshl_b32 s{sT0}, s{sGrp}, 8")
    I(f"s_add_u32 s{sT0}, s{sT0}, {WS_FX}")
    I(f"v_lshlrev_b32 v5, 2, v{vL}")
    I(f"v_add_u32 v5, s{sT0}, v5")
    A.barrier()
    poll_flags(5, 6)
    I(f"v_lshlrev_b32 v5, 4, v{vL}")
    I(f"s_lshl_b32 s{sT0}, s{sGrp}, 3")
    I(f"s_lshl_b32 s{sT1}, s{sW}, 1")
    I(f"s_add_u32 s{sT0}, s{sT0}, s{sT1}")
    I(f"s_lshl_b32 s{sT0}, s{sT0}, 14")
    I(f"s_add_u32 s{sP0}, s{sT0}, {WS_X1P}")
    I(f"s_lshl_b32 s{sP1}, s{sW}, 11")
    ids = []
    for ks in range(16):
        for r in range(2):
            I(f"s_add_u32 m0, s{sP1}, {ks*8192 + r*1024}")
            I(f"s_add_u32 s{sT0}, s{sP0}, {r*16384 + ks*1024}")
            last = I(f"buffer_load_dwordx4 v5, {S(SWS)}, s{sT0} offen sc1 lds")
        ids.append(last)
    SR = 32
    I(f"v_and_b32 v6, 127, v{vTid}")
    I(f"s_lshl_b32 s{sT0}, s{sGrp}, 13")
    I(f"s_add_u32 s{sT0}, s{sT0}, {WS_STAT}")
    I(f"v_lshlrev_b32 v7, 6, v6")
    for q in range(4):
        sid = I(f"buffer_load_dwordx4 {vr(SR+4*q,4)}, v7, {S(SWS)}, s{sT0} offen offset:{16*q} sc1")
    I(f"s_and_b32 s{sT1}, s{sW}, 1")
    I(f"s_lshl_b32 s{sT1}, s{sT1}, 12")
    I(f"v_add_u32 v8, s{sT1}, v5")
    I(f"v_xor_b32 v9, 4096, v8")
    I(f"v_add_u32 v10, 65536, v8")
    I(f"v_add_u32 v11, 65536, v9")
    DA = 128
    AF = 64
    def rd(ks):
        b = AF + (ks & 1) * 32
        out = []
        for sl in range(8):
            base = (8 if sl < 4 else 9) + (2 if ks >= 8 else 0)
            out.append(I(f"ds_read_b128 {vr(b+4*sl,4)}, v{base} offset:{(ks&7)*8192 + (sl&3)*1024}"))
        return out
    A.wait_vm(ids[3]); A.barrier()
    cur = rd(0)
    for ks in range(16):
        if ks + 1 < 16:
            if (ks + 1) % 4 == 0:
                A.wait_vm(ids[ks + 4]); I("s_barrier")
            nxt = rd(ks + 1)
        b = AF + (ks & 1) * 32
        for sl in range(8):
            A.wait_lg(cur[sl])
            for c in range(3):
                acc = vr(DA + (c * 8 + sl) * 4, 4)
                I(f"v_mfma_f32_16x16x32_bf16 {acc}, {ar(GF(c,ks),4)}, {vr(b+4*sl,4)}, {acc if ks else 0}")
        cur = nxt
    A.wait_vm(sid)
    I(f"v_add_f32 v48, v{SR}, v{SR+2}")
    for q in range(2, 8):
        I(f"v_add_f32 v48, v48, v{SR+2*q}")
    I(f"v_mul_f32 v49, 0xbe000000, v48")
    I(f"v_add_f32 v50, v{SR+1}, v{SR+3}")
    for q in range(2, 8):
        I(f"v_add_f32 v50, v50, v{SR+2*q+1}")
    for q in range(8):
        I(f"v_add_f32 v51, v{SR+2*q}, v49")
        I(f"v_mul_f32 v51, v51, v51")
        I(f"v_fmac_f32 v50, 0x3c800000, v51")
    I("v_mov_b32 v51, 0x3727c5ac")
    I("v_fmac_f32 v51, 0x3b000000, v50")
    I("v_rsq_f32 v50, v51")
    I("v_mul_f32 v51, 0xbb000000, v48")
    I("v_mul_f32 v51, v51, v50")
    I(f"v_lshlrev_b32 v6, 3, v6")
    I(f"v_add_u32 v6, {L_RS}, v6")
    I(f"ds_write_b64 v6, v[50:51]")
    A.barrier()
    I(f"s_lshr_b32 s{sT1}, s{sT1}, 3")
    I(f"v_lshlrev_b32 v6, 3, v{vT}")
    I(f"v_add_u32 v6, s{sT1}, v6")
    I(f"v_add_u32 v6, {L_RS}, v6")
    I(f"v_xor_b32 v7, 512, v6")
    RS = 32
    for sl in range(8):
        I(f"ds_read_b64 {vr(RS+2*sl,2)}, v{6 if sl < 4 else 7} offset:{(sl&3)*128}")
    A.wait_lg()
    for c in (2, 0, 1):
        for sl in range(8):
            a = DA + (c * 8 + sl) * 4
            for e in (0, 2):
                I(f"v_pk_fma_f32 v[48:49], {vr(U1+4*c+e,2)}, {vr(RS+2*sl,2)}, {vr(U1+12+4*c+e,2)} op_sel:[0,1,0] op_sel_hi:[1,1,1]")
                I(f"v_pk_fma_f32 {vr(a+e,2)}, {vr(a+e,2)}, {vr(RS+2*sl,2)}, v[48:49] op_sel_hi:[1,0,1]")
        if c == 2:
            I(f"v_add_u32 v12, s{sW4096}, v5")
            I(f"v_add_u32 v12, {L_XCH}, v12")
            for sl in range(4, 8):
                I(f"ds_write_b128 v12, {vr(DA+(16+sl)*4,4)} offset:{(sl-4)*1024}")
    A.barrier()
    I(f"v_xor_b32 v12, 4096, v12")
    for sl in range(4):
        I(f"ds_read_b128 {vr(DA+(20+sl)*4,4)}, v12 offset:{sl*1024}")
    def hh_pack(dst, ga, ua):
        for e in (0, 2):
            I(f"v_pk_mul_f32 {vr(ga+e,2)}, {vr(ga+e,2)}, {vr(ua+e,2)}")
        I(f"v_cvt_pk_bf16_f32 v{dst}, v{ga}, v{ga+1}")
        I(f"v_cvt_pk_bf16_f32 v{dst+1}, v{ga+2}, v{ga+3}")
    I(f"v_and_b32 v13, 1, v{vG}")
    I(f"v_mul_u32_u24 v13, {43*1024}, v13")
    I(f"v_lshrrev_b32 v14, 1, v{vG}")
    I(f"v_lshl_add_u32 v13, v14, 8, v13")
    I(f"v_lshl_add_u32 v13, v{vT}, 4, v13")
    def ft_base(dst, tile_s):
        I(f"s_add_u32 s{dst}, s{sFt0}, s{tile_s}")
        I(f"s_lshl_b32 s{dst}, s{dst}, 9")
        I(f"s_mul_i32 s{sT0}, s{sGrp}, {8*43*1024}")
        I(f"s_add_u32 s{dst}, s{dst}, s{sT0}")
        I(f"s_add_u32 s{dst}, s{dst}, {WS_HH}")
    ft_base(sP0, sP2); ft_base(sP1, sP3)
    I(f"s_and_b32 s{sT1}, s{sW}, 1")
    I(f"s_mul_i32 s{sT1}, s{sT1}, {4*43*1024}")
    I(f"s_xor_b32 s{sT2}, s{sT1}, {4*43*1024}")
    H = 64
    def store_pair(k, slot, base_s, ga0, ua0, ga1, ua1):
        d = H + 4 * k
        hh_pack(d, ga0, ua0)
        hh_pack(d + 2, ga1, ua1)
        I(f"v_permlane16_swap_b32 v{d}, v{d+2}")
        I(f"v_permlane16_swap_b32 v{d+1}, v{d+3}")
        I(f"s_add_u32 s{sT0}, s{base_s}, s{sT1 if slot < 4 else sT2}")
        I(f"s_add_u32 s{sT0}, s{sT0}, {(slot&3)*43*1024}")
        I(f"buffer_store_dwordx4 {vr(d,4)}, v13, {S(SWS)}, s{sT0} offen sc1")
    for k, sl in enumerate(range(0, 8, 2)):
        store_pair(k, sl, sP0, DA + sl * 4, DA + (8 + sl) * 4, DA + (sl + 1) * 4, DA + (9 + sl) * 4)
    A.wait_lg()
    for k, sl in enumerate(range(0, 4, 2)):
        store_pair(4 + k, sl, sP1, DA + (16 + sl) * 4, DA + (20 + sl) * 4, DA + (17 + sl) * 4, DA + (21 + sl) * 4)
    I(f"s_lshl_b32 s{sT0}, s{sGrp}, 6")
    I(f"s_lshl_b32 s{sT1}, s{sM}, 2")
    I(f"s_add_u32 s{sT0}, s{sT0}, s{sT1}")
    I(f"s_add_u32 s{sT0}, s{sT0}, s{sW}")
    I(f"s_lshl_b32 s{sT0}, s{sT0}, 2")
    I(f"s_add_u32 s{sT0}, s{sT0}, {WS_FH}")
    set_flag(sT0)

def DF(j, c): return (j * 4 + c) * 4
def wd_stage():
    A.barrier()
    I(f"v_lshrrev_b32 v5, 3, v{vL}")
    I(f"v_bfe_u32 v6, v{vL}, 4, 1")
    I(f"v_bfe_u32 v7, v{vL}, 1, 2")
    I(f"v_xor_b32 v7, v7, v6")
    I(f"v_and_b32 v8, 1, v{vL}")
    I(f"v_lshlrev_b32 v8, 4, v8")
    I(f"v_lshl_add_u32 v8, v7, 5, v8")
    I(f"v_lshl_add_u32 v12, v5, 10, v8")
    I(f"v_xor_b32 v13, 64, v12")
    I(f"s_mul_i32 s{sP0}, s{sW}, {352*1024}")
    I(f"s_lshl_b32 s{sT2}, s{sCt}, 7")
    I(f"s_add_u32 s{sP0}, s{sP0}, s{sT2}")
    I(f"s_lshl_b32 s{sP1}, s{sW}, 15")
    I(f"v_bfe_u32 v5, v{vL}, 2, 2")
    I(f"v_lshl_add_u32 v5, v{vG}, 3, v5")
    I(f"v_lshlrev_b32 v5, 7, v5")
    I(f"v_bfe_u32 v6, v{vL}, 3, 2")
    I(f"v_lshl_add_u32 v5, v6, 5, v5")
    I(f"v_and_b32 v6, 3, v{vL}")
    I(f"v_lshl_add_u32 v5, v6, 3, v5")
    I(f"v_add_u32 v5, s{sP1}, v5")
    for c in range(4):
        I(f"v_xor_b32 v{8+c}, {c*32}, v5")
    def dma(j, slot):
        for i in range(4):
            I(f"s_add_u32 m0, s{sP1}, {slot*4096 + i*1024}")
            I(f"s_add_u32 s{sT0}, s{sP0}, {(j*32 + i*8)*1024}")
            last = I(f"buffer_load_dwordx4 v{13 if i & 1 else 12}, {S(SWD)}, s{sT0} offen lds")
        return last
    def tr(j, slot):
        for c in range(4):
            f = DF(j, c)
            I(f"ds_read_b64_tr_b16 {ar(f,2)}, v{8+c} offset:{slot*4096}")
            I(f"ds_read_b64_tr_b16 {ar(f+2,2)}, v{8+c} offset:{slot*4096+512}")
    ids = [dma(j, j) for j in range(8)]
    for j in range(11):
        A.wait_vm(ids[j]); tr(j, j % 8)
        if j < 3:
            A.wait_lg()
            ids.append(dma(8 + j, j))
    A.wait_lg()

def phaseE():
    I(f"s_lshl_b32 s{sT0}, s{sGrp}, 8")
    I(f"s_add_u32 s{sT0}, s{sT0}, {WS_FH}")
    I(f"v_lshlrev_b32 v5, 2, v{vL}")
    I(f"v_add_u32 v5, s{sT0}, v5")
    poll_flags(5, 6)
    I(f"v_lshlrev_b32 v5, 4, v{vL}")
    I(f"s_mul_i32 s{sP0}, s{sRb}, {4*43*1024}")
    I(f"s_mul_i32 s{sT1}, s{sW}, {11*1024}")
    I(f"s_add_u32 s{sP0}, s{sP0}, s{sT1}")
    I(f"s_add_u32 s{sP0}, s{sP0}, {WS_HH}")
    I(f"s_cmp_eq_u32 s{sW}, 3")
    I(f"s_cselect_b32 s{sP1}, 1024, 0")
    I(f"s_sub_u32 s{sP1}, s{sP0}, s{sP1}")
    EA = 32
    CA = 128
    DEPTH = 6
    def ld(j):
        out = []
        for rt in range(4):
            I(f"s_add_u32 s{sT0}, s{sP1 if j == 10 else sP0}, {rt*43*1024 + j*1024}")
            out.append(I(f"buffer_load_dwordx4 {vr(EA+((j%DEPTH)*4+rt)*4,4)}, v5, {S(SWS)}, s{sT0} offen sc1"))
        return out
    ids = [ld(j) for j in range(DEPTH - 1)]
    for j in range(11):
        if j + DEPTH - 1 < 11: ids.append(ld(j + DEPTH - 1))
        for rt in range(4):
            A.wait_vm(ids[j][rt])
            for c in range(4):
                acc = vr(CA + (c * 4 + rt) * 4, 4)
                I(f"v_mfma_f32_16x16x32_bf16 {acc}, {ar(DF(j,c),4)}, {vr(EA+((j%DEPTH)*4+rt)*4,4)}, {acc if j else 0}")
    O = 32
    reduce_scatter(CA, O)
    GB = 160
    I(f"s_lshl_b32 s{sT1}, s{sCt}, 8")
    I(f"v_lshlrev_b32 v8, 4, v{vG}")
    I(f"v_add_u32 v8, s{sT1}, v8")
    I(f"v_add_u32 v8, {L_MODV}, v8")
    for c in range(4):
        I(f"ds_read_b128 {vr(GB+4*c,4)}, v8 offset:{10240 + 64*c}")
    XF = 176
    for q in range(8):
        I(f"v_lshlrev_b32 v{XF+2*q}, 16, v{X1K+q}")
        I(f"v_and_b32 v{XF+2*q+1}, s{sHi}, v{X1K+q}")
    A.wait_lg()
    for q in range(0, 16, 2):
        I(f"v_pk_fma_f32 {vr(O+q,2)}, {vr(O+q,2)}, {vr(GB+q,2)}, {vr(XF+q,2)}")
    for q in range(8):
        I(f"v_cvt_pk_bf16_f32 v{XF+q}, v{O+2*q}, v{O+2*q+1}")
    for p in range(2):
        I(f"v_permlane16_swap_b32 v{XF+4*p}, v{XF+4*p+2}")
        I(f"v_permlane16_swap_b32 v{XF+4*p+1}, v{XF+4*p+3}")
    I(f"s_lshl_b32 s{sT0}, s{sRb}, 6")
    I(f"s_lshl_b32 s{sT1}, s{sW}, 4")
    I(f"s_add_u32 s{sT0}, s{sT0}, s{sT1}")
    I(f"v_add_u32 v10, s{sT0}, v{vT}")
    I(f"v_lshlrev_b32 v10, 10, v10")
    I(f"v_and_b32 v6, 1, v{vG}")
    I(f"v_lshl_add_u32 v10, v6, 5, v10")
    I(f"v_lshrrev_b32 v6, 1, v{vG}")
    I(f"v_lshl_add_u32 v10, v6, 4, v10")
    I(f"s_lshl_b32 s{sT1}, s{sCt}, 7")
    I(f"buffer_store_dwordx4 {vr(XF,4)}, v10, {S(SOUT)}, s{sT1} offen")
    I(f"buffer_store_dwordx4 {vr(XF+4,4)}, v10, {S(SOUT)}, s{sT1} offen offset:64")

def write_epoch():
    I(f"s_lshl_b32 s{sT0}, s2, 8")
    I(f"v_or_b32 v5, s{sT0}, v{vTid}")
    I(f"v_cmp_eq_u32 vcc, 0, v5")
    I(f"v_mov_b32 v6, {OOB}")
    I(f"v_cndmask_b32 v6, v6, {WS_EPOCH}, vcc")
    I(f"buffer_store_dword v{vTag}, v6, {S(SWS)}, 0 offen")

def body():
    prologue()
    stamp()
    aids = phaseA_issue()
    xids = x_issue()
    wq_addr()
    phaseA_compute(aids)
    stamp()
    pid = wphi_issue()
    wids = [wq_dma(u) for u in range(3)]
    wq_tr_addr()
    layernorm(xids)
    stamp()
    A.wait_vm(wids[0]); A.barrier(); wq_tr(0); A.barrier()
    wids.append(wq_dma(3))
    for u in (1, 2, 3):
        A.wait_vm(wids[u]); A.barrier(); wq_tr(u)
    A.wait_lg()
    stamp()
    gather_mod()
    wphi_pack()
    stamp()
    make_h()
    stamp()
    gemmB()
    if STOP == 1:
        A.fence(16)
        dbg_dump([vr(ACC + 4 * k, 4) for k in range(12)], 0)
        return
    stamp()
    epilogueB()
    stamp()
    kv_reduce()
    stamp()
    if STOP == 2: return
    A.barrier()
    wo_stage(0)
    wgu_stage()
    stamp()
    CA = phaseC()
    stamp()
    epilogueC(CA)
    stamp()
    if STOP == 3: return
    u12()
    stamp()
    phaseD()
    stamp()
    if STOP == 4: return
    wd_stage()
    stamp()
    phaseE()
    stamp()

hdr = open(f"cdna_kernels/{NAME}.s.ref").read().split("; Override launch")[0]
A.raw(hdr.rstrip())
A.raw(f"; @launch grid=(256,1,1) block=(256,1,1) lds={LDS_BYTES}")
A.raw('.amdgcn_target "amdgcn-amd-amdhsa--gfx950"')
A.raw(".text")
A.raw(f".globl {NAME}_kernel")
A.raw(".p2align 8")
A.raw(f".type {NAME}_kernel,@function")
A.raw(f"{NAME}_kernel:")
body()
write_epoch()
finish()
A.raw('.section .rodata,"a"')
A.raw(".p2align 6")
A.raw(f".amdhsa_kernel {NAME}_kernel")
A.raw("  .amdhsa_next_free_vgpr 512")
A.raw("  .amdhsa_next_free_sgpr 102")
A.raw("  .amdhsa_accum_offset 256")
A.raw("  .amdhsa_group_segment_fixed_size 0")
A.raw("  .amdhsa_kernarg_size 104")
A.raw("  .amdhsa_user_sgpr_count 2")
A.raw("  .amdhsa_user_sgpr_kernarg_segment_ptr 1")
A.raw("  .amdhsa_system_sgpr_workgroup_id_x 1")
A.raw(".end_amdhsa_kernel")
out = sys.argv[1] if len(sys.argv) > 1 else f"cdna_kernels/{NAME}.s"
open(out, "w").write(A.text())
print("instructions:", A.ninstr, "->", out)
```

```python
import re

def vr(i, n=1):
    return f"v{i}" if n == 1 else f"v[{i}:{i+n-1}]"
def ar(i, n=1):
    return f"a{i}" if n == 1 else f"a[{i}:{i+n-1}]"
def sr(i, n=1):
    return f"s{i}" if n == 1 else f"s[{i}:{i+n-1}]"

_REG = re.compile(r"\b([vas])(?:(\d+)\b|\[(\d+):(\d+)\])")

def regs_of(tok):
    out = set()
    for m in _REG.finditer(tok):
        k = m.group(1)
        if m.group(2) is not None:
            out.add((k, int(m.group(2))))
        else:
            for i in range(int(m.group(3)), int(m.group(4)) + 1):
                out.add((k, i))
    if re.search(r"\bvcc\b", tok): out.add(("s", 106)); out.add(("s", 107))
    if re.search(r"\bexec\b", tok): out.add(("s", 126)); out.add(("s", 127))
    if re.search(r"\bm0\b", tok): out.add(("s", 124))
    return out

TRANS = ("v_exp_f32", "v_log_f32", "v_rcp_f32", "v_rsq_f32", "v_sqrt_f32", "v_sin_f32", "v_cos_f32")

class Ins:
    __slots__ = ("text", "op", "w", "r", "kind", "srcC", "srcAB", "passes", "sdata", "dpp", "states")
    def __init__(self, text):
        self.text = text
        t = text.split(";")[0].strip()
        parts = t.split(None, 1)
        self.op = op = parts[0]
        rest = parts[1] if len(parts) > 1 else ""
        ops = [o.strip() for o in re.split(r",(?![^\[]*\])", rest)] if rest else []
        self.w = set(); self.r = set(); self.srcC = set(); self.srcAB = set(); self.passes = 0
        self.sdata = set(); self.dpp = False; self.states = 1
        if op == "s_nop":
            self.kind = "nop"; self.states = int(ops[0], 0) + 1; return
        if op.startswith("v_mfma"):
            self.kind = "mfma"
            self.w = regs_of(ops[0]); self.srcAB = regs_of(ops[1]) | regs_of(ops[2]); self.srcC = regs_of(ops[3])
            self.r = self.srcAB | self.srcC
            self.passes = 8 if "32x32" in op else 4
            return
        if op.startswith("v_"):
            self.kind = "trans" if op.replace("_e32", "").replace("_e64", "") in TRANS else "valu"
            self.dpp = ("_dpp" in op) or ("row_" in rest) or ("quad_perm" in rest)
            if op.startswith("v_permlane") and "swap" in op:
                self.kind = "permlane"
                self.w = regs_of(ops[0]) | regs_of(ops[1]); self.r = set(self.w); return
            if op.startswith("v_cmp"):
                self.w = regs_of(ops[0])
                if op.startswith("v_cmpx"): self.w |= {("s", 126), ("s", 127)}
                for o in ops[1:]: self.r |= regs_of(o)
                return
            self.w = regs_of(ops[0])
            k = 1
            if op.startswith(("v_add_co", "v_sub_co", "v_addc_co", "v_subb_co", "v_subrev_co", "v_div_scale", "v_mad_u64")):
                self.w |= regs_of(ops[1]); k = 2
            for o in ops[k:]: self.r |= regs_of(o)
            if op.startswith(("v_fmac", "v_pk_fmac", "v_dot2c")) or self.dpp: self.r |= regs_of(ops[0])
            if op.startswith("v_cndmask") and len(ops) == 3: self.r |= {("s", 106), ("s", 107)}
            if op.startswith(("v_readfirstlane", "v_readlane")): self.kind = "readlane"
            return
        if op.startswith(("buffer_", "global_")):
            self.kind = "vmem"
            is_lds = bool(re.search(r"\blds\b", rest)) or "load_lds" in op
            if "load" in op and not is_lds:
                self.w = regs_of(ops[0])
                for o in ops[1:]: self.r |= regs_of(o)
                if "d16" in op: self.r |= regs_of(ops[0])
            else:
                for o in ops: self.r |= regs_of(o)
                if is_lds: self.r |= {("s", 124)}; self.kind = "vmem_lds"
                if "store" in op or "atomic" in op:
                    d = ops[0] if op.startswith("buffer_") else ops[1]
                    if ("x4" in op or "x3" in op): self.sdata = regs_of(d)
            return
        if op.startswith("ds_"):
            self.kind = "ds"
            if "read" in op or "permute" in op or "swizzle" in op:
                self.w = regs_of(ops[0])
                for o in ops[1:]: self.r |= regs_of(o)
            else:
                for o in ops: self.r |= regs_of(o)
            return
        if op.startswith("s_"):
            self.kind = "salu"
            if op.startswith(("s_cmp", "s_cbranch", "s_branch", "s_waitcnt", "s_barrier", "s_endpgm", "s_sleep", "s_setprio", "s_bitcmp")):
                for o in ops: self.r |= regs_of(o)
            else:
                if ops: self.w = regs_of(ops[0])
                for o in ops[1:]: self.r |= regs_of(o)
                if "saveexec" in op: self.w |= {("s", 126), ("s", 127)}
            return
        raise ValueError("unknown instr " + text)

def isv(x): return x[0] in "va"

def need_states(p, c):
    n = 0
    pv = p.kind in ("valu", "trans", "permlane", "readlane")
    cv = c.kind in ("valu", "trans", "permlane", "readlane")
    pw_v = {x for x in p.w if isv(x)}
    pw_s = {x for x in p.w if x[0] == "s"}
    if pv:
        if c.kind == "mfma" and (pw_v & c.r): n = max(n, 2)
        if c.kind == "permlane" and (pw_v & c.r): n = max(n, 2)
        if c.dpp and (pw_v & c.r): n = max(n, 2)
        if c.kind == "readlane" and (pw_v & c.r): n = max(n, 1)
        if p.kind == "trans" and cv and (pw_v & c.r): n = max(n, 1)
        if p.kind == "trans" and c.kind in ("vmem", "ds") and (pw_v & c.r): n = max(n, 1)
        if pw_s:
            if cv and (pw_s & c.r): n = max(n, 4 if c.kind == "readlane" else 2)
            if c.kind in ("vmem", "vmem_lds") and (pw_s & c.r): n = max(n, 5)
            if c.kind == "salu" and (pw_s & c.r): n = max(n, 1)
            if ("s", 126) in pw_s:
                if c.kind == "mfma": n = max(n, 4)
                if c.dpp: n = max(n, 5)
                if c.kind in ("readlane", "permlane"): n = max(n, 4)
    if p.kind == "mfma":
        big = {4: 8, 8: 12}[p.passes]
        if c.kind == "mfma":
            if p.w & c.srcAB: n = max(n, big)
            if (p.w & c.srcC):
                if not (p.w == c.srcC and p.passes == c.passes): n = max(n, big - 2)
            elif (p.w & c.w): n = max(n, big)
        elif c.kind in ("valu", "trans", "permlane", "readlane", "vmem", "vmem_lds", "ds"):
            if p.w & (c.r | c.w): n = max(n, big)
            if cv and (p.srcC & c.w): n = max(n, {4: 3, 8: 7}[p.passes])
    if p.kind == "salu" and ("s", 124) in p.w and c.kind == "vmem_lds": n = max(n, 1)
    if p.kind == "salu" and ("s", 126) in p.w:
        pass
    if p.kind == "vmem" and p.sdata and (p.sdata & c.w): n = max(n, 2)
    return n

class Asm:
    def __init__(self):
        self.out = []
        self.hist = []
        self.vm = []
        self.lg = []
        self.nid = 0
        self.lab = 0
        self.ninstr = 0
    def raw(self, s):
        self.out.append(s)
    def comment(self, s):
        self.out.append("    ; " + s)
    def label(self, name):
        self.out.append(name + ":")
    def newlabel(self, p="L"):
        self.lab += 1
        return f"{p}_{self.lab}"
    def I(self, text):
        ins = Ins(text)
        need = 0
        dist = 0
        for p in reversed(self.hist):
            k = need_states(p, ins)
            if k > dist: need = max(need, k - dist)
            dist += p.states
            if dist > 24: break
        while need > 0:
            k = min(need, 16)
            nop = Ins(f"s_nop {k-1}")
            self.out.append("    " + nop.text); self.hist.append(nop); need -= k
        self.out.append("    " + text)
        self.hist.append(ins)
        if len(self.hist) > 64: self.hist = self.hist[-40:]
        self.ninstr += 1
        self.nid += 1
        if ins.kind in ("vmem", "vmem_lds"): self.vm.append(self.nid)
        elif ins.kind == "ds": self.lg.append(self.nid)
        return self.nid
    def fence(self, n=16):
        self.I(f"s_nop {n-1}")
    def wait_vm(self, oid=None):
        if oid is None:
            if self.vm: self.I("s_waitcnt vmcnt(0)")
            self.vm = []
            return
        if oid not in self.vm: return
        idx = self.vm.index(oid)
        n = len(self.vm) - 1 - idx
        self.I(f"s_waitcnt vmcnt({min(n, 63)})")
        self.vm = self.vm[idx + 1:]
    def wait_lg(self, oid=None):
        if oid is None:
            if self.lg: self.I("s_waitcnt lgkmcnt(0)")
            self.lg = []
            return
        if oid not in self.lg: return
        idx = self.lg.index(oid)
        n = len(self.lg) - 1 - idx
        self.I(f"s_waitcnt lgkmcnt({min(n, 15)})")
        self.lg = self.lg[idx + 1:]
    def wait_all(self):
        self.I("s_waitcnt vmcnt(0) lgkmcnt(0)")
        self.vm = []; self.lg = []
    def barrier(self):
        self.wait_lg()
        self.I("s_barrier")
    def text(self):
        return "\n".join(self.out) + "\n"

class Rec:
    def __init__(self):
        self.ops = []
        self.grp = 0
        self._g = None
    def _add(self, op):
        self.ops.append((op, self._g))
    def I(self, text):
        ph = object()
        self._add(("I", text, ph)); return ph
    def wait_vm(self, ph=None): self._add(("wvm", ph))
    def wait_lg(self, ph=None): self._add(("wlg", ph))
    def barrier(self): self._add(("bar",))
    def wait_all(self): self._add(("wall",))
    def fence(self, n=16): self.I(f"s_nop {n-1}")
    def begin(self): self.grp += 1; self._g = self.grp
    def end(self): self._g = None
    def pad(self, cyc): self._add(("pad", cyc))

def op_cost(op):
    if op[0] == "pad": return op[1]
    if op[0] != "I": return 4
    t = op[1]
    if t.startswith("v_mfma"): return 16
    if t.startswith(("v_exp", "v_rcp", "v_rsq", "v_log")): return 8
    return 4.5

def replay_op(A, op):
    k = op[0]
    if k == "I": A.phmap[op[2]] = A.I(op[1])
    elif k == "wvm": A.wait_vm(A.phmap.get(op[1], op[1]) if op[1] is not None else None)
    elif k == "wlg": A.wait_lg(A.phmap.get(op[1], op[1]) if op[1] is not None else None)
    elif k == "bar": A.barrier()
    elif k == "wall": A.wait_all()

def merge(A, streams, spans=None):
    if not hasattr(A, "phmap"): A.phmap = {}
    n = len(streams)
    tot = [max(sum(op_cost(o) for o, _ in s.ops), 1e-9) for s in streams]
    done = [0.0] * n; pos = [0] * n
    spans = spans or [(0.0, 1.0)] * n
    def key(i):
        lo, hi = spans[i]
        return lo + (hi - lo) * done[i] / tot[i]
    while True:
        cand = [i for i in range(n) if pos[i] < len(streams[i].ops)]
        if not cand: break
        i = min(cand, key=lambda i: (key(i), i))
        s = streams[i]
        op, g = s.ops[pos[i]]
        while True:
            replay_op(A, op); done[i] += op_cost(op); pos[i] += 1
            if g is None or pos[i] >= len(s.ops) or s.ops[pos[i]][1] != g: break
            op, _ = s.ops[pos[i]]
```

```python
import sys
from asmlib import *

NAME = "adaLN_cond__linear_kernel_hedgehog__glu_gated_bilinear__prompt"
STOP = int(sys.argv[2]) if len(sys.argv) > 2 else 99
STAMP = int(sys.argv[3]) if len(sys.argv) > 3 else 0

WS_EPOCH = 0
WS_FQ = 0x80000
WS_FX = 0x88000
WS_FH = 0x90000
WS_MODF = 0x10000
WS_KVF = 0x20000
WS_STAT = 0x40000
WS_KVP = 0x100000
WS_PHIQ = 0x400000
WS_X1P = 0x800000
WS_HH = 0xA00000
WS_DBG = 0x1000000
WS_STAMP = 0x1F00000
WS_SIZE = 0x2000000
OOB = 0x7ffffff0
KVREC = 2176
K = 1024
L_MODV = 144 * K
L_MISC = 156 * K
LDS_BYTES = 160 * K
SPIN = 400000

sTag, sW, sJ = 4, 5, 6
sCtB, sRbB, sCtC, sRbC, sGrpC, sMC, sGrpD, sMD = 7, 8, 9, 10, 36, 37, 38, 39
sT0, sT1, sT2, sT3, sCnt = 11, 12, 13, 14, 15
sK, sKW, sKM = 16, 20, 24
sW4096 = 28
sP0, sP1, sP2, sP3 = 29, 30, 31, 32
sFt0, sHead, sB0 = 33, 34, 35
sTx, sTz, sB1, sB2 = 40, 41, 42, 43
SX, SWQKV, SWPHI, SWO, SWG, SWU, SWD, SC, SWMOD, SOUT, SWS = 44, 48, 52, 56, 60, 64, 68, 72, 76, 80, 84
SGU = 72
sR = 76
sSel = 88
sSelA, sSelB = 92, 93
sL, sL2, sNL, sNL2 = 94, 95, 96, 97
sHi = 98
sSelHi = 99

A = Asm(); A.phmap = {}
class Em: pass
E = Em(); E.t = A
def I(t): return E.t.I(t)
def wait_vm(x=None): E.t.wait_vm(A.phmap.get(x, x) if (E.t is A and x is not None) else x)
def wait_lg(x=None): E.t.wait_lg(A.phmap.get(x, x) if (E.t is A and x is not None) else x)
def barrier(): E.t.barrier()
def rec(fn, *a):
    r = Rec(); old = E.t; E.t = r
    ret = fn(*a)
    E.t = old
    r.ret = ret
    return r
def gbegin():
    if E.t is not A: E.t.begin()
def gend():
    if E.t is not A: E.t.end()
def pad(c):
    if E.t is not A: E.t.pad(c)

def srd(base, ptr, nbytes):
    I(f"s_mov_b32 s{base}, s{ptr}")
    I(f"s_and_b32 s{base+1}, s{ptr+1}, 0xffff")
    I(f"s_mov_b32 s{base+2}, {nbytes}")
    I(f"s_mov_b32 s{base+3}, 0x20000")
def S(b): return sr(b, 4)

vTid, vL, vG, vT, vTag, vL16 = 0, 1, 2, 3, 4, 5

stamp_idx = [0]
def stamp():
    if not STAMP: return
    n = stamp_idx[0]; stamp_idx[0] += 1
    I("s_memrealtime s[100:101]" if STAMP == 1 else "s_memtime s[100:101]")
    I("s_waitcnt lgkmcnt(0)")
    A.lg = []
    I("v_mov_b32 v6, s100")
    I(f"v_lshlrev_b32 v7, 1, v{vTid}")
    I(f"v_and_b32 v7, 0x180, v7")
    I(f"s_lshl_b32 s100, s2, 9")
    I(f"s_add_u32 s100, s100, {WS_STAMP + 4*n}")
    I(f"buffer_store_dword v6, v7, {S(SWS)}, s100 offen")

def tag4(b):
    for i in range(4):
        I(f"v_perm_b32 v{b+i}, v{b+i}, v{vTag}, s{sSel+i}")
def check4(bad, b, t0, t1, first):
    I(f"v_perm_b32 v{t0}, v{b+1}, v{b}, s{sSelA}")
    I(f"v_perm_b32 v{t1}, v{b+3}, v{b+2}, s{sSelB}")
    if first:
        I(f"v_bitop3_b32 v{bad}, v{t0}, v{t1}, v{vTag} bitop3:0x96")
    else:
        I(f"v_bitop3_b32 v{t0}, v{t0}, v{t1}, v{vTag} bitop3:0x96")
        I(f"v_or_b32 v{bad}, v{bad}, v{t0}")

def spin_loop(body, first_done=False):
    lab = A.newlabel("Lspin"); done = A.newlabel("Ldone")
    saved_vm, saved_lg = list(A.vm), list(A.lg)
    if first_done:
        I(f"s_cbranch_vccz {done}")
    I(f"s_mov_b32 s{sCnt}, 0")
    A.fence(4)
    A.label(lab)
    body()
    I(f"s_cbranch_vccz {done}")
    I(f"s_add_u32 s{sCnt}, s{sCnt}, 1")
    I(f"s_cmp_lt_u32 s{sCnt}, {SPIN}")
    I(f"s_cbranch_scc1 {lab}")
    A.label(done)
    if first_done:
        A.vm, A.lg = saved_vm, saved_lg
    A.fence(2)

def poll_flags(vaddr, vtmp):
    def body():
        I(f"buffer_load_dword v{vtmp}, v{vaddr}, {S(SWS)}, 0 offen sc1")
        I("s_waitcnt vmcnt(0)"); A.vm = []
        I(f"v_cmp_ne_u32 vcc, v{vtmp}, v{vTag}")
    spin_loop(body)

vLane0 = 23
def set_flag(soff_reg, last):
    wait_vm(last)
    I("s_barrier")
    I(f"buffer_store_dword v{vTag}, v{vLane0}, {S(SWS)}, s{soff_reg} offen sc1")

def xlane4(vals, op, mid=None):
    a, b, c, d = vals
    I(f"v_permlane32_swap_b32 v{a}, v{b}")
    I(f"v_permlane32_swap_b32 v{c}, v{d}")
    I(f"{op} v{a}, v{a}, v{b}")
    I(f"{op} v{c}, v{c}, v{d}")
    I(f"v_permlane16_swap_b32 v{a}, v{c}")
    I(f"{op} v{a}, v{a}, v{c}")
    if mid: mid(a)
    I(f"v_mov_b32 v{c}, v{a}")
    I(f"v_permlane16_swap_b32 v{a}, v{c}")
    I(f"v_mov_b32 v{b}, v{a}")
    I(f"v_mov_b32 v{d}, v{c}")
    I(f"v_permlane32_swap_b32 v{a}, v{b}")
    I(f"v_permlane32_swap_b32 v{c}, v{d}")

def xlane4x2(v1, op1, mid1, v2, op2, mid2):
    r1 = rec(xlane4, v1, op1, mid1); r2 = rec(xlane4, v2, op2, mid2)
    for (o1, _), (o2, _) in zip(r1.ops, r2.ops):
        I(o1[1]); I(o2[1])

def dbg_dump(regs, slot):
    I(f"v_lshlrev_b32 v6, 4, v{vTid}")
    for k, r in enumerate(regs):
        I(f"s_lshl_b32 s{sT0}, s2, 12")
        I(f"s_add_u32 s{sT0}, s{sT0}, {WS_DBG + (slot + k) * 256 * 4096}")
        I(f"buffer_store_dwordx4 {r}, v6, {S(SWS)}, s{sT0} offen")
    wait_vm()

def bf_round4(b, t):
    I(f"v_cvt_pk_bf16_f32 v{t}, v{b}, v{b+1}")
    I(f"v_cvt_pk_bf16_f32 v{t+1}, v{b+2}, v{b+3}")
    I(f"v_lshlrev_b32 v{b}, 16, v{t}")
    I(f"v_and_b32 v{b+1}, s{sHi}, v{t}")
    I(f"v_lshlrev_b32 v{b+2}, 16, v{t+1}")
    I(f"v_and_b32 v{b+3}, s{sHi}, v{t+1}")

def prologue():
    I("s_cmp_ge_u32 s2, 256")
    I("s_cbranch_scc1 L_end")
    I("s_load_dwordx8 s[32:39], s[0:1], 64")
    I("s_load_dwordx16 s[16:31], s[0:1], 0")
    I("s_load_dwordx2 s[40:41], s[0:1], 96")
    I("s_getpc_b64 s[100:101]")
    A.raw("L_pc:")
    I(f"v_and_b32 v{vL}, 63, v0")
    I(f"v_lshrrev_b32 v6, 6, v0")
    I(f"v_lshrrev_b32 v{vG}, 4, v{vL}")
    I(f"v_and_b32 v{vT}, 15, v0")
    I(f"v_readfirstlane_b32 s{sW}, v6")
    I(f"v_lshlrev_b32 v{vL16}, 4, v{vL}")
    I(f"s_lshr_b32 s{sJ}, s2, 3")
    I(f"s_and_b32 s3, s2, 7")
    I(f"s_sub_u32 s{sT0}, s{sJ}, 24")
    I(f"s_cmp_ge_u32 s{sJ}, 24")
    I(f"s_cselect_b32 s{sT0}, s{sT0}, s{sJ}")
    I(f"s_lshr_b32 s{sT1}, s{sT0}, 2")
    I(f"s_lshl_b32 s{sT1}, s{sT1}, 3")
    I(f"s_add_u32 s{sT1}, s{sT1}, s3")
    I(f"s_lshl_b32 s{sT1}, s{sT1}, 2")
    I(f"s_and_b32 s{sT0}, s{sT0}, 3")
    I(f"s_add_u32 s{sT3}, s{sT1}, s{sT0}")
    I(f"v_lshrrev_b32 v6, 1, v0")
    I(f"v_and_b32 v6, 31, v6")
    I(f"s_lshl_b32 s{sT0}, s{sW}, 7")
    I(f"v_add_u32 v6, s{sT0}, v6")
    I(f"v_lshlrev_b32 v7, 1, v6")
    I(f"v_mul_u32_u24 v8, 6144, v6")
    I(f"v_and_b32 v9, 1, v0")
    I(f"v_lshl_add_u32 v8, v9, 4, v8")
    I(f"s_lshl_b32 s{sT0}, s{sT3}, 5")
    I("s_waitcnt lgkmcnt(0)")
    srd(SC, 32, 1024)
    srd(SWMOD, 34, 512 * 3072 * 2)
    ids = []
    for i in range(4):
        I(f"s_add_u32 s{sT1}, s{sT0}, {i*32*6144}")
        ids.append(I(f"buffer_load_dwordx4 {vr(32+4*i,4)}, v8, {S(SWMOD)}, s{sT1} offen"))
    for i in range(4):
        ids.append(I(f"buffer_load_ushort v{48+i}, v7, {S(SC)}, 0 offen offset:{64*i}"))
    I(f"s_load_dword s{sTag}, s[40:41], {WS_EPOCH}")
    I(f"s_and_b32 s{sT0}, s{sJ}, 15")
    I(f"s_lshl_b32 s{sT0}, s{sT0}, 12")
    I(f"v_lshlrev_b32 v6, 4, v0")
    I(f"v_add_u32 v6, s{sT0}, v6")
    I(f"v_min_u32 v6, L_code_end-L_pc-16, v6")
    I(f"global_load_dwordx4 v[60:63], v6, s[100:101]")
    srd(SX, 16, 2048 * 512 * 2)
    srd(SWQKV, 18, 512 * 1536 * 2)
    srd(SWPHI, 20, 32 * 512)
    srd(SWO, 22, 512 * 512 * 2)
    srd(SWG, 26, 512 * 1376 * 2)
    srd(SWU, 28, 512 * 1376 * 2)
    srd(SWD, 30, 1376 * 512 * 2)
    srd(SOUT, 36, 2048 * 512 * 2)
    srd(SWS, 40, WS_SIZE)
    I(f"s_lshr_b32 s{sT0}, s3, 1")
    I(f"s_and_b32 s{sT1}, s3, 1")
    I(f"s_lshr_b32 s{sT2}, s{sJ}, 2")
    I(f"s_lshl_b32 s{sRbB}, s{sT0}, 3")
    I(f"s_add_u32 s{sRbB}, s{sRbB}, s{sT2}")
    I(f"s_and_b32 s{sP0}, s{sT2}, 3")
    I(f"s_and_b32 s{sT2}, s{sJ}, 3")
    I(f"s_lshl_b32 s{sCtB}, s{sT1}, 2")
    I(f"s_add_u32 s{sCtB}, s{sCtB}, s{sT2}")
    I(f"s_lshr_b32 s{sT2}, s{sJ}, 3")
    I(f"s_lshl_b32 s{sGrpD}, s{sT0}, 2")
    I(f"s_add_u32 s{sGrpD}, s{sGrpD}, s{sT2}")
    I(f"s_and_b32 s{sT2}, s{sJ}, 7")
    I(f"s_lshl_b32 s{sMD}, s{sT1}, 3")
    I(f"s_add_u32 s{sMD}, s{sMD}, s{sT2}")
    I(f"s_lshr_b32 s{sT2}, s{sJ}, 4")
    I(f"s_lshl_b32 s{sGrpC}, s3, 1")
    I(f"s_add_u32 s{sGrpC}, s{sGrpC}, s{sT2}")
    I(f"s_and_b32 s{sMC}, s{sJ}, 15")
    I(f"s_and_b32 s{sCtC}, s{sJ}, 7")
    I(f"s_lshr_b32 s{sT2}, s{sJ}, 3")
    I(f"s_lshl_b32 s{sRbC}, s3, 2")
    I(f"s_add_u32 s{sRbC}, s{sRbC}, s{sT2}")
    for u in range(4):
        I(f"s_add_u32 s{sT0}, s{sP0}, {u}")
        I(f"s_and_b32 s{sT0}, s{sT0}, 3")
        I(f"s_lshl_b32 s{sK+u}, s{sT0}, 8")
        I(f"s_mul_i32 s{sKW+u}, s{sT0}, {128*3072}")
        I(f"s_lshl_b32 s{sKM+u}, s{sT0}, 9")
    I(f"s_lshl_b32 s{sW4096}, s{sW}, 12")
    return ids

def consts():
    for i in range(4):
        I(f"s_mov_b32 s{sSel+i}, {0x07060500 | i:#x}")
    I(f"s_mov_b32 s{sSelA}, 0x0c0c0400")
    I(f"s_mov_b32 s{sSelB}, 0x04000c0c")
    I(f"s_mov_b32 s{sL}, 0x3fb8aa3b")
    I(f"s_mov_b32 s{sL2}, 0x3fb8aa3b")
    I(f"s_mov_b32 s{sNL}, 0xbfb8aa3b")
    I(f"s_mov_b32 s{sNL2}, 0xbfb8aa3b")
    I(f"s_mov_b32 s{sHi}, 0xffff0000")
    I(f"s_mov_b32 s{sSelHi}, 0x07060302")
    I(f"v_cmp_eq_u32 vcc, 0, v{vTid}")
    I(f"v_mov_b32 v{vLane0}, {OOB}")
    I(f"v_cndmask_b32 v{vLane0}, v{vLane0}, 0, vcc")

XH = 64
RAW = 192
vRow = 16
def x_issue():
    ids = {}
    I(f"s_lshl_b32 s{sT0}, s{sRbB}, 6")
    I(f"s_lshl_b32 s{sT1}, s{sW}, 4")
    I(f"s_add_u32 s{sT0}, s{sT0}, s{sT1}")
    for i in range(4):
        I(f"s_add_u32 s{sT2}, s{sJ}, {i}")
        I(f"s_and_b32 s{sT2}, s{sT2}, 3")
        I(f"s_lshl_b32 s{sT2}, s{sT2}, 2")
        I(f"v_add_u32 v{vRow+i}, s{sT2}, v{vG}")
        I(f"v_add_u32 v9, s{sT0}, v{vRow+i}")
        I(f"v_lshlrev_b32 v9, 10, v9")
        I(f"v_lshl_add_u32 v9, v{vT}, 4, v9")
        for u in range(4):
            ids[(i, u)] = I(f"buffer_load_dwordx4 {vr(RAW + (i*4+u)*4, 4)}, v9, {S(SX)}, s{sK+u} offen")
    return ids

def phaseA_compute(ids):
    wait_vm(ids[7])
    for i in range(4): I(f"v_lshlrev_b32 v{48+i}, 16, v{48+i}")
    for i in range(4): I(f"v_mul_f32 v{52+i}, s{sNL}, v{48+i}")
    for i in range(4): I(f"v_min_f32 v{52+i}, 0x42f00000, v{52+i}")
    for i in range(4): I(f"v_exp_f32 v{52+i}, v{52+i}")
    for i in range(4): I(f"v_add_f32 v{52+i}, 1.0, v{52+i}")
    for i in range(4): I(f"v_rcp_f32 v{56+i}, v{52+i}")
    for i in range(4): I(f"v_mul_f32 v{8+i}, v{48+i}, v{56+i}")
    for i in range(4): I(f"v_fma_f32 v{48+i}, -v{8+i}, v{52+i}, v{48+i}")
    for i in range(4): I(f"v_fma_f32 v{48+i}, v{48+i}, v{56+i}, v{8+i}")
    bf_round4(48, 52)
    AC = 8
    for i in range(4):
        for d in range(4):
            I(f"v_lshlrev_b32 v52, 16, v{32+4*i+d}")
            I(f"v_and_b32 v53, s{sHi}, v{32+4*i+d}")
            if i == 0:
                I(f"v_mul_f32 v{AC+2*d}, v{48+i}, v52")
                I(f"v_mul_f32 v{AC+1+2*d}, v{48+i}, v53")
            else:
                I(f"v_fmac_f32 v{AC+2*d}, v{48+i}, v52")
                I(f"v_fmac_f32 v{AC+1+2*d}, v{48+i}, v53")
    for e in range(4): I(f"v_permlane32_swap_b32 v{AC+e}, v{AC+4+e}")
    for e in range(4): I(f"v_add_f32 v{AC+e}, v{AC+e}, v{AC+4+e}")
    for e in range(2): I(f"v_permlane16_swap_b32 v{AC+e}, v{AC+2+e}")
    for e in range(2): I(f"v_add_f32 v{AC+e}, v{AC+e}, v{AC+2+e}")
    I(f"v_and_b32 v6, 1, v{vL}")
    I(f"v_lshlrev_b32 v6, 5, v6")
    I(f"v_lshl_add_u32 v6, v{vG}, 3, v6")
    for r in (8, 4, 2):
        for e in range(2):
            I(f"v_add_f32_dpp v{AC+e}, v{AC+e}, v{AC+e} row_ror:{r} row_mask:0xf bank_mask:0xf")
        if r == 8:
            I(f"s_lshl_b32 s{sT0}, s{sW}, 6")
            I(f"s_add_u32 s{sT0}, s{sT0}, {L_MISC}")
        if r == 4:
            I(f"v_add_u32 v6, s{sT0}, v6")
            I(f"v_and_b32 v7, 3, v{vL}")
    I(f"ds_write_b64 v6, {vr(AC,2)}")
    I(f"v_lshlrev_b32 v7, 4, v7")
    I(f"v_add_u32 v6, {L_MISC}, v7")
    I("s_waitcnt lgkmcnt(0)"); A.lg = []
    I("s_barrier")
    for w in range(4):
        I(f"ds_read_b128 {vr(32+4*w,4)}, v6 offset:{64*w}")
    I(f"s_add_u32 s{sTag}, s{sTag}, 0x9e3779b1")
    I(f"v_mov_b32 v{vTag}, s{sTag}")
    I(f"s_lshr_b32 s{sT0}, s{sT3}, 5")
    I(f"s_cmp_eq_u32 s{sT0}, 1")
    I(f"s_cselect_b32 s{sT1}, 1.0, 0")
    I(f"s_cmp_eq_u32 s{sT0}, 4")
    I(f"s_cselect_b32 s{sT1}, 1.0, s{sT1}")
    I(f"v_cmp_gt_u32 vcc, 4, v{vTid}")
    I(f"v_mov_b32 v6, {OOB}")
    I(f"v_cndmask_b32 v7, v6, v7, vcc")
    I(f"s_lshl_b32 s{sT0}, s{sT3}, 6")
    I(f"s_add_u32 s{sT0}, s{sT0}, {WS_MODF}")
    wait_lg()
    for e in (0, 2):
        I(f"v_pk_add_f32 {vr(32+e,2)}, {vr(32+e,2)}, {vr(36+e,2)}")
        I(f"v_pk_add_f32 {vr(40+e,2)}, {vr(40+e,2)}, {vr(44+e,2)}")
    for e in (0, 2):
        I(f"v_pk_add_f32 {vr(32+e,2)}, {vr(32+e,2)}, {vr(40+e,2)}")
    bf_round4(32, 36)
    for e in range(4): I(f"v_add_f32 v{32+e}, s{sT1}, v{32+e}")
    bf_round4(32, 36)
    tag4(32)
    I(f"buffer_store_dwordx4 v[32:35], v7, {S(SWS)}, s{sT0} offen sc1")

def rows128_voff(vb, pitch, std, extra_s=None):
    I(f"v_lshrrev_b32 v6, 3, v{vL}")
    I(f"v_bfe_u32 v7, v{vL}, 4, {1 if std else 2}")
    I(f"v_bfe_u32 v8, v{vL}, 1, 2")
    I(f"v_xor_b32 v8, v8, v7")
    I(f"v_and_b32 v9, 1, v{vL}")
    I(f"v_lshlrev_b32 v9, 4, v9")
    I(f"v_lshl_add_u32 v9, v8, 5, v9")
    I(f"v_mul_u32_u24 v6, {pitch}, v6")
    if extra_s is not None: I(f"v_add_u32 v6, s{extra_s}, v6")
    I(f"v_add_u32 v{vb}, v6, v9")
    if std:
        I(f"v_xor_b32 v9, 64, v9")
        I(f"v_add_u32 v{vb+1}, v6, v9")
        I(f"v_add_u32 v{vb+1}, {8*pitch - 1024}, v{vb+1}")
    else:
        I(f"v_add_u32 v{vb+1}, {8*pitch - 1024}, v{vb}")
    I(f"v_add_u32 v{vb+2}, {2*(8*pitch - 1024)}, v{vb}")
    I(f"v_add_u32 v{vb+3}, {2*(8*pitch - 1024)}, v{vb+1}")

def dma4(vb, srd_, m0_s, m0_imm, so_s, so_imm, flags=""):
    if E.t is not A and not hasattr(E.t, "first_dma"): E.t.first_dma = len(E.t.ops)
    I(f"s_add_u32 m0, s{m0_s}, {m0_imm}")
    I(f"s_add_u32 s{sB0}, s{so_s}, {so_imm}")
    for i in range(4):
        last = I(f"buffer_load_dwordx4 v{vb[i] if isinstance(vb, list) else vb+i}, {srd_}, s{sB0} offen offset:{i*1024}{flags} lds")
        pad(100)
    return last

vBG = 24
def KF(u, s): return (u * 4 + s) * 4
def VF(u, s): return 64 + (u * 4 + s) * 4
def QF(u, s): return 128 + (u * 4 + s) * 4
PSLOT = [0, 32 * K, 64 * K, 96 * K, 64 * K, 96 * K]
PUNITS = [[(1, 0), (2, 0)], [(1, 1), (2, 1)], [(1, 2), (2, 2)], [(1, 3), (2, 3)], [(0, 0), (0, 1)], [(0, 2), (0, 3)]]
def wq_addr():
    I(f"s_mul_i32 s{sT0}, s{sW}, {32*3072}")
    I(f"s_lshl_b32 s{sT1}, s{sCtB}, 7")
    I(f"s_add_u32 s{sT0}, s{sT0}, s{sT1}")
    rows128_voff(vBG, 3072, True, sT0)
    I(f"v_bfe_u32 v6, v{vL}, 2, 2")
    I(f"v_lshl_add_u32 v6, v{vG}, 3, v6")
    I(f"v_lshlrev_b32 v6, 7, v6")
    I(f"v_bfe_u32 v7, v{vL}, 3, 2")
    I(f"v_xor_b32 v7, s{sW}, v7")
    I(f"v_lshl_add_u32 v6, v7, 5, v6")
    I(f"v_and_b32 v7, 3, v{vL}")
    I(f"v_lshl_add_u32 v28, v7, 3, v6")
    I(f"v_add_u32 v29, {64*K}, v28")
def wq_dma(p):
    for sub, (sg, u) in enumerate(PUNITS[p]):
        last = dma4(vBG, S(SWQKV), sW4096, PSLOT[p] + sub * 16 * K, sKW + u, sg * 1024)
    return last
def wq_tr(p):
    base = 28 if PSLOT[p] < 64 * K else 29
    off = PSLOT[p] % (64 * K)
    for sub, (sg, u) in enumerate(PUNITS[p]):
        for s in range(4):
            f = (QF, KF, VF)[sg](u, s)
            I(f"ds_read_b64_tr_b16 {ar(f,2)}, v{base} offset:{off + sub*16*K + s*4096}")
            I(f"ds_read_b64_tr_b16 {ar(f+2,2)}, v{base} offset:{off + sub*16*K + s*4096 + 512}")

def layernorm(xids):
    for i in range(4):
        wait_vm(xids[(i, 3)])
        xb = XH + i * 32
        for q in range(16):
            I(f"v_lshlrev_b32 v{xb+2*q}, 16, v{RAW+i*16+q}")
            I(f"v_and_b32 v{xb+2*q+1}, s{sHi}, v{RAW+i*16+q}")
        I(f"v_pk_add_f32 v[32:33], {vr(xb,2)}, {vr(xb+2,2)}")
        I(f"v_pk_add_f32 v[34:35], {vr(xb+4,2)}, {vr(xb+6,2)}")
        for q in range(4, 16, 2):
            I(f"v_pk_add_f32 v[32:33], v[32:33], {vr(xb+2*q,2)}")
            I(f"v_pk_add_f32 v[34:35], v[34:35], {vr(xb+2*q+2,2)}")
        I("v_pk_add_f32 v[32:33], v[32:33], v[34:35]")
        I("v_add_f32 v32, v32, v33")
        for r in (8, 4, 2, 1):
            I(f"v_add_f32_dpp v32, v32, v32 row_ror:{r} row_mask:0xf bank_mask:0xf")
        I("v_mul_f32 v32, 0xbb000000, v32")
        for q in range(16):
            I(f"v_pk_add_f32 {vr(xb+2*q,2)}, {vr(xb+2*q,2)}, v[32:33] op_sel_hi:[1,0]")
        I(f"v_pk_mul_f32 v[34:35], {vr(xb,2)}, {vr(xb,2)}")
        I(f"v_pk_mul_f32 v[36:37], {vr(xb+2,2)}, {vr(xb+2,2)}")
        for q in range(2, 16, 2):
            I(f"v_pk_fma_f32 v[34:35], {vr(xb+2*q,2)}, {vr(xb+2*q,2)}, v[34:35]")
            I(f"v_pk_fma_f32 v[36:37], {vr(xb+2*q+2,2)}, {vr(xb+2*q+2,2)}, v[36:37]")
        I("v_pk_add_f32 v[34:35], v[34:35], v[36:37]")
        I("v_add_f32 v34, v34, v35")
        for r in (8, 4, 2, 1):
            I(f"v_add_f32_dpp v34, v34, v34 row_ror:{r} row_mask:0xf bank_mask:0xf")
        I("v_mov_b32 v35, 0x3727c5ac")
        I("v_fmac_f32 v35, 0x3b000000, v34")
        I("v_rsq_f32 v34, v35")
        for q in range(16):
            I(f"v_pk_mul_f32 {vr(xb+2*q,2)}, {vr(xb+2*q,2)}, v[34:35] op_sel_hi:[1,0]")

def gather_mod(sets, G0, pre=None):
    I(f"v_lshlrev_b32 v6, 4, v{vTid}")
    I(f"v_add_u32 v7, {WS_MODF}, v6")
    def loads():
        out = None
        for k, n in enumerate(sets):
            I(f"s_mov_b32 s{sT0}, {n*4096}")
            out = I(f"buffer_load_dwordx4 {vr(G0+4*k,4)}, v7, {S(SWS)}, s{sT0} offen sc1")
        return out
    def checks():
        for k in range(len(sets)):
            check4(8, G0 + 4 * k, 9, 10, k == 0)
        I("v_cmp_ne_u32 vcc, 0, v8")
    last = loads()
    if pre: pre()
    wait_vm(last)
    checks()
    def body():
        loads(); I("s_waitcnt vmcnt(0)"); A.vm = []; checks()
    spin_loop(body, first_done=True)
    I(f"v_add_u32 v6, {L_MODV}, v6")
    for k, n in enumerate(sets):
        for e in range(4):
            I(f"v_and_b32 v{G0+4*k+e}, s{sHi}, v{G0+4*k+e}")
        I(f"ds_write_b128 v6, {vr(G0+4*k,4)} offset:{n*4096}")

def h_addr():
    for i in range(4):
        I(f"v_xor_b32 v6, v{vT}, v{vRow+i}")
        I(f"v_lshlrev_b32 v6, 4, v6")
        I(f"v_lshl_add_u32 v6, v{vRow+i}, 8, v6")
        I(f"v_add_u32 v{vRow+i}, s{sW4096}, v6")
    I(f"v_lshlrev_b32 v20, 5, v{vT}")
    I(f"v_add_u32 v20, {L_MODV}, v20")
    for s in range(4):
        I(f"v_add_u32 v6, {4*s}, v{vG}")
        I(f"v_xor_b32 v6, v6, v{vT}")
        I(f"v_lshlrev_b32 v6, 4, v6")
        I(f"v_lshl_add_u32 v{12+s}, v{vT}, 8, v6")

def make_h(u, pk):
    I(f"v_add_u32 v6, s{sKM+u}, v20")
    I(f"ds_read_b128 v[240:243], v6 offset:2048")
    I(f"ds_read_b128 v[244:247], v6 offset:2064")
    I(f"ds_read_b128 v[248:251], v6")
    x = I(f"ds_read_b128 v[252:255], v6 offset:16")
    pad(120)
    wait_lg(x)
    for i in range(4):
        b = XH + (i * 4 + u) * 8
        if pk:
            for e in range(0, 8, 2):
                I(f"v_pk_fma_f32 {vr(b+e,2)}, {vr(b+e,2)}, {vr(240+e,2)}, {vr(248+e,2)}")
        else:
            for e in range(8):
                I(f"v_fma_f32 v{b+e}, v{b+e}, v{240+e}, v{248+e}")
        for e in range(4):
            I(f"v_cvt_pk_bf16_f32 v{b+e}, v{b+2*e}, v{b+2*e+1}")
        I(f"ds_write_b128 v{vRow+i}, {vr(b,4)} offset:{u*16*K}")

ACC = 192
def accK(rt): return ACC + rt * 4
def accV(rt): return ACC + 16 + rt * 4
def accQ(rt): return ACC + 32 + rt * 4
def a_rd(k, rt):
    u, s = k >> 2, k & 3
    b = 32 + (k & 1) * 16 + 4 * rt
    return I(f"ds_read_b128 {vr(b,4)}, v{12+s} offset:{u*16*K + rt*4096}")

def gemm_kv_chunk(u, cur):
    for s in range(4):
        k = 4 * u + s
        nxt = []
        for rt in range(4):
            if s < 3: nxt.append(a_rd(k + 1, rt))
            wait_lg(cur[rt])
            h = vr(32 + (k & 1) * 16 + 4 * rt, 4)
            I(f"v_mfma_f32_16x16x32_bf16 {vr(accK(rt),4)}, {ar(KF(u,s),4)}, {h}, {vr(accK(rt),4) if k else 0}")
            I(f"v_mfma_f32_16x16x32_bf16 {vr(accV(rt),4)}, {h}, {ar(VF(u,s),4)}, {vr(accV(rt),4) if k else 0}")
        cur = nxt

def gemm_q():
    cur = [a_rd(0, rt) for rt in range(4)]
    for k in range(16):
        nxt = []
        for rt in range(4):
            if k < 15: nxt.append(a_rd(k + 1, rt))
            if rt % 2 == 0: wait_lg(cur[rt + 1])
            h = vr(32 + (k & 1) * 16 + 4 * rt, 4)
            I(f"v_mfma_f32_16x16x32_bf16 {vr(accQ(rt),4)}, {ar(QF(k>>2,k&3),4)}, {h}, {vr(accQ(rt),4) if k else 0}")
        cur = nxt

vPHI = 22
def wphi_issue():
    I(f"s_lshl_b32 s{sHead}, s{sCtB}, 2")
    I(f"s_add_u32 s{sHead}, s{sHead}, s{sW}")
    I(f"s_lshl_b32 s{sT0}, s{sHead}, 9")
    I(f"v_lshlrev_b32 v6, 7, v{vG}")
    I(f"v_lshl_add_u32 v6, v{vT}, 1, v6")
    for j in range(4):
        last = I(f"buffer_load_ushort v{(21, 22, 30, 31)[j]}, v6, {S(SWPHI)}, s{sT0} offen offset:{32*j}")
    return last
def wphi_pack():
    I(f"v_lshl_or_b32 v21, v22, 16, v21")
    I(f"v_lshl_or_b32 v22, v31, 16, v30")
def wphi_final():
    I("v_mov_b32 v20, v21")
    I("v_mov_b32 v21, v22")

def softmax(acc, OUT):
    P = 64; EP = 80; EN = 96; XB = 112
    ST = [120, 122, 124, 126]; SN = [128, 130, 132, 134]
    for rt in range(4):
        I(f"v_cvt_pk_bf16_f32 v{XB+2*rt}, v{acc(rt)}, v{acc(rt)+1}")
        I(f"v_cvt_pk_bf16_f32 v{XB+2*rt+1}, v{acc(rt)+2}, v{acc(rt)+3}")
    for rt in range(4):
        I(f"v_mfma_f32_16x16x16_bf16 {vr(P+4*rt,4)}, v[20:21], {vr(XB+2*rt,2)}, 0")
    for rt in range(4):
        p = P + 4 * rt
        I(f"v_max3_f32 v{ST[rt]}, v{p}, v{p+1}, v{p+2}")
        I(f"v_min3_f32 v{SN[rt]}, v{p}, v{p+1}, v{p+2}")
        I(f"v_max_f32 v{ST[rt]}, v{ST[rt]}, v{p+3}")
        I(f"v_min_f32 v{SN[rt]}, v{SN[rt]}, v{p+3}")
    xlane4x2(ST, "v_max_f32", lambda r: I(f"v_mul_f32 v{r}, s{sNL}, v{r}"),
             SN, "v_min_f32", lambda r: I(f"v_mul_f32 v{r}, s{sL}, v{r}"))
    for rt in range(4):
        for e in (0, 2):
            I(f"v_pk_fma_f32 {vr(EP+4*rt+e,2)}, {vr(P+4*rt+e,2)}, {sr(sL,2)}, {vr(ST[rt],2)} op_sel_hi:[1,1,0]")
            I(f"v_pk_fma_f32 {vr(EN+4*rt+e,2)}, {vr(P+4*rt+e,2)}, {sr(sNL,2)}, {vr(SN[rt],2)} op_sel_hi:[1,1,0]")
    for q in range(16):
        I(f"v_exp_f32 v{EP+q}, v{EP+q}")
        I(f"v_exp_f32 v{EN+q}, v{EN+q}")
    for rt in range(4):
        I(f"v_pk_add_f32 {vr(ST[rt],2)}, {vr(EP+4*rt,2)}, {vr(EP+4*rt+2,2)}")
        I(f"v_pk_add_f32 {vr(SN[rt],2)}, {vr(EN+4*rt,2)}, {vr(EN+4*rt+2,2)}")
    for rt in range(4):
        I(f"v_add_f32 v{ST[rt]}, v{ST[rt]}, v{ST[rt]+1}")
        I(f"v_add_f32 v{SN[rt]}, v{SN[rt]}, v{SN[rt]+1}")
    xlane4x2(ST, "v_add_f32", lambda r: I(f"v_rcp_f32 v{r}, v{r}"),
             SN, "v_add_f32", lambda r: I(f"v_rcp_f32 v{r}, v{r}"))
    for rt in range(4):
        for e in (0, 2):
            I(f"v_pk_mul_f32 {vr(EP+4*rt+e,2)}, {vr(EP+4*rt+e,2)}, {vr(ST[rt],2)} op_sel_hi:[1,0]")
            I(f"v_pk_mul_f32 {vr(EN+4*rt+e,2)}, {vr(EN+4*rt+e,2)}, {vr(SN[rt],2)} op_sel_hi:[1,0]")
    for rt in range(4):
        I(f"v_cvt_pk_bf16_f32 v{OUT+4*rt}, v{EP+4*rt}, v{EP+4*rt+1}")
        I(f"v_cvt_pk_bf16_f32 v{OUT+4*rt+1}, v{EP+4*rt+2}, v{EP+4*rt+3}")
        I(f"v_cvt_pk_bf16_f32 v{OUT+4*rt+2}, v{EN+4*rt}, v{EN+4*rt+1}")
        I(f"v_cvt_pk_bf16_f32 v{OUT+4*rt+3}, v{EN+4*rt+2}, v{EN+4*rt+3}")

L_PT = 128 * K
def epi_k():
    PK = 144; VFR = 160; ONES = 168
    I(f"v_lshlrev_b32 v8, 6, v{vT}")
    I(f"v_lshl_add_u32 v8, v{vG}, 3, v8")
    I(f"s_add_u32 s{sT1}, s{sW4096}, {L_PT}")
    I(f"v_add_u32 v8, s{sT1}, v8")
    I(f"v_lshrrev_b32 v9, 2, v{vL}")
    I(f"v_lshlrev_b32 v9, 6, v9")
    I(f"v_and_b32 v10, 3, v{vL}")
    I(f"v_lshl_add_u32 v9, v10, 3, v9")
    I(f"v_add_u32 v9, s{sT1}, v9")
    for e in range(4): I(f"v_mov_b32 v{ONES+e}, 0x3f803f80")
    softmax(accK, PK)
    for rt in range(4):
        I(f"ds_write_b64 v8, {vr(PK+4*rt,2)} offset:{rt*1024}")
        I(f"ds_write_b64 v8, {vr(PK+4*rt+2,2)} offset:{rt*1024+32}")
    for kp in range(2):
        for hh in range(2):
            a = accV(2 * kp + hh)
            I(f"v_cvt_pk_bf16_f32 v{VFR+4*kp+2*hh}, v{a}, v{a+1}")
            I(f"v_cvt_pk_bf16_f32 v{VFR+4*kp+2*hh+1}, v{a+2}, v{a+3}")
    PT = 64
    for T in range(2):
        for kp in range(2):
            f = PT + (T * 2 + kp) * 4
            I(f"ds_read_b64_tr_b16 {vr(f,2)}, v9 offset:{kp*2048 + T*32}")
            x = I(f"ds_read_b64_tr_b16 {vr(f+2,2)}, v9 offset:{kp*2048 + 1024 + T*32}")
    I(f"s_lshl_b32 s{sT0}, s{sHead}, 5")
    I(f"s_add_u32 s{sT0}, s{sT0}, s{sRbB}")
    I(f"s_mul_i32 s{sT0}, s{sT0}, {KVREC}")
    I(f"s_add_u32 s{sT0}, s{sT0}, {WS_KVP}")
    I(f"v_lshlrev_b32 v8, 5, v{vG}")
    I(f"v_lshl_add_u32 v8, v{vT}, 4, v8")
    I(f"v_mov_b32 v9, {OOB}")
    I(f"v_cmp_gt_u32 vcc, 2, v{vT}")
    I(f"v_cndmask_b32 v8, v9, v8, vcc")
    I(f"v_cmp_eq_u32 vcc, 1, v{vT}")
    wait_lg(x)
    KV = 172; Z = 180
    for kp in range(2):
        for T in range(2):
            f = vr(PT + (T * 2 + kp) * 4, 4)
            I(f"v_mfma_f32_16x16x32_bf16 {vr(KV+4*T,4)}, {f}, {vr(VFR+4*kp,4)}, {vr(KV+4*T,4) if kp else 0}")
    for kp in range(2):
        for T in range(2):
            f = vr(PT + (T * 2 + kp) * 4, 4)
            I(f"v_mfma_f32_16x16x32_bf16 {vr(Z+4*T,4)}, {f}, {vr(ONES,4)}, {vr(Z+4*T,4) if kp else 0}")
    tag4(KV); tag4(KV + 4)
    I(f"buffer_store_dwordx4 {vr(KV,4)}, v{vL16}, {S(SWS)}, s{sT0} offen sc1")
    I(f"buffer_store_dwordx4 {vr(KV+4,4)}, v{vL16}, {S(SWS)}, s{sT0} offen offset:1024 sc1")
    for e in range(4):
        I(f"v_cndmask_b32 v{Z+e}, v{Z+e}, v{Z+4+e}, vcc")
    tag4(Z)
    I(f"buffer_store_dwordx4 {vr(Z,4)}, v8, {S(SWS)}, s{sT0} offen offset:2048 sc1")

def epi_q():
    PQ = 144
    I(f"s_lshl_b32 s{sT0}, s{sRbB}, 7")
    I(f"s_add_u32 s{sT0}, s{sT0}, s{sHead}")
    I(f"s_lshl_b32 s{sT0}, s{sT0}, 10")
    I(f"s_add_u32 s{sT0}, s{sT0}, {WS_PHIQ}")
    I(f"s_lshl_b32 s{sT1}, s{sRbB}, 3")
    I(f"s_add_u32 s{sT1}, s{sT1}, s{sCtB}")
    I(f"s_lshl_b32 s{sT1}, s{sT1}, 7")
    I(f"s_add_u32 s{sT1}, s{sT1}, {WS_FQ}")
    softmax(accQ, PQ)
    for rt in range(4):
        last = I(f"buffer_store_dwordx4 {vr(PQ+4*rt,4)}, v{vL16}, {S(SWS)}, s{sT0} offen sc1")
        if rt < 3: I(f"s_add_u32 s{sT0}, s{sT0}, 32768")
    return last

def gemm_kv(k0, k1, cur):
    for k in range(k0, k1):
        u, s = k >> 2, k & 3
        nxt = []
        for rt in range(4):
            if k < 15: nxt.append(a_rd(k + 1, rt))
            if rt % 2 == 0: wait_lg(cur[rt + 1])
            h = vr(32 + (k & 1) * 16 + 4 * rt, 4)
            I(f"v_mfma_f32_16x16x32_bf16 {vr(accK(rt),4)}, {ar(KF(u,s),4)}, {h}, {vr(accK(rt),4) if k else 0}")
            I(f"v_mfma_f32_16x16x32_bf16 {vr(accV(rt),4)}, {h}, {ar(VF(u,s),4)}, {vr(accV(rt),4) if k else 0}")
        cur = nxt
    return cur

RR = 172
def kv_reduce_issue():
    I(f"s_and_b32 s{sT2}, s2, 7")
    I(f"s_lshl_b32 s{sT3}, s{sT2}, 4")
    I(f"s_add_u32 s{sT3}, s{sT3}, 2048")
    I(f"s_lshl_b32 s{sT2}, s{sT2}, 2")
    I(f"s_add_u32 s{sT2}, s{sT2}, s{sW}")
    I(f"s_lshl_b32 s{sT2}, s{sT2}, 6")
    I(f"v_and_b32 v10, 7, v{vL}")
    I(f"v_lshlrev_b32 v11, 4, v10")
    I(f"v_add_u32 v11, s{sT2}, v11")
    I(f"v_mov_b32 v12, s{sT3}")
    I(f"v_cmp_gt_u32 vcc, 4, v10")
    I(f"v_cndmask_b32 v11, v12, v11, vcc")
    I(f"v_lshrrev_b32 v12, 3, v{vL}")
    I(f"v_mul_u32_u24 v12, {KVREC}, v12")
    I(f"v_add_u32 v12, v12, v11")
    I(f"s_mul_i32 s{sP0}, s{sJ}, {32*KVREC}")
    I(f"s_add_u32 s{sP0}, s{sP0}, {WS_KVP}")
    I(f"s_mul_i32 s{sP1}, s{sJ}, {KVREC}")
    I(f"s_add_u32 s{sP1}, s{sP1}, {WS_KVF}")
    I(f"s_mov_b32 s{sP2}, 0xffffff00")
    I(f"v_cmp_gt_u32 vcc, 5, v{vL}")
    I(f"v_mov_b32 v10, {OOB}")
    I(f"v_cndmask_b32 v11, v10, v11, vcc")
    return kv_reduce_loads()
def kv_reduce_loads():
    for n in range(4):
        I(f"s_add_u32 s{sT2}, s{sP0}, {n*8*KVREC}")
        last = I(f"buffer_load_dwordx4 {vr(RR+4*n,4)}, v12, {S(SWS)}, s{sT2} offen sc1")
    return last
def kv_reduce_finish(last):
    R = RR
    def checks():
        for n in range(4): check4(8, R + 4 * n, 9, 10, n == 0)
        I("v_cmp_ne_u32 vcc, 0, v8")
    wait_vm(last)
    checks()
    def body():
        kv_reduce_loads(); I("s_waitcnt vmcnt(0)"); A.vm = []; checks()
    spin_loop(body, first_done=True)
    for q in range(16):
        I(f"v_and_b32 v{R+q}, s{sP2}, v{R+q}")
    for st in (8, 4):
        for q in range(0, st, 2):
            I(f"v_pk_add_f32 {vr(R+q,2)}, {vr(R+q,2)}, {vr(R+st+q,2)}")
    for e in range(4):
        I(f"v_add_f32_dpp v{R+e}, v{R+e}, v{R+e} row_ror:8 row_mask:0xf bank_mask:0xf")
    for op in ("v_permlane16_swap_b32", "v_permlane32_swap_b32"):
        for e in range(4): I(f"v_mov_b32 v{R+4+e}, v{R+e}")
        for e in range(4): I(f"{op} v{R+e}, v{R+4+e}")
        for e in (0, 2): I(f"v_pk_add_f32 {vr(R+e,2)}, {vr(R+e,2)}, {vr(R+4+e,2)}")
    bf_round4(R, R + 4)
    tag4(R)
    I(f"buffer_store_dwordx4 {vr(R,4)}, v11, {S(SWS)}, s{sP1} offen sc1")

def pf_wo_gu(vd):
    I(f"s_lshl_b32 s{sB1}, s{sJ}, 14")
    I(f"s_add_u32 s{sB1}, s{sB1}, s{sW4096}")
    I(f"v_and_b32 v30, 31, v{vL}")
    I(f"v_lshlrev_b32 v30, 7, v30")
    I(f"buffer_load_dword a255, v30, {S(SWO)}, s{sB1} offen")
    pad(300)
    I(f"s_lshl_b32 s{sB1}, s{sJ}, 4")
    I(f"s_lshl_b32 s{sB2}, s{sW}, 2")
    I(f"s_add_u32 s{sB1}, s{sB1}, s{sB2}")
    I(f"s_mul_i32 s{sB1}, s{sB1}, 2752")
    I(f"s_and_b32 s{sB2}, s2, 1")
    I(f"s_mul_i32 s{sB2}, s{sB2}, 1344")
    I(f"s_add_u32 s{sB1}, s{sB1}, s{sB2}")
    I(f"v_mul_u32_u24 v30, 2752, v{vG}")
    I(f"v_mul_u32_u24 v31, 96, v{vT}")
    I(f"v_add_u32 v30, v30, v31")
    I(f"buffer_load_dword a255, v30, {S(SWG)}, s{sB1} offen")
    pad(300)
    I(f"buffer_load_dword a255, v30, {S(SWU)}, s{sB1} offen")
def pf_wd(vd, va):
    I(f"s_mul_i32 s{sT2}, s{sJ}, {344*128}")
    I(f"s_mul_i32 s{sT3}, s{sW}, {86*128}")
    I(f"s_add_u32 s{sT2}, s{sT2}, s{sT3}")
    I(f"v_lshlrev_b32 v{va}, 7, v{vL}")
    I(f"buffer_load_dword v{vd}, v{va}, {S(SWD)}, s{sT2} offen")
    I(f"v_min_u32 v{va}, {21*128}, v{va}")
    I(f"s_add_u32 s{sT2}, s{sT2}, 8192")
    I(f"buffer_load_dword v{vd}, v{va}, {S(SWD)}, s{sT2} offen")

WOF = 192
L_WO = 64 * K
def wo_dma():
    rows128_voff(vBG, 1024, False)
    I(f"s_lshl_b32 s{sB1}, s{sW}, 17")
    I(f"s_lshl_b32 s{sB2}, s{sCtC}, 7")
    I(f"s_add_u32 s{sB1}, s{sB1}, s{sB2}")
    I(f"s_lshl_b32 s{sB2}, s{sW}, 14")
    for s in range(4):
        last = dma4(vBG, S(SWO), sB2, L_WO + s * 4096, sB1, s * 32768)
    return last
def wo_tr(last):
    I(f"v_lshrrev_b32 v28, 2, v{vL}")
    I(f"v_lshlrev_b32 v28, 7, v28")
    I(f"v_bfe_u32 v29, v{vL}, 3, 2")
    I(f"v_lshl_add_u32 v28, v29, 5, v28")
    I(f"v_and_b32 v29, 3, v{vL}")
    I(f"v_lshl_add_u32 v28, v29, 3, v28")
    I(f"s_lshl_b32 s{sB2}, s{sW}, 14")
    I(f"s_add_u32 s{sB2}, s{sB2}, {L_WO}")
    I(f"v_add_u32 v28, s{sB2}, v28")
    for c in range(1, 4):
        I(f"v_xor_b32 v{28+c}, {c*32}, v28")
    wait_vm(last)
    for s in range(4):
        for c in range(4):
            f = WOF + (s * 4 + c) * 4
            I(f"ds_read_b64_tr_b16 {ar(f,2)}, v{28+c} offset:{s*4096}")
            I(f"ds_read_b64_tr_b16 {ar(f+2,2)}, v{28+c} offset:{s*4096+2048}")

def GF(c, ks): return (ks * 3 + c) * 4
GSLOT = [0, 48 * K, 0, 96 * K]
def wgu_setup():
    I(f"s_lshl_b32 s{sB1}, s{sMD}, 3")
    I(f"s_mul_i32 s{sB1}, s{sB1}, 21846")
    I(f"s_lshr_b32 s{sB1}, s{sB1}, 16")
    I(f"s_lshl_b32 s{sFt0}, s{sB1}, 1")
    for n in range(3):
        I(f"v_add_u32 v27, {64*n}, v{vL}")
        I(f"v_mul_u32_u24 v28, 5462, v27")
        I(f"v_lshrrev_b32 v28, 16, v28")
        I(f"v_mul_u32_u24 v29, 12, v28")
        I(f"v_sub_u32 v29, v27, v29")
        I(f"v_bfe_u32 v30, v28, 2, 1")
        I(f"v_lshlrev_b32 v30, 1, v30")
        I(f"v_xor_b32 v29, v29, v30")
        I(f"v_mul_u32_u24 v28, 2752, v28")
        I(f"v_lshl_add_u32 v{vBG+n}, v29, 4, v28")
        if n: I(f"v_subrev_u32 v{vBG+n}, {n*1024}, v{vBG+n}")
    I(f"s_and_b32 s{sB1}, s{sW}, 1")
    I(f"s_mul_i32 s{sB1}, s{sB1}, {64*2752}")
    I(f"s_lshl_b32 s{sB2}, s{sFt0}, 5")
    I(f"s_add_u32 s{sB1}, s{sB1}, s{sB2}")
    for q in range(4):
        I(f"s_add_u32 s{sB2}, s{sGrpD}, {q}")
        I(f"s_and_b32 s{sB2}, s{sB2}, 3")
        I(f"s_mul_i32 s{sKW+q}, s{sB2}, {128*2752}")
        I(f"s_add_u32 s{sKW+q}, s{sKW+q}, s{sB1}")
        I(f"s_lshl_b32 s{sK+q}, s{sB2}, 12")
        I(f"s_lshl_b32 s{sKM+q}, s{sB2}, 9")
    I(f"s_mul_i32 s{sB1}, s{sW}, 12288")
    I(f"s_cmp_ge_u32 s{sW}, 2")
    I(f"s_cselect_b32 s{SGU}, s{SWU}, s{SWG}")
    I(f"s_cselect_b32 s{SGU+1}, s{SWU+1}, s{SWG+1}")
    I(f"s_mov_b32 s{SGU+2}, {512*1376*2}")
    I(f"s_mov_b32 s{SGU+3}, 0x20000")
def wgu_traddr():
    I(f"s_lshr_b32 s{sB2}, s{sW}, 1")
    I(f"s_mul_i32 s{sTz}, s{sB2}, 3")
    I(f"s_and_b32 s{sB2}, s{sW}, 1")
    I(f"s_lshl_b32 s{sTx}, s{sB2}, 1")
    I(f"s_add_u32 s{sTx}, s{sTx}, s{sTz}")
    I(f"s_add_u32 s{sTz}, s{sTz}, 1")
    I(f"v_lshrrev_b32 v27, 2, v{vL}")
    I(f"v_mul_u32_u24 v27, 192, v27")
    I(f"v_and_b32 v31, 3, v{vL}")
    I(f"v_lshl_add_u32 v27, v31, 3, v27")
    I(f"v_and_b32 v31, 1, v{vG}")
    I(f"v_xor_b32 v30, s{sTx}, v31")
    I(f"v_lshl_add_u32 v28, v30, 5, v27")
    I(f"v_add_u32 v29, 24576, v28")
    I(f"v_xor_b32 v30, s{sTz}, v31")
    I(f"v_lshl_add_u32 v30, v30, 5, v27")
    I(f"s_mul_i32 s{sB2}, s{sB2}, 24576")
    I(f"v_add_u32 v30, s{sB2}, v30")
def wgu_dma(q):
    for p in range(4):
        I(f"s_add_u32 m0, s{sB1}, {GSLOT[q] + p*3072}")
        I(f"s_add_u32 s{sB0}, s{sKW+q}, {p*16*2752}")
        for n in range(3):
            last = I(f"buffer_load_dwordx4 v{vBG+n}, {S(SGU)}, s{sB0} offen offset:{n*1024} lds")
            pad(100)
    return last
def wgu_tr(q):
    for c in range(3):
        if GSLOT[q]:
            I(f"v_add_u32 v31, {GSLOT[q]}, v{28+c}"); b = 31
        else: b = 28 + c
        for s in range(4):
            f = GF(c, q * 4 + s)
            I(f"ds_read_b64_tr_b16 {ar(f,2)}, v{b} offset:{s*6144}")
            I(f"ds_read_b64_tr_b16 {ar(f+2,2)}, v{b} offset:{s*6144+3072}")

PH = 64; RK = 192; KB = 32; ZB = 16; CA = 192
def rt_offsets(stride):
    for r in range(4):
        I(f"s_add_u32 s{sT0}, s{sW}, {r}")
        I(f"s_and_b32 s{sT0}, s{sT0}, 3")
        I(f"s_mul_i32 s{sR+r}, s{sT0}, {stride}")
def phiq_load():
    I(f"s_lshl_b32 s{sT0}, s{sRbC}, 3")
    I(f"s_lshl_b32 s{sT1}, s{sW}, 1")
    I(f"s_add_u32 s{sT0}, s{sT0}, s{sT1}")
    I(f"v_and_b32 v6, 1, v{vL}")
    I(f"v_add_u32 v6, s{sT0}, v6")
    I(f"v_lshlrev_b32 v6, 7, v6")
    I(f"v_add_u32 v6, {WS_FQ}, v6")
    I(f"s_lshl_b32 s{sT1}, s{sW}, 3")
    rt_offsets(32768)
    I(f"s_lshl_b32 s{sT0}, s{sRbC}, 7")
    I(f"s_add_u32 s{sT0}, s{sT0}, s{sT1}")
    I(f"s_lshl_b32 s{sT0}, s{sT0}, 10")
    I(f"s_add_u32 s{sT0}, s{sT0}, {WS_PHIQ}")
    I(f"v_add_u32 v8, s{sT0}, v{vL16}")
    I(f"v_add_u32 v9, 4096, v8")
    poll_flags(6, 7)
    for n in range(8):
        for r in range(4):
            I(f"buffer_load_dwordx4 {vr(PH+(n*4+r)*4,4)}, v{8 + (n>>2)}, {S(SWS)}, s{sR+r} offen offset:{(n&3)*1024} sc1")
def kv_load():
    I(f"s_lshl_b32 s{sT1}, s{sW}, 3")
    I(f"s_mul_i32 s{sP1}, s{sT1}, {KVREC}")
    I(f"s_add_u32 s{sP1}, s{sP1}, {WS_KVF}")
    I(f"v_and_b32 v6, 3, v{vT}")
    I(f"v_mul_u32_u24 v6, {KVREC}, v6")
    I(f"v_lshl_add_u32 v6, v{vG}, 5, v6")
    RZ = 32
    def body():
        for n in range(8):
            I(f"s_add_u32 s{sT0}, s{sP1}, {n*KVREC}")
            I(f"buffer_load_dwordx4 {vr(RK+8*n,4)}, v{vL16}, {S(SWS)}, s{sT0} offen sc1")
            I(f"buffer_load_dwordx4 {vr(RK+8*n+4,4)}, v{vL16}, {S(SWS)}, s{sT0} offen offset:1024 sc1")
            if n % 4 == 0:
                q = n // 4
                I(f"buffer_load_dwordx4 {vr(RZ+8*q,4)}, v6, {S(SWS)}, s{sT0} offen offset:2048 sc1")
                I(f"buffer_load_dwordx4 {vr(RZ+8*q+4,4)}, v6, {S(SWS)}, s{sT0} offen offset:2064 sc1")
        I("s_waitcnt vmcnt(0)"); A.vm = []
        for k in range(16): check4(8, RK + 4 * k, 9, 10, k == 0)
        for k in range(4): check4(8, RZ + 4 * k, 9, 10, False)
        I("v_cmp_ne_u32 vcc, 0, v8")
    spin_loop(body)
    ZT = 48
    for k in range(8):
        I(f"v_perm_b32 v{ZT+k}, v{RZ+2*k+1}, v{RZ+2*k}, s{sSelHi}")
    for k in range(8):
        I(f"v_mov_b32 v{8+k}, v{ZT+k}")
    for k in range(32):
        I(f"v_perm_b32 v{KB+k}, v{RK+2*k+1}, v{RK+2*k}, s{sSelHi}")

def c_compute():
    ZF = 8
    EPS = 16
    for e in range(4): I(f"v_mov_b32 v{EPS+e}, 0x358637bd")
    def f0(u): return PH + ((2 * (u >> 2)) * 4 + (u & 3)) * 4
    def f1(u): return PH + ((2 * (u >> 2) + 1) * 4 + (u & 3)) * 4
    def cacc(c, r): return CA + (c * 4 + r) * 4
    def buf(u):
        if u < 4:
            r = (2 if u % 2 == 0 else 3)
            return [cacc(c, r) for c in range(4)]
        k = 0 if u % 2 == 0 else 2
        return [f0(k), f1(k), f0(k + 1), f1(k + 1)]
    def s1(u):
        s = u >> 2; N0, D0, N1, D1 = buf(u)
        return [f"v_mfma_f32_16x16x32_bf16 {vr(D0,4)}, {vr(ZF+4*(s>>1),4)}, {vr(f0(u),4)}, {vr(EPS,4)}",
                f"v_mfma_f32_16x16x32_bf16 {vr(D1,4)}, {vr(ZF+4*(s>>1),4)}, {vr(f1(u),4)}, {vr(EPS,4)}",
                f"v_mfma_f32_16x16x32_bf16 {vr(N0,4)}, {vr(KB+8*s,4)}, {vr(f0(u),4)}, 0",
                f"v_mfma_f32_16x16x32_bf16 {vr(N1,4)}, {vr(KB+8*s+4,4)}, {vr(f1(u),4)}, 0"]
    def s2(u):
        s = u >> 2; N0, D0, N1, D1 = buf(u)
        d0 = D0 + ((2 * s) & 3); d1 = D1 + ((2 * s + 1) & 3)
        o = [f"v_rcp_f32 v6, v{d0}", f"v_rcp_f32 v7, v{d1}"]
        o += [f"v_mul_f32 v{N0+e}, v{N0+e}, v6" for e in range(4)]
        o += [f"v_cvt_pk_bf16_f32 v{f0(u)}, v{N0}, v{N0+1}", f"v_cvt_pk_bf16_f32 v{f0(u)+1}, v{N0+2}, v{N0+3}"]
        o += [f"v_mul_f32 v{N1+e}, v{N1+e}, v7" for e in range(4)]
        o += [f"v_cvt_pk_bf16_f32 v{f0(u)+2}, v{N1}, v{N1+1}", f"v_cvt_pk_bf16_f32 v{f0(u)+3}, v{N1+2}, v{N1+3}"]
        return o
    def s3(u):
        s = u >> 2; r = u & 3
        return [f"v_mfma_f32_16x16x32_bf16 {vr(cacc(c,r),4)}, {ar(WOF+(s*4+c)*4,4)}, {vr(f0(u),4)}, {vr(cacc(c,r),4) if s else 0}" for c in range(4)]
    for m in s1(0): I(m)
    for u in range(17):
        mf = (s3(u - 1) if u >= 1 else []) + (s1(u + 1) if u + 1 < 16 else [])
        va = s2(u) if u < 16 else []
        k = 0
        for m in mf:
            I(m)
            for _ in range(2):
                if k < len(va): I(va[k]); k += 1
        while k < len(va): I(va[k]); k += 1

L_RED = 96 * K
def reduce_scatter(CAb, T):
    for r in range(1, 4):
        I(f"s_add_u32 s{sT0}, s{sW}, {r}")
        I(f"s_and_b32 s{sT0}, s{sT0}, 3")
        I(f"s_mul_i32 s{sT0}, s{sT0}, 12288")
        I(f"s_add_u32 s{sT0}, s{sT0}, {L_RED + (r-1)*4096}")
        I(f"v_add_u32 v6, s{sT0}, v{vL16}")
        for c in range(4):
            I(f"ds_write_b128 v6, {vr(CAb+(c*4+r)*4,4)} offset:{c*1024}")
    I(f"s_mul_i32 s{sT0}, s{sW}, 12288")
    I(f"s_add_u32 s{sT0}, s{sT0}, {L_RED}")
    I(f"v_add_u32 v6, s{sT0}, v{vL16}")
    barrier()
    ids = []
    for k in range(12):
        ids.append(I(f"ds_read_b128 {vr(T+4*k,4)}, v6 offset:{k*1024}"))
    wait_lg(ids[7])
    for c in range(4):
        for e in (0, 2):
            I(f"v_pk_add_f32 {vr(CAb+c*16+e,2)}, {vr(CAb+c*16+e,2)}, {vr(T+4*c+e,2)}")
    wait_lg(ids[11])
    for c in range(4):
        for e in (0, 2):
            I(f"v_pk_add_f32 {vr(T+16+4*c+e,2)}, {vr(T+16+4*c+e,2)}, {vr(T+32+4*c+e,2)}")
    for c in range(4):
        for e in (0, 2):
            I(f"v_pk_add_f32 {vr(T+4*c+e,2)}, {vr(CAb+c*16+e,2)}, {vr(T+16+4*c+e,2)}")

X1K = 248
XR = 32
def c_xload():
    I(f"s_lshl_b32 s{sT0}, s{sRbC}, 6")
    I(f"s_lshl_b32 s{sT1}, s{sW}, 4")
    I(f"s_add_u32 s{sT0}, s{sT0}, s{sT1}")
    I(f"v_add_u32 v20, s{sT0}, v{vT}")
    I(f"v_lshlrev_b32 v21, 10, v20")
    I(f"v_lshl_add_u32 v21, v{vG}, 3, v21")
    I(f"s_lshl_b32 s{sT1}, s{sCtC}, 7")
    for c in range(4):
        last = I(f"buffer_load_dwordx2 {vr(XR+2*c,2)}, v21, {S(SX)}, s{sT1} offen offset:{32*c}")
    return last
def epilogueC(xid):
    O = 64
    GA = 160; CB = 176; XF = 128
    I(f"s_lshl_b32 s{sT1}, s{sCtC}, 8")
    I(f"v_lshlrev_b32 v22, 4, v{vG}")
    I(f"v_add_u32 v22, s{sT1}, v22")
    I(f"v_add_u32 v22, {L_MODV}, v22")
    for c in range(4):
        I(f"ds_read_b128 {vr(GA+4*c,4)}, v22 offset:{4096 + 64*c}")
        I(f"ds_read_b128 {vr(CB+4*c,4)}, v22 offset:{8192 + 64*c}")
    wait_vm(xid)
    for q in range(8):
        I(f"v_lshlrev_b32 v{XF+2*q}, 16, v{XR+q}")
        I(f"v_and_b32 v{XF+2*q+1}, s{sHi}, v{XR+q}")
    reduce_scatter(CA, O)
    for q in range(0, 16, 2):
        I(f"v_pk_fma_f32 {vr(O+q,2)}, {vr(O+q,2)}, {vr(GA+q,2)}, {vr(XF+q,2)}")
    for q in range(8):
        I(f"v_cvt_pk_bf16_f32 v{X1K+q}, v{O+2*q}, v{O+2*q+1}")
    for q in range(8):
        I(f"v_lshlrev_b32 v{O+2*q}, 16, v{X1K+q}")
        I(f"v_and_b32 v{O+2*q+1}, s{sHi}, v{X1K+q}")
    for q in range(0, 16, 2):
        I(f"v_pk_mul_f32 {vr(XF+q,2)}, {vr(O+q,2)}, {vr(CB+q,2)}")
    I(f"s_lshl_b32 s{sT0}, s{sRbC}, 2")
    I(f"s_add_u32 s{sT0}, s{sT0}, s{sW}")
    I(f"s_lshl_b32 s{sT0}, s{sT0}, 14")
    I(f"s_lshl_b32 s{sT1}, s{sCtC}, 11")
    I(f"s_add_u32 s{sT0}, s{sT0}, s{sT1}")
    I(f"s_add_u32 s{sT0}, s{sT0}, {WS_X1P}")
    for q in range(8):
        I(f"v_cvt_pk_bf16_f32 v{XF+q}, v{XF+2*q}, v{XF+2*q+1}")
    I(f"buffer_store_dwordx4 {vr(XF,4)}, v{vL16}, {S(SWS)}, s{sT0} offen sc1")
    I(f"buffer_store_dwordx4 {vr(XF+4,4)}, v{vL16}, {S(SWS)}, s{sT0} offen offset:1024 sc1")
    T = 96
    I(f"v_pk_add_f32 v[{T}:{T+1}], {vr(O,2)}, {vr(O+2,2)}")
    I(f"v_pk_add_f32 v[{T+2}:{T+3}], {vr(O+4,2)}, {vr(O+6,2)}")
    for q in (8, 12):
        I(f"v_pk_add_f32 v[{T}:{T+1}], v[{T}:{T+1}], {vr(O+q,2)}")
        I(f"v_pk_add_f32 v[{T+2}:{T+3}], v[{T+2}:{T+3}], {vr(O+q+2,2)}")
    I(f"v_pk_add_f32 v[{T}:{T+1}], v[{T}:{T+1}], v[{T+2}:{T+3}]")
    I(f"v_add_f32 v{T}, v{T}, v{T+1}")
    I(f"v_mul_f32 v{T+2}, 0xbd800000, v{T}")
    for q in range(0, 16, 2):
        I(f"v_pk_add_f32 {vr(O+q,2)}, {vr(O+q,2)}, v[{T+2}:{T+3}] op_sel_hi:[1,0]")
    I(f"v_pk_mul_f32 v[{T+4}:{T+5}], {vr(O,2)}, {vr(O,2)}")
    I(f"v_pk_mul_f32 v[{T+6}:{T+7}], {vr(O+2,2)}, {vr(O+2,2)}")
    for q in range(4, 16, 4):
        I(f"v_pk_fma_f32 v[{T+4}:{T+5}], {vr(O+q,2)}, {vr(O+q,2)}, v[{T+4}:{T+5}]")
        I(f"v_pk_fma_f32 v[{T+6}:{T+7}], {vr(O+q+2,2)}, {vr(O+q+2,2)}, v[{T+6}:{T+7}]")
    I(f"v_pk_add_f32 v[{T+4}:{T+5}], v[{T+4}:{T+5}], v[{T+6}:{T+7}]")
    I(f"v_add_f32 v{T+1}, v{T+4}, v{T+5}")
    for op, inv in (("v_permlane16_swap_b32", 0x3d000000), ("v_permlane32_swap_b32", 0x3c800000)):
        I(f"v_mov_b32 v{T+2}, v{T}")
        I(f"v_mov_b32 v{T+3}, v{T+1}")
        I(f"{op} v{T}, v{T+2}")
        I(f"{op} v{T+1}, v{T+3}")
        I(f"v_sub_f32 v{T+4}, v{T}, v{T+2}")
        I(f"v_add_f32 v{T}, v{T}, v{T+2}")
        I(f"v_add_f32 v{T+1}, v{T+1}, v{T+3}")
        I(f"v_mul_f32 v{T+4}, v{T+4}, v{T+4}")
        I(f"v_fmac_f32 v{T+1}, {inv:#x}, v{T+4}")
    I(f"v_lshlrev_b32 v6, 6, v20")
    I(f"v_mov_b32 v7, {OOB}")
    I(f"v_cmp_gt_u32 vcc, 16, v{vL}")
    I(f"v_cndmask_b32 v6, v7, v6, vcc")
    I(f"s_lshl_b32 s{sT0}, s{sCtC}, 3")
    I(f"s_add_u32 s{sT0}, s{sT0}, {WS_STAT}")
    last = I(f"buffer_store_dwordx2 v[{T}:{T+1}], v6, {S(SWS)}, s{sT0} offen sc1")
    I(f"s_lshl_b32 s{sT0}, s{sGrpC}, 4")
    I(f"s_add_u32 s{sT0}, s{sT0}, s{sMC}")
    I(f"s_lshl_b32 s{sT0}, s{sT0}, 7")
    I(f"s_add_u32 s{sT0}, s{sT0}, {WS_FX}")
    set_flag(sT0, last)

U1 = 224
def u12():
    I(f"v_lshlrev_b32 v6, 4, v{vG}")
    I(f"v_add_u32 v6, {L_MODV + 8192}, v6")
    I(f"v_subrev_u32 v7, 2048, v6")
    I(f"v_cmp_gt_u32 vcc, 8, v{vT}")
    I(f"v_cndmask_b32 v6, v7, v6, vcc")
    R = 64
    ids = []
    for q in range(4):
        I(f"v_add_u32 v7, s{sKM+q}, v6")
        for s in range(4):
            ks = 4 * q + s
            I(f"ds_read_b128 {vr(R+8*ks,4)}, v7 offset:{128*s}")
            ids.append(I(f"ds_read_b128 {vr(R+8*ks+4,4)}, v7 offset:{128*s+64}"))
    def cv(ks):
        return [f"v_cvt_pk_bf16_f32 v{R+8*ks+e}, v{R+8*ks+2*e}, v{R+8*ks+2*e+1}" for e in range(4)]
    wait_lg()
    for x in cv(0): I(x)
    for ks in range(16):
        nx = cv(ks + 1) if ks < 15 else []
        for c in range(3):
            acc = vr(U1 + 4 * c, 4)
            I(f"v_mfma_f32_16x16x32_bf16 {acc}, {ar(GF(c,ks),4)}, {vr(R+8*ks,4)}, {acc if ks else 0}")
            for x in nx[2*c:2*c+2]: I(x)
    for q in range(12):
        I(f"v_mov_b32_dpp v{U1+12+q}, v{U1+q} row_ror:8 row_mask:0xf bank_mask:0xf")
    for q in range(12):
        I(f"v_cndmask_b32 v6, v{U1+12+q}, v{U1+q}, vcc")
        I(f"v_cndmask_b32 v{U1+12+q}, v{U1+q}, v{U1+12+q}, vcc")
        I(f"v_mov_b32 v{U1+q}, v6")

def DF(j, c): return (192 + (j * 4 + c) * 4) if j < 4 else ((j - 4) * 4 + c) * 4
WDSLOT = {0: (0, 0), 1: (0, 1), 2: ("s", 0), 3: (1, 0), 4: (1, 1), 5: (0, 0), 6: (0, 1), 7: ("s", 0), 8: (2, 0), 9: (2, 1), 10: (1, 0)}
sW8192 = sK + 0
def wd_setup():
    rows128_voff(vBG, 1024, True)
    I(f"s_mul_i32 s{sB1}, s{sW}, {352*1024}")
    I(f"s_lshl_b32 s{sB2}, s{sCtC}, 7")
    I(f"s_add_u32 s{sB1}, s{sB1}, s{sB2}")
    I(f"s_lshl_b32 s{sHead}, s{sW}, 13")
    I(f"v_bfe_u32 v6, v{vL}, 2, 2")
    I(f"v_lshl_add_u32 v6, v{vG}, 3, v6")
    I(f"v_lshlrev_b32 v6, 7, v6")
    I(f"v_bfe_u32 v7, v{vL}, 3, 2")
    I(f"v_lshl_add_u32 v6, v7, 5, v6")
    I(f"v_and_b32 v7, 3, v{vL}")
    I(f"v_lshl_add_u32 v28, v7, 3, v6")
def wd_dma(j):
    q, sub = WDSLOT[j]
    if q == "s": return dma4(vBG, S(SWD), sW4096, 128 * K, sB1, j * 32768)
    return dma4(vBG, S(SWD), sHead, q * 32 * K + sub * 4096, sB1, j * 32768)
def wd_tr(j, last):
    q, sub = WDSLOT[j]
    if q == "s":
        I(f"s_add_u32 s{sB2}, s{sW4096}, {128*K}")
    else:
        I(f"s_add_u32 s{sB2}, s{sHead}, {q*32*K + sub*4096}")
    I(f"v_add_u32 v29, s{sB2}, v28")
    wait_vm(last)
    out = None
    for c in range(4):
        if c: I(f"v_xor_b32 v{30 + (c&1)}, {c*32}, v29")
        b = 29 if c == 0 else 30 + (c & 1)
        f = DF(j, c)
        I(f"ds_read_b64_tr_b16 {ar(f,2)}, v{b}")
        out = I(f"ds_read_b64_tr_b16 {ar(f+2,2)}, v{b} offset:512")
    return out

L_XCH = 96 * K
L_RS = L_MISC
DA = 128; AF = 64; SR = 32
def d_start():
    I(f"s_lshl_b32 s{sT0}, s{sGrpD}, 11")
    I(f"s_add_u32 s{sT0}, s{sT0}, {WS_FX}")
    I(f"v_lshlrev_b32 v6, 7, v{vT}")
    I(f"v_add_u32 v6, s{sT0}, v6")
    I(f"s_lshl_b32 s{sT0}, s{sGrpD}, 3")
    I(f"s_lshl_b32 s{sT1}, s{sW}, 1")
    I(f"s_add_u32 s{sT0}, s{sT0}, s{sT1}")
    I(f"s_lshl_b32 s{sT0}, s{sT0}, 14")
    I(f"s_add_u32 s{sT0}, s{sT0}, {WS_X1P}")
    I(f"v_add_u32 v12, s{sT0}, v{vL16}")
    I(f"s_lshl_b32 s{sP1}, s{sW}, 13")
    I(f"v_and_b32 v13, 127, v{vTid}")
    I(f"s_lshl_b32 s{sP0}, s{sGrpD}, 13")
    I(f"s_add_u32 s{sP0}, s{sP0}, {WS_STAT}")
    I(f"v_lshlrev_b32 v14, 6, v13")
    I(f"s_and_b32 s{sT1}, s{sW}, 1")
    I(f"s_lshl_b32 s{sT1}, s{sT1}, 14")
    I(f"v_add_u32 v8, s{sT1}, v{vL16}")
    I(f"v_xor_b32 v9, 16384, v8")
    I(f"v_add_u32 v10, 65536, v8")
    I(f"v_add_u32 v11, 65536, v9")
    barrier()
    poll_flags(6, 7)
    ids = []
    for q in range(4):
        for r in range(2):
            last = dma4([12] * 4, S(SWS), sP1, q * 32 * K + r * 4096, sK + q, r * 16384, " sc1")
        ids.append(last)
        if q == 0:
            for k in range(4):
                sid = I(f"buffer_load_dwordx4 {vr(SR+4*k,4)}, v14, {S(SWS)}, s{sP0} offen offset:{16*k} sc1")
    return ids, sid

def d_rd(ks, sl):
    b = AF + (ks & 1) * 32 + 4 * sl
    q, s = ks >> 2, ks & 3
    base = (8 if sl < 4 else 9) + (2 if q >= 2 else 0)
    return I(f"ds_read_b128 {vr(b,4)}, v{base} offset:{(q&1)*32*K + (sl&3)*4096 + s*1024}")

def d_gemm(ids):
    wd = {}
    wait_vm(ids[0]); barrier()
    cur = [d_rd(0, sl) for sl in range(8)]
    for ks in range(16):
        def main():
            nonlocal cur
            if ks in (4, 8, 12): I("s_barrier")
            if ks + 1 < 16 and (ks + 1) % 4 == 0:
                wait_vm(ids[(ks + 1) >> 2]); I("s_barrier")
            nxt = []
            for sl in range(8):
                if ks + 1 < 16: nxt.append(d_rd(ks + 1, sl))
                if sl % 2 == 0: wait_lg(cur[sl + 1])
                for c in range(3):
                    acc = vr(DA + (c * 8 + sl) * 4, 4)
                    I(f"v_mfma_f32_16x16x32_bf16 {acc}, {ar(GF(c,ks),4)}, {vr(AF+(ks&1)*32+4*sl,4)}, {acc if ks else 0}")
            cur = nxt
        def bg():
            if ks == 4: wd[0] = wd_dma(0); wd[1] = wd_dma(1)
            if ks == 6: wd[2] = wd_dma(2)
            if ks == 8: wd[3] = wd_dma(3); wd[4] = wd_dma(4)
            if ks == 10:
                wd_tr(0, wd[0]); x = wd_tr(1, wd[1]); wait_lg(x)
                wd[5] = wd_dma(5)
            if ks == 11:
                wd[6] = wd_dma(6)
                x = wd_tr(2, wd[2]); wait_lg(x)
                wd[7] = wd_dma(7)
            if ks == 12: wd[8] = wd_dma(8); wd[9] = wd_dma(9)
            if ks == 13:
                x = wd_tr(3, wd[3]); wait_lg(x)
                wd[10] = wd_dma(10)
            if ks == 14: wd_tr(4, wd[4])
            if ks == 15: wd_tr(5, wd[5])
        rm = rec(main); rb_ = rec(bg)
        merge(A, [rm, rb_], [(0, 1), (0.08, 0.95)])
    return wd

def d_epilogue(sid):
    wait_vm(sid)
    I(f"v_add_f32 v48, v{SR}, v{SR+2}")
    I(f"v_add_f32 v50, v{SR+1}, v{SR+3}")
    for q in range(2, 8):
        I(f"v_add_f32 v48, v48, v{SR+2*q}")
        I(f"v_add_f32 v50, v50, v{SR+2*q+1}")
    I(f"v_mul_f32 v49, 0xbe000000, v48")
    for q in range(8):
        I(f"v_add_f32 v{52+q}, v{SR+2*q}, v49")
    for q in range(8):
        I(f"v_mul_f32 v{52+q}, v{52+q}, v{52+q}")
    for q in range(8):
        I(f"v_fmac_f32 v50, 0x3c800000, v{52+q}")
    I("v_mov_b32 v51, 0x3727c5ac")
    I("v_fmac_f32 v51, 0x3b000000, v50")
    I("v_rsq_f32 v50, v51")
    I("v_mul_f32 v51, 0xbb000000, v48")
    I(f"v_lshlrev_b32 v13, 3, v13")
    I(f"v_add_u32 v13, {L_RS}, v13")
    I("v_mul_f32 v51, v51, v50")
    I(f"ds_write_b64 v13, v[50:51]")

def d_epilogue2():
    I(f"s_and_b32 s{sT1}, s{sW}, 1")
    I(f"s_lshl_b32 s{sT1}, s{sT1}, 9")
    I(f"v_lshlrev_b32 v6, 3, v{vT}")
    I(f"v_add_u32 v6, s{sT1}, v6")
    I(f"v_add_u32 v6, {L_RS}, v6")
    I(f"v_xor_b32 v7, 512, v6")
    barrier()
    RS = 32
    for sl in (4, 5, 6, 7, 0, 1, 2, 3):
        I(f"ds_read_b64 {vr(RS+2*sl,2)}, v{6 if sl < 4 else 7} offset:{(sl&3)*128}")
    I(f"s_add_u32 s{sT0}, s{sW4096}, {L_XCH}")
    I(f"v_add_u32 v12, s{sT0}, v{vL16}")
    I(f"v_and_b32 v13, 1, v{vG}")
    I(f"v_mul_u32_u24 v13, {43*1024}, v13")
    I(f"v_lshrrev_b32 v14, 1, v{vG}")
    I(f"v_lshl_add_u32 v13, v14, 8, v13")
    I(f"v_lshl_add_u32 v13, v{vT}, 4, v13")
    def ft_base(dst, tile_s):
        I(f"s_add_u32 s{dst}, s{sFt0}, s{tile_s}")
        I(f"s_lshl_b32 s{dst}, s{dst}, 9")
        I(f"s_add_u32 s{dst}, s{dst}, s{sT0}")
    I(f"s_mul_i32 s{sT0}, s{sGrpD}, {8*43*1024}")
    I(f"s_add_u32 s{sT0}, s{sT0}, {WS_HH}")
    ft_base(sP0, sTx); ft_base(sP1, sTz)
    I(f"s_and_b32 s{sT1}, s{sW}, 1")
    I(f"s_mul_i32 s{sT1}, s{sT1}, {4*43*1024}")
    I(f"s_xor_b32 s{sT2}, s{sT1}, {4*43*1024}")
    wait_lg()
    tcount = [0]
    def fix(c, sl):
        a = DA + (c * 8 + sl) * 4
        for e in (0, 2):
            t = 48 + 2 * (tcount[0] & 3); tcount[0] += 1
            I(f"v_pk_fma_f32 {vr(t,2)}, {vr(U1+4*c+e,2)}, {vr(RS+2*sl,2)}, {vr(U1+12+4*c+e,2)} op_sel:[0,1,0] op_sel_hi:[1,1,1]")
            I(f"v_pk_fma_f32 {vr(a+e,2)}, {vr(a+e,2)}, {vr(RS+2*sl,2)}, {vr(t,2)} op_sel_hi:[1,0,1]")
    for sl in range(4, 8):
        fix(2, sl)
        I(f"ds_write_b128 v12, {vr(DA+(16+sl)*4,4)} offset:{(sl-4)*1024}")
    def hh_pack(dst, ga, ua):
        for e in (0, 2):
            I(f"v_pk_mul_f32 {vr(ga+e,2)}, {vr(ga+e,2)}, {vr(ua+e,2)}")
        I(f"v_cvt_pk_bf16_f32 v{dst}, v{ga}, v{ga+1}")
        I(f"v_cvt_pk_bf16_f32 v{dst+1}, v{ga+2}, v{ga+3}")
    H = 64
    def store_pair(k, slot, base_s, ga0, ua0, ga1, ua1):
        d = H + 4 * k
        hh_pack(d, ga0, ua0)
        hh_pack(d + 2, ga1, ua1)
        I(f"s_add_u32 s{sT0}, s{base_s}, s{sT1 if slot < 4 else sT2}")
        I(f"s_add_u32 s{sT0}, s{sT0}, {(slot&3)*43*1024}")
        I(f"v_permlane16_swap_b32 v{d}, v{d+2}")
        I(f"v_permlane16_swap_b32 v{d+1}, v{d+3}")
        return I(f"buffer_store_dwordx4 {vr(d,4)}, v13, {S(SWS)}, s{sT0} offen sc1")
    for k, sl in enumerate(range(0, 8, 2)):
        for c in (0, 1):
            fix(c, sl); fix(c, sl + 1)
        store_pair(k, sl, sP0, DA + sl * 4, DA + (8 + sl) * 4, DA + (sl + 1) * 4, DA + (9 + sl) * 4)
        if k == 0:
            barrier()
            I(f"v_xor_b32 v12, 4096, v12")
            for s2 in range(4):
                I(f"ds_read_b128 {vr(DA+(20+s2)*4,4)}, v12 offset:{s2*1024}")
    for sl in range(4): fix(2, sl)
    wait_lg()
    for k, sl in enumerate(range(0, 4, 2)):
        last = store_pair(4 + k, sl, sP1, DA + (16 + sl) * 4, DA + (20 + sl) * 4, DA + (17 + sl) * 4, DA + (21 + sl) * 4)
    I(f"s_lshl_b32 s{sT0}, s{sGrpD}, 4")
    I(f"s_add_u32 s{sT0}, s{sT0}, s{sMD}")
    I(f"s_lshl_b32 s{sT0}, s{sT0}, 7")
    I(f"s_add_u32 s{sT0}, s{sT0}, {WS_FH}")
    set_flag(sT0, last)

def phaseE():
    I(f"s_lshl_b32 s{sT0}, s{sGrpC}, 11")
    I(f"s_add_u32 s{sT0}, s{sT0}, {WS_FH}")
    I(f"v_lshlrev_b32 v6, 7, v{vT}")
    I(f"v_add_u32 v6, s{sT0}, v6")
    rt_offsets(43 * 1024)
    I(f"s_mul_i32 s{sP0}, s{sRbC}, {4*43*1024}")
    I(f"s_mul_i32 s{sT1}, s{sW}, {11*1024}")
    I(f"s_add_u32 s{sP0}, s{sP0}, s{sT1}")
    I(f"s_add_u32 s{sP0}, s{sP0}, {WS_HH}")
    I(f"v_add_u32 v8, s{sP0}, v{vL16}")
    I(f"v_add_u32 v9, 4096, v8")
    I(f"v_add_u32 v10, 8192, v8")
    I(f"s_cmp_eq_u32 s{sW}, 3")
    I(f"s_cselect_b32 s{sP1}, 1024, 0")
    I(f"v_subrev_u32 v11, s{sP1}, v10")
    GB = 192; XF = 208
    for c in range(4):
        I(f"ds_read_b128 {vr(GB+4*c,4)}, v22 offset:{10240 + 64*c}")
    for q in range(8):
        I(f"v_lshlrev_b32 v{XF+2*q}, 16, v{X1K+q}")
        I(f"v_and_b32 v{XF+2*q+1}, s{sHi}, v{X1K+q}")
    I(f"v_lshlrev_b32 v12, 10, v20")
    I(f"v_and_b32 v7, 1, v{vG}")
    I(f"v_lshl_add_u32 v12, v7, 5, v12")
    I(f"v_lshrrev_b32 v7, 1, v{vG}")
    I(f"v_lshl_add_u32 v12, v7, 4, v12")
    barrier()
    poll_flags(6, 7)
    EA = 32; EC = 128; DEPTH = 6
    def ld(j, r):
        base = 11 if j == 10 else 8 + (j >> 2)
        return I(f"buffer_load_dwordx4 {vr(EA+((j%DEPTH)*4+r)*4,4)}, v{base}, {S(SWS)}, s{sR+r} offen offset:{(j&3)*1024} sc1")
    ids = [[ld(j, r) for r in range(4)] for j in range(DEPTH - 1)]
    for j in range(11):
        nx = []
        for r in range(4):
            if j + DEPTH - 1 < 11: nx.append(ld(j + DEPTH - 1, r))
            wait_vm(ids[j][r])
            for c in range(4):
                acc = vr(EC + (c * 4 + r) * 4, 4)
                I(f"v_mfma_f32_16x16x32_bf16 {acc}, {ar(DF(j,c),4)}, {vr(EA+((j%DEPTH)*4+r)*4,4)}, {acc if j else 0}")
        ids.append(nx)
    O = 32
    reduce_scatter(EC, O)
    for q in range(0, 16, 2):
        I(f"v_pk_fma_f32 {vr(O+q,2)}, {vr(O+q,2)}, {vr(GB+q,2)}, {vr(XF+q,2)}")
    for q in range(8):
        I(f"v_cvt_pk_bf16_f32 v{XF+q}, v{O+2*q}, v{O+2*q+1}")
    I(f"s_lshl_b32 s{sT1}, s{sCtC}, 7")
    for p in range(2):
        I(f"v_permlane16_swap_b32 v{XF+4*p}, v{XF+4*p+2}")
        I(f"v_permlane16_swap_b32 v{XF+4*p+1}, v{XF+4*p+3}")
    I(f"buffer_store_dwordx4 {vr(XF,4)}, v12, {S(SOUT)}, s{sT1} offen")
    I(f"buffer_store_dwordx4 {vr(XF+4,4)}, v12, {S(SOUT)}, s{sT1} offen offset:64")

def write_epoch():
    I(f"s_lshl_b32 s{sT0}, s2, 8")
    I(f"v_or_b32 v6, s{sT0}, v{vTid}")
    I(f"v_cmp_eq_u32 vcc, 0, v6")
    I(f"v_mov_b32 v7, {OOB}")
    I(f"v_cndmask_b32 v7, v7, {WS_EPOCH}, vcc")
    I(f"buffer_store_dword v{vTag}, v7, {S(SWS)}, 0 offen")

def body():
    aids = prologue()
    stamp()
    xids = x_issue()
    consts()
    wq_addr()
    phaseA_compute(aids)
    stamp()
    wphi_issue()
    r1 = rec(layernorm, xids)
    r2 = rec(lambda: [wq_dma(p) for p in range(4)])
    merge(A, [r1, r2], [(0, 1), (0, 0.8)])
    wids = list(r2.ret)
    h_addr()
    stamp()
    for p in range(3):
        wait_vm(wids[p]); barrier(); wq_tr(p)
    wphi_pack()
    wait_vm(wids[3]); barrier()
    def pre():
        wids.append(wq_dma(4)); wq_tr(3)
    stamp()
    gather_mod([0], 192, pre)
    barrier()
    stamp()
    make_h(0, True)
    make_h(1, True)
    barrier()
    cur = [a_rd(0, rt) for rt in range(4)]
    rm = rec(gemm_kv, 0, 6, cur); rb_ = rec(lambda: (make_h(2, False), make_h(3, False))); rc = rec(lambda: (wq_dma(5), pf_wo_gu(7))[0])
    merge(A, [rm, rb_, rc], [(0, 1), (0, 0.95), (0, 0.9)])
    wids.append(rc.ret)
    cur = gemm_kv(6, 7, rm.ret)
    barrier()
    cur = gemm_kv(7, 10, cur)
    wait_vm(wids[5]); I("s_barrier")
    rm = rec(gemm_kv, 10, 16, cur); rb_ = rec(lambda: (wq_tr(4), wq_tr(5)))
    merge(A, [rm, rb_], [(0, 1), (0, 0.8)])
    wphi_final()
    barrier()
    stamp()
    rm = rec(epi_k); rb_ = rec(wo_dma)
    nset = rb_.first_dma
    setup = Rec(); setup.ops = rb_.ops[:nset]; rb_.ops = rb_.ops[nset:]
    merge(A, [setup])
    merge(A, [rm, rb_], [(0, 1), (0, 0.7)])
    wo_last = rb_.ret
    stamp()
    rm = rec(gemm_q); rb_ = rec(wgu_setup)
    merge(A, [rm, rb_], [(0, 1), (0.3, 1.0)])
    if STOP == 1:
        A.fence(16)
        dbg_dump([vr(accQ(k), 4) for k in range(4)] + [vr(accK(k), 4) for k in range(4)] + [vr(accV(k), 4) for k in range(4)], 0)
        return
    barrier()
    stamp()
    g = {}
    rm = rec(epi_q); rb_ = rec(wgu_dma, 0); rc = rec(kv_reduce_issue)
    merge(A, [rm, rb_, rc], [(0, 1), (0, 0.5), (0.55, 0.75)])
    g[0] = rb_.ret
    stamp()
    kv_reduce_finish(rc.ret)
    set_flag(sT1, rm.ret)
    stamp()
    if STOP == 2: return
    wo_tr(wo_last)
    wgu_traddr()
    phiq_load()
    stamp()
    barrier()
    wgu_tr(0)
    gather_mod([1, 2], 192)
    stamp()
    kv_load()
    barrier()
    stamp()
    rm = rec(c_compute); rb_ = rec(lambda: (pf_wd(27, 31), wgu_dma(1), c_xload(), wgu_dma(2))[1:])
    merge(A, [rm, rb_], [(0, 1), (0, 0.9)])
    g[1], xid, g[2] = rb_.ret
    stamp()
    epilogueC(xid)
    stamp()
    if STOP == 3: return
    g[3] = wgu_dma(3)
    wgu_tr(1); wgu_tr(2)
    wait_vm(g[3]); barrier()
    wgu_tr(3)
    wd_setup()
    stamp()
    ids, sid = d_start()
    stamp()
    u12()
    d_epilogue(sid)
    stamp()
    wd = d_gemm(ids)
    stamp()
    d_epilogue2()
    stamp()
    if STOP == 4: return
    for j in range(6, 11): wd_tr(j, wd[j])
    phaseE()
    stamp()

hdr = open(f"cdna_kernels/{NAME}.s.ref").read().split("; Override launch")[0]
A.raw(hdr.rstrip())
A.raw(f"; @launch grid=(256,1,1) block=(256,1,1) lds={LDS_BYTES}")
A.raw('.amdgcn_target "amdgcn-amd-amdhsa--gfx950"')
A.raw(".text")
A.raw(f".globl {NAME}_kernel")
A.raw(".p2align 8")
A.raw(f".type {NAME}_kernel,@function")
A.raw(f"{NAME}_kernel:")
body()
write_epoch()
A.raw("L_end:")
I("s_endpgm")
A.raw("L_code_end:")
A.raw('.section .rodata,"a"')
A.raw(".p2align 6")
A.raw(f".amdhsa_kernel {NAME}_kernel")
A.raw("  .amdhsa_next_free_vgpr 512")
A.raw("  .amdhsa_next_free_sgpr 102")
A.raw("  .amdhsa_accum_offset 256")
A.raw("  .amdhsa_group_segment_fixed_size 0")
A.raw("  .amdhsa_kernarg_size 104")
A.raw("  .amdhsa_user_sgpr_count 2")
A.raw("  .amdhsa_user_sgpr_kernarg_segment_ptr 1")
A.raw("  .amdhsa_system_sgpr_workgroup_id_x 1")
A.raw(".end_amdhsa_kernel")
out = sys.argv[1] if len(sys.argv) > 1 else f"cdna_kernels/{NAME}.s"
open(out, "w").write(A.text())
print("instructions:", A.ninstr, "stamps:", stamp_idx[0], "->", out)
```

```python
import sys
from asmlib import *

NAME = "adaLN_cond__linear_kernel_hedgehog__glu_gated_bilinear__prompt"
STOP = int(sys.argv[2]) if len(sys.argv) > 2 else 99
STAMP = int(sys.argv[3]) if len(sys.argv) > 3 else 0

WS_EPOCH = 0
WS_FQ = 0x80000
WS_FX = 0x88000
WS_FH = 0x90000
WS_MODF = 0x10000
WS_KVF = 0x20000
WS_STAT = 0x40000
WS_KVP = 0x100000
WS_PHIQ = 0x400000
WS_X1P = 0x800000
WS_HH = 0xA00000
WS_DBG = 0x1000000
WS_STAMP = 0x1F00000
WS_SIZE = 0x2000000
OOB = 0x7ffffff0
KVREC = 2176
K = 1024
L_MODV = 144 * K
L_MISC = 156 * K
LDS_BYTES = 160 * K
SPIN = 400000

sTag, sW, sJ = 4, 5, 6
sCtB, sRbB, sCtC, sRbC, sGrpC, sMC, sGrpD, sMD = 7, 8, 9, 10, 36, 37, 38, 39
sT0, sT1, sT2, sT3, sCnt = 11, 12, 13, 14, 15
sK, sKW, sKM = 16, 20, 24
sW4096 = 28
sP0, sP1, sP2, sP3 = 29, 30, 31, 32
sFt0, sHead, sB0 = 33, 34, 35
sTx, sTz, sB1, sB2 = 40, 41, 42, 43
SX, SWQKV, SWPHI, SWO, SWG, SWU, SWD, SC, SWMOD, SOUT, SWS = 44, 48, 52, 56, 60, 64, 68, 72, 76, 80, 84
SGU = 72
sR = 76
sSel = 88
sSelA, sSelB = 92, 93
sL, sL2, sNL, sNL2 = 94, 95, 96, 97
sHi = 98
sSelHi = 99

A = Asm(); A.phmap = {}
class Em: pass
E = Em(); E.t = A
def I(t): return E.t.I(t)
def wait_vm(x=None): E.t.wait_vm(A.phmap.get(x, x) if (E.t is A and x is not None) else x)
def wait_lg(x=None): E.t.wait_lg(A.phmap.get(x, x) if (E.t is A and x is not None) else x)
def barrier(): E.t.barrier()
def rec(fn, *a):
    r = Rec(); old = E.t; E.t = r
    ret = fn(*a)
    E.t = old
    r.ret = ret
    return r
def gbegin():
    if E.t is not A: E.t.begin()
def gend():
    if E.t is not A: E.t.end()
def pad(c):
    if E.t is not A: E.t.pad(c)

def srd(base, ptr, nbytes):
    I(f"s_mov_b32 s{base}, s{ptr}")
    I(f"s_and_b32 s{base+1}, s{ptr+1}, 0xffff")
    I(f"s_mov_b32 s{base+2}, {nbytes}")
    I(f"s_mov_b32 s{base+3}, 0x20000")
def S(b): return sr(b, 4)

vTid, vL, vG, vT, vTag, vL16 = 0, 1, 2, 3, 4, 5

stamp_idx = [0]
DBGSET = [0, 1, 2, 4, 5, 6, 8, 9, 12, 13, 14, 16, 17, 18, 19, 20]
def stamp():
    if not STAMP: return
    n = stamp_idx[0]; stamp_idx[0] += 1
    if STAMP == 3:
        if n not in DBGSET: return
        n = DBGSET.index(n)
    I("s_memrealtime s[100:101]" if STAMP != 2 else "s_memtime s[100:101]")
    I("s_waitcnt lgkmcnt(0)")
    A.lg = []
    I("v_mov_b32 v6, s100")
    I(f"v_lshlrev_b32 v7, 1, v{vTid}")
    I(f"v_and_b32 v7, 0x180, v7")
    I(f"s_lshl_b32 s100, s2, 9")
    I(f"s_add_u32 s100, s100, {WS_STAMP + 4*n}")
    I(f"buffer_store_dword v6, v7, {S(SWS)}, s100 offen")
def stamp_out():
    if STAMP != 3: return
    I("s_cmp_lg_u32 s2, 100")
    I("s_cbranch_scc1 L_end")
    I(f"s_load_dwordx2 s[20:21], s[0:1], 88")
    I("s_waitcnt vmcnt(0) lgkmcnt(0)")
    srd(16, 20, 64)
    I(f"v_lshlrev_b32 v7, 2, v{vTid}")
    I(f"s_mov_b32 s100, {WS_STAMP + 100*512}")
    I(f"buffer_load_dword v6, v7, {S(SWS)}, s100 offen sc1")
    I("s_waitcnt vmcnt(0)")
    I(f"buffer_store_dword v6, v7, s[16:19], 0 offen")

def tag4(b):
    for i in range(4):
        I(f"v_perm_b32 v{b+i}, v{b+i}, v{vTag}, s{sSel+i}")
def check4(bad, b, t0, t1, first):
    I(f"v_perm_b32 v{t0}, v{b+1}, v{b}, s{sSelA}")
    I(f"v_perm_b32 v{t1}, v{b+3}, v{b+2}, s{sSelB}")
    if first:
        I(f"v_bitop3_b32 v{bad}, v{t0}, v{t1}, v{vTag} bitop3:0x96")
    else:
        I(f"v_bitop3_b32 v{t0}, v{t0}, v{t1}, v{vTag} bitop3:0x96")
        I(f"v_or_b32 v{bad}, v{bad}, v{t0}")

def spin_loop(body, first_done=False):
    lab = A.newlabel("Lspin"); done = A.newlabel("Ldone")
    saved_vm, saved_lg = list(A.vm), list(A.lg)
    if first_done:
        I(f"s_cbranch_vccz {done}")
    I(f"s_mov_b32 s{sCnt}, 0")
    A.fence(4)
    A.label(lab)
    body()
    I(f"s_cbranch_vccz {done}")
    I(f"s_add_u32 s{sCnt}, s{sCnt}, 1")
    I(f"s_cmp_lt_u32 s{sCnt}, {SPIN}")
    I(f"s_cbranch_scc1 {lab}")
    A.label(done)
    if first_done:
        A.vm, A.lg = saved_vm, saved_lg
    A.fence(2)

def poll_flags(vaddr, vtmp):
    def body():
        I(f"buffer_load_dword v{vtmp}, v{vaddr}, {S(SWS)}, 0 offen sc1")
        I("s_waitcnt vmcnt(0)"); A.vm = []
        I(f"v_cmp_ne_u32 vcc, v{vtmp}, v{vTag}")
    spin_loop(body)

vLane0 = 23
def set_flag(soff_reg, last):
    wait_vm(last)
    I("s_barrier")
    I(f"buffer_store_dword v{vTag}, v{vLane0}, {S(SWS)}, s{soff_reg} offen sc1")

def xlane4(vals, op, mid=None):
    a, b, c, d = vals
    I(f"v_permlane32_swap_b32 v{a}, v{b}")
    I(f"v_permlane32_swap_b32 v{c}, v{d}")
    I(f"{op} v{a}, v{a}, v{b}")
    I(f"{op} v{c}, v{c}, v{d}")
    I(f"v_permlane16_swap_b32 v{a}, v{c}")
    I(f"{op} v{a}, v{a}, v{c}")
    if mid: mid(a)
    I(f"v_mov_b32 v{c}, v{a}")
    I(f"v_permlane16_swap_b32 v{a}, v{c}")
    I(f"v_mov_b32 v{b}, v{a}")
    I(f"v_mov_b32 v{d}, v{c}")
    I(f"v_permlane32_swap_b32 v{a}, v{b}")
    I(f"v_permlane32_swap_b32 v{c}, v{d}")

def xlane4x2(v1, op1, mid1, v2, op2, mid2):
    r1 = rec(xlane4, v1, op1, mid1); r2 = rec(xlane4, v2, op2, mid2)
    for (o1, _), (o2, _) in zip(r1.ops, r2.ops):
        I(o1[1]); I(o2[1])

def dbg_dump(regs, slot):
    I(f"v_lshlrev_b32 v6, 4, v{vTid}")
    for k, r in enumerate(regs):
        I(f"s_lshl_b32 s{sT0}, s2, 12")
        I(f"s_add_u32 s{sT0}, s{sT0}, {WS_DBG + (slot + k) * 256 * 4096}")
        I(f"buffer_store_dwordx4 {r}, v6, {S(SWS)}, s{sT0} offen")
    wait_vm()

def bf_round4(b, t):
    I(f"v_cvt_pk_bf16_f32 v{t}, v{b}, v{b+1}")
    I(f"v_cvt_pk_bf16_f32 v{t+1}, v{b+2}, v{b+3}")
    I(f"v_lshlrev_b32 v{b}, 16, v{t}")
    I(f"v_and_b32 v{b+1}, s{sHi}, v{t}")
    I(f"v_lshlrev_b32 v{b+2}, 16, v{t+1}")
    I(f"v_and_b32 v{b+3}, s{sHi}, v{t+1}")

def prologue():
    I("s_cmp_ge_u32 s2, 256")
    I("s_cbranch_scc1 L_end")
    I("s_load_dwordx8 s[32:39], s[0:1], 64")
    I("s_load_dwordx16 s[16:31], s[0:1], 0")
    I("s_load_dwordx2 s[40:41], s[0:1], 96")
    I("s_getpc_b64 s[100:101]")
    A.raw("L_pc:")
    I(f"v_and_b32 v{vL}, 63, v0")
    I(f"v_lshrrev_b32 v6, 6, v0")
    I(f"v_lshrrev_b32 v{vG}, 4, v{vL}")
    I(f"v_and_b32 v{vT}, 15, v0")
    I(f"v_readfirstlane_b32 s{sW}, v6")
    I(f"v_lshlrev_b32 v{vL16}, 4, v{vL}")
    I(f"s_lshr_b32 s{sJ}, s2, 3")
    I(f"s_and_b32 s3, s2, 7")
    I(f"s_sub_u32 s{sT0}, s{sJ}, 24")
    I(f"s_cmp_ge_u32 s{sJ}, 24")
    I(f"s_cselect_b32 s{sT0}, s{sT0}, s{sJ}")
    I(f"s_lshr_b32 s{sT1}, s{sT0}, 2")
    I(f"s_lshl_b32 s{sT1}, s{sT1}, 3")
    I(f"s_add_u32 s{sT1}, s{sT1}, s3")
    I(f"s_lshl_b32 s{sT1}, s{sT1}, 2")
    I(f"s_and_b32 s{sT0}, s{sT0}, 3")
    I(f"s_add_u32 s{sT3}, s{sT1}, s{sT0}")
    I(f"v_lshrrev_b32 v6, 1, v0")
    I(f"v_and_b32 v6, 31, v6")
    I(f"s_lshl_b32 s{sT0}, s{sW}, 7")
    I(f"v_add_u32 v6, s{sT0}, v6")
    I(f"v_lshlrev_b32 v7, 1, v6")
    I(f"v_mul_u32_u24 v8, 6144, v6")
    I(f"v_and_b32 v9, 1, v0")
    I(f"v_lshl_add_u32 v8, v9, 4, v8")
    I(f"s_lshl_b32 s{sT0}, s{sT3}, 5")
    I("s_waitcnt lgkmcnt(0)")
    srd(SC, 32, 1024)
    srd(SWMOD, 34, 512 * 3072 * 2)
    ids = []
    for i in range(4):
        I(f"s_add_u32 s{sT1}, s{sT0}, {i*32*6144}")
        ids.append(I(f"buffer_load_dwordx4 {vr(32+4*i,4)}, v8, {S(SWMOD)}, s{sT1} offen"))
    for i in range(4):
        ids.append(I(f"buffer_load_ushort v{48+i}, v7, {S(SC)}, 0 offen offset:{64*i}"))
    I(f"s_load_dword s{sTag}, s[40:41], {WS_EPOCH}")
    I(f"s_and_b32 s{sT0}, s{sJ}, 15")
    I(f"s_lshl_b32 s{sT0}, s{sT0}, 12")
    I(f"v_lshlrev_b32 v6, 4, v0")
    I(f"v_add_u32 v6, s{sT0}, v6")
    I(f"v_min_u32 v6, L_code_end-L_pc-16, v6")
    I(f"global_load_dwordx4 v[60:63], v6, s[100:101]")
    srd(SX, 16, 2048 * 512 * 2)
    srd(SWQKV, 18, 512 * 1536 * 2)
    srd(SWPHI, 20, 32 * 512)
    srd(SWO, 22, 512 * 512 * 2)
    srd(SWG, 26, 512 * 1376 * 2)
    srd(SWU, 28, 512 * 1376 * 2)
    srd(SWD, 30, 1376 * 512 * 2)
    srd(SOUT, 36, 2048 * 512 * 2)
    srd(SWS, 40, WS_SIZE)
    I(f"s_lshr_b32 s{sT0}, s3, 1")
    I(f"s_and_b32 s{sT1}, s3, 1")
    I(f"s_lshr_b32 s{sT2}, s{sJ}, 2")
    I(f"s_lshl_b32 s{sRbB}, s{sT0}, 3")
    I(f"s_add_u32 s{sRbB}, s{sRbB}, s{sT2}")
    I(f"s_and_b32 s{sP0}, s{sT2}, 3")
    I(f"s_and_b32 s{sT2}, s{sJ}, 3")
    I(f"s_lshl_b32 s{sCtB}, s{sT1}, 2")
    I(f"s_add_u32 s{sCtB}, s{sCtB}, s{sT2}")
    I(f"s_lshr_b32 s{sT2}, s{sJ}, 3")
    I(f"s_lshl_b32 s{sGrpD}, s{sT0}, 2")
    I(f"s_add_u32 s{sGrpD}, s{sGrpD}, s{sT2}")
    I(f"s_and_b32 s{sT2}, s{sJ}, 7")
    I(f"s_lshl_b32 s{sMD}, s{sT1}, 3")
    I(f"s_add_u32 s{sMD}, s{sMD}, s{sT2}")
    I(f"s_lshr_b32 s{sT2}, s{sJ}, 4")
    I(f"s_lshl_b32 s{sGrpC}, s3, 1")
    I(f"s_add_u32 s{sGrpC}, s{sGrpC}, s{sT2}")
    I(f"s_and_b32 s{sMC}, s{sJ}, 15")
    I(f"s_and_b32 s{sCtC}, s{sJ}, 7")
    I(f"s_lshr_b32 s{sT2}, s{sJ}, 3")
    I(f"s_lshl_b32 s{sRbC}, s3, 2")
    I(f"s_add_u32 s{sRbC}, s{sRbC}, s{sT2}")
    for u in range(4):
        I(f"s_add_u32 s{sT0}, s{sP0}, {u}")
        I(f"s_and_b32 s{sT0}, s{sT0}, 3")
        I(f"s_lshl_b32 s{sK+u}, s{sT0}, 8")
        I(f"s_mul_i32 s{sKW+u}, s{sT0}, {128*3072}")
        I(f"s_lshl_b32 s{sKM+u}, s{sT0}, 9")
    I(f"s_lshl_b32 s{sW4096}, s{sW}, 12")
    return ids

def consts():
    for i in range(4):
        I(f"s_mov_b32 s{sSel+i}, {0x07060500 | i:#x}")
    I(f"s_mov_b32 s{sSelA}, 0x0c0c0400")
    I(f"s_mov_b32 s{sSelB}, 0x04000c0c")
    I(f"s_mov_b32 s{sL}, 0x3fb8aa3b")
    I(f"s_mov_b32 s{sL2}, 0x3fb8aa3b")
    I(f"s_mov_b32 s{sNL}, 0xbfb8aa3b")
    I(f"s_mov_b32 s{sNL2}, 0xbfb8aa3b")
    I(f"s_mov_b32 s{sHi}, 0xffff0000")
    I(f"s_mov_b32 s{sSelHi}, 0x07060302")
    I(f"v_cmp_eq_u32 vcc, 0, v{vTid}")
    I(f"v_mov_b32 v{vLane0}, {OOB}")
    I(f"v_cndmask_b32 v{vLane0}, v{vLane0}, 0, vcc")

XH = 64
RAW = 192
vRow = 16
def x_issue():
    ids = {}
    I(f"s_lshl_b32 s{sT0}, s{sRbB}, 6")
    I(f"s_lshl_b32 s{sT1}, s{sW}, 4")
    I(f"s_add_u32 s{sT0}, s{sT0}, s{sT1}")
    for i in range(4):
        I(f"s_add_u32 s{sT2}, s{sJ}, {i}")
        I(f"s_and_b32 s{sT2}, s{sT2}, 3")
        I(f"s_lshl_b32 s{sT2}, s{sT2}, 2")
        I(f"v_add_u32 v{vRow+i}, s{sT2}, v{vG}")
        I(f"v_add_u32 v9, s{sT0}, v{vRow+i}")
        I(f"v_lshlrev_b32 v9, 10, v9")
        I(f"v_lshl_add_u32 v9, v{vT}, 4, v9")
        for u in range(4):
            ids[(i, u)] = I(f"buffer_load_dwordx4 {vr(RAW + (i*4+u)*4, 4)}, v9, {S(SX)}, s{sK+u} offen")
    return ids

def phaseA_compute(ids):
    wait_vm(ids[7])
    for i in range(4): I(f"v_lshlrev_b32 v{48+i}, 16, v{48+i}")
    for i in range(4): I(f"v_mul_f32 v{52+i}, s{sNL}, v{48+i}")
    for i in range(4): I(f"v_min_f32 v{52+i}, 0x42f00000, v{52+i}")
    for i in range(4): I(f"v_exp_f32 v{52+i}, v{52+i}")
    for i in range(4): I(f"v_add_f32 v{52+i}, 1.0, v{52+i}")
    for i in range(4): I(f"v_rcp_f32 v{56+i}, v{52+i}")
    for i in range(4): I(f"v_mul_f32 v{8+i}, v{48+i}, v{56+i}")
    for i in range(4): I(f"v_fma_f32 v{48+i}, -v{8+i}, v{52+i}, v{48+i}")
    for i in range(4): I(f"v_fma_f32 v{48+i}, v{48+i}, v{56+i}, v{8+i}")
    bf_round4(48, 52)
    AC = 8
    for i in range(4):
        for d in range(4):
            I(f"v_lshlrev_b32 v52, 16, v{32+4*i+d}")
            I(f"v_and_b32 v53, s{sHi}, v{32+4*i+d}")
            if i == 0:
                I(f"v_mul_f32 v{AC+2*d}, v{48+i}, v52")
                I(f"v_mul_f32 v{AC+1+2*d}, v{48+i}, v53")
            else:
                I(f"v_fmac_f32 v{AC+2*d}, v{48+i}, v52")
                I(f"v_fmac_f32 v{AC+1+2*d}, v{48+i}, v53")
    for e in range(4): I(f"v_permlane32_swap_b32 v{AC+e}, v{AC+4+e}")
    for e in range(4): I(f"v_add_f32 v{AC+e}, v{AC+e}, v{AC+4+e}")
    for e in range(2): I(f"v_permlane16_swap_b32 v{AC+e}, v{AC+2+e}")
    for e in range(2): I(f"v_add_f32 v{AC+e}, v{AC+e}, v{AC+2+e}")
    I(f"v_and_b32 v6, 1, v{vL}")
    I(f"v_lshlrev_b32 v6, 5, v6")
    I(f"v_lshl_add_u32 v6, v{vG}, 3, v6")
    for r in (8, 4, 2):
        for e in range(2):
            I(f"v_add_f32_dpp v{AC+e}, v{AC+e}, v{AC+e} row_ror:{r} row_mask:0xf bank_mask:0xf")
        if r == 8:
            I(f"s_lshl_b32 s{sT0}, s{sW}, 6")
            I(f"s_add_u32 s{sT0}, s{sT0}, {L_MISC}")
        if r == 4:
            I(f"v_add_u32 v6, s{sT0}, v6")
            I(f"v_and_b32 v7, 3, v{vL}")
    I(f"ds_write_b64 v6, {vr(AC,2)}")
    I(f"v_lshlrev_b32 v7, 4, v7")
    I(f"v_add_u32 v6, {L_MISC}, v7")
    I("s_waitcnt lgkmcnt(0)"); A.lg = []
    I("s_barrier")
    for w in range(4):
        I(f"ds_read_b128 {vr(32+4*w,4)}, v6 offset:{64*w}")
    I(f"s_add_u32 s{sTag}, s{sTag}, 0x9e3779b1")
    I(f"v_mov_b32 v{vTag}, s{sTag}")
    I(f"s_lshr_b32 s{sT0}, s{sT3}, 5")
    I(f"s_cmp_eq_u32 s{sT0}, 1")
    I(f"s_cselect_b32 s{sT1}, 1.0, 0")
    I(f"s_cmp_eq_u32 s{sT0}, 4")
    I(f"s_cselect_b32 s{sT1}, 1.0, s{sT1}")
    I(f"v_cmp_gt_u32 vcc, 4, v{vTid}")
    I(f"v_mov_b32 v6, {OOB}")
    I(f"v_cndmask_b32 v7, v6, v7, vcc")
    I(f"s_lshl_b32 s{sT0}, s{sT3}, 6")
    I(f"s_add_u32 s{sT0}, s{sT0}, {WS_MODF}")
    wait_lg()
    for e in (0, 2):
        I(f"v_pk_add_f32 {vr(32+e,2)}, {vr(32+e,2)}, {vr(36+e,2)}")
        I(f"v_pk_add_f32 {vr(40+e,2)}, {vr(40+e,2)}, {vr(44+e,2)}")
    for e in (0, 2):
        I(f"v_pk_add_f32 {vr(32+e,2)}, {vr(32+e,2)}, {vr(40+e,2)}")
    bf_round4(32, 36)
    for e in range(4): I(f"v_add_f32 v{32+e}, s{sT1}, v{32+e}")
    bf_round4(32, 36)
    tag4(32)
    I(f"buffer_store_dwordx4 v[32:35], v7, {S(SWS)}, s{sT0} offen sc1")

def rows128_voff(vb, pitch, std, extra_s=None):
    I(f"v_lshrrev_b32 v6, 3, v{vL}")
    I(f"v_bfe_u32 v7, v{vL}, 4, {1 if std else 2}")
    I(f"v_bfe_u32 v8, v{vL}, 1, 2")
    I(f"v_xor_b32 v8, v8, v7")
    I(f"v_and_b32 v9, 1, v{vL}")
    I(f"v_lshlrev_b32 v9, 4, v9")
    I(f"v_lshl_add_u32 v9, v8, 5, v9")
    I(f"v_mul_u32_u24 v6, {pitch}, v6")
    if extra_s is not None: I(f"v_add_u32 v6, s{extra_s}, v6")
    I(f"v_add_u32 v{vb}, v6, v9")
    if std:
        I(f"v_xor_b32 v9, 64, v9")
        I(f"v_add_u32 v{vb+1}, v6, v9")
        I(f"v_add_u32 v{vb+1}, {8*pitch - 1024}, v{vb+1}")
    else:
        I(f"v_add_u32 v{vb+1}, {8*pitch - 1024}, v{vb}")
    I(f"v_add_u32 v{vb+2}, {2*(8*pitch - 1024)}, v{vb}")
    I(f"v_add_u32 v{vb+3}, {2*(8*pitch - 1024)}, v{vb+1}")

def dma4(vb, srd_, m0_s, m0_imm, so_s, so_imm, flags=""):
    if E.t is not A and not hasattr(E.t, "first_dma"): E.t.first_dma = len(E.t.ops)
    I(f"s_add_u32 m0, s{m0_s}, {m0_imm}")
    I(f"s_add_u32 s{sB0}, s{so_s}, {so_imm}")
    for i in range(4):
        last = I(f"buffer_load_dwordx4 v{vb[i] if isinstance(vb, list) else vb+i}, {srd_}, s{sB0} offen offset:{i*1024}{flags} lds")
        pad(100)
    return last

vBG = 24
def KF(u, s): return (u * 4 + s) * 4
def VF(u, s): return 64 + (u * 4 + s) * 4
def QF(u, s): return 128 + (u * 4 + s) * 4
PSLOT = [0, 32 * K, 64 * K, 96 * K, 64 * K, 96 * K]
PUNITS = [[(1, 0), (2, 0)], [(1, 1), (2, 1)], [(1, 2), (2, 2)], [(1, 3), (2, 3)], [(0, 0), (0, 1)], [(0, 2), (0, 3)]]
def wq_addr():
    I(f"s_mul_i32 s{sT0}, s{sW}, {32*3072}")
    I(f"s_lshl_b32 s{sT1}, s{sCtB}, 7")
    I(f"s_add_u32 s{sT0}, s{sT0}, s{sT1}")
    rows128_voff(vBG, 3072, True, sT0)
    I(f"v_bfe_u32 v6, v{vL}, 2, 2")
    I(f"v_lshl_add_u32 v6, v{vG}, 3, v6")
    I(f"v_lshlrev_b32 v6, 7, v6")
    I(f"v_bfe_u32 v7, v{vL}, 3, 2")
    I(f"v_xor_b32 v7, s{sW}, v7")
    I(f"v_lshl_add_u32 v6, v7, 5, v6")
    I(f"v_and_b32 v7, 3, v{vL}")
    I(f"v_lshl_add_u32 v28, v7, 3, v6")
    I(f"v_add_u32 v29, {64*K}, v28")
def wq_dma(p):
    for sub, (sg, u) in enumerate(PUNITS[p]):
        last = dma4(vBG, S(SWQKV), sW4096, PSLOT[p] + sub * 16 * K, sKW + u, sg * 1024)
    return last
def wq_tr(p):
    base = 28 if PSLOT[p] < 64 * K else 29
    off = PSLOT[p] % (64 * K)
    for sub, (sg, u) in enumerate(PUNITS[p]):
        for s in range(4):
            f = (QF, KF, VF)[sg](u, s)
            I(f"ds_read_b64_tr_b16 {ar(f,2)}, v{base} offset:{off + sub*16*K + s*4096}")
            I(f"ds_read_b64_tr_b16 {ar(f+2,2)}, v{base} offset:{off + sub*16*K + s*4096 + 512}")

def layernorm(xids):
    for i in range(4):
        wait_vm(xids[(i, 3)])
        xb = XH + i * 32
        for q in range(16):
            I(f"v_lshlrev_b32 v{xb+2*q}, 16, v{RAW+i*16+q}")
            I(f"v_and_b32 v{xb+2*q+1}, s{sHi}, v{RAW+i*16+q}")
        I(f"v_pk_add_f32 v[32:33], {vr(xb,2)}, {vr(xb+2,2)}")
        I(f"v_pk_add_f32 v[34:35], {vr(xb+4,2)}, {vr(xb+6,2)}")
        for q in range(4, 16, 2):
            I(f"v_pk_add_f32 v[32:33], v[32:33], {vr(xb+2*q,2)}")
            I(f"v_pk_add_f32 v[34:35], v[34:35], {vr(xb+2*q+2,2)}")
        I("v_pk_add_f32 v[32:33], v[32:33], v[34:35]")
        I("v_add_f32 v32, v32, v33")
        for r in (8, 4, 2, 1):
            I(f"v_add_f32_dpp v32, v32, v32 row_ror:{r} row_mask:0xf bank_mask:0xf")
        I("v_mul_f32 v32, 0xbb000000, v32")
        for q in range(16):
            I(f"v_pk_add_f32 {vr(xb+2*q,2)}, {vr(xb+2*q,2)}, v[32:33] op_sel_hi:[1,0]")
        I(f"v_pk_mul_f32 v[34:35], {vr(xb,2)}, {vr(xb,2)}")
        I(f"v_pk_mul_f32 v[36:37], {vr(xb+2,2)}, {vr(xb+2,2)}")
        for q in range(2, 16, 2):
            I(f"v_pk_fma_f32 v[34:35], {vr(xb+2*q,2)}, {vr(xb+2*q,2)}, v[34:35]")
            I(f"v_pk_fma_f32 v[36:37], {vr(xb+2*q+2,2)}, {vr(xb+2*q+2,2)}, v[36:37]")
        I("v_pk_add_f32 v[34:35], v[34:35], v[36:37]")
        I("v_add_f32 v34, v34, v35")
        for r in (8, 4, 2, 1):
            I(f"v_add_f32_dpp v34, v34, v34 row_ror:{r} row_mask:0xf bank_mask:0xf")
        I("v_mov_b32 v35, 0x3727c5ac")
        I("v_fmac_f32 v35, 0x3b000000, v34")
        I("v_rsq_f32 v34, v35")
        for q in range(16):
            I(f"v_pk_mul_f32 {vr(xb+2*q,2)}, {vr(xb+2*q,2)}, v[34:35] op_sel_hi:[1,0]")

def gather_mod(sets, G0, pre=None):
    I(f"v_lshlrev_b32 v6, 4, v{vTid}")
    I(f"v_add_u32 v7, {WS_MODF}, v6")
    def loads():
        out = None
        for k, n in enumerate(sets):
            I(f"s_mov_b32 s{sT0}, {n*4096}")
            out = I(f"buffer_load_dwordx4 {vr(G0+4*k,4)}, v7, {S(SWS)}, s{sT0} offen sc1")
        return out
    def checks():
        for k in range(len(sets)):
            check4(8, G0 + 4 * k, 9, 10, k == 0)
        I("v_cmp_ne_u32 vcc, 0, v8")
    last = loads()
    if pre: pre()
    wait_vm(last)
    checks()
    def body():
        loads(); I("s_waitcnt vmcnt(0)"); A.vm = []; checks()
    spin_loop(body, first_done=True)
    I(f"v_add_u32 v6, {L_MODV}, v6")
    for k, n in enumerate(sets):
        for e in range(4):
            I(f"v_and_b32 v{G0+4*k+e}, s{sHi}, v{G0+4*k+e}")
        I(f"ds_write_b128 v6, {vr(G0+4*k,4)} offset:{n*4096}")

def h_addr():
    for i in range(4):
        I(f"v_xor_b32 v6, v{vT}, v{vRow+i}")
        I(f"v_lshlrev_b32 v6, 4, v6")
        I(f"v_lshl_add_u32 v6, v{vRow+i}, 8, v6")
        I(f"v_add_u32 v{vRow+i}, s{sW4096}, v6")
    I(f"v_lshlrev_b32 v20, 5, v{vT}")
    I(f"v_add_u32 v20, {L_MODV}, v20")
    for s in range(4):
        I(f"v_add_u32 v6, {4*s}, v{vG}")
        I(f"v_xor_b32 v6, v6, v{vT}")
        I(f"v_lshlrev_b32 v6, 4, v6")
        I(f"v_lshl_add_u32 v{12+s}, v{vT}, 8, v6")

def make_h(u, pk):
    I(f"v_add_u32 v6, s{sKM+u}, v20")
    I(f"ds_read_b128 v[240:243], v6 offset:2048")
    I(f"ds_read_b128 v[244:247], v6 offset:2064")
    I(f"ds_read_b128 v[248:251], v6")
    x = I(f"ds_read_b128 v[252:255], v6 offset:16")
    pad(120)
    wait_lg(x)
    for i in range(4):
        b = XH + (i * 4 + u) * 8
        if pk:
            for e in range(0, 8, 2):
                I(f"v_pk_fma_f32 {vr(b+e,2)}, {vr(b+e,2)}, {vr(240+e,2)}, {vr(248+e,2)}")
        else:
            for e in range(8):
                I(f"v_fma_f32 v{b+e}, v{b+e}, v{240+e}, v{248+e}")
        for e in range(4):
            I(f"v_cvt_pk_bf16_f32 v{b+e}, v{b+2*e}, v{b+2*e+1}")
        I(f"ds_write_b128 v{vRow+i}, {vr(b,4)} offset:{u*16*K}")

ACC = 192
def accK(rt): return ACC + rt * 4
def accV(rt): return ACC + 16 + rt * 4
def accQ(rt): return ACC + 32 + rt * 4
def a_rd(k, rt):
    u, s = k >> 2, k & 3
    b = 32 + (k & 1) * 16 + 4 * rt
    return I(f"ds_read_b128 {vr(b,4)}, v{12+s} offset:{u*16*K + rt*4096}")

def gemm_kv_chunk(u, cur):
    for s in range(4):
        k = 4 * u + s
        nxt = []
        for rt in range(4):
            if s < 3: nxt.append(a_rd(k + 1, rt))
            wait_lg(cur[rt])
            h = vr(32 + (k & 1) * 16 + 4 * rt, 4)
            I(f"v_mfma_f32_16x16x32_bf16 {vr(accK(rt),4)}, {ar(KF(u,s),4)}, {h}, {vr(accK(rt),4) if k else 0}")
            I(f"v_mfma_f32_16x16x32_bf16 {vr(accV(rt),4)}, {h}, {ar(VF(u,s),4)}, {vr(accV(rt),4) if k else 0}")
        cur = nxt

def gemm_q():
    cur = [a_rd(0, rt) for rt in range(4)]
    for k in range(16):
        nxt = []
        for rt in range(4):
            if k < 15: nxt.append(a_rd(k + 1, rt))
            if rt % 2 == 0: wait_lg(cur[rt + 1])
            h = vr(32 + (k & 1) * 16 + 4 * rt, 4)
            I(f"v_mfma_f32_16x16x32_bf16 {vr(accQ(rt),4)}, {ar(QF(k>>2,k&3),4)}, {h}, {vr(accQ(rt),4) if k else 0}")
        cur = nxt

vPHI = 22
def wphi_issue():
    I(f"s_lshl_b32 s{sHead}, s{sCtB}, 2")
    I(f"s_add_u32 s{sHead}, s{sHead}, s{sW}")
    I(f"s_lshl_b32 s{sT0}, s{sHead}, 9")
    I(f"v_lshlrev_b32 v6, 7, v{vG}")
    I(f"v_lshl_add_u32 v6, v{vT}, 1, v6")
    for j in range(4):
        last = I(f"buffer_load_ushort v{(21, 22, 30, 31)[j]}, v6, {S(SWPHI)}, s{sT0} offen offset:{32*j}")
    return last
def wphi_pack():
    I(f"v_lshl_or_b32 v21, v22, 16, v21")
    I(f"v_lshl_or_b32 v22, v31, 16, v30")
def wphi_final():
    I("v_mov_b32 v20, v21")
    I("v_mov_b32 v21, v22")

def softmax(acc, OUT):
    P = 64; EP = 80; EN = 96; XB = 112
    ST = [120, 122, 124, 126]; SN = [128, 130, 132, 134]
    for rt in range(4):
        I(f"v_cvt_pk_bf16_f32 v{XB+2*rt}, v{acc(rt)}, v{acc(rt)+1}")
        I(f"v_cvt_pk_bf16_f32 v{XB+2*rt+1}, v{acc(rt)+2}, v{acc(rt)+3}")
    for rt in range(4):
        I(f"v_mfma_f32_16x16x16_bf16 {vr(P+4*rt,4)}, v[20:21], {vr(XB+2*rt,2)}, 0")
    for rt in range(4):
        p = P + 4 * rt
        I(f"v_max3_f32 v{ST[rt]}, v{p}, v{p+1}, v{p+2}")
        I(f"v_min3_f32 v{SN[rt]}, v{p}, v{p+1}, v{p+2}")
        I(f"v_max_f32 v{ST[rt]}, v{ST[rt]}, v{p+3}")
        I(f"v_min_f32 v{SN[rt]}, v{SN[rt]}, v{p+3}")
    xlane4x2(ST, "v_max_f32", lambda r: I(f"v_mul_f32 v{r}, s{sNL}, v{r}"),
             SN, "v_min_f32", lambda r: I(f"v_mul_f32 v{r}, s{sL}, v{r}"))
    for rt in range(4):
        for e in (0, 2):
            I(f"v_pk_fma_f32 {vr(EP+4*rt+e,2)}, {vr(P+4*rt+e,2)}, {sr(sL,2)}, {vr(ST[rt],2)} op_sel_hi:[1,1,0]")
            I(f"v_pk_fma_f32 {vr(EN+4*rt+e,2)}, {vr(P+4*rt+e,2)}, {sr(sNL,2)}, {vr(SN[rt],2)} op_sel_hi:[1,1,0]")
    for q in range(16):
        I(f"v_exp_f32 v{EP+q}, v{EP+q}")
        I(f"v_exp_f32 v{EN+q}, v{EN+q}")
    for rt in range(4):
        I(f"v_pk_add_f32 {vr(ST[rt],2)}, {vr(EP+4*rt,2)}, {vr(EP+4*rt+2,2)}")
        I(f"v_pk_add_f32 {vr(SN[rt],2)}, {vr(EN+4*rt,2)}, {vr(EN+4*rt+2,2)}")
    for rt in range(4):
        I(f"v_add_f32 v{ST[rt]}, v{ST[rt]}, v{ST[rt]+1}")
        I(f"v_add_f32 v{SN[rt]}, v{SN[rt]}, v{SN[rt]+1}")
    xlane4x2(ST, "v_add_f32", lambda r: I(f"v_rcp_f32 v{r}, v{r}"),
             SN, "v_add_f32", lambda r: I(f"v_rcp_f32 v{r}, v{r}"))
    for rt in range(4):
        for e in (0, 2):
            I(f"v_pk_mul_f32 {vr(EP+4*rt+e,2)}, {vr(EP+4*rt+e,2)}, {vr(ST[rt],2)} op_sel_hi:[1,0]")
            I(f"v_pk_mul_f32 {vr(EN+4*rt+e,2)}, {vr(EN+4*rt+e,2)}, {vr(SN[rt],2)} op_sel_hi:[1,0]")
    for rt in range(4):
        I(f"v_cvt_pk_bf16_f32 v{OUT+4*rt}, v{EP+4*rt}, v{EP+4*rt+1}")
        I(f"v_cvt_pk_bf16_f32 v{OUT+4*rt+1}, v{EP+4*rt+2}, v{EP+4*rt+3}")
        I(f"v_cvt_pk_bf16_f32 v{OUT+4*rt+2}, v{EN+4*rt}, v{EN+4*rt+1}")
        I(f"v_cvt_pk_bf16_f32 v{OUT+4*rt+3}, v{EN+4*rt+2}, v{EN+4*rt+3}")

L_PT = 128 * K
def epi_k():
    PK = 144; VFR = 160; ONES = 168
    I(f"v_lshlrev_b32 v8, 6, v{vT}")
    I(f"v_lshl_add_u32 v8, v{vG}, 3, v8")
    I(f"s_add_u32 s{sT1}, s{sW4096}, {L_PT}")
    I(f"v_add_u32 v8, s{sT1}, v8")
    I(f"v_lshrrev_b32 v9, 2, v{vL}")
    I(f"v_lshlrev_b32 v9, 6, v9")
    I(f"v_and_b32 v10, 3, v{vL}")
    I(f"v_lshl_add_u32 v9, v10, 3, v9")
    I(f"v_add_u32 v9, s{sT1}, v9")
    for e in range(4): I(f"v_mov_b32 v{ONES+e}, 0x3f803f80")
    softmax(accK, PK)
    for rt in range(4):
        I(f"ds_write_b64 v8, {vr(PK+4*rt,2)} offset:{rt*1024}")
        I(f"ds_write_b64 v8, {vr(PK+4*rt+2,2)} offset:{rt*1024+32}")
    for kp in range(2):
        for hh in range(2):
            a = accV(2 * kp + hh)
            I(f"v_cvt_pk_bf16_f32 v{VFR+4*kp+2*hh}, v{a}, v{a+1}")
            I(f"v_cvt_pk_bf16_f32 v{VFR+4*kp+2*hh+1}, v{a+2}, v{a+3}")
    PT = 64
    for T in range(2):
        for kp in range(2):
            f = PT + (T * 2 + kp) * 4
            I(f"ds_read_b64_tr_b16 {vr(f,2)}, v9 offset:{kp*2048 + T*32}")
            x = I(f"ds_read_b64_tr_b16 {vr(f+2,2)}, v9 offset:{kp*2048 + 1024 + T*32}")
    I(f"s_lshl_b32 s{sT0}, s{sHead}, 5")
    I(f"s_add_u32 s{sT0}, s{sT0}, s{sRbB}")
    I(f"s_mul_i32 s{sT0}, s{sT0}, {KVREC}")
    I(f"s_add_u32 s{sT0}, s{sT0}, {WS_KVP}")
    I(f"v_lshlrev_b32 v8, 5, v{vG}")
    I(f"v_lshl_add_u32 v8, v{vT}, 4, v8")
    I(f"v_mov_b32 v9, {OOB}")
    I(f"v_cmp_gt_u32 vcc, 2, v{vT}")
    I(f"v_cndmask_b32 v8, v9, v8, vcc")
    I(f"v_cmp_eq_u32 vcc, 1, v{vT}")
    wait_lg(x)
    KV = 172; Z = 180
    for kp in range(2):
        for T in range(2):
            f = vr(PT + (T * 2 + kp) * 4, 4)
            I(f"v_mfma_f32_16x16x32_bf16 {vr(KV+4*T,4)}, {f}, {vr(VFR+4*kp,4)}, {vr(KV+4*T,4) if kp else 0}")
    for kp in range(2):
        for T in range(2):
            f = vr(PT + (T * 2 + kp) * 4, 4)
            I(f"v_mfma_f32_16x16x32_bf16 {vr(Z+4*T,4)}, {f}, {vr(ONES,4)}, {vr(Z+4*T,4) if kp else 0}")
    tag4(KV); tag4(KV + 4)
    I(f"buffer_store_dwordx4 {vr(KV,4)}, v{vL16}, {S(SWS)}, s{sT0} offen sc1")
    I(f"buffer_store_dwordx4 {vr(KV+4,4)}, v{vL16}, {S(SWS)}, s{sT0} offen offset:1024 sc1")
    for e in range(4):
        I(f"v_cndmask_b32 v{Z+e}, v{Z+e}, v{Z+4+e}, vcc")
    tag4(Z)
    I(f"buffer_store_dwordx4 {vr(Z,4)}, v8, {S(SWS)}, s{sT0} offen offset:2048 sc1")

def epi_q():
    PQ = 144
    I(f"s_lshl_b32 s{sT0}, s{sRbB}, 7")
    I(f"s_add_u32 s{sT0}, s{sT0}, s{sHead}")
    I(f"s_lshl_b32 s{sT0}, s{sT0}, 10")
    I(f"s_add_u32 s{sT0}, s{sT0}, {WS_PHIQ}")
    I(f"s_lshl_b32 s{sT1}, s{sRbB}, 3")
    I(f"s_add_u32 s{sT1}, s{sT1}, s{sCtB}")
    I(f"s_lshl_b32 s{sT1}, s{sT1}, 7")
    I(f"s_add_u32 s{sT1}, s{sT1}, {WS_FQ}")
    softmax(accQ, PQ)
    for rt in range(4):
        last = I(f"buffer_store_dwordx4 {vr(PQ+4*rt,4)}, v{vL16}, {S(SWS)}, s{sT0} offen sc1")
        if rt < 3: I(f"s_add_u32 s{sT0}, s{sT0}, 32768")
    return last

def gemm_kv(k0, k1, cur):
    for k in range(k0, k1):
        u, s = k >> 2, k & 3
        nxt = []
        for rt in range(4):
            if k < 15: nxt.append(a_rd(k + 1, rt))
            if rt % 2 == 0: wait_lg(cur[rt + 1])
            h = vr(32 + (k & 1) * 16 + 4 * rt, 4)
            I(f"v_mfma_f32_16x16x32_bf16 {vr(accK(rt),4)}, {ar(KF(u,s),4)}, {h}, {vr(accK(rt),4) if k else 0}")
            I(f"v_mfma_f32_16x16x32_bf16 {vr(accV(rt),4)}, {h}, {ar(VF(u,s),4)}, {vr(accV(rt),4) if k else 0}")
        cur = nxt
    return cur

RR = 172
def kv_reduce_issue():
    I(f"s_and_b32 s{sT2}, s2, 7")
    I(f"s_lshl_b32 s{sT3}, s{sT2}, 4")
    I(f"s_add_u32 s{sT3}, s{sT3}, 2048")
    I(f"s_lshl_b32 s{sT2}, s{sT2}, 2")
    I(f"s_add_u32 s{sT2}, s{sT2}, s{sW}")
    I(f"s_lshl_b32 s{sT2}, s{sT2}, 6")
    I(f"v_and_b32 v10, 7, v{vL}")
    I(f"v_lshlrev_b32 v11, 4, v10")
    I(f"v_add_u32 v11, s{sT2}, v11")
    I(f"v_mov_b32 v12, s{sT3}")
    I(f"v_cmp_gt_u32 vcc, 4, v10")
    I(f"v_cndmask_b32 v11, v12, v11, vcc")
    I(f"v_lshrrev_b32 v12, 3, v{vL}")
    I(f"v_mul_u32_u24 v12, {KVREC}, v12")
    I(f"v_add_u32 v12, v12, v11")
    I(f"s_mul_i32 s{sP0}, s{sJ}, {32*KVREC}")
    I(f"s_add_u32 s{sP0}, s{sP0}, {WS_KVP}")
    I(f"s_mul_i32 s{sP1}, s{sJ}, {KVREC}")
    I(f"s_add_u32 s{sP1}, s{sP1}, {WS_KVF}")
    I(f"s_mov_b32 s{sP2}, 0xffffff00")
    I(f"v_cmp_gt_u32 vcc, 5, v{vL}")
    I(f"v_mov_b32 v10, {OOB}")
    I(f"v_cndmask_b32 v11, v10, v11, vcc")
    return kv_reduce_loads()
def kv_reduce_loads():
    for n in range(4):
        I(f"s_add_u32 s{sT2}, s{sP0}, {n*8*KVREC}")
        last = I(f"buffer_load_dwordx4 {vr(RR+4*n,4)}, v12, {S(SWS)}, s{sT2} offen sc1")
    return last
def kv_reduce_finish(last):
    R = RR
    def checks():
        for n in range(4): check4(8, R + 4 * n, 9, 10, n == 0)
        I("v_cmp_ne_u32 vcc, 0, v8")
    wait_vm(last)
    checks()
    def body():
        kv_reduce_loads(); I("s_waitcnt vmcnt(0)"); A.vm = []; checks()
    spin_loop(body, first_done=True)
    for q in range(16):
        I(f"v_and_b32 v{R+q}, s{sP2}, v{R+q}")
    for st in (8, 4):
        for q in range(0, st, 2):
            I(f"v_pk_add_f32 {vr(R+q,2)}, {vr(R+q,2)}, {vr(R+st+q,2)}")
    for e in range(4):
        I(f"v_add_f32_dpp v{R+e}, v{R+e}, v{R+e} row_ror:8 row_mask:0xf bank_mask:0xf")
    for op in ("v_permlane16_swap_b32", "v_permlane32_swap_b32"):
        for e in range(4): I(f"v_mov_b32 v{R+4+e}, v{R+e}")
        for e in range(4): I(f"{op} v{R+e}, v{R+4+e}")
        for e in (0, 2): I(f"v_pk_add_f32 {vr(R+e,2)}, {vr(R+e,2)}, {vr(R+4+e,2)}")
    bf_round4(R, R + 4)
    tag4(R)
    I(f"buffer_store_dwordx4 {vr(R,4)}, v11, {S(SWS)}, s{sP1} offen sc1")

def pf_wo_gu(vd):
    I(f"s_lshl_b32 s{sB1}, s{sJ}, 14")
    I(f"s_add_u32 s{sB1}, s{sB1}, s{sW4096}")
    I(f"v_and_b32 v30, 31, v{vL}")
    I(f"v_lshlrev_b32 v30, 7, v30")
    I(f"buffer_load_dword a255, v30, {S(SWO)}, s{sB1} offen")
    pad(300)
    I(f"s_lshl_b32 s{sB1}, s{sJ}, 4")
    I(f"s_lshl_b32 s{sB2}, s{sW}, 2")
    I(f"s_add_u32 s{sB1}, s{sB1}, s{sB2}")
    I(f"s_mul_i32 s{sB1}, s{sB1}, 2752")
    I(f"s_and_b32 s{sB2}, s2, 1")
    I(f"s_mul_i32 s{sB2}, s{sB2}, 1344")
    I(f"s_add_u32 s{sB1}, s{sB1}, s{sB2}")
    I(f"v_mul_u32_u24 v30, 2752, v{vG}")
    I(f"v_mul_u32_u24 v31, 96, v{vT}")
    I(f"v_add_u32 v30, v30, v31")
    I(f"buffer_load_dword a255, v30, {S(SWG)}, s{sB1} offen")
    pad(300)
    I(f"buffer_load_dword a255, v30, {S(SWU)}, s{sB1} offen")
def pf_wd(vd, va):
    I(f"s_mul_i32 s{sT2}, s{sJ}, {344*128}")
    I(f"s_mul_i32 s{sT3}, s{sW}, {86*128}")
    I(f"s_add_u32 s{sT2}, s{sT2}, s{sT3}")
    I(f"v_lshlrev_b32 v{va}, 7, v{vL}")
    I(f"buffer_load_dword v{vd}, v{va}, {S(SWD)}, s{sT2} offen")
    I(f"v_min_u32 v{va}, {21*128}, v{va}")
    I(f"s_add_u32 s{sT2}, s{sT2}, 8192")
    I(f"buffer_load_dword v{vd}, v{va}, {S(SWD)}, s{sT2} offen")

WOF = 192
L_WO = 64 * K
def wo_dma():
    rows128_voff(vBG, 1024, False)
    I(f"s_lshl_b32 s{sB1}, s{sW}, 17")
    I(f"s_lshl_b32 s{sB2}, s{sCtC}, 7")
    I(f"s_add_u32 s{sB1}, s{sB1}, s{sB2}")
    I(f"s_lshl_b32 s{sB2}, s{sW}, 14")
    for s in range(4):
        last = dma4(vBG, S(SWO), sB2, L_WO + s * 4096, sB1, s * 32768)
    return last
def wo_tr(last):
    I(f"v_lshrrev_b32 v28, 2, v{vL}")
    I(f"v_lshlrev_b32 v28, 7, v28")
    I(f"v_bfe_u32 v29, v{vL}, 3, 2")
    I(f"v_lshl_add_u32 v28, v29, 5, v28")
    I(f"v_and_b32 v29, 3, v{vL}")
    I(f"v_lshl_add_u32 v28, v29, 3, v28")
    I(f"s_lshl_b32 s{sB2}, s{sW}, 14")
    I(f"s_add_u32 s{sB2}, s{sB2}, {L_WO}")
    I(f"v_add_u32 v28, s{sB2}, v28")
    for c in range(1, 4):
        I(f"v_xor_b32 v{28+c}, {c*32}, v28")
    wait_vm(last)
    for s in range(4):
        for c in range(4):
            f = WOF + (s * 4 + c) * 4
            I(f"ds_read_b64_tr_b16 {ar(f,2)}, v{28+c} offset:{s*4096}")
            I(f"ds_read_b64_tr_b16 {ar(f+2,2)}, v{28+c} offset:{s*4096+2048}")

def GF(c, ks): return (ks * 3 + c) * 4
GSLOT = [0, 48 * K, 0, 96 * K]
def wgu_setup():
    I(f"s_lshl_b32 s{sB1}, s{sMD}, 3")
    I(f"s_mul_i32 s{sB1}, s{sB1}, 21846")
    I(f"s_lshr_b32 s{sB1}, s{sB1}, 16")
    I(f"s_lshl_b32 s{sFt0}, s{sB1}, 1")
    for n in range(3):
        I(f"v_add_u32 v27, {64*n}, v{vL}")
        I(f"v_mul_u32_u24 v28, 5462, v27")
        I(f"v_lshrrev_b32 v28, 16, v28")
        I(f"v_mul_u32_u24 v29, 12, v28")
        I(f"v_sub_u32 v29, v27, v29")
        I(f"v_bfe_u32 v30, v28, 2, 1")
        I(f"v_lshlrev_b32 v30, 1, v30")
        I(f"v_xor_b32 v29, v29, v30")
        I(f"v_mul_u32_u24 v28, 2752, v28")
        I(f"v_lshl_add_u32 v{vBG+n}, v29, 4, v28")
        if n: I(f"v_subrev_u32 v{vBG+n}, {n*1024}, v{vBG+n}")
    I(f"s_and_b32 s{sB1}, s{sW}, 1")
    I(f"s_mul_i32 s{sB1}, s{sB1}, {64*2752}")
    I(f"s_lshl_b32 s{sB2}, s{sFt0}, 5")
    I(f"s_add_u32 s{sB1}, s{sB1}, s{sB2}")
    for q in range(4):
        I(f"s_add_u32 s{sB2}, s{sGrpD}, {q}")
        I(f"s_and_b32 s{sB2}, s{sB2}, 3")
        I(f"s_mul_i32 s{sKW+q}, s{sB2}, {128*2752}")
        I(f"s_add_u32 s{sKW+q}, s{sKW+q}, s{sB1}")
        I(f"s_lshl_b32 s{sK+q}, s{sB2}, 12")
        I(f"s_lshl_b32 s{sKM+q}, s{sB2}, 9")
    I(f"s_mul_i32 s{sB1}, s{sW}, 12288")
    I(f"s_cmp_ge_u32 s{sW}, 2")
    I(f"s_cselect_b32 s{SGU}, s{SWU}, s{SWG}")
    I(f"s_cselect_b32 s{SGU+1}, s{SWU+1}, s{SWG+1}")
    I(f"s_mov_b32 s{SGU+2}, {512*1376*2}")
    I(f"s_mov_b32 s{SGU+3}, 0x20000")
def wgu_traddr():
    I(f"s_lshr_b32 s{sB2}, s{sW}, 1")
    I(f"s_mul_i32 s{sTz}, s{sB2}, 3")
    I(f"s_and_b32 s{sB2}, s{sW}, 1")
    I(f"s_lshl_b32 s{sTx}, s{sB2}, 1")
    I(f"s_add_u32 s{sTx}, s{sTx}, s{sTz}")
    I(f"s_add_u32 s{sTz}, s{sTz}, 1")
    I(f"v_lshrrev_b32 v27, 2, v{vL}")
    I(f"v_mul_u32_u24 v27, 192, v27")
    I(f"v_and_b32 v31, 3, v{vL}")
    I(f"v_lshl_add_u32 v27, v31, 3, v27")
    I(f"v_and_b32 v31, 1, v{vG}")
    I(f"v_xor_b32 v30, s{sTx}, v31")
    I(f"v_lshl_add_u32 v28, v30, 5, v27")
    I(f"v_add_u32 v29, 24576, v28")
    I(f"v_xor_b32 v30, s{sTz}, v31")
    I(f"v_lshl_add_u32 v30, v30, 5, v27")
    I(f"s_mul_i32 s{sB2}, s{sB2}, 24576")
    I(f"v_add_u32 v30, s{sB2}, v30")
def wgu_dma(q):
    for p in range(4):
        I(f"s_add_u32 m0, s{sB1}, {GSLOT[q] + p*3072}")
        I(f"s_add_u32 s{sB0}, s{sKW+q}, {p*16*2752}")
        for n in range(3):
            last = I(f"buffer_load_dwordx4 v{vBG+n}, {S(SGU)}, s{sB0} offen offset:{n*1024} lds")
            pad(100)
    return last
def wgu_tr(q):
    for c in range(3):
        if GSLOT[q]:
            I(f"v_add_u32 v31, {GSLOT[q]}, v{28+c}"); b = 31
        else: b = 28 + c
        for s in range(4):
            f = GF(c, q * 4 + s)
            I(f"ds_read_b64_tr_b16 {ar(f,2)}, v{b} offset:{s*6144}")
            I(f"ds_read_b64_tr_b16 {ar(f+2,2)}, v{b} offset:{s*6144+3072}")

PH = 64; RK = 192; KB = 32; ZB = 16; CA = 192
def rt_offsets(stride):
    for r in range(4):
        I(f"s_add_u32 s{sT0}, s{sW}, {r}")
        I(f"s_and_b32 s{sT0}, s{sT0}, 3")
        I(f"s_mul_i32 s{sR+r}, s{sT0}, {stride}")
def phiq_load():
    I(f"s_lshl_b32 s{sT0}, s{sRbC}, 3")
    I(f"s_lshl_b32 s{sT1}, s{sW}, 1")
    I(f"s_add_u32 s{sT0}, s{sT0}, s{sT1}")
    I(f"v_and_b32 v6, 1, v{vL}")
    I(f"v_add_u32 v6, s{sT0}, v6")
    I(f"v_lshlrev_b32 v6, 7, v6")
    I(f"v_add_u32 v6, {WS_FQ}, v6")
    I(f"s_lshl_b32 s{sT1}, s{sW}, 3")
    rt_offsets(32768)
    I(f"s_lshl_b32 s{sT0}, s{sRbC}, 7")
    I(f"s_add_u32 s{sT0}, s{sT0}, s{sT1}")
    I(f"s_lshl_b32 s{sT0}, s{sT0}, 10")
    I(f"s_add_u32 s{sT0}, s{sT0}, {WS_PHIQ}")
    I(f"v_add_u32 v8, s{sT0}, v{vL16}")
    I(f"v_add_u32 v9, 4096, v8")
    poll_flags(6, 7)
    for n in range(8):
        for r in range(4):
            I(f"buffer_load_dwordx4 {vr(PH+(n*4+r)*4,4)}, v{8 + (n>>2)}, {S(SWS)}, s{sR+r} offen offset:{(n&3)*1024} sc1")
def kv_load():
    I(f"s_lshl_b32 s{sT1}, s{sW}, 3")
    I(f"s_mul_i32 s{sP1}, s{sT1}, {KVREC}")
    I(f"s_add_u32 s{sP1}, s{sP1}, {WS_KVF}")
    I(f"v_and_b32 v6, 3, v{vT}")
    I(f"v_mul_u32_u24 v6, {KVREC}, v6")
    I(f"v_lshl_add_u32 v6, v{vG}, 5, v6")
    RZ = 32
    def body():
        for n in range(8):
            I(f"s_add_u32 s{sT0}, s{sP1}, {n*KVREC}")
            I(f"buffer_load_dwordx4 {vr(RK+8*n,4)}, v{vL16}, {S(SWS)}, s{sT0} offen sc1")
            I(f"buffer_load_dwordx4 {vr(RK+8*n+4,4)}, v{vL16}, {S(SWS)}, s{sT0} offen offset:1024 sc1")
            if n % 4 == 0:
                q = n // 4
                I(f"buffer_load_dwordx4 {vr(RZ+8*q,4)}, v6, {S(SWS)}, s{sT0} offen offset:2048 sc1")
                I(f"buffer_load_dwordx4 {vr(RZ+8*q+4,4)}, v6, {S(SWS)}, s{sT0} offen offset:2064 sc1")
        I("s_waitcnt vmcnt(0)"); A.vm = []
        for k in range(16): check4(8, RK + 4 * k, 9, 10, k == 0)
        for k in range(4): check4(8, RZ + 4 * k, 9, 10, False)
        I("v_cmp_ne_u32 vcc, 0, v8")
    spin_loop(body)
    ZT = 48
    for k in range(8):
        I(f"v_perm_b32 v{ZT+k}, v{RZ+2*k+1}, v{RZ+2*k}, s{sSelHi}")
    for k in range(8):
        I(f"v_mov_b32 v{8+k}, v{ZT+k}")
    for k in range(32):
        I(f"v_perm_b32 v{KB+k}, v{RK+2*k+1}, v{RK+2*k}, s{sSelHi}")

def c_compute():
    ZF = 8
    EPS = 16
    for e in range(4): I(f"v_mov_b32 v{EPS+e}, 0x358637bd")
    def f0(u): return PH + ((2 * (u >> 2)) * 4 + (u & 3)) * 4
    def f1(u): return PH + ((2 * (u >> 2) + 1) * 4 + (u & 3)) * 4
    def cacc(c, r): return CA + (c * 4 + r) * 4
    def buf(u):
        if u < 4:
            r = (2 if u % 2 == 0 else 3)
            return [cacc(c, r) for c in range(4)]
        k = 0 if u % 2 == 0 else 2
        return [f0(k), f1(k), f0(k + 1), f1(k + 1)]
    def s1(u):
        s = u >> 2; N0, D0, N1, D1 = buf(u)
        return [f"v_mfma_f32_16x16x32_bf16 {vr(D0,4)}, {vr(ZF+4*(s>>1),4)}, {vr(f0(u),4)}, {vr(EPS,4)}",
                f"v_mfma_f32_16x16x32_bf16 {vr(D1,4)}, {vr(ZF+4*(s>>1),4)}, {vr(f1(u),4)}, {vr(EPS,4)}",
                f"v_mfma_f32_16x16x32_bf16 {vr(N0,4)}, {vr(KB+8*s,4)}, {vr(f0(u),4)}, 0",
                f"v_mfma_f32_16x16x32_bf16 {vr(N1,4)}, {vr(KB+8*s+4,4)}, {vr(f1(u),4)}, 0"]
    def s2(u):
        s = u >> 2; N0, D0, N1, D1 = buf(u)
        d0 = D0 + ((2 * s) & 3); d1 = D1 + ((2 * s + 1) & 3)
        o = [f"v_rcp_f32 v6, v{d0}", f"v_rcp_f32 v7, v{d1}"]
        o += [f"v_mul_f32 v{N0+e}, v{N0+e}, v6" for e in range(4)]
        o += [f"v_cvt_pk_bf16_f32 v{f0(u)}, v{N0}, v{N0+1}", f"v_cvt_pk_bf16_f32 v{f0(u)+1}, v{N0+2}, v{N0+3}"]
        o += [f"v_mul_f32 v{N1+e}, v{N1+e}, v7" for e in range(4)]
        o += [f"v_cvt_pk_bf16_f32 v{f0(u)+2}, v{N1}, v{N1+1}", f"v_cvt_pk_bf16_f32 v{f0(u)+3}, v{N1+2}, v{N1+3}"]
        return o
    def s3(u):
        s = u >> 2; r = u & 3
        return [f"v_mfma_f32_16x16x32_bf16 {vr(cacc(c,r),4)}, {ar(WOF+(s*4+c)*4,4)}, {vr(f0(u),4)}, {vr(cacc(c,r),4) if s else 0}" for c in range(4)]
    for m in s1(0): I(m)
    for u in range(17):
        mf = (s3(u - 1) if u >= 1 else []) + (s1(u + 1) if u + 1 < 16 else [])
        va = s2(u) if u < 16 else []
        k = 0
        for m in mf:
            I(m)
            for _ in range(2):
                if k < len(va): I(va[k]); k += 1
        while k < len(va): I(va[k]); k += 1

L_RED = 96 * K
def reduce_scatter(CAb, T):
    for r in range(1, 4):
        I(f"s_add_u32 s{sT0}, s{sW}, {r}")
        I(f"s_and_b32 s{sT0}, s{sT0}, 3")
        I(f"s_mul_i32 s{sT0}, s{sT0}, 12288")
        I(f"s_add_u32 s{sT0}, s{sT0}, {L_RED + (r-1)*4096}")
        I(f"v_add_u32 v6, s{sT0}, v{vL16}")
        for c in range(4):
            I(f"ds_write_b128 v6, {vr(CAb+(c*4+r)*4,4)} offset:{c*1024}")
    I(f"s_mul_i32 s{sT0}, s{sW}, 12288")
    I(f"s_add_u32 s{sT0}, s{sT0}, {L_RED}")
    I(f"v_add_u32 v6, s{sT0}, v{vL16}")
    barrier()
    ids = []
    for k in range(12):
        ids.append(I(f"ds_read_b128 {vr(T+4*k,4)}, v6 offset:{k*1024}"))
    wait_lg(ids[7])
    for c in range(4):
        for e in (0, 2):
            I(f"v_pk_add_f32 {vr(CAb+c*16+e,2)}, {vr(CAb+c*16+e,2)}, {vr(T+4*c+e,2)}")
    wait_lg(ids[11])
    for c in range(4):
        for e in (0, 2):
            I(f"v_pk_add_f32 {vr(T+16+4*c+e,2)}, {vr(T+16+4*c+e,2)}, {vr(T+32+4*c+e,2)}")
    for c in range(4):
        for e in (0, 2):
            I(f"v_pk_add_f32 {vr(T+4*c+e,2)}, {vr(CAb+c*16+e,2)}, {vr(T+16+4*c+e,2)}")

X1K = 248
XR = 32
def c_xload():
    I(f"s_lshl_b32 s{sT0}, s{sRbC}, 6")
    I(f"s_lshl_b32 s{sT1}, s{sW}, 4")
    I(f"s_add_u32 s{sT0}, s{sT0}, s{sT1}")
    I(f"v_add_u32 v20, s{sT0}, v{vT}")
    I(f"v_lshlrev_b32 v21, 10, v20")
    I(f"v_lshl_add_u32 v21, v{vG}, 3, v21")
    I(f"s_lshl_b32 s{sT1}, s{sCtC}, 7")
    for c in range(4):
        last = I(f"buffer_load_dwordx2 {vr(XR+2*c,2)}, v21, {S(SX)}, s{sT1} offen offset:{32*c}")
    return last
def epilogueC(xid):
    O = 64
    GA = 160; CB = 176; XF = 128
    I(f"s_lshl_b32 s{sT1}, s{sCtC}, 8")
    I(f"v_lshlrev_b32 v22, 4, v{vG}")
    I(f"v_add_u32 v22, s{sT1}, v22")
    I(f"v_add_u32 v22, {L_MODV}, v22")
    for c in range(4):
        I(f"ds_read_b128 {vr(GA+4*c,4)}, v22 offset:{4096 + 64*c}")
        I(f"ds_read_b128 {vr(CB+4*c,4)}, v22 offset:{8192 + 64*c}")
    wait_vm(xid)
    for q in range(8):
        I(f"v_lshlrev_b32 v{XF+2*q}, 16, v{XR+q}")
        I(f"v_and_b32 v{XF+2*q+1}, s{sHi}, v{XR+q}")
    reduce_scatter(CA, O)
    for q in range(0, 16, 2):
        I(f"v_pk_fma_f32 {vr(O+q,2)}, {vr(O+q,2)}, {vr(GA+q,2)}, {vr(XF+q,2)}")
    for q in range(8):
        I(f"v_cvt_pk_bf16_f32 v{X1K+q}, v{O+2*q}, v{O+2*q+1}")
    for q in range(8):
        I(f"v_lshlrev_b32 v{O+2*q}, 16, v{X1K+q}")
        I(f"v_and_b32 v{O+2*q+1}, s{sHi}, v{X1K+q}")
    for q in range(0, 16, 2):
        I(f"v_pk_mul_f32 {vr(XF+q,2)}, {vr(O+q,2)}, {vr(CB+q,2)}")
    I(f"s_lshl_b32 s{sT0}, s{sRbC}, 2")
    I(f"s_add_u32 s{sT0}, s{sT0}, s{sW}")
    I(f"s_lshl_b32 s{sT0}, s{sT0}, 14")
    I(f"s_lshl_b32 s{sT1}, s{sCtC}, 11")
    I(f"s_add_u32 s{sT0}, s{sT0}, s{sT1}")
    I(f"s_add_u32 s{sT0}, s{sT0}, {WS_X1P}")
    for q in range(8):
        I(f"v_cvt_pk_bf16_f32 v{XF+q}, v{XF+2*q}, v{XF+2*q+1}")
    I(f"buffer_store_dwordx4 {vr(XF,4)}, v{vL16}, {S(SWS)}, s{sT0} offen sc1")
    I(f"buffer_store_dwordx4 {vr(XF+4,4)}, v{vL16}, {S(SWS)}, s{sT0} offen offset:1024 sc1")
    T = 96
    I(f"v_pk_add_f32 v[{T}:{T+1}], {vr(O,2)}, {vr(O+2,2)}")
    I(f"v_pk_add_f32 v[{T+2}:{T+3}], {vr(O+4,2)}, {vr(O+6,2)}")
    for q in (8, 12):
        I(f"v_pk_add_f32 v[{T}:{T+1}], v[{T}:{T+1}], {vr(O+q,2)}")
        I(f"v_pk_add_f32 v[{T+2}:{T+3}], v[{T+2}:{T+3}], {vr(O+q+2,2)}")
    I(f"v_pk_add_f32 v[{T}:{T+1}], v[{T}:{T+1}], v[{T+2}:{T+3}]")
    I(f"v_add_f32 v{T}, v{T}, v{T+1}")
    I(f"v_mul_f32 v{T+2}, 0xbd800000, v{T}")
    for q in range(0, 16, 2):
        I(f"v_pk_add_f32 {vr(O+q,2)}, {vr(O+q,2)}, v[{T+2}:{T+3}] op_sel_hi:[1,0]")
    I(f"v_pk_mul_f32 v[{T+4}:{T+5}], {vr(O,2)}, {vr(O,2)}")
    I(f"v_pk_mul_f32 v[{T+6}:{T+7}], {vr(O+2,2)}, {vr(O+2,2)}")
    for q in range(4, 16, 4):
        I(f"v_pk_fma_f32 v[{T+4}:{T+5}], {vr(O+q,2)}, {vr(O+q,2)}, v[{T+4}:{T+5}]")
        I(f"v_pk_fma_f32 v[{T+6}:{T+7}], {vr(O+q+2,2)}, {vr(O+q+2,2)}, v[{T+6}:{T+7}]")
    I(f"v_pk_add_f32 v[{T+4}:{T+5}], v[{T+4}:{T+5}], v[{T+6}:{T+7}]")
    I(f"v_add_f32 v{T+1}, v{T+4}, v{T+5}")
    for op, inv in (("v_permlane16_swap_b32", 0x3d000000), ("v_permlane32_swap_b32", 0x3c800000)):
        I(f"v_mov_b32 v{T+2}, v{T}")
        I(f"v_mov_b32 v{T+3}, v{T+1}")
        I(f"{op} v{T}, v{T+2}")
        I(f"{op} v{T+1}, v{T+3}")
        I(f"v_sub_f32 v{T+4}, v{T}, v{T+2}")
        I(f"v_add_f32 v{T}, v{T}, v{T+2}")
        I(f"v_add_f32 v{T+1}, v{T+1}, v{T+3}")
        I(f"v_mul_f32 v{T+4}, v{T+4}, v{T+4}")
        I(f"v_fmac_f32 v{T+1}, {inv:#x}, v{T+4}")
    I(f"v_lshlrev_b32 v6, 6, v20")
    I(f"v_mov_b32 v7, {OOB}")
    I(f"v_cmp_gt_u32 vcc, 16, v{vL}")
    I(f"v_cndmask_b32 v6, v7, v6, vcc")
    I(f"s_lshl_b32 s{sT0}, s{sCtC}, 3")
    I(f"s_add_u32 s{sT0}, s{sT0}, {WS_STAT}")
    last = I(f"buffer_store_dwordx2 v[{T}:{T+1}], v6, {S(SWS)}, s{sT0} offen sc1")
    I(f"s_lshl_b32 s{sT0}, s{sGrpC}, 4")
    I(f"s_add_u32 s{sT0}, s{sT0}, s{sMC}")
    I(f"s_lshl_b32 s{sT0}, s{sT0}, 7")
    I(f"s_add_u32 s{sT0}, s{sT0}, {WS_FX}")
    set_flag(sT0, last)

U1 = 224
def u12():
    I(f"v_lshlrev_b32 v6, 4, v{vG}")
    I(f"v_add_u32 v6, {L_MODV + 8192}, v6")
    I(f"v_subrev_u32 v7, 2048, v6")
    I(f"v_cmp_gt_u32 vcc, 8, v{vT}")
    I(f"v_cndmask_b32 v6, v7, v6, vcc")
    R = 64
    ids = []
    for q in range(4):
        I(f"v_add_u32 v7, s{sKM+q}, v6")
        for s in range(4):
            ks = 4 * q + s
            I(f"ds_read_b128 {vr(R+8*ks,4)}, v7 offset:{128*s}")
            ids.append(I(f"ds_read_b128 {vr(R+8*ks+4,4)}, v7 offset:{128*s+64}"))
    def cv(ks):
        return [f"v_cvt_pk_bf16_f32 v{R+8*ks+e}, v{R+8*ks+2*e}, v{R+8*ks+2*e+1}" for e in range(4)]
    wait_lg()
    for x in cv(0): I(x)
    for ks in range(16):
        nx = cv(ks + 1) if ks < 15 else []
        for c in range(3):
            acc = vr(U1 + 4 * c, 4)
            I(f"v_mfma_f32_16x16x32_bf16 {acc}, {ar(GF(c,ks),4)}, {vr(R+8*ks,4)}, {acc if ks else 0}")
            for x in nx[2*c:2*c+2]: I(x)
    for q in range(12):
        I(f"v_mov_b32_dpp v{U1+12+q}, v{U1+q} row_ror:8 row_mask:0xf bank_mask:0xf")
    for q in range(12):
        I(f"v_cndmask_b32 v6, v{U1+12+q}, v{U1+q}, vcc")
        I(f"v_cndmask_b32 v{U1+12+q}, v{U1+q}, v{U1+12+q}, vcc")
        I(f"v_mov_b32 v{U1+q}, v6")

def DF(j, c): return (192 + (j * 4 + c) * 4) if j < 4 else ((j - 4) * 4 + c) * 4
WDSLOT = {0: (0, 0), 1: (0, 1), 2: ("s", 0), 3: (1, 0), 4: (1, 1), 5: (0, 0), 6: (0, 1), 7: ("s", 0), 8: (2, 0), 9: (2, 1), 10: (1, 0)}
sW8192 = sK + 0
def wd_setup():
    rows128_voff(vBG, 1024, True)
    I(f"s_mul_i32 s{sB1}, s{sW}, {352*1024}")
    I(f"s_lshl_b32 s{sB2}, s{sCtC}, 7")
    I(f"s_add_u32 s{sB1}, s{sB1}, s{sB2}")
    I(f"s_lshl_b32 s{sHead}, s{sW}, 13")
    I(f"v_bfe_u32 v6, v{vL}, 2, 2")
    I(f"v_lshl_add_u32 v6, v{vG}, 3, v6")
    I(f"v_lshlrev_b32 v6, 7, v6")
    I(f"v_bfe_u32 v7, v{vL}, 3, 2")
    I(f"v_lshl_add_u32 v6, v7, 5, v6")
    I(f"v_and_b32 v7, 3, v{vL}")
    I(f"v_lshl_add_u32 v28, v7, 3, v6")
def wd_dma(j):
    q, sub = WDSLOT[j]
    if q == "s": return dma4(vBG, S(SWD), sW4096, 128 * K, sB1, j * 32768)
    return dma4(vBG, S(SWD), sHead, q * 32 * K + sub * 4096, sB1, j * 32768)
def wd_tr(j, last):
    q, sub = WDSLOT[j]
    if q == "s":
        I(f"s_add_u32 s{sB2}, s{sW4096}, {128*K}")
    else:
        I(f"s_add_u32 s{sB2}, s{sHead}, {q*32*K + sub*4096}")
    I(f"v_add_u32 v29, s{sB2}, v28")
    wait_vm(last)
    out = None
    for c in range(4):
        if c: I(f"v_xor_b32 v{30 + (c&1)}, {c*32}, v29")
        b = 29 if c == 0 else 30 + (c & 1)
        f = DF(j, c)
        I(f"ds_read_b64_tr_b16 {ar(f,2)}, v{b}")
        out = I(f"ds_read_b64_tr_b16 {ar(f+2,2)}, v{b} offset:512")
    return out

L_XCH = 96 * K
L_RS = L_MISC
DA = 128; AF = 64; SR = 32
def d_start():
    I(f"s_lshl_b32 s{sT0}, s{sGrpD}, 11")
    I(f"s_add_u32 s{sT0}, s{sT0}, {WS_FX}")
    I(f"v_lshlrev_b32 v6, 7, v{vT}")
    I(f"v_add_u32 v6, s{sT0}, v6")
    I(f"s_lshl_b32 s{sT0}, s{sGrpD}, 3")
    I(f"s_lshl_b32 s{sT1}, s{sW}, 1")
    I(f"s_add_u32 s{sT0}, s{sT0}, s{sT1}")
    I(f"s_lshl_b32 s{sT0}, s{sT0}, 14")
    I(f"s_add_u32 s{sT0}, s{sT0}, {WS_X1P}")
    I(f"v_add_u32 v12, s{sT0}, v{vL16}")
    I(f"s_lshl_b32 s{sP1}, s{sW}, 13")
    I(f"v_and_b32 v13, 127, v{vTid}")
    I(f"s_lshl_b32 s{sP0}, s{sGrpD}, 13")
    I(f"s_add_u32 s{sP0}, s{sP0}, {WS_STAT}")
    I(f"v_lshlrev_b32 v14, 6, v13")
    I(f"s_and_b32 s{sT1}, s{sW}, 1")
    I(f"s_lshl_b32 s{sT1}, s{sT1}, 14")
    I(f"v_add_u32 v8, s{sT1}, v{vL16}")
    I(f"v_xor_b32 v9, 16384, v8")
    I(f"v_add_u32 v10, 65536, v8")
    I(f"v_add_u32 v11, 65536, v9")
    barrier()
    poll_flags(6, 7)
    ids = []
    for q in range(4):
        for r in range(2):
            last = dma4([12] * 4, S(SWS), sP1, q * 32 * K + r * 4096, sK + q, r * 16384, " sc1")
        ids.append(last)
        if q == 0:
            for k in range(4):
                sid = I(f"buffer_load_dwordx4 {vr(SR+4*k,4)}, v14, {S(SWS)}, s{sP0} offen offset:{16*k} sc1")
    return ids, sid

def d_rd(ks, sl):
    b = AF + (ks & 1) * 32 + 4 * sl
    q, s = ks >> 2, ks & 3
    base = (8 if sl < 4 else 9) + (2 if q >= 2 else 0)
    return I(f"ds_read_b128 {vr(b,4)}, v{base} offset:{(q&1)*32*K + (sl&3)*4096 + s*1024}")

def d_gemm(ids):
    wd = {}
    wait_vm(ids[0]); barrier()
    cur = [d_rd(0, sl) for sl in range(8)]
    for ks in range(16):
        def main():
            nonlocal cur
            if ks in (4, 8, 12): I("s_barrier")
            if ks + 1 < 16 and (ks + 1) % 4 == 0:
                wait_vm(ids[(ks + 1) >> 2]); I("s_barrier")
            nxt = []
            for sl in range(8):
                if ks + 1 < 16: nxt.append(d_rd(ks + 1, sl))
                if sl % 2 == 0: wait_lg(cur[sl + 1])
                for c in range(3):
                    acc = vr(DA + (c * 8 + sl) * 4, 4)
                    I(f"v_mfma_f32_16x16x32_bf16 {acc}, {ar(GF(c,ks),4)}, {vr(AF+(ks&1)*32+4*sl,4)}, {acc if ks else 0}")
            cur = nxt
        def bg():
            if ks == 4: wd[0] = wd_dma(0); wd[1] = wd_dma(1)
            if ks == 6: wd[2] = wd_dma(2)
            if ks == 8: wd[3] = wd_dma(3); wd[4] = wd_dma(4)
            if ks == 10:
                wd_tr(0, wd[0]); x = wd_tr(1, wd[1]); wait_lg(x)
                wd[5] = wd_dma(5)
            if ks == 11:
                wd[6] = wd_dma(6)
                x = wd_tr(2, wd[2]); wait_lg(x)
                wd[7] = wd_dma(7)
            if ks == 12: wd[8] = wd_dma(8); wd[9] = wd_dma(9)
            if ks == 13:
                x = wd_tr(3, wd[3]); wait_lg(x)
                wd[10] = wd_dma(10)
            if ks == 14: wd_tr(4, wd[4])
            if ks == 15: wd_tr(5, wd[5])
        rm = rec(main); rb_ = rec(bg)
        merge(A, [rm, rb_], [(0, 1), (0.08, 0.95)])
    return wd

def d_epilogue(sid):
    wait_vm(sid)
    I(f"v_add_f32 v48, v{SR}, v{SR+2}")
    I(f"v_add_f32 v50, v{SR+1}, v{SR+3}")
    for q in range(2, 8):
        I(f"v_add_f32 v48, v48, v{SR+2*q}")
        I(f"v_add_f32 v50, v50, v{SR+2*q+1}")
    I(f"v_mul_f32 v49, 0xbe000000, v48")
    for q in range(8):
        I(f"v_add_f32 v{52+q}, v{SR+2*q}, v49")
    for q in range(8):
        I(f"v_mul_f32 v{52+q}, v{52+q}, v{52+q}")
    for q in range(8):
        I(f"v_fmac_f32 v50, 0x3c800000, v{52+q}")
    I("v_mov_b32 v51, 0x3727c5ac")
    I("v_fmac_f32 v51, 0x3b000000, v50")
    I("v_rsq_f32 v50, v51")
    I("v_mul_f32 v51, 0xbb000000, v48")
    I(f"v_lshlrev_b32 v13, 3, v13")
    I(f"v_add_u32 v13, {L_RS}, v13")
    I("v_mul_f32 v51, v51, v50")
    I(f"ds_write_b64 v13, v[50:51]")

def d_epilogue2():
    I(f"s_and_b32 s{sT1}, s{sW}, 1")
    I(f"s_lshl_b32 s{sT1}, s{sT1}, 9")
    I(f"v_lshlrev_b32 v6, 3, v{vT}")
    I(f"v_add_u32 v6, s{sT1}, v6")
    I(f"v_add_u32 v6, {L_RS}, v6")
    I(f"v_xor_b32 v7, 512, v6")
    barrier()
    RS = 32
    for sl in (4, 5, 6, 7, 0, 1, 2, 3):
        I(f"ds_read_b64 {vr(RS+2*sl,2)}, v{6 if sl < 4 else 7} offset:{(sl&3)*128}")
    I(f"s_add_u32 s{sT0}, s{sW4096}, {L_XCH}")
    I(f"v_add_u32 v12, s{sT0}, v{vL16}")
    I(f"v_and_b32 v13, 1, v{vG}")
    I(f"v_mul_u32_u24 v13, {43*1024}, v13")
    I(f"v_lshrrev_b32 v14, 1, v{vG}")
    I(f"v_lshl_add_u32 v13, v14, 8, v13")
    I(f"v_lshl_add_u32 v13, v{vT}, 4, v13")
    def ft_base(dst, tile_s):
        I(f"s_add_u32 s{dst}, s{sFt0}, s{tile_s}")
        I(f"s_lshl_b32 s{dst}, s{dst}, 9")
        I(f"s_add_u32 s{dst}, s{dst}, s{sT0}")
    I(f"s_mul_i32 s{sT0}, s{sGrpD}, {8*43*1024}")
    I(f"s_add_u32 s{sT0}, s{sT0}, {WS_HH}")
    ft_base(sP0, sTx); ft_base(sP1, sTz)
    I(f"s_and_b32 s{sT1}, s{sW}, 1")
    I(f"s_mul_i32 s{sT1}, s{sT1}, {4*43*1024}")
    I(f"s_xor_b32 s{sT2}, s{sT1}, {4*43*1024}")
    wait_lg()
    tcount = [0]
    def fix(c, sl):
        a = DA + (c * 8 + sl) * 4
        for e in (0, 2):
            t = 48 + 2 * (tcount[0] & 3); tcount[0] += 1
            I(f"v_pk_fma_f32 {vr(t,2)}, {vr(U1+4*c+e,2)}, {vr(RS+2*sl,2)}, {vr(U1+12+4*c+e,2)} op_sel:[0,1,0] op_sel_hi:[1,1,1]")
            I(f"v_pk_fma_f32 {vr(a+e,2)}, {vr(a+e,2)}, {vr(RS+2*sl,2)}, {vr(t,2)} op_sel_hi:[1,0,1]")
    for sl in range(4, 8):
        fix(2, sl)
        I(f"ds_write_b128 v12, {vr(DA+(16+sl)*4,4)} offset:{(sl-4)*1024}")
    def hh_pack(dst, ga, ua):
        for e in (0, 2):
            I(f"v_pk_mul_f32 {vr(ga+e,2)}, {vr(ga+e,2)}, {vr(ua+e,2)}")
        I(f"v_cvt_pk_bf16_f32 v{dst}, v{ga}, v{ga+1}")
        I(f"v_cvt_pk_bf16_f32 v{dst+1}, v{ga+2}, v{ga+3}")
    H = 64
    def store_pair(k, slot, base_s, ga0, ua0, ga1, ua1):
        d = H + 4 * k
        hh_pack(d, ga0, ua0)
        hh_pack(d + 2, ga1, ua1)
        I(f"s_add_u32 s{sT0}, s{base_s}, s{sT1 if slot < 4 else sT2}")
        I(f"s_add_u32 s{sT0}, s{sT0}, {(slot&3)*43*1024}")
        I(f"v_permlane16_swap_b32 v{d}, v{d+2}")
        I(f"v_permlane16_swap_b32 v{d+1}, v{d+3}")
        return I(f"buffer_store_dwordx4 {vr(d,4)}, v13, {S(SWS)}, s{sT0} offen sc1")
    for k, sl in enumerate(range(0, 8, 2)):
        for c in (0, 1):
            fix(c, sl); fix(c, sl + 1)
        store_pair(k, sl, sP0, DA + sl * 4, DA + (8 + sl) * 4, DA + (sl + 1) * 4, DA + (9 + sl) * 4)
        if k == 0:
            barrier()
            I(f"v_xor_b32 v12, 4096, v12")
            for s2 in range(4):
                I(f"ds_read_b128 {vr(DA+(20+s2)*4,4)}, v12 offset:{s2*1024}")
    for sl in range(4): fix(2, sl)
    wait_lg()
    for k, sl in enumerate(range(0, 4, 2)):
        last = store_pair(4 + k, sl, sP1, DA + (16 + sl) * 4, DA + (20 + sl) * 4, DA + (17 + sl) * 4, DA + (21 + sl) * 4)
    I(f"s_lshl_b32 s{sT0}, s{sGrpD}, 4")
    I(f"s_add_u32 s{sT0}, s{sT0}, s{sMD}")
    I(f"s_lshl_b32 s{sT0}, s{sT0}, 7")
    I(f"s_add_u32 s{sT0}, s{sT0}, {WS_FH}")
    set_flag(sT0, last)

def phaseE():
    I(f"s_lshl_b32 s{sT0}, s{sGrpC}, 11")
    I(f"s_add_u32 s{sT0}, s{sT0}, {WS_FH}")
    I(f"v_lshlrev_b32 v6, 7, v{vT}")
    I(f"v_add_u32 v6, s{sT0}, v6")
    rt_offsets(43 * 1024)
    I(f"s_mul_i32 s{sP0}, s{sRbC}, {4*43*1024}")
    I(f"s_mul_i32 s{sT1}, s{sW}, {11*1024}")
    I(f"s_add_u32 s{sP0}, s{sP0}, s{sT1}")
    I(f"s_add_u32 s{sP0}, s{sP0}, {WS_HH}")
    I(f"v_add_u32 v8, s{sP0}, v{vL16}")
    I(f"v_add_u32 v9, 4096, v8")
    I(f"v_add_u32 v10, 8192, v8")
    I(f"s_cmp_eq_u32 s{sW}, 3")
    I(f"s_cselect_b32 s{sP1}, 1024, 0")
    I(f"v_subrev_u32 v11, s{sP1}, v10")
    GB = 192; XF = 208
    for c in range(4):
        I(f"ds_read_b128 {vr(GB+4*c,4)}, v22 offset:{10240 + 64*c}")
    for q in range(8):
        I(f"v_lshlrev_b32 v{XF+2*q}, 16, v{X1K+q}")
        I(f"v_and_b32 v{XF+2*q+1}, s{sHi}, v{X1K+q}")
    I(f"v_lshlrev_b32 v12, 10, v20")
    I(f"v_and_b32 v7, 1, v{vG}")
    I(f"v_lshl_add_u32 v12, v7, 5, v12")
    I(f"v_lshrrev_b32 v7, 1, v{vG}")
    I(f"v_lshl_add_u32 v12, v7, 4, v12")
    barrier()
    poll_flags(6, 7)
    EA = 32; EC = 128; DEPTH = 6
    def ld(j, r):
        base = 11 if j == 10 else 8 + (j >> 2)
        return I(f"buffer_load_dwordx4 {vr(EA+((j%DEPTH)*4+r)*4,4)}, v{base}, {S(SWS)}, s{sR+r} offen offset:{(j&3)*1024} sc1")
    ids = [[ld(j, r) for r in range(4)] for j in range(DEPTH - 1)]
    for j in range(11):
        nx = []
        for r in range(4):
            if j + DEPTH - 1 < 11: nx.append(ld(j + DEPTH - 1, r))
            wait_vm(ids[j][r])
            for c in range(4):
                acc = vr(EC + (c * 4 + r) * 4, 4)
                I(f"v_mfma_f32_16x16x32_bf16 {acc}, {ar(DF(j,c),4)}, {vr(EA+((j%DEPTH)*4+r)*4,4)}, {acc if j else 0}")
        ids.append(nx)
    O = 32
    reduce_scatter(EC, O)
    for q in range(0, 16, 2):
        I(f"v_pk_fma_f32 {vr(O+q,2)}, {vr(O+q,2)}, {vr(GB+q,2)}, {vr(XF+q,2)}")
    for q in range(8):
        I(f"v_cvt_pk_bf16_f32 v{XF+q}, v{O+2*q}, v{O+2*q+1}")
    I(f"s_lshl_b32 s{sT1}, s{sCtC}, 7")
    for p in range(2):
        I(f"v_permlane16_swap_b32 v{XF+4*p}, v{XF+4*p+2}")
        I(f"v_permlane16_swap_b32 v{XF+4*p+1}, v{XF+4*p+3}")
    I(f"buffer_store_dwordx4 {vr(XF,4)}, v12, {S(SOUT)}, s{sT1} offen")
    I(f"buffer_store_dwordx4 {vr(XF+4,4)}, v12, {S(SOUT)}, s{sT1} offen offset:64")

def write_epoch():
    I(f"s_lshl_b32 s{sT0}, s2, 8")
    I(f"v_or_b32 v6, s{sT0}, v{vTid}")
    I(f"v_cmp_eq_u32 vcc, 0, v6")
    I(f"v_mov_b32 v7, {OOB}")
    I(f"v_cndmask_b32 v7, v7, {WS_EPOCH}, vcc")
    I(f"buffer_store_dword v{vTag}, v7, {S(SWS)}, 0 offen")

def body():
    aids = prologue()
    stamp()
    xids = x_issue()
    consts()
    wq_addr()
    phaseA_compute(aids)
    stamp()
    wphi_issue()
    r1 = rec(layernorm, xids)
    r2 = rec(lambda: [wq_dma(p) for p in range(4)])
    merge(A, [r1, r2], [(0, 1), (0, 0.8)])
    wids = list(r2.ret)
    h_addr()
    stamp()
    for p in range(3):
        wait_vm(wids[p]); barrier(); wq_tr(p)
    wphi_pack()
    wait_vm(wids[3]); barrier()
    def pre():
        wids.append(wq_dma(4)); wq_tr(3)
    stamp()
    gather_mod([0], 192, pre)
    barrier()
    stamp()
    make_h(0, True)
    make_h(1, True)
    barrier()
    cur = [a_rd(0, rt) for rt in range(4)]
    rm = rec(gemm_kv, 0, 6, cur); rb_ = rec(lambda: (make_h(2, False), make_h(3, False))); rc = rec(lambda: (wq_dma(5), pf_wo_gu(7))[0])
    merge(A, [rm, rb_, rc], [(0, 1), (0, 0.95), (0, 0.9)])
    wids.append(rc.ret)
    cur = gemm_kv(6, 7, rm.ret)
    barrier()
    cur = gemm_kv(7, 10, cur)
    wait_vm(wids[5]); I("s_barrier")
    rm = rec(gemm_kv, 10, 16, cur); rb_ = rec(lambda: (wq_tr(4), wq_tr(5)))
    merge(A, [rm, rb_], [(0, 1), (0, 0.8)])
    wphi_final()
    barrier()
    stamp()
    rm = rec(epi_k); rb_ = rec(wo_dma)
    nset = rb_.first_dma
    setup = Rec(); setup.ops = rb_.ops[:nset]; rb_.ops = rb_.ops[nset:]
    merge(A, [setup])
    merge(A, [rm, rb_], [(0, 1), (0, 0.7)])
    wo_last = rb_.ret
    stamp()
    rm = rec(gemm_q); rb_ = rec(wgu_setup)
    merge(A, [rm, rb_], [(0, 1), (0.3, 1.0)])
    if STOP == 1:
        A.fence(16)
        dbg_dump([vr(accQ(k), 4) for k in range(4)] + [vr(accK(k), 4) for k in range(4)] + [vr(accV(k), 4) for k in range(4)], 0)
        return
    barrier()
    stamp()
    g = {}
    rm = rec(epi_q); rb_ = rec(wgu_dma, 0); rc = rec(kv_reduce_issue)
    merge(A, [rm, rb_, rc], [(0, 1), (0, 0.5), (0.55, 0.75)])
    g[0] = rb_.ret
    stamp()
    kv_reduce_finish(rc.ret)
    set_flag(sT1, rm.ret)
    stamp()
    if STOP == 2: return
    wo_tr(wo_last)
    wgu_traddr()
    phiq_load()
    stamp()
    barrier()
    wgu_tr(0)
    gather_mod([1, 2], 192)
    stamp()
    kv_load()
    barrier()
    stamp()
    rm = rec(c_compute); rb_ = rec(lambda: (pf_wd(27, 31), wgu_dma(1), c_xload(), wgu_dma(2))[1:])
    merge(A, [rm, rb_], [(0, 1), (0, 0.9)])
    g[1], xid, g[2] = rb_.ret
    stamp()
    epilogueC(xid)
    stamp()
    if STOP == 3: return
    g[3] = wgu_dma(3)
    wgu_tr(1); wgu_tr(2)
    wait_vm(g[3]); barrier()
    wgu_tr(3)
    wd_setup()
    stamp()
    ids, sid = d_start()
    stamp()
    u12()
    d_epilogue(sid)
    stamp()
    wd = d_gemm(ids)
    stamp()
    d_epilogue2()
    stamp()
    if STOP == 4: return
    for j in range(6, 11): wd_tr(j, wd[j])
    phaseE()
    stamp()

hdr = open(f"cdna_kernels/{NAME}.s.ref").read().split("; Override launch")[0]
A.raw(hdr.rstrip())
A.raw(f"; @launch grid=(256,1,1) block=(256,1,1) lds={LDS_BYTES}")
A.raw('.amdgcn_target "amdgcn-amd-amdhsa--gfx950"')
A.raw(".text")
A.raw(f".globl {NAME}_kernel")
A.raw(".p2align 8")
A.raw(f".type {NAME}_kernel,@function")
A.raw(f"{NAME}_kernel:")
body()
write_epoch()
stamp_out()
A.raw("L_end:")
I("s_endpgm")
A.raw("L_code_end:")
A.raw('.section .rodata,"a"')
A.raw(".p2align 6")
A.raw(f".amdhsa_kernel {NAME}_kernel")
A.raw("  .amdhsa_next_free_vgpr 512")
A.raw("  .amdhsa_next_free_sgpr 102")
A.raw("  .amdhsa_accum_offset 256")
A.raw("  .amdhsa_group_segment_fixed_size 0")
A.raw("  .amdhsa_kernarg_size 104")
A.raw("  .amdhsa_user_sgpr_count 2")
A.raw("  .amdhsa_user_sgpr_kernarg_segment_ptr 1")
A.raw("  .amdhsa_system_sgpr_workgroup_id_x 1")
A.raw(".end_amdhsa_kernel")
out = sys.argv[1] if len(sys.argv) > 1 else f"cdna_kernels/{NAME}.s"
open(out, "w").write(A.text())
print("instructions:", A.ninstr, "stamps:", stamp_idx[0], "->", out)
```

```python
import sys
from asmlib import *

NAME = "adaLN_cond__linear_kernel_hedgehog__glu_gated_bilinear__prompt"
STOP = int(sys.argv[2]) if len(sys.argv) > 2 else 99
STAMP = int(sys.argv[3]) if len(sys.argv) > 3 else 0
XST = int(sys.argv[4]) if len(sys.argv) > 4 else 0

WS_EPOCH = 0
WS_FQ = 0x80000
WS_FX = 0x88000
WS_FH = 0x90000
WS_MODF = 0x10000
WS_KVF = 0x20000
WS_STAT = 0x40000
WS_KVP = 0x100000
WS_PHIQ = 0x400000
WS_X1P = 0x800000
WS_HH = 0xA00000
WS_DBG = 0x1000000
WS_STAMP = 0x1F00000
WS_SIZE = 0x2000000
OOB = 0x7ffffff0
KVREC = 2176
K = 1024
L_MODV = 144 * K
L_MISC = 156 * K
L_UV = L_MISC + 1024
LDS_BYTES = 160 * K
SPIN = 400000

sTag, sW, sJ = 4, 5, 6
sCtB, sRbB, sCtC, sRbC, sGrpC, sMC, sGrpD, sMD = 7, 8, 9, 10, 36, 37, 38, 39
sT0, sT1, sT2, sT3, sCnt = 11, 12, 13, 14, 15
sK, sKW, sKM = 16, 20, 24
sW4096 = 28
sP0, sP1, sP2, sP3 = 29, 30, 31, 32
sFt0, sHead, sB0 = 33, 34, 35
sTx, sTz, sB1, sB2 = 40, 41, 42, 43
SX, SWQKV, SWPHI, SWO, SWG, SWU, SWD, SC, SWMOD, SOUT, SWS = 44, 48, 52, 56, 60, 64, 68, 72, 76, 80, 84
SGU = 72
sR = 76
sSel = 88
sSelA, sSelB = 92, 93
sL, sL2, sNL, sNL2 = 94, 95, 96, 97
sHi = 98
sSelHi = 99
sSelLL = 3

A = Asm(); A.phmap = {}
class Em: pass
E = Em(); E.t = A
def I(t): return E.t.I(t)
def wait_vm(x=None): E.t.wait_vm(A.phmap.get(x, x) if (E.t is A and x is not None) else x)
def wait_lg(x=None): E.t.wait_lg(A.phmap.get(x, x) if (E.t is A and x is not None) else x)
def barrier(): E.t.barrier()
def rec(fn, *a):
    r = Rec(); old = E.t; E.t = r
    ret = fn(*a)
    E.t = old
    r.ret = ret
    return r
def gbegin():
    if E.t is not A: E.t.begin()
def gend():
    if E.t is not A: E.t.end()
def pad(c):
    if E.t is not A: E.t.pad(c)

def srd(base, ptr, nbytes):
    I(f"s_mov_b32 s{base}, s{ptr}")
    I(f"s_and_b32 s{base+1}, s{ptr+1}, 0xffff")
    I(f"s_mov_b32 s{base+2}, {nbytes}")
    I(f"s_mov_b32 s{base+3}, 0x20000")
def S(b): return sr(b, 4)

vTid, vL, vG, vT, vTag, vL16 = 0, 1, 2, 3, 4, 5

stamp_idx = [0]
DBGSET = [0, 1, 2, 4, 5, 6, 8, 9, 12, 13, 14, 16, 17, 18, 19, 20]
def stamp():
    if not STAMP: return
    n = stamp_idx[0]; stamp_idx[0] += 1
    if STAMP == 3:
        if n not in DBGSET: return
        n = DBGSET.index(n)
    I("s_memrealtime s[100:101]" if STAMP != 2 else "s_memtime s[100:101]")
    I("s_waitcnt lgkmcnt(0)")
    A.lg = []
    I("v_mov_b32 v6, s100")
    I(f"v_lshlrev_b32 v7, 1, v{vTid}")
    I(f"v_and_b32 v7, 0x180, v7")
    I(f"s_lshl_b32 s100, s2, 9")
    I(f"s_add_u32 s100, s100, {WS_STAMP + 4*n}")
    I(f"buffer_store_dword v6, v7, {S(SWS)}, s100 offen")
def stamp_out():
    if STAMP != 3: return
    I("s_cmp_lg_u32 s2, 100")
    I("s_cbranch_scc1 L_end")
    I(f"s_load_dwordx2 s[20:21], s[0:1], 88")
    I("s_waitcnt vmcnt(0) lgkmcnt(0)")
    srd(16, 20, 64)
    I(f"v_lshlrev_b32 v7, 2, v{vTid}")
    I(f"s_mov_b32 s100, {WS_STAMP + 100*512}")
    I(f"buffer_load_dword v6, v7, {S(SWS)}, s100 offen sc1")
    I("s_waitcnt vmcnt(0)")
    I(f"buffer_store_dword v6, v7, s[16:19], 0 offen")

def xstamp():
    if STAMP in (1, 2) and XST: stamp()
def tag4(b):
    for i in range(4):
        I(f"v_perm_b32 v{b+i}, v{b+i}, v{vTag}, s{sSel+i}")
def check4(bad, b, t0, t1, first):
    I(f"v_perm_b32 v{t0}, v{b+1}, v{b}, s{sSelA}")
    I(f"v_perm_b32 v{t1}, v{b+3}, v{b+2}, s{sSelB}")
    if first:
        I(f"v_bitop3_b32 v{bad}, v{t0}, v{t1}, v{vTag} bitop3:0x96")
    else:
        I(f"v_bitop3_b32 v{t0}, v{t0}, v{t1}, v{vTag} bitop3:0x96")
        I(f"v_or_b32 v{bad}, v{bad}, v{t0}")

def round_tag16(b, t):
    I(f"v_cvt_pk_bf16_f32 v{t}, v{b}, v{b+1}")
    I(f"v_cvt_pk_bf16_f32 v{t+1}, v{b+2}, v{b+3}")
    I(f"v_perm_b32 v{b}, v{t}, v{vTag}, s{sSelLL}")
    I(f"v_perm_b32 v{b+1}, v{t}, v{vTag}, s{sSelHi}")
    I(f"v_perm_b32 v{b+2}, v{t+1}, v{vTag}, s{sSelLL}")
    I(f"v_perm_b32 v{b+3}, v{t+1}, v{vTag}, s{sSelHi}")
def check16(bad, b, t0, first):
    I(f"v_perm_b32 v{t0}, v{b+1}, v{b}, s{sSelLL}")
    if first: I(f"v_xor_b32 v{bad}, v{t0}, v{vTag}")
    else: I(f"v_bitop3_b32 v{bad}, v{bad}, v{t0}, v{vTag} bitop3:0xf6")

def spin_loop(body, first_done=False):
    lab = A.newlabel("Lspin"); done = A.newlabel("Ldone")
    saved_vm, saved_lg = list(A.vm), list(A.lg)
    if first_done:
        I(f"s_cbranch_vccz {done}")
    I(f"s_mov_b32 s{sCnt}, 0")
    A.fence(4)
    A.label(lab)
    body()
    I(f"s_cbranch_vccz {done}")
    I(f"s_add_u32 s{sCnt}, s{sCnt}, 1")
    I(f"s_cmp_lt_u32 s{sCnt}, {SPIN}")
    I(f"s_cbranch_scc1 {lab}")
    A.label(done)
    if first_done:
        A.vm, A.lg = saved_vm, saved_lg
    A.fence(2)

def poll_flags(vaddr, vtmp):
    def body():
        I(f"buffer_load_dword v{vtmp}, v{vaddr}, {S(SWS)}, 0 offen sc1")
        I("s_waitcnt vmcnt(0)"); A.vm = []
        I(f"v_cmp_ne_u32 vcc, v{vtmp}, v{vTag}")
    spin_loop(body)

vLane0 = 23
def poll_issue(vaddr, vtmp):
    return I(f"buffer_load_dword v{vtmp}, v{vaddr}, {S(SWS)}, 0 offen sc1")
def poll_finish(vaddr, vtmp, pid):
    wait_vm(pid)
    I(f"v_cmp_ne_u32 vcc, v{vtmp}, v{vTag}")
    def body():
        I(f"buffer_load_dword v{vtmp}, v{vaddr}, {S(SWS)}, 0 offen sc1")
        I("s_waitcnt vmcnt(0)"); A.vm = []
        I(f"v_cmp_ne_u32 vcc, v{vtmp}, v{vTag}")
    spin_loop(body, first_done=True)

def set_flag(soff_reg, last):
    wait_vm(last)
    I("s_barrier")
    I(f"buffer_store_dword v{vTag}, v{vLane0}, {S(SWS)}, s{soff_reg} offen sc1")

def xlane4(vals, op, mid=None):
    a, b, c, d = vals
    I(f"v_permlane32_swap_b32 v{a}, v{b}")
    I(f"v_permlane32_swap_b32 v{c}, v{d}")
    I(f"{op} v{a}, v{a}, v{b}")
    I(f"{op} v{c}, v{c}, v{d}")
    I(f"v_permlane16_swap_b32 v{a}, v{c}")
    I(f"{op} v{a}, v{a}, v{c}")
    if mid: mid(a)
    I(f"v_mov_b32 v{c}, v{a}")
    I(f"v_permlane16_swap_b32 v{a}, v{c}")
    I(f"v_mov_b32 v{b}, v{a}")
    I(f"v_mov_b32 v{d}, v{c}")
    I(f"v_permlane32_swap_b32 v{a}, v{b}")
    I(f"v_permlane32_swap_b32 v{c}, v{d}")

def xlane4x2(v1, op1, mid1, v2, op2, mid2):
    r1 = rec(xlane4, v1, op1, mid1); r2 = rec(xlane4, v2, op2, mid2)
    for (o1, _), (o2, _) in zip(r1.ops, r2.ops):
        I(o1[1]); I(o2[1])

def dbg_dump(regs, slot):
    I(f"v_lshlrev_b32 v6, 4, v{vTid}")
    for k, r in enumerate(regs):
        I(f"s_lshl_b32 s{sT0}, s2, 12")
        I(f"s_add_u32 s{sT0}, s{sT0}, {WS_DBG + (slot + k) * 256 * 4096}")
        I(f"buffer_store_dwordx4 {r}, v6, {S(SWS)}, s{sT0} offen")
    wait_vm()

def bf_round4(b, t):
    I(f"v_cvt_pk_bf16_f32 v{t}, v{b}, v{b+1}")
    I(f"v_cvt_pk_bf16_f32 v{t+1}, v{b+2}, v{b+3}")
    I(f"v_lshlrev_b32 v{b}, 16, v{t}")
    I(f"v_and_b32 v{b+1}, s{sHi}, v{t}")
    I(f"v_lshlrev_b32 v{b+2}, 16, v{t+1}")
    I(f"v_and_b32 v{b+3}, s{sHi}, v{t+1}")

def prologue():
    I("s_cmp_ge_u32 s2, 256")
    I("s_cbranch_scc1 L_end")
    I("s_load_dwordx8 s[32:39], s[0:1], 64")
    I("s_load_dwordx16 s[16:31], s[0:1], 0")
    I("s_load_dwordx2 s[40:41], s[0:1], 96")
    I("s_getpc_b64 s[100:101]")
    A.raw("L_pc:")
    I(f"v_and_b32 v{vL}, 63, v0")
    I(f"v_lshrrev_b32 v6, 6, v0")
    I(f"v_lshrrev_b32 v{vG}, 4, v{vL}")
    I(f"v_and_b32 v{vT}, 15, v0")
    I(f"v_readfirstlane_b32 s{sW}, v6")
    I(f"v_lshlrev_b32 v{vL16}, 4, v{vL}")
    I(f"s_lshr_b32 s{sJ}, s2, 3")
    I(f"s_and_b32 s3, s2, 7")
    I(f"s_sub_u32 s{sT0}, s{sJ}, 24")
    I(f"s_cmp_ge_u32 s{sJ}, 24")
    I(f"s_cselect_b32 s{sT0}, s{sT0}, s{sJ}")
    I(f"s_lshr_b32 s{sT1}, s{sT0}, 2")
    I(f"s_lshl_b32 s{sT1}, s{sT1}, 3")
    I(f"s_add_u32 s{sT1}, s{sT1}, s3")
    I(f"s_lshl_b32 s{sT1}, s{sT1}, 2")
    I(f"s_and_b32 s{sT0}, s{sT0}, 3")
    I(f"s_add_u32 s{sT3}, s{sT1}, s{sT0}")
    I(f"v_lshrrev_b32 v6, 1, v0")
    I(f"v_and_b32 v6, 31, v6")
    I(f"s_lshl_b32 s{sT0}, s{sW}, 7")
    I(f"v_add_u32 v6, s{sT0}, v6")
    I(f"v_lshlrev_b32 v7, 1, v6")
    I(f"v_mul_u32_u24 v8, 6144, v6")
    I(f"v_and_b32 v9, 1, v0")
    I(f"v_lshl_add_u32 v8, v9, 4, v8")
    I(f"s_lshl_b32 s{sT0}, s{sT3}, 5")
    I("s_waitcnt lgkmcnt(0)")
    srd(SC, 32, 1024)
    srd(SWMOD, 34, 512 * 3072 * 2)
    ids = []
    for i in range(4):
        I(f"s_add_u32 s{sT1}, s{sT0}, {i*32*6144}")
        ids.append(I(f"buffer_load_dwordx4 {vr(32+4*i,4)}, v8, {S(SWMOD)}, s{sT1} offen"))
    for i in range(4):
        ids.append(I(f"buffer_load_ushort v{48+i}, v7, {S(SC)}, 0 offen offset:{64*i}"))
    I(f"s_load_dword s{sTag}, s[40:41], {WS_EPOCH}")
    I(f"s_and_b32 s{sT0}, s{sJ}, 15")
    I(f"s_lshl_b32 s{sT0}, s{sT0}, 12")
    I(f"v_lshlrev_b32 v6, 4, v0")
    I(f"v_add_u32 v6, s{sT0}, v6")
    I(f"v_min_u32 v6, L_code_end-L_pc-16, v6")
    I(f"global_load_dwordx4 v[60:63], v6, s[100:101]")
    srd(SX, 16, 2048 * 512 * 2)
    srd(SWQKV, 18, 512 * 1536 * 2)
    srd(SWPHI, 20, 32 * 512)
    srd(SWO, 22, 512 * 512 * 2)
    srd(SWG, 26, 512 * 1376 * 2)
    srd(SWU, 28, 512 * 1376 * 2)
    srd(SWD, 30, 1376 * 512 * 2)
    srd(SOUT, 36, 2048 * 512 * 2)
    srd(SWS, 40, WS_SIZE)
    I(f"v_lshlrev_b32 v6, 18, v{vL}")
    I(f"buffer_load_dword a255, v6, {S(SWS)}, 0 offen offset:64")
    I(f"v_lshlrev_b32 v6, 16, v{vL}")
    for b in (SWO, SWG, SWU, SWD, SOUT):
        I(f"buffer_load_dword a255, v6, {S(b)}, 0 offen")
    I(f"s_lshr_b32 s{sT0}, s3, 1")
    I(f"s_and_b32 s{sT1}, s3, 1")
    I(f"s_lshr_b32 s{sT2}, s{sJ}, 2")
    I(f"s_lshl_b32 s{sRbB}, s{sT0}, 3")
    I(f"s_add_u32 s{sRbB}, s{sRbB}, s{sT2}")
    I(f"s_and_b32 s{sP0}, s{sT2}, 3")
    I(f"s_and_b32 s{sT2}, s{sJ}, 3")
    I(f"s_lshl_b32 s{sCtB}, s{sT1}, 2")
    I(f"s_add_u32 s{sCtB}, s{sCtB}, s{sT2}")
    I(f"s_and_b32 s{sT1}, s3, 3")
    I(f"s_lshl_b32 s{sMD}, s{sT1}, 2")
    I(f"s_add_u32 s{sMD}, s{sMD}, s{sT2}")
    I(f"s_lshr_b32 s{sT2}, s{sJ}, 2")
    I(f"s_lshr_b32 s{sT0}, s3, 2")
    I(f"s_lshl_b32 s{sGrpD}, s{sT0}, 3")
    I(f"s_add_u32 s{sGrpD}, s{sGrpD}, s{sT2}")
    I(f"s_lshr_b32 s{sT2}, s{sJ}, 4")
    I(f"s_lshl_b32 s{sGrpC}, s3, 1")
    I(f"s_add_u32 s{sGrpC}, s{sGrpC}, s{sT2}")
    I(f"s_and_b32 s{sMC}, s{sJ}, 15")
    I(f"s_and_b32 s{sCtC}, s{sJ}, 7")
    I(f"s_lshr_b32 s{sT2}, s{sJ}, 3")
    I(f"s_lshl_b32 s{sRbC}, s3, 2")
    I(f"s_add_u32 s{sRbC}, s{sRbC}, s{sT2}")
    for u in range(4):
        I(f"s_add_u32 s{sT0}, s{sP0}, {u}")
        I(f"s_and_b32 s{sT0}, s{sT0}, 3")
        I(f"s_lshl_b32 s{sK+u}, s{sT0}, 8")
        I(f"s_mul_i32 s{sKW+u}, s{sT0}, {128*3072}")
        I(f"s_lshl_b32 s{sKM+u}, s{sT0}, 9")
    I(f"s_lshl_b32 s{sW4096}, s{sW}, 12")
    return ids

def consts():
    for i in range(4):
        I(f"s_mov_b32 s{sSel+i}, {0x07060500 | i:#x}")
    I(f"s_mov_b32 s{sSelA}, 0x0c0c0400")
    I(f"s_mov_b32 s{sSelB}, 0x04000c0c")
    I(f"s_mov_b32 s{sL}, 0x3fb8aa3b")
    I(f"s_mov_b32 s{sL2}, 0x3fb8aa3b")
    I(f"s_mov_b32 s{sNL}, 0xbfb8aa3b")
    I(f"s_mov_b32 s{sNL2}, 0xbfb8aa3b")
    I(f"s_mov_b32 s{sHi}, 0xffff0000")
    I(f"s_mov_b32 s{sSelHi}, 0x07060302")
    I(f"s_mov_b32 s{sSelLL}, 0x05040100")
    I(f"v_cmp_eq_u32 vcc, 0, v{vTid}")
    I(f"v_mov_b32 v{vLane0}, {OOB}")
    I(f"v_cndmask_b32 v{vLane0}, v{vLane0}, 0, vcc")

XH = 64
RAW = 192
vRow = 16
def x_issue():
    ids = {}
    I(f"s_lshl_b32 s{sT0}, s{sRbB}, 6")
    I(f"s_lshl_b32 s{sT1}, s{sW}, 4")
    I(f"s_add_u32 s{sT0}, s{sT0}, s{sT1}")
    for i in range(4):
        I(f"s_add_u32 s{sT2}, s{sJ}, {i}")
        I(f"s_and_b32 s{sT2}, s{sT2}, 3")
        I(f"s_lshl_b32 s{sT2}, s{sT2}, 2")
        I(f"v_add_u32 v{vRow+i}, s{sT2}, v{vG}")
        I(f"v_add_u32 v9, s{sT0}, v{vRow+i}")
        I(f"v_lshlrev_b32 v9, 10, v9")
        I(f"v_lshl_add_u32 v9, v{vT}, 4, v9")
        for u in range(4):
            ids[(i, u)] = I(f"buffer_load_dwordx4 {vr(RAW + (i*4+u)*4, 4)}, v9, {S(SX)}, s{sK+u} offen")
    return ids

def phaseA_compute(ids):
    wait_vm(ids[7])
    for i in range(4): I(f"v_lshlrev_b32 v{48+i}, 16, v{48+i}")
    for i in range(4): I(f"v_mul_f32 v{52+i}, s{sNL}, v{48+i}")
    for i in range(4): I(f"v_min_f32 v{52+i}, 0x42f00000, v{52+i}")
    for i in range(4): I(f"v_exp_f32 v{52+i}, v{52+i}")
    for i in range(4): I(f"v_add_f32 v{52+i}, 1.0, v{52+i}")
    for i in range(4): I(f"v_rcp_f32 v{56+i}, v{52+i}")
    for i in range(4): I(f"v_mul_f32 v{8+i}, v{48+i}, v{56+i}")
    for i in range(4): I(f"v_fma_f32 v{48+i}, -v{8+i}, v{52+i}, v{48+i}")
    for i in range(4): I(f"v_fma_f32 v{48+i}, v{48+i}, v{56+i}, v{8+i}")
    bf_round4(48, 52)
    AC = 8
    for i in range(4):
        for d in range(4):
            I(f"v_lshlrev_b32 v52, 16, v{32+4*i+d}")
            I(f"v_and_b32 v53, s{sHi}, v{32+4*i+d}")
            if i == 0:
                I(f"v_mul_f32 v{AC+2*d}, v{48+i}, v52")
                I(f"v_mul_f32 v{AC+1+2*d}, v{48+i}, v53")
            else:
                I(f"v_fmac_f32 v{AC+2*d}, v{48+i}, v52")
                I(f"v_fmac_f32 v{AC+1+2*d}, v{48+i}, v53")
    for e in range(4): I(f"v_permlane32_swap_b32 v{AC+e}, v{AC+4+e}")
    for e in range(4): I(f"v_add_f32 v{AC+e}, v{AC+e}, v{AC+4+e}")
    for e in range(2): I(f"v_permlane16_swap_b32 v{AC+e}, v{AC+2+e}")
    for e in range(2): I(f"v_add_f32 v{AC+e}, v{AC+e}, v{AC+2+e}")
    I(f"v_and_b32 v6, 1, v{vL}")
    I(f"v_lshlrev_b32 v6, 5, v6")
    I(f"v_lshl_add_u32 v6, v{vG}, 3, v6")
    for r in (8, 4, 2):
        for e in range(2):
            I(f"v_add_f32_dpp v{AC+e}, v{AC+e}, v{AC+e} row_ror:{r} row_mask:0xf bank_mask:0xf")
        if r == 8:
            I(f"s_lshl_b32 s{sT0}, s{sW}, 6")
            I(f"s_add_u32 s{sT0}, s{sT0}, {L_MISC}")
        if r == 4:
            I(f"v_add_u32 v6, s{sT0}, v6")
            I(f"v_and_b32 v7, 3, v{vL}")
    I(f"ds_write_b64 v6, {vr(AC,2)}")
    I(f"v_lshlrev_b32 v7, 4, v7")
    I(f"v_add_u32 v6, {L_MISC}, v7")
    I("s_waitcnt lgkmcnt(0)"); A.lg = []
    I("s_barrier")
    for w in range(4):
        I(f"ds_read_b128 {vr(32+4*w,4)}, v6 offset:{64*w}")
    I(f"s_add_u32 s{sTag}, s{sTag}, 0x9e3779b1")
    I(f"v_mov_b32 v{vTag}, s{sTag}")
    I(f"s_lshr_b32 s{sT0}, s{sT3}, 5")
    I(f"s_cmp_eq_u32 s{sT0}, 1")
    I(f"s_cselect_b32 s{sT1}, 1.0, 0")
    I(f"s_cmp_eq_u32 s{sT0}, 4")
    I(f"s_cselect_b32 s{sT1}, 1.0, s{sT1}")
    I(f"v_cmp_gt_u32 vcc, 4, v{vTid}")
    I(f"v_mov_b32 v6, {OOB}")
    I(f"v_cndmask_b32 v7, v6, v7, vcc")
    I(f"s_lshl_b32 s{sT0}, s{sT3}, 6")
    I(f"s_add_u32 s{sT0}, s{sT0}, {WS_MODF}")
    wait_lg()
    for e in (0, 2):
        I(f"v_pk_add_f32 {vr(32+e,2)}, {vr(32+e,2)}, {vr(36+e,2)}")
        I(f"v_pk_add_f32 {vr(40+e,2)}, {vr(40+e,2)}, {vr(44+e,2)}")
    for e in (0, 2):
        I(f"v_pk_add_f32 {vr(32+e,2)}, {vr(32+e,2)}, {vr(40+e,2)}")
    bf_round4(32, 36)
    for e in range(4): I(f"v_add_f32 v{32+e}, s{sT1}, v{32+e}")
    round_tag16(32, 36)
    I(f"buffer_store_dwordx4 v[32:35], v7, {S(SWS)}, s{sT0} offen sc1")

def rows128_voff(vb, pitch, std, extra_s=None):
    I(f"v_lshrrev_b32 v6, 3, v{vL}")
    I(f"v_bfe_u32 v7, v{vL}, 4, {1 if std else 2}")
    I(f"v_bfe_u32 v8, v{vL}, 1, 2")
    I(f"v_xor_b32 v8, v8, v7")
    I(f"v_and_b32 v9, 1, v{vL}")
    I(f"v_lshlrev_b32 v9, 4, v9")
    I(f"v_lshl_add_u32 v9, v8, 5, v9")
    I(f"v_mul_u32_u24 v6, {pitch}, v6")
    if extra_s is not None: I(f"v_add_u32 v6, s{extra_s}, v6")
    I(f"v_add_u32 v{vb}, v6, v9")
    if std:
        I(f"v_xor_b32 v9, 64, v9")
        I(f"v_add_u32 v{vb+1}, v6, v9")
        I(f"v_add_u32 v{vb+1}, {8*pitch - 1024}, v{vb+1}")
    else:
        I(f"v_add_u32 v{vb+1}, {8*pitch - 1024}, v{vb}")
    I(f"v_add_u32 v{vb+2}, {2*(8*pitch - 1024)}, v{vb}")
    I(f"v_add_u32 v{vb+3}, {2*(8*pitch - 1024)}, v{vb+1}")

def dma4(vb, srd_, m0_s, m0_imm, so_s, so_imm, flags=""):
    if E.t is not A and not hasattr(E.t, "first_dma"): E.t.first_dma = len(E.t.ops)
    I(f"s_add_u32 m0, s{m0_s}, {m0_imm}")
    I(f"s_add_u32 s{sB0}, s{so_s}, {so_imm}")
    for i in range(4):
        last = I(f"buffer_load_dwordx4 v{vb[i] if isinstance(vb, list) else vb+i}, {srd_}, s{sB0} offen offset:{i*1024}{flags} lds")
        pad(100)
    return last

vBG = 24
def KF(u, s): return (u * 4 + s) * 4
def VF(u, s): return 64 + (u * 4 + s) * 4
def QF(u, s): return 128 + (u * 4 + s) * 4
PSLOT = [0, 32 * K, 64 * K, 96 * K, 64 * K, 96 * K]
PUNITS = [[(1, 0), (2, 0)], [(1, 1), (2, 1)], [(1, 2), (2, 2)], [(1, 3), (2, 3)], [(0, 0), (0, 1)], [(0, 2), (0, 3)]]
def wq_addr():
    I(f"s_mul_i32 s{sT0}, s{sW}, {32*3072}")
    I(f"s_lshl_b32 s{sT1}, s{sCtB}, 7")
    I(f"s_add_u32 s{sT0}, s{sT0}, s{sT1}")
    rows128_voff(vBG, 3072, True, sT0)
    I(f"v_bfe_u32 v6, v{vL}, 2, 2")
    I(f"v_lshl_add_u32 v6, v{vG}, 3, v6")
    I(f"v_lshlrev_b32 v6, 7, v6")
    I(f"v_bfe_u32 v7, v{vL}, 3, 2")
    I(f"v_xor_b32 v7, s{sW}, v7")
    I(f"v_lshl_add_u32 v6, v7, 5, v6")
    I(f"v_and_b32 v7, 3, v{vL}")
    I(f"v_lshl_add_u32 v28, v7, 3, v6")
    I(f"v_add_u32 v29, {64*K}, v28")
def wq_dma(p):
    for sub, (sg, u) in enumerate(PUNITS[p]):
        last = dma4(vBG, S(SWQKV), sW4096, PSLOT[p] + sub * 16 * K, sKW + u, sg * 1024)
    return last
def wq_tr(p):
    base = 28 if PSLOT[p] < 64 * K else 29
    off = PSLOT[p] % (64 * K)
    for sub, (sg, u) in enumerate(PUNITS[p]):
        for s in range(4):
            f = (QF, KF, VF)[sg](u, s)
            I(f"ds_read_b64_tr_b16 {ar(f,2)}, v{base} offset:{off + sub*16*K + s*4096}")
            I(f"ds_read_b64_tr_b16 {ar(f+2,2)}, v{base} offset:{off + sub*16*K + s*4096 + 512}")

def layernorm(xids):
    for i in range(4):
        wait_vm(xids[(i, 3)])
        xb = XH + i * 32
        for q in range(16):
            I(f"v_lshlrev_b32 v{xb+2*q}, 16, v{RAW+i*16+q}")
            I(f"v_and_b32 v{xb+2*q+1}, s{sHi}, v{RAW+i*16+q}")
        I(f"v_pk_add_f32 v[32:33], {vr(xb,2)}, {vr(xb+2,2)}")
        I(f"v_pk_add_f32 v[34:35], {vr(xb+4,2)}, {vr(xb+6,2)}")
        for q in range(4, 16, 2):
            I(f"v_pk_add_f32 v[32:33], v[32:33], {vr(xb+2*q,2)}")
            I(f"v_pk_add_f32 v[34:35], v[34:35], {vr(xb+2*q+2,2)}")
        I("v_pk_add_f32 v[32:33], v[32:33], v[34:35]")
        I("v_add_f32 v32, v32, v33")
        for r in (8, 4, 2, 1):
            I(f"v_add_f32_dpp v32, v32, v32 row_ror:{r} row_mask:0xf bank_mask:0xf")
        I("v_mul_f32 v32, 0xbb000000, v32")
        for q in range(16):
            I(f"v_pk_add_f32 {vr(xb+2*q,2)}, {vr(xb+2*q,2)}, v[32:33] op_sel_hi:[1,0]")
        I(f"v_pk_mul_f32 v[34:35], {vr(xb,2)}, {vr(xb,2)}")
        I(f"v_pk_mul_f32 v[36:37], {vr(xb+2,2)}, {vr(xb+2,2)}")
        for q in range(2, 16, 2):
            I(f"v_pk_fma_f32 v[34:35], {vr(xb+2*q,2)}, {vr(xb+2*q,2)}, v[34:35]")
            I(f"v_pk_fma_f32 v[36:37], {vr(xb+2*q+2,2)}, {vr(xb+2*q+2,2)}, v[36:37]")
        I("v_pk_add_f32 v[34:35], v[34:35], v[36:37]")
        I("v_add_f32 v34, v34, v35")
        for r in (8, 4, 2, 1):
            I(f"v_add_f32_dpp v34, v34, v34 row_ror:{r} row_mask:0xf bank_mask:0xf")
        I("v_mov_b32 v35, 0x3727c5ac")
        I("v_fmac_f32 v35, 0x3b000000, v34")
        I("v_rsq_f32 v34, v35")
        for q in range(16):
            I(f"v_pk_mul_f32 {vr(xb+2*q,2)}, {vr(xb+2*q,2)}, v[34:35] op_sel_hi:[1,0]")

def gm_loads(sets, G0):
    out = None
    for k, n in enumerate(sets):
        I(f"s_mov_b32 s{sB2}, {WS_MODF + n*4096}")
        out = I(f"buffer_load_dwordx4 {vr(G0+4*k,4)}, v11, {S(SWS)}, s{sB2} offen sc1")
    return out
def gm_issue(sets, G0):
    I(f"v_lshlrev_b32 v11, 4, v{vTid}")
    return gm_loads(sets, G0)
def gm_finish(sets, G0, last):
    def checks():
        for k in range(len(sets)):
            check16(8, G0 + 4 * k, 9, k == 0)
            check16(8, G0 + 4 * k + 2, 9, False)
        I("v_cmp_ne_u32 vcc, 0, v8")
    wait_vm(last)
    checks()
    def body():
        gm_loads(sets, G0); I("s_waitcnt vmcnt(0)"); A.vm = []; checks()
    spin_loop(body, first_done=True)
    I(f"v_add_u32 v6, {L_MODV}, v11")
    for k, n in enumerate(sets):
        for e in range(4):
            I(f"v_and_b32 v{G0+4*k+e}, s{sHi}, v{G0+4*k+e}")
        I(f"ds_write_b128 v6, {vr(G0+4*k,4)} offset:{n*4096}")
    if sets == [1, 2]:
        I(f"v_cmp_gt_u32 vcc, 128, v{vTid}")
        for e in range(4):
            I(f"v_cndmask_b32 v{G0+e}, v{G0+e}, v{G0+4+e}, vcc")
        I(f"v_perm_b32 v{G0+4}, v{G0+1}, v{G0}, s{sSelHi}")
        I(f"v_perm_b32 v{G0+5}, v{G0+3}, v{G0+2}, s{sSelHi}")
        I(f"v_lshrrev_b32 v6, 3, v{vTid}")
        I(f"v_lshlrev_b32 v6, 6, v6")
        I(f"v_and_b32 v8, 3, v{vTid}")
        I(f"v_lshl_add_u32 v6, v8, 4, v6")
        I(f"v_bfe_u32 v8, v{vTid}, 2, 1")
        I(f"v_lshl_add_u32 v6, v8, 3, v6")
        I(f"v_add_u32 v6, {L_UV}, v6")
        I(f"ds_write_b64 v6, {vr(G0+4,2)}")

def h_addr():
    for i in range(4):
        I(f"v_xor_b32 v6, v{vT}, v{vRow+i}")
        I(f"v_lshlrev_b32 v6, 4, v6")
        I(f"v_lshl_add_u32 v6, v{vRow+i}, 8, v6")
        I(f"v_add_u32 v{vRow+i}, s{sW4096}, v6")
    I(f"v_lshlrev_b32 v20, 5, v{vT}")
    I(f"v_add_u32 v20, {L_MODV}, v20")
    for s in range(4):
        I(f"v_add_u32 v6, {4*s}, v{vG}")
        I(f"v_xor_b32 v6, v6, v{vT}")
        I(f"v_lshlrev_b32 v6, 4, v6")
        I(f"v_lshl_add_u32 v{12+s}, v{vT}, 8, v6")

def make_h(u, pk):
    I(f"v_add_u32 v6, s{sKM+u}, v20")
    I(f"ds_read_b128 v[240:243], v6 offset:2048")
    I(f"ds_read_b128 v[244:247], v6 offset:2064")
    I(f"ds_read_b128 v[248:251], v6")
    x = I(f"ds_read_b128 v[252:255], v6 offset:16")
    pad(120)
    wait_lg(x)
    for i in range(4):
        b = XH + (i * 4 + u) * 8
        if pk:
            for e in range(0, 8, 2):
                I(f"v_pk_fma_f32 {vr(b+e,2)}, {vr(b+e,2)}, {vr(240+e,2)}, {vr(248+e,2)}")
        else:
            for e in range(8):
                I(f"v_fma_f32 v{b+e}, v{b+e}, v{240+e}, v{248+e}")
        for e in range(4):
            I(f"v_cvt_pk_bf16_f32 v{b+e}, v{b+2*e}, v{b+2*e+1}")
        I(f"ds_write_b128 v{vRow+i}, {vr(b,4)} offset:{u*16*K}")

ACC = 192
def accK(rt): return ACC + rt * 4
def accV(rt): return ACC + 16 + rt * 4
def accQ(rt): return ACC + 32 + rt * 4
def a_rd(k, rt):
    u, s = k >> 2, k & 3
    b = 32 + (k & 1) * 16 + 4 * rt
    return I(f"ds_read_b128 {vr(b,4)}, v{12+s} offset:{u*16*K + rt*4096}")

def gemm_kv_chunk(u, cur):
    for s in range(4):
        k = 4 * u + s
        nxt = []
        for rt in range(4):
            if s < 3: nxt.append(a_rd(k + 1, rt))
            wait_lg(cur[rt])
            h = vr(32 + (k & 1) * 16 + 4 * rt, 4)
            I(f"v_mfma_f32_16x16x32_bf16 {vr(accK(rt),4)}, {ar(KF(u,s),4)}, {h}, {vr(accK(rt),4) if k else 0}")
            I(f"v_mfma_f32_16x16x32_bf16 {vr(accV(rt),4)}, {h}, {ar(VF(u,s),4)}, {vr(accV(rt),4) if k else 0}")
        cur = nxt

def gemm_q():
    cur = [a_rd(0, rt) for rt in range(4)]
    for k in range(16):
        nxt = []
        for rt in range(4):
            if k < 15: nxt.append(a_rd(k + 1, rt))
            if rt % 2 == 0: wait_lg(cur[rt + 1])
            h = vr(32 + (k & 1) * 16 + 4 * rt, 4)
            I(f"v_mfma_f32_16x16x32_bf16 {vr(accQ(rt),4)}, {ar(QF(k>>2,k&3),4)}, {h}, {vr(accQ(rt),4) if k else 0}")
        cur = nxt

APHI = 240
def wphi_issue():
    I(f"s_lshl_b32 s{sHead}, s{sCtB}, 2")
    I(f"s_add_u32 s{sHead}, s{sHead}, s{sW}")
    I(f"s_lshl_b32 s{sT0}, s{sHead}, 9")
    I(f"v_bfe_u32 v6, v{vL}, 3, 2")
    I(f"v_and_b32 v7, 3, v{vL}")
    I(f"v_lshl_add_u32 v6, v6, 2, v7")
    I(f"v_lshlrev_b32 v6, 1, v6")
    I(f"v_lshrrev_b32 v7, 5, v{vL}")
    I(f"v_lshl_add_u32 v6, v7, 8, v6")
    for j in range(8):
        last = I(f"buffer_load_ushort v{44+j}, v6, {S(SWPHI)}, s{sT0} offen offset:{32*j}")
    return last
def wphi_pack():
    I(f"v_bfe_u32 v6, v{vL}, 2, 1")
    I(f"v_mul_u32_u24 v6, 0x8000, v6")
    I(f"v_lshl_or_b32 v6, v6, 16, v6")
    for e in range(4):
        I(f"v_lshl_or_b32 v{44+e}, v{45+2*e}, 16, v{44+2*e}")
    for e in range(4):
        I(f"v_xor_b32 v{44+e}, v6, v{44+e}")
    for e in range(4):
        I(f"v_accvgpr_write_b32 a{APHI+e}, v{44+e}")

def softmax(acc, OUT):
    P = [64, 80]; XB = [96, 100]; M = [104, 112]
    for p in range(2):
        for h in range(2):
            a = acc(2 * p + h)
            I(f"v_cvt_pk_bf16_f32 v{XB[p]+2*h}, v{a}, v{a+1}")
            I(f"v_cvt_pk_bf16_f32 v{XB[p]+2*h+1}, v{a+2}, v{a+3}")
    for p in range(2):
        I(f"v_permlane16_swap_b32 v{XB[p]}, v{XB[p]+2}")
        I(f"v_permlane16_swap_b32 v{XB[p]+1}, v{XB[p]+3}")
    for p in range(2):
        I(f"v_mfma_f32_32x32x16_bf16 {vr(P[p],16)}, {ar(APHI,4)}, {vr(XB[p],4)}, 0")
    def chain(p):
        b = P[p]; m = M[p]
        for q in range(5): I(f"v_max3_f32 v{m+q}, v{b+3*q}, v{b+3*q+1}, v{b+3*q+2}")
        I(f"v_max3_f32 v{m}, v{m}, v{m+1}, v{m+2}")
        I(f"v_max3_f32 v{m+3}, v{m+3}, v{m+4}, v{b+15}")
        I(f"v_max_f32 v{m}, v{m}, v{m+3}")
        I(f"v_mul_f32 v{m}, s{sNL}, v{m}")
        for q in range(0, 16, 2):
            I(f"v_pk_fma_f32 {vr(b+q,2)}, {vr(b+q,2)}, {sr(sL,2)}, {vr(m,2)} op_sel_hi:[1,1,0]")
        for q in range(16): I(f"v_exp_f32 v{b+q}, v{b+q}")
        for q in range(4): I(f"v_pk_add_f32 {vr(m+2*q,2)}, {vr(b+4*q,2)}, {vr(b+4*q+2,2)}")
        I(f"v_pk_add_f32 {vr(m,2)}, {vr(m,2)}, {vr(m+2,2)}")
        I(f"v_pk_add_f32 {vr(m+4,2)}, {vr(m+4,2)}, {vr(m+6,2)}")
        I(f"v_pk_add_f32 {vr(m,2)}, {vr(m,2)}, {vr(m+4,2)}")
        I(f"v_add_f32 v{m}, v{m}, v{m+1}")
        I(f"v_rcp_f32 v{m}, v{m}")
        for q in range(0, 16, 2):
            I(f"v_pk_mul_f32 {vr(b+q,2)}, {vr(b+q,2)}, {vr(m,2)} op_sel_hi:[1,0]")
        for q in range(8): I(f"v_cvt_pk_bf16_f32 v{OUT+8*p+q}, v{b+2*q}, v{b+2*q+1}")
    r0 = rec(chain, 0); r1 = rec(chain, 1)
    lag = 6
    o0 = [o[1] for o, _ in r0.ops]; o1 = [o[1] for o, _ in r1.ops]
    for k in range(len(o0) + lag):
        if k < len(o0): I(o0[k])
        if k >= lag: I(o1[k - lag])

L_PT = 128 * K
def epi_k():
    PK = 144; VFR = 160; ONES = 168
    I(f"s_add_u32 s{sT1}, s{sW4096}, {L_PT}")
    I(f"v_and_b32 v8, 31, v{vL}")
    I(f"v_lshlrev_b32 v8, 6, v8")
    I(f"v_lshrrev_b32 v9, 5, v{vL}")
    I(f"v_lshlrev_b32 v9, 1, v9")
    I(f"v_bfe_u32 v10, v{vL}, 1, 2")
    I(f"v_xor_b32 v9, v9, v10")
    I(f"v_lshl_add_u32 v8, v9, 4, v8")
    I(f"v_add_u32 v8, s{sT1}, v8")
    I(f"v_xor_b32 v7, 16, v8")
    I(f"v_lshrrev_b32 v9, 2, v{vL}")
    I(f"v_lshlrev_b32 v9, 6, v9")
    I(f"v_bfe_u32 v10, v{vL}, 1, 1")
    I(f"v_bfe_u32 v11, v{vL}, 3, 2")
    I(f"v_xor_b32 v10, v10, v11")
    I(f"v_lshl_add_u32 v9, v10, 4, v9")
    I(f"v_and_b32 v10, 1, v{vL}")
    I(f"v_lshl_add_u32 v9, v10, 3, v9")
    I(f"v_add_u32 v9, s{sT1}, v9")
    I(f"v_xor_b32 v10, 32, v9")
    for e in range(4): I(f"v_mov_b32 v{ONES+e}, 0x3f803f80")
    softmax(accK, PK)
    for p in range(2):
        I(f"ds_write_b128 v8, {vr(PK+8*p,4)} offset:{p*2048}")
        I(f"ds_write_b128 v7, {vr(PK+8*p+4,4)} offset:{p*2048}")
    for kp in range(2):
        for hh in range(2):
            a = accV(2 * kp + hh)
            I(f"v_cvt_pk_bf16_f32 v{VFR+4*kp+2*hh}, v{a}, v{a+1}")
            I(f"v_cvt_pk_bf16_f32 v{VFR+4*kp+2*hh+1}, v{a+2}, v{a+3}")
    PT = 64
    for T in range(2):
        for kp in range(2):
            f = PT + (T * 2 + kp) * 4
            I(f"ds_read_b64_tr_b16 {vr(f,2)}, v{9+T} offset:{kp*2048}")
            x = I(f"ds_read_b64_tr_b16 {vr(f+2,2)}, v{9+T} offset:{kp*2048 + 1024}")
    I(f"s_lshl_b32 s{sT0}, s{sHead}, 5")
    I(f"s_add_u32 s{sT0}, s{sT0}, s{sRbB}")
    I(f"s_mul_i32 s{sT0}, s{sT0}, {KVREC}")
    I(f"s_add_u32 s{sT0}, s{sT0}, {WS_KVP}")
    I(f"v_lshlrev_b32 v8, 5, v{vG}")
    I(f"v_lshl_add_u32 v8, v{vT}, 4, v8")
    I(f"v_mov_b32 v9, {OOB}")
    I(f"v_cmp_gt_u32 vcc, 2, v{vT}")
    I(f"v_cndmask_b32 v8, v9, v8, vcc")
    I(f"v_cmp_eq_u32 vcc, 1, v{vT}")
    wait_lg(x)
    KV = 172; Z = 180
    for kp in range(2):
        for T in range(2):
            f = vr(PT + (T * 2 + kp) * 4, 4)
            I(f"v_mfma_f32_16x16x32_bf16 {vr(KV+4*T,4)}, {f}, {vr(VFR+4*kp,4)}, {vr(KV+4*T,4) if kp else 0}")
    for kp in range(2):
        for T in range(2):
            f = vr(PT + (T * 2 + kp) * 4, 4)
            I(f"v_mfma_f32_16x16x32_bf16 {vr(Z+4*T,4)}, {f}, {vr(ONES,4)}, {vr(Z+4*T,4) if kp else 0}")
    tag4(KV); tag4(KV + 4)
    I(f"buffer_store_dwordx4 {vr(KV,4)}, v{vL16}, {S(SWS)}, s{sT0} offen sc1")
    I(f"buffer_store_dwordx4 {vr(KV+4,4)}, v{vL16}, {S(SWS)}, s{sT0} offen offset:1024 sc1")
    for e in range(4):
        I(f"v_cndmask_b32 v{Z+e}, v{Z+e}, v{Z+4+e}, vcc")
    tag4(Z)
    I(f"buffer_store_dwordx4 {vr(Z,4)}, v8, {S(SWS)}, s{sT0} offen offset:2048 sc1")

def epi_q():
    PQ = 144
    I(f"s_lshl_b32 s{sT0}, s{sRbB}, 7")
    I(f"s_add_u32 s{sT0}, s{sT0}, s{sHead}")
    I(f"s_lshl_b32 s{sT0}, s{sT0}, 10")
    I(f"s_add_u32 s{sT0}, s{sT0}, {WS_PHIQ}")
    I(f"s_lshl_b32 s{sT1}, s{sRbB}, 3")
    I(f"s_add_u32 s{sT1}, s{sT1}, s{sCtB}")
    I(f"s_lshl_b32 s{sT1}, s{sT1}, 7")
    I(f"s_add_u32 s{sT1}, s{sT1}, {WS_FQ}")
    I(f"v_and_b32 v6, 1, v{vG}")
    I(f"v_lshlrev_b32 v6, 15, v6")
    I(f"v_lshrrev_b32 v7, 1, v{vG}")
    I(f"v_lshl_add_u32 v6, v7, 9, v6")
    I(f"v_lshl_add_u32 v6, v{vT}, 4, v6")
    softmax(accQ, PQ)
    for p in range(2):
        I(f"buffer_store_dwordx4 {vr(PQ+8*p,4)}, v6, {S(SWS)}, s{sT0} offen sc1")
        last = I(f"buffer_store_dwordx4 {vr(PQ+8*p+4,4)}, v6, {S(SWS)}, s{sT0} offen offset:256 sc1")
        if p == 0: I(f"s_add_u32 s{sT0}, s{sT0}, 65536")
    return last

def gemm_kv(k0, k1, cur):
    for k in range(k0, k1):
        u, s = k >> 2, k & 3
        nxt = []
        for rt in range(4):
            if k < 15: nxt.append(a_rd(k + 1, rt))
            if rt % 2 == 0: wait_lg(cur[rt + 1])
            h = vr(32 + (k & 1) * 16 + 4 * rt, 4)
            I(f"v_mfma_f32_16x16x32_bf16 {vr(accK(rt),4)}, {ar(KF(u,s),4)}, {h}, {vr(accK(rt),4) if k else 0}")
            I(f"v_mfma_f32_16x16x32_bf16 {vr(accV(rt),4)}, {h}, {ar(VF(u,s),4)}, {vr(accV(rt),4) if k else 0}")
        cur = nxt
    return cur

RR = 172
def kv_reduce_issue():
    I(f"s_and_b32 s{sT2}, s2, 7")
    I(f"s_lshl_b32 s{sT3}, s{sT2}, 4")
    I(f"s_add_u32 s{sT3}, s{sT3}, 2048")
    I(f"s_lshl_b32 s{sT2}, s{sT2}, 2")
    I(f"s_add_u32 s{sT2}, s{sT2}, s{sW}")
    I(f"s_lshl_b32 s{sT2}, s{sT2}, 6")
    I(f"v_and_b32 v10, 7, v{vL}")
    I(f"v_lshlrev_b32 v11, 4, v10")
    I(f"v_add_u32 v11, s{sT2}, v11")
    I(f"v_mov_b32 v12, s{sT3}")
    I(f"v_cmp_gt_u32 vcc, 4, v10")
    I(f"v_cndmask_b32 v11, v12, v11, vcc")
    I(f"v_lshrrev_b32 v12, 3, v{vL}")
    I(f"v_mul_u32_u24 v12, {KVREC}, v12")
    I(f"v_add_u32 v12, v12, v11")
    I(f"s_mul_i32 s{sP0}, s{sJ}, {32*KVREC}")
    I(f"s_add_u32 s{sP0}, s{sP0}, {WS_KVP}")
    I(f"s_mul_i32 s{sP1}, s{sJ}, {KVREC}")
    I(f"s_add_u32 s{sP1}, s{sP1}, {WS_KVF}")
    I(f"s_mov_b32 s{sP2}, 0xffffff00")
    I(f"v_cmp_gt_u32 vcc, 5, v{vL}")
    I(f"v_mov_b32 v10, {OOB}")
    I(f"v_cndmask_b32 v11, v10, v11, vcc")
    return kv_reduce_loads()
def kv_reduce_loads():
    for n in range(4):
        I(f"s_add_u32 s{sT2}, s{sP0}, {n*8*KVREC}")
        last = I(f"buffer_load_dwordx4 {vr(RR+4*n,4)}, v12, {S(SWS)}, s{sT2} offen sc1")
    return last
def kv_reduce_finish(last):
    R = RR
    def checks():
        for n in range(4): check4(8, R + 4 * n, 9, 10, n == 0)
        I("v_cmp_ne_u32 vcc, 0, v8")
    wait_vm(last)
    checks()
    def body():
        kv_reduce_loads(); I("s_waitcnt vmcnt(0)"); A.vm = []; checks()
    spin_loop(body, first_done=True)
    for q in range(16):
        I(f"v_and_b32 v{R+q}, s{sP2}, v{R+q}")
    for st in (8, 4):
        for q in range(0, st, 2):
            I(f"v_pk_add_f32 {vr(R+q,2)}, {vr(R+q,2)}, {vr(R+st+q,2)}")
    for e in range(4):
        I(f"v_add_f32_dpp v{R+e}, v{R+e}, v{R+e} row_ror:8 row_mask:0xf bank_mask:0xf")
    for op in ("v_permlane16_swap_b32", "v_permlane32_swap_b32"):
        for e in range(4): I(f"v_mov_b32 v{R+4+e}, v{R+e}")
        for e in range(4): I(f"{op} v{R+e}, v{R+4+e}")
        for e in (0, 2): I(f"v_pk_add_f32 {vr(R+e,2)}, {vr(R+e,2)}, {vr(R+4+e,2)}")
    round_tag16(R, R + 4)
    I(f"buffer_store_dwordx4 {vr(R,4)}, v11, {S(SWS)}, s{sP1} offen sc1")

def pf_wo():
    I(f"s_lshl_b32 s{sB1}, s{sJ}, 14")
    I(f"s_add_u32 s{sB1}, s{sB1}, s{sW4096}")
    I(f"v_and_b32 v30, 31, v{vL}")
    I(f"v_lshlrev_b32 v30, 7, v30")
    I(f"buffer_load_dword a255, v30, {S(SWO)}, s{sB1} offen")
def pf_gu():
    I(f"s_cmp_ge_u32 s{sW}, 2")
    I(f"s_cselect_b32 s{SGU}, s{SWU}, s{SWG}")
    I(f"s_cselect_b32 s{SGU+1}, s{SWU+1}, s{SWG+1}")
    I(f"s_mov_b32 s{SGU+2}, {512*1376*2}")
    I(f"s_mov_b32 s{SGU+3}, 0x20000")
    I(f"s_lshl_b32 s{sB1}, s{sJ}, 1")
    I(f"s_and_b32 s{sB2}, s{sW}, 1")
    I(f"s_add_u32 s{sB1}, s{sB1}, s{sB2}")
    I(f"s_mul_i32 s{sB1}, s{sB1}, {8*2752}")
    I(f"s_and_b32 s{sB2}, s2, 3")
    I(f"s_mul_i32 s{sB2}, s{sB2}, {32*21846}")
    I(f"s_lshr_b32 s{sB2}, s{sB2}, 16")
    I(f"s_lshl_b32 s{sB2}, s{sB2}, 6")
    I(f"s_add_u32 s{sB1}, s{sB1}, s{sB2}")
    I(f"v_lshrrev_b32 v30, 3, v{vL}")
    I(f"v_mul_u32_u24 v30, 2752, v30")
    I(f"v_and_b32 v31, 7, v{vL}")
    I(f"v_mul_u32_u24 v31, 100, v31")
    I(f"v_add_u32 v30, v30, v31")
    I(f"buffer_load_dword a255, v30, {S(SGU)}, s{sB1} offen")
def pf_wd(vd, va):
    I(f"s_mul_i32 s{sT2}, s{sJ}, {344*128}")
    I(f"s_mul_i32 s{sT3}, s{sW}, {86*128}")
    I(f"s_add_u32 s{sT2}, s{sT2}, s{sT3}")
    I(f"v_lshlrev_b32 v{va}, 7, v{vL}")
    I(f"buffer_load_dword v{vd}, v{va}, {S(SWD)}, s{sT2} offen")
    I(f"v_min_u32 v{va}, {21*128}, v{va}")
    I(f"s_add_u32 s{sT2}, s{sT2}, 8192")
    I(f"buffer_load_dword v{vd}, v{va}, {S(SWD)}, s{sT2} offen")

WOF = 192
L_WO = 64 * K
def wo_dma():
    rows128_voff(vBG, 1024, False)
    I(f"s_lshl_b32 s{sB1}, s{sW}, 17")
    I(f"s_lshl_b32 s{sB2}, s{sCtC}, 7")
    I(f"s_add_u32 s{sB1}, s{sB1}, s{sB2}")
    I(f"s_lshl_b32 s{sB2}, s{sW}, 14")
    for s in range(4):
        last = dma4(vBG, S(SWO), sB2, L_WO + s * 4096, sB1, s * 32768)
    return last
def wo_tr(last):
    I(f"v_lshrrev_b32 v28, 2, v{vL}")
    I(f"v_lshlrev_b32 v28, 7, v28")
    I(f"v_bfe_u32 v29, v{vL}, 3, 2")
    I(f"v_lshl_add_u32 v28, v29, 5, v28")
    I(f"v_and_b32 v29, 3, v{vL}")
    I(f"v_lshl_add_u32 v28, v29, 3, v28")
    I(f"s_lshl_b32 s{sB2}, s{sW}, 14")
    I(f"s_add_u32 s{sB2}, s{sB2}, {L_WO}")
    I(f"v_add_u32 v28, s{sB2}, v28")
    for c in range(1, 4):
        I(f"v_xor_b32 v{28+c}, {c*32}, v28")
    wait_vm(last)
    for s in range(4):
        for c in range(4):
            f = WOF + (s * 4 + c) * 4
            I(f"ds_read_b64_tr_b16 {ar(f,2)}, v{28+c} offset:{s*4096}")
            I(f"ds_read_b64_tr_b16 {ar(f+2,2)}, v{28+c} offset:{s*4096+2048}")

def GF(c, ks): return (ks * 3 + c) * 4
GSLOT = [0, 48 * K, 0, 96 * K]
def wgu_setup():
    I(f"s_lshl_b32 s{sB1}, s{sMD}, 3")
    I(f"s_mul_i32 s{sB1}, s{sB1}, 21846")
    I(f"s_lshr_b32 s{sB1}, s{sB1}, 16")
    I(f"s_lshl_b32 s{sFt0}, s{sB1}, 1")
    for n in range(3):
        I(f"v_add_u32 v27, {64*n}, v{vL}")
        I(f"v_mul_u32_u24 v28, 5462, v27")
        I(f"v_lshrrev_b32 v28, 16, v28")
        I(f"v_mul_u32_u24 v29, 12, v28")
        I(f"v_sub_u32 v29, v27, v29")
        I(f"v_bfe_u32 v30, v28, 2, 1")
        I(f"v_lshlrev_b32 v30, 1, v30")
        I(f"v_xor_b32 v29, v29, v30")
        I(f"v_mul_u32_u24 v28, 2752, v28")
        I(f"v_lshl_add_u32 v{vBG+n}, v29, 4, v28")
        if n: I(f"v_subrev_u32 v{vBG+n}, {n*1024}, v{vBG+n}")
    I(f"s_and_b32 s{sB1}, s{sW}, 1")
    I(f"s_mul_i32 s{sB1}, s{sB1}, {64*2752}")
    I(f"s_lshl_b32 s{sB2}, s{sFt0}, 5")
    I(f"s_add_u32 s{sB1}, s{sB1}, s{sB2}")
    for q in range(4):
        I(f"s_add_u32 s{sB2}, s{sGrpD}, {q}")
        I(f"s_and_b32 s{sB2}, s{sB2}, 3")
        I(f"s_mul_i32 s{sKW+q}, s{sB2}, {128*2752}")
        I(f"s_add_u32 s{sKW+q}, s{sKW+q}, s{sB1}")
        I(f"s_lshl_b32 s{sK+q}, s{sB2}, 12")
        I(f"s_lshl_b32 s{sKM+q}, s{sB2}, 9")
    I(f"s_mul_i32 s{sB1}, s{sW}, 12288")
def wgu_traddr():
    I(f"s_lshr_b32 s{sB2}, s{sW}, 1")
    I(f"s_mul_i32 s{sTz}, s{sB2}, 3")
    I(f"s_and_b32 s{sB2}, s{sW}, 1")
    I(f"s_lshl_b32 s{sTx}, s{sB2}, 1")
    I(f"s_add_u32 s{sTx}, s{sTx}, s{sTz}")
    I(f"s_add_u32 s{sTz}, s{sTz}, 1")
    I(f"v_lshrrev_b32 v27, 2, v{vL}")
    I(f"v_mul_u32_u24 v27, 192, v27")
    I(f"v_and_b32 v31, 3, v{vL}")
    I(f"v_lshl_add_u32 v27, v31, 3, v27")
    I(f"v_and_b32 v31, 1, v{vG}")
    I(f"v_xor_b32 v30, s{sTx}, v31")
    I(f"v_lshl_add_u32 v28, v30, 5, v27")
    I(f"v_add_u32 v29, 24576, v28")
    I(f"v_xor_b32 v30, s{sTz}, v31")
    I(f"v_lshl_add_u32 v30, v30, 5, v27")
    I(f"s_mul_i32 s{sB2}, s{sB2}, 24576")
    I(f"v_add_u32 v30, s{sB2}, v30")
def wgu_dma(q):
    for p in range(4):
        I(f"s_add_u32 m0, s{sB1}, {GSLOT[q] + p*3072}")
        I(f"s_add_u32 s{sB0}, s{sKW+q}, {p*16*2752}")
        for n in range(3):
            last = I(f"buffer_load_dwordx4 v{vBG+n}, {S(SGU)}, s{sB0} offen offset:{n*1024} lds")
            pad(100)
    return last
def wgu_tr(q):
    for c in range(3):
        if GSLOT[q]:
            I(f"v_add_u32 v31, {GSLOT[q]}, v{28+c}"); b = 31
        else: b = 28 + c
        for s in range(4):
            f = GF(c, q * 4 + s)
            I(f"ds_read_b64_tr_b16 {ar(f,2)}, v{b} offset:{s*6144}")
            I(f"ds_read_b64_tr_b16 {ar(f+2,2)}, v{b} offset:{s*6144+3072}")

PH = 64; RK = 192; KB = 32; ZB = 16; CA = 192
def rt_offsets(stride):
    for r in range(4):
        I(f"s_add_u32 s{sT0}, s{sW}, {r}")
        I(f"s_and_b32 s{sT0}, s{sT0}, 3")
        I(f"s_mul_i32 s{sR+r}, s{sT0}, {stride}")
def phiq_load():
    I(f"s_lshl_b32 s{sT0}, s{sRbC}, 3")
    I(f"s_lshl_b32 s{sT1}, s{sW}, 1")
    I(f"s_add_u32 s{sT0}, s{sT0}, s{sT1}")
    I(f"v_and_b32 v6, 1, v{vL}")
    I(f"v_add_u32 v6, s{sT0}, v6")
    I(f"v_lshlrev_b32 v6, 7, v6")
    I(f"v_add_u32 v6, {WS_FQ}, v6")
    I(f"s_lshl_b32 s{sT1}, s{sW}, 3")
    rt_offsets(32768)
    I(f"s_lshl_b32 s{sT0}, s{sRbC}, 7")
    I(f"s_add_u32 s{sT0}, s{sT0}, s{sT1}")
    I(f"s_lshl_b32 s{sT0}, s{sT0}, 10")
    I(f"s_add_u32 s{sT0}, s{sT0}, {WS_PHIQ}")
    I(f"v_add_u32 v8, s{sT0}, v{vL16}")
    I(f"v_add_u32 v9, 4096, v8")
    poll_flags(6, 7)
    for n in range(8):
        for r in range(4):
            I(f"buffer_load_dwordx4 {vr(PH+(n*4+r)*4,4)}, v{8 + (n>>2)}, {S(SWS)}, s{sR+r} offen offset:{(n&3)*1024} sc1")
def kv_load():
    I(f"s_lshl_b32 s{sT1}, s{sW}, 3")
    I(f"s_mul_i32 s{sP1}, s{sT1}, {KVREC}")
    I(f"s_add_u32 s{sP1}, s{sP1}, {WS_KVF}")
    I(f"v_and_b32 v6, 3, v{vT}")
    I(f"v_mul_u32_u24 v6, {KVREC}, v6")
    I(f"v_and_b32 v7, 1, v{vG}")
    I(f"v_lshl_add_u32 v6, v7, 6, v6")
    I(f"v_lshrrev_b32 v7, 1, v{vG}")
    I(f"v_lshl_add_u32 v6, v7, 4, v6")
    I(f"v_lshlrev_b32 v7, 9, v{vG}")
    I(f"v_lshl_add_u32 v7, v{vT}, 4, v7")
    RZ = 32
    def body():
        for n in range(8):
            I(f"s_add_u32 s{sT0}, s{sP1}, {n*KVREC}")
            I(f"buffer_load_dwordx4 {vr(RK+8*n,4)}, v7, {S(SWS)}, s{sT0} offen sc1")
            I(f"buffer_load_dwordx4 {vr(RK+8*n+4,4)}, v7, {S(SWS)}, s{sT0} offen offset:256 sc1")
            if n % 4 == 0:
                q = n // 4
                I(f"buffer_load_dwordx4 {vr(RZ+8*q,4)}, v6, {S(SWS)}, s{sT0} offen offset:2048 sc1")
                I(f"buffer_load_dwordx4 {vr(RZ+8*q+4,4)}, v6, {S(SWS)}, s{sT0} offen offset:2080 sc1")
        I("s_waitcnt vmcnt(0)"); A.vm = []
        for k in range(16): check16(16, RK + 4 * k, 17 + (k & 1), k == 0)
        for k in range(4): check16(16, RZ + 4 * k, 17 + (k & 1), False)
        I("v_cmp_ne_u32 vcc, 0, v16")
    spin_loop(body)
    for k in range(8):
        I(f"v_perm_b32 v{8+k}, v{RZ+2*k+1}, v{RZ+2*k}, s{sSelHi}")
    for k in range(32):
        I(f"v_perm_b32 v{KB+k}, v{RK+2*k+1}, v{RK+2*k}, s{sSelHi}")

def c_compute():
    ZF = 8
    EPS = 16
    for e in range(4): I(f"v_mov_b32 v{EPS+e}, 0x358637bd")
    def f0(u): return PH + ((2 * (u >> 2)) * 4 + (u & 3)) * 4
    def f1(u): return PH + ((2 * (u >> 2) + 1) * 4 + (u & 3)) * 4
    def cacc(c, r): return CA + (c * 4 + r) * 4
    def buf(u):
        if u < 4:
            r = (2 if u % 2 == 0 else 3)
            return [cacc(c, r) for c in range(4)]
        k = 0 if u % 2 == 0 else 2
        return [f0(k), f1(k), f0(k + 1), f1(k + 1)]
    def s1(u):
        s = u >> 2; N0, D0, N1, D1 = buf(u)
        return [f"v_mfma_f32_16x16x32_bf16 {vr(D0,4)}, {vr(ZF+4*(s>>1),4)}, {vr(f0(u),4)}, {vr(EPS,4)}",
                f"v_mfma_f32_16x16x32_bf16 {vr(D1,4)}, {vr(ZF+4*(s>>1),4)}, {vr(f1(u),4)}, {vr(EPS,4)}",
                f"v_mfma_f32_16x16x32_bf16 {vr(N0,4)}, {vr(KB+8*s,4)}, {vr(f0(u),4)}, 0",
                f"v_mfma_f32_16x16x32_bf16 {vr(N1,4)}, {vr(KB+8*s+4,4)}, {vr(f1(u),4)}, 0"]
    def s2(u):
        s = u >> 2; N0, D0, N1, D1 = buf(u)
        d0 = D0 + ((2 * s) & 3); d1 = D1 + ((2 * s + 1) & 3)
        o = [f"v_rcp_f32 v6, v{d0}", f"v_rcp_f32 v7, v{d1}"]
        o += [f"v_mul_f32 v{N0+e}, v{N0+e}, v6" for e in range(4)]
        o += [f"v_cvt_pk_bf16_f32 v{f0(u)}, v{N0}, v{N0+1}", f"v_cvt_pk_bf16_f32 v{f0(u)+1}, v{N0+2}, v{N0+3}"]
        o += [f"v_mul_f32 v{N1+e}, v{N1+e}, v7" for e in range(4)]
        o += [f"v_cvt_pk_bf16_f32 v{f0(u)+2}, v{N1}, v{N1+1}", f"v_cvt_pk_bf16_f32 v{f0(u)+3}, v{N1+2}, v{N1+3}"]
        return o
    def s3(u):
        s = u >> 2; r = u & 3
        return [f"v_mfma_f32_16x16x32_bf16 {vr(cacc(c,r),4)}, {ar(WOF+(s*4+c)*4,4)}, {vr(f0(u),4)}, {vr(cacc(c,r),4) if s else 0}" for c in range(4)]
    for m in s1(0): I(m)
    for u in range(17):
        mf = (s3(u - 1) if u >= 1 else []) + (s1(u + 1) if u + 1 < 16 else [])
        va = s2(u) if u < 16 else []
        k = 0
        for m in mf:
            I(m)
            for _ in range(2):
                if k < len(va): I(va[k]); k += 1
        while k < len(va): I(va[k]); k += 1

L_RED = 96 * K
def reduce_scatter(CAb, T):
    for r in range(1, 4):
        I(f"s_add_u32 s{sT0}, s{sW}, {r}")
        I(f"s_and_b32 s{sT0}, s{sT0}, 3")
        I(f"s_mul_i32 s{sT0}, s{sT0}, 12288")
        I(f"s_add_u32 s{sT0}, s{sT0}, {L_RED + (r-1)*4096}")
        I(f"v_add_u32 v6, s{sT0}, v{vL16}")
        for c in range(4):
            I(f"ds_write_b128 v6, {vr(CAb+(c*4+r)*4,4)} offset:{c*1024}")
    I(f"s_mul_i32 s{sT0}, s{sW}, 12288")
    I(f"s_add_u32 s{sT0}, s{sT0}, {L_RED}")
    I(f"v_add_u32 v6, s{sT0}, v{vL16}")
    barrier()
    ids = []
    for k in range(12):
        ids.append(I(f"ds_read_b128 {vr(T+4*k,4)}, v6 offset:{k*1024}"))
    wait_lg(ids[7])
    for c in range(4):
        for e in (0, 2):
            I(f"v_pk_add_f32 {vr(CAb+c*16+e,2)}, {vr(CAb+c*16+e,2)}, {vr(T+4*c+e,2)}")
    wait_lg(ids[11])
    for c in range(4):
        for e in (0, 2):
            I(f"v_pk_add_f32 {vr(T+16+4*c+e,2)}, {vr(T+16+4*c+e,2)}, {vr(T+32+4*c+e,2)}")
    for c in range(4):
        for e in (0, 2):
            I(f"v_pk_add_f32 {vr(T+4*c+e,2)}, {vr(CAb+c*16+e,2)}, {vr(T+16+4*c+e,2)}")

X1K = 248
XR = 32
def c_xload():
    I(f"s_lshl_b32 s{sT0}, s{sRbC}, 6")
    I(f"s_lshl_b32 s{sT1}, s{sW}, 4")
    I(f"s_add_u32 s{sT0}, s{sT0}, s{sT1}")
    I(f"v_add_u32 v20, s{sT0}, v{vT}")
    I(f"v_lshlrev_b32 v21, 10, v20")
    I(f"v_lshl_add_u32 v21, v{vG}, 3, v21")
    I(f"s_lshl_b32 s{sT1}, s{sCtC}, 7")
    for c in range(4):
        last = I(f"buffer_load_dwordx2 {vr(XR+2*c,2)}, v21, {S(SX)}, s{sT1} offen offset:{32*c}")
    return last
def epilogueC(xid):
    O = 64
    GA = 160; CB = 176; XF = 128
    I(f"s_lshl_b32 s{sT1}, s{sCtC}, 8")
    I(f"v_lshlrev_b32 v22, 4, v{vG}")
    I(f"v_add_u32 v22, s{sT1}, v22")
    I(f"v_add_u32 v22, {L_MODV}, v22")
    for c in range(4):
        I(f"ds_read_b128 {vr(GA+4*c,4)}, v22 offset:{4096 + 64*c}")
        I(f"ds_read_b128 {vr(CB+4*c,4)}, v22 offset:{8192 + 64*c}")
    wait_vm(xid)
    for q in range(8):
        I(f"v_lshlrev_b32 v{XF+2*q}, 16, v{XR+q}")
        I(f"v_and_b32 v{XF+2*q+1}, s{sHi}, v{XR+q}")
    reduce_scatter(CA, O)
    for q in range(0, 16, 2):
        I(f"v_pk_fma_f32 {vr(O+q,2)}, {vr(O+q,2)}, {vr(GA+q,2)}, {vr(XF+q,2)}")
    for q in range(8):
        I(f"v_cvt_pk_bf16_f32 v{X1K+q}, v{O+2*q}, v{O+2*q+1}")
    for q in range(8):
        I(f"v_lshlrev_b32 v{O+2*q}, 16, v{X1K+q}")
        I(f"v_and_b32 v{O+2*q+1}, s{sHi}, v{X1K+q}")
    for q in range(0, 16, 2):
        I(f"v_pk_mul_f32 {vr(XF+q,2)}, {vr(O+q,2)}, {vr(CB+q,2)}")
    I(f"s_lshl_b32 s{sT0}, s{sRbC}, 2")
    I(f"s_add_u32 s{sT0}, s{sT0}, s{sW}")
    I(f"s_lshl_b32 s{sT0}, s{sT0}, 14")
    I(f"s_lshl_b32 s{sT1}, s{sCtC}, 11")
    I(f"s_add_u32 s{sT0}, s{sT0}, s{sT1}")
    I(f"s_add_u32 s{sT0}, s{sT0}, {WS_X1P}")
    for q in range(8):
        I(f"v_cvt_pk_bf16_f32 v{XF+q}, v{XF+2*q}, v{XF+2*q+1}")
    I(f"buffer_store_dwordx4 {vr(XF,4)}, v{vL16}, {S(SWS)}, s{sT0} offen sc1")
    I(f"buffer_store_dwordx4 {vr(XF+4,4)}, v{vL16}, {S(SWS)}, s{sT0} offen offset:1024 sc1")
    T = 96
    I(f"v_pk_add_f32 v[{T}:{T+1}], {vr(O,2)}, {vr(O+2,2)}")
    I(f"v_pk_add_f32 v[{T+2}:{T+3}], {vr(O+4,2)}, {vr(O+6,2)}")
    for q in (8, 12):
        I(f"v_pk_add_f32 v[{T}:{T+1}], v[{T}:{T+1}], {vr(O+q,2)}")
        I(f"v_pk_add_f32 v[{T+2}:{T+3}], v[{T+2}:{T+3}], {vr(O+q+2,2)}")
    I(f"v_pk_add_f32 v[{T}:{T+1}], v[{T}:{T+1}], v[{T+2}:{T+3}]")
    I(f"v_add_f32 v{T}, v{T}, v{T+1}")
    I(f"v_mul_f32 v{T+2}, 0xbd800000, v{T}")
    for q in range(0, 16, 2):
        I(f"v_pk_add_f32 {vr(O+q,2)}, {vr(O+q,2)}, v[{T+2}:{T+3}] op_sel_hi:[1,0]")
    I(f"v_pk_mul_f32 v[{T+4}:{T+5}], {vr(O,2)}, {vr(O,2)}")
    I(f"v_pk_mul_f32 v[{T+6}:{T+7}], {vr(O+2,2)}, {vr(O+2,2)}")
    for q in range(4, 16, 4):
        I(f"v_pk_fma_f32 v[{T+4}:{T+5}], {vr(O+q,2)}, {vr(O+q,2)}, v[{T+4}:{T+5}]")
        I(f"v_pk_fma_f32 v[{T+6}:{T+7}], {vr(O+q+2,2)}, {vr(O+q+2,2)}, v[{T+6}:{T+7}]")
    I(f"v_pk_add_f32 v[{T+4}:{T+5}], v[{T+4}:{T+5}], v[{T+6}:{T+7}]")
    I(f"v_add_f32 v{T+1}, v{T+4}, v{T+5}")
    for op, inv in (("v_permlane16_swap_b32", 0x3d000000), ("v_permlane32_swap_b32", 0x3c800000)):
        I(f"v_mov_b32 v{T+2}, v{T}")
        I(f"v_mov_b32 v{T+3}, v{T+1}")
        I(f"{op} v{T}, v{T+2}")
        I(f"{op} v{T+1}, v{T+3}")
        I(f"v_sub_f32 v{T+4}, v{T}, v{T+2}")
        I(f"v_add_f32 v{T}, v{T}, v{T+2}")
        I(f"v_add_f32 v{T+1}, v{T+1}, v{T+3}")
        I(f"v_mul_f32 v{T+4}, v{T+4}, v{T+4}")
        I(f"v_fmac_f32 v{T+1}, {inv:#x}, v{T+4}")
    I(f"v_lshlrev_b32 v6, 6, v20")
    I(f"v_mov_b32 v7, {OOB}")
    I(f"v_cmp_gt_u32 vcc, 16, v{vL}")
    I(f"v_cndmask_b32 v6, v7, v6, vcc")
    I(f"s_lshl_b32 s{sT0}, s{sCtC}, 3")
    I(f"s_add_u32 s{sT0}, s{sT0}, {WS_STAT}")
    last = I(f"buffer_store_dwordx2 v[{T}:{T+1}], v6, {S(SWS)}, s{sT0} offen sc1")
    I(f"s_lshl_b32 s{sT0}, s{sGrpC}, 4")
    I(f"s_add_u32 s{sT0}, s{sT0}, s{sMC}")
    I(f"s_lshl_b32 s{sT0}, s{sT0}, 7")
    I(f"s_add_u32 s{sT0}, s{sT0}, {WS_FX}")
    set_flag(sT0, last)

U1 = 224
def u12_prep():
    I(f"v_lshrrev_b32 v6, 3, v{vT}")
    I(f"v_lshlrev_b32 v6, 10, v6")
    I(f"v_lshl_add_u32 v6, v{vG}, 4, v6")
    I(f"v_add_u32 v6, {L_UV}, v6")
    R = 64
    for q in range(4):
        I(f"s_lshr_b32 s{sT0}, s{sKM+q}, 1")
        I(f"v_add_u32 v7, s{sT0}, v6")
        for s in range(4):
            I(f"ds_read_b128 {vr(R+4*(4*q+s),4)}, v7 offset:{64*s}")
def u12_mm(k0, k1):
    R = 64
    wait_lg()
    for ks in range(k0, k1):
        for c in range(3):
            acc = vr(U1 + 4 * c, 4)
            I(f"v_mfma_f32_16x16x32_bf16 {acc}, {ar(GF(c,ks),4)}, {vr(R+4*ks,4)}, {acc if ks else 0}")
def u12_fin():
    I(f"v_cmp_gt_u32 vcc, 8, v{vT}")
    for q in range(12):
        I(f"v_mov_b32_dpp v{U1+12+q}, v{U1+q} row_ror:8 row_mask:0xf bank_mask:0xf")
    for q in range(12):
        I(f"v_cndmask_b32 v6, v{U1+12+q}, v{U1+q}, vcc")
        I(f"v_cndmask_b32 v{U1+12+q}, v{U1+q}, v{U1+12+q}, vcc")
        I(f"v_mov_b32 v{U1+q}, v6")

def DF(j, c): return (192 + (j * 4 + c) * 4) if j < 4 else ((j - 4) * 4 + c) * 4
WDSLOT = {0: (0, 0), 1: (0, 1), 2: ("s", 0), 3: (1, 0), 4: (1, 1), 5: (0, 0), 6: (0, 1), 7: ("s", 0), 8: (2, 0), 9: (2, 1), 10: (1, 0)}
sW8192 = sK + 0
def wd_setup0():
    rows128_voff(vBG, 1024, True)
def wd_setup():
    I(f"s_mul_i32 s{sB1}, s{sW}, {352*1024}")
    I(f"s_lshl_b32 s{sB2}, s{sCtC}, 7")
    I(f"s_add_u32 s{sB1}, s{sB1}, s{sB2}")
    I(f"s_lshl_b32 s{sHead}, s{sW}, 13")
    I(f"v_bfe_u32 v6, v{vL}, 2, 2")
    I(f"v_lshl_add_u32 v6, v{vG}, 3, v6")
    I(f"v_lshlrev_b32 v6, 7, v6")
    I(f"v_bfe_u32 v7, v{vL}, 3, 2")
    I(f"v_lshl_add_u32 v6, v7, 5, v6")
    I(f"v_and_b32 v7, 3, v{vL}")
    I(f"v_lshl_add_u32 v28, v7, 3, v6")
def wd_dma(j):
    q, sub = WDSLOT[j]
    if q == "s": return dma4(vBG, S(SWD), sW4096, 128 * K, sB1, j * 32768)
    return dma4(vBG, S(SWD), sHead, q * 32 * K + sub * 4096, sB1, j * 32768)
def wd_tr(j, last):
    q, sub = WDSLOT[j]
    if q == "s":
        I(f"s_add_u32 s{sB2}, s{sW4096}, {128*K}")
    else:
        I(f"s_add_u32 s{sB2}, s{sHead}, {q*32*K + sub*4096}")
    I(f"v_add_u32 v29, s{sB2}, v28")
    wait_vm(last)
    out = None
    for c in range(4):
        if c: I(f"v_xor_b32 v{30 + (c&1)}, {c*32}, v29")
        b = 29 if c == 0 else 30 + (c & 1)
        f = DF(j, c)
        I(f"ds_read_b64_tr_b16 {ar(f,2)}, v{b}")
        out = I(f"ds_read_b64_tr_b16 {ar(f+2,2)}, v{b} offset:512")
    return out

L_XCH = 96 * K
L_RS = L_MISC
DA = 128; AF = 64; SR = 32
def d_start():
    I(f"s_lshl_b32 s{sT0}, s{sGrpD}, 11")
    I(f"s_add_u32 s{sT0}, s{sT0}, {WS_FX}")
    I(f"v_lshlrev_b32 v16, 7, v{vT}")
    I(f"v_add_u32 v16, s{sT0}, v16")
    pid = poll_issue(16, 17)
    I(f"s_lshl_b32 s{sT0}, s{sGrpD}, 3")
    I(f"s_lshl_b32 s{sT1}, s{sW}, 1")
    I(f"s_add_u32 s{sT0}, s{sT0}, s{sT1}")
    I(f"s_lshl_b32 s{sT0}, s{sT0}, 14")
    I(f"s_add_u32 s{sT0}, s{sT0}, {WS_X1P}")
    I(f"v_add_u32 v12, s{sT0}, v{vL16}")
    I(f"s_lshl_b32 s{sP1}, s{sW}, 13")
    I(f"v_and_b32 v13, 127, v{vTid}")
    I(f"s_lshl_b32 s{sP0}, s{sGrpD}, 13")
    I(f"s_add_u32 s{sP0}, s{sP0}, {WS_STAT}")
    I(f"v_lshlrev_b32 v14, 6, v13")
    I(f"s_and_b32 s{sT1}, s{sW}, 1")
    I(f"s_lshl_b32 s{sT1}, s{sT1}, 14")
    I(f"v_add_u32 v8, s{sT1}, v{vL16}")
    I(f"v_xor_b32 v9, 16384, v8")
    I(f"v_add_u32 v10, 65536, v8")
    I(f"v_add_u32 v11, 65536, v9")
    return pid
def d_start2(pid):
    barrier()
    poll_finish(16, 17, pid)
    ids = [d_adma(0)]
    for k in range(4):
        sid = I(f"buffer_load_dwordx4 {vr(SR+4*k,4)}, v14, {S(SWS)}, s{sP0} offen offset:{16*k} sc1")
    ids.append(d_adma(1))
    return ids, sid
def d_adma(q):
    for r in range(2):
        last = dma4([12] * 4, S(SWS), sP1, q * 32 * K + r * 4096, sK + q, r * 16384, " sc1")
    return last

def d_rd(ks, sl):
    b = AF + (ks & 1) * 32 + 4 * sl
    q, s = ks >> 2, ks & 3
    base = (8 if sl < 4 else 9) + (2 if q >= 2 else 0)
    return I(f"ds_read_b128 {vr(b,4)}, v{base} offset:{(q&1)*32*K + (sl&3)*4096 + s*1024}")

def d_gemm(ids):
    wd = {}
    wait_vm(ids[0]); barrier()
    cur = [d_rd(0, sl) for sl in range(8)]
    for ks in range(16):
        def main():
            nonlocal cur
            if ks in (4, 8, 12): I("s_barrier")
            if ks + 1 < 16 and (ks + 1) % 4 == 0:
                wait_vm(ids[(ks + 1) >> 2]); I("s_barrier")
            nxt = []
            for sl in range(8):
                if ks + 1 < 16: nxt.append(d_rd(ks + 1, sl))
                if sl % 2 == 0: wait_lg(cur[sl + 1])
                for c in range(3):
                    acc = vr(DA + (c * 8 + sl) * 4, 4)
                    I(f"v_mfma_f32_16x16x32_bf16 {acc}, {ar(GF(c,ks),4)}, {vr(AF+(ks&1)*32+4*sl,4)}, {acc if ks else 0}")
            cur = nxt
        def bg():
            if ks == 0: ids.append(d_adma(2))
            if ks == 2: ids.append(d_adma(3))
            if ks == 3: pf_wd(15, 31)
            if ks == 8: wd[0] = wd_dma(0); wd[1] = wd_dma(1)
            if ks == 9: wd[2] = wd_dma(2); wd[3] = wd_dma(3)
            if ks == 10: wd[4] = wd_dma(4)
            if ks == 11:
                wd_tr(0, wd[0]); x = wd_tr(1, wd[1]); wait_lg(x)
                wd[5] = wd_dma(5)
            if ks == 12:
                wd[6] = wd_dma(6); wd[8] = wd_dma(8)
            if ks == 13:
                wd_tr(2, wd[2]); x = wd_tr(3, wd[3]); wait_lg(x)
                wd[7] = wd_dma(7)
            if ks == 14:
                wd[9] = wd_dma(9); wd[10] = wd_dma(10)
            if ks == 15: wd_tr(4, wd[4]); wd_tr(5, wd[5])
        rb_ = rec(bg); rm = rec(main)
        merge(A, [rm, rb_], [(0, 1), (0.08, 0.95)])
    return wd

def d_epilogue(sid):
    wait_vm(sid)
    I(f"v_add_f32 v48, v{SR}, v{SR+2}")
    I(f"v_add_f32 v50, v{SR+1}, v{SR+3}")
    for q in range(2, 8):
        I(f"v_add_f32 v48, v48, v{SR+2*q}")
        I(f"v_add_f32 v50, v50, v{SR+2*q+1}")
    I(f"v_mul_f32 v49, 0xbe000000, v48")
    for q in range(8):
        I(f"v_add_f32 v{52+q}, v{SR+2*q}, v49")
    for q in range(8):
        I(f"v_mul_f32 v{52+q}, v{52+q}, v{52+q}")
    for q in range(8):
        I(f"v_fmac_f32 v50, 0x3c800000, v{52+q}")
    I("v_mov_b32 v51, 0x3727c5ac")
    I("v_fmac_f32 v51, 0x3b000000, v50")
    I("v_rsq_f32 v50, v51")
    I("v_mul_f32 v51, 0xbb000000, v48")
    I(f"v_lshlrev_b32 v13, 3, v13")
    I(f"v_add_u32 v13, {L_RS}, v13")
    I("v_mul_f32 v51, v51, v50")
    I(f"ds_write_b64 v13, v[50:51]")

def d_epilogue2():
    I(f"s_and_b32 s{sT1}, s{sW}, 1")
    I(f"s_lshl_b32 s{sT1}, s{sT1}, 9")
    I(f"v_lshlrev_b32 v6, 3, v{vT}")
    I(f"v_add_u32 v6, s{sT1}, v6")
    I(f"v_add_u32 v6, {L_RS}, v6")
    I(f"v_xor_b32 v7, 512, v6")
    barrier()
    RS = 32
    for sl in (4, 5, 6, 7, 0, 1, 2, 3):
        I(f"ds_read_b64 {vr(RS+2*sl,2)}, v{6 if sl < 4 else 7} offset:{(sl&3)*128}")
    I(f"s_add_u32 s{sT0}, s{sW4096}, {L_XCH}")
    I(f"v_add_u32 v12, s{sT0}, v{vL16}")
    I(f"v_and_b32 v13, 1, v{vG}")
    I(f"v_mul_u32_u24 v13, {43*1024}, v13")
    I(f"v_lshrrev_b32 v14, 1, v{vG}")
    I(f"v_lshl_add_u32 v13, v14, 8, v13")
    I(f"v_lshl_add_u32 v13, v{vT}, 4, v13")
    def ft_base(dst, tile_s):
        I(f"s_add_u32 s{dst}, s{sFt0}, s{tile_s}")
        I(f"s_lshl_b32 s{dst}, s{dst}, 9")
        I(f"s_add_u32 s{dst}, s{dst}, s{sT0}")
    I(f"s_mul_i32 s{sT0}, s{sGrpD}, {8*43*1024}")
    I(f"s_add_u32 s{sT0}, s{sT0}, {WS_HH}")
    ft_base(sP0, sTx); ft_base(sP1, sTz)
    I(f"s_and_b32 s{sT1}, s{sW}, 1")
    I(f"s_mul_i32 s{sT1}, s{sT1}, {4*43*1024}")
    I(f"s_xor_b32 s{sT2}, s{sT1}, {4*43*1024}")
    wait_lg()
    tcount = [0]
    def fix(c, sl):
        a = DA + (c * 8 + sl) * 4
        for e in (0, 2):
            t = 48 + 2 * (tcount[0] & 3); tcount[0] += 1
            I(f"v_pk_fma_f32 {vr(t,2)}, {vr(U1+4*c+e,2)}, {vr(RS+2*sl,2)}, {vr(U1+12+4*c+e,2)} op_sel:[0,1,0] op_sel_hi:[1,1,1]")
            I(f"v_pk_fma_f32 {vr(a+e,2)}, {vr(a+e,2)}, {vr(RS+2*sl,2)}, {vr(t,2)} op_sel_hi:[1,0,1]")
    for sl in range(4, 8):
        fix(2, sl)
        I(f"ds_write_b128 v12, {vr(DA+(16+sl)*4,4)} offset:{(sl-4)*1024}")
    def hh_pack(dst, ga, ua):
        for e in (0, 2):
            I(f"v_pk_mul_f32 {vr(ga+e,2)}, {vr(ga+e,2)}, {vr(ua+e,2)}")
        I(f"v_cvt_pk_bf16_f32 v{dst}, v{ga}, v{ga+1}")
        I(f"v_cvt_pk_bf16_f32 v{dst+1}, v{ga+2}, v{ga+3}")
    H = 64
    def store_pair(k, slot, base_s, ga0, ua0, ga1, ua1):
        d = H + 4 * k
        hh_pack(d, ga0, ua0)
        hh_pack(d + 2, ga1, ua1)
        I(f"s_add_u32 s{sT0}, s{base_s}, s{sT1 if slot < 4 else sT2}")
        I(f"s_add_u32 s{sT0}, s{sT0}, {(slot&3)*43*1024}")
        I(f"v_permlane16_swap_b32 v{d}, v{d+2}")
        I(f"v_permlane16_swap_b32 v{d+1}, v{d+3}")
        return I(f"buffer_store_dwordx4 {vr(d,4)}, v13, {S(SWS)}, s{sT0} offen sc1")
    for k, sl in enumerate(range(0, 8, 2)):
        for c in (0, 1):
            fix(c, sl); fix(c, sl + 1)
        store_pair(k, sl, sP0, DA + sl * 4, DA + (8 + sl) * 4, DA + (sl + 1) * 4, DA + (9 + sl) * 4)
        if k == 0:
            barrier()
            I(f"v_xor_b32 v12, 4096, v12")
            for s2 in range(4):
                I(f"ds_read_b128 {vr(DA+(20+s2)*4,4)}, v12 offset:{s2*1024}")
    for sl in range(4): fix(2, sl)
    wait_lg()
    for k, sl in enumerate(range(0, 4, 2)):
        last = store_pair(4 + k, sl, sP1, DA + (16 + sl) * 4, DA + (20 + sl) * 4, DA + (17 + sl) * 4, DA + (21 + sl) * 4)
    I(f"s_lshl_b32 s{sT0}, s{sGrpD}, 4")
    I(f"s_add_u32 s{sT0}, s{sT0}, s{sMD}")
    I(f"s_lshl_b32 s{sT0}, s{sT0}, 7")
    I(f"s_add_u32 s{sT0}, s{sT0}, {WS_FH}")
    set_flag(sT0, last)

def phaseE():
    I(f"s_lshl_b32 s{sT0}, s{sGrpC}, 11")
    I(f"s_add_u32 s{sT0}, s{sT0}, {WS_FH}")
    I(f"v_lshlrev_b32 v6, 7, v{vT}")
    I(f"v_add_u32 v6, s{sT0}, v6")
    rt_offsets(43 * 1024)
    I(f"s_mul_i32 s{sP0}, s{sRbC}, {4*43*1024}")
    I(f"s_mul_i32 s{sT1}, s{sW}, {11*1024}")
    I(f"s_add_u32 s{sP0}, s{sP0}, s{sT1}")
    I(f"s_add_u32 s{sP0}, s{sP0}, {WS_HH}")
    I(f"v_add_u32 v8, s{sP0}, v{vL16}")
    I(f"v_add_u32 v9, 4096, v8")
    I(f"v_add_u32 v10, 8192, v8")
    I(f"s_cmp_eq_u32 s{sW}, 3")
    I(f"s_cselect_b32 s{sP1}, 1024, 0")
    I(f"v_subrev_u32 v11, s{sP1}, v10")
    GB = 192; XF = 208
    for c in range(4):
        I(f"ds_read_b128 {vr(GB+4*c,4)}, v22 offset:{10240 + 64*c}")
    for q in range(8):
        I(f"v_lshlrev_b32 v{XF+2*q}, 16, v{X1K+q}")
        I(f"v_and_b32 v{XF+2*q+1}, s{sHi}, v{X1K+q}")
    I(f"v_lshlrev_b32 v12, 10, v20")
    I(f"v_and_b32 v7, 1, v{vG}")
    I(f"v_lshl_add_u32 v12, v7, 5, v12")
    I(f"v_lshrrev_b32 v7, 1, v{vG}")
    I(f"v_lshl_add_u32 v12, v7, 4, v12")
    barrier()
    poll_flags(6, 7)
    EA = 32; EC = 128; DEPTH = 6
    def ld(j, r):
        base = 11 if j == 10 else 8 + (j >> 2)
        return I(f"buffer_load_dwordx4 {vr(EA+((j%DEPTH)*4+r)*4,4)}, v{base}, {S(SWS)}, s{sR+r} offen offset:{(j&3)*1024} sc1")
    ids = [[ld(j, r) for r in range(4)] for j in range(DEPTH - 1)]
    for j in range(11):
        nx = []
        for r in range(4):
            if j + DEPTH - 1 < 11: nx.append(ld(j + DEPTH - 1, r))
            wait_vm(ids[j][r])
            for c in range(4):
                acc = vr(EC + (c * 4 + r) * 4, 4)
                I(f"v_mfma_f32_16x16x32_bf16 {acc}, {ar(DF(j,c),4)}, {vr(EA+((j%DEPTH)*4+r)*4,4)}, {acc if j else 0}")
        ids.append(nx)
    O = 32
    reduce_scatter(EC, O)
    for q in range(0, 16, 2):
        I(f"v_pk_fma_f32 {vr(O+q,2)}, {vr(O+q,2)}, {vr(GB+q,2)}, {vr(XF+q,2)}")
    for q in range(8):
        I(f"v_cvt_pk_bf16_f32 v{XF+q}, v{O+2*q}, v{O+2*q+1}")
    I(f"s_lshl_b32 s{sT1}, s{sCtC}, 7")
    for p in range(2):
        I(f"v_permlane16_swap_b32 v{XF+4*p}, v{XF+4*p+2}")
        I(f"v_permlane16_swap_b32 v{XF+4*p+1}, v{XF+4*p+3}")
    I(f"buffer_store_dwordx4 {vr(XF,4)}, v12, {S(SOUT)}, s{sT1} offen")
    I(f"buffer_store_dwordx4 {vr(XF+4,4)}, v12, {S(SOUT)}, s{sT1} offen offset:64")

def write_epoch():
    I(f"s_lshl_b32 s{sT0}, s2, 8")
    I(f"v_or_b32 v6, s{sT0}, v{vTid}")
    I(f"v_cmp_eq_u32 vcc, 0, v6")
    I(f"v_mov_b32 v7, {OOB}")
    I(f"v_cndmask_b32 v7, v7, {WS_EPOCH}, vcc")
    I(f"buffer_store_dword v{vTag}, v7, {S(SWS)}, 0 offen")

def body():
    aids = prologue()
    stamp()
    xids = x_issue()
    consts()
    wq_addr()
    phaseA_compute(aids)
    stamp()
    wphi_issue()
    wids = {}
    r1 = rec(layernorm, xids)
    r2 = rec(lambda: (wq_dma(0), wq_dma(1), gm_issue([0], 40)))
    merge(A, [r1, r2], [(0, 1), (0, 0.9)])
    wids[0], wids[1], gid = r2.ret
    h_addr()
    stamp()
    wait_vm(wids[0]); barrier()
    r1 = rec(wq_tr, 0); r2 = rec(wq_dma, 2)
    merge(A, [r1, r2]); wids[2] = r2.ret
    stamp()
    gm_finish([0], 40, gid)
    wphi_pack()
    barrier()
    stamp()
    wq_tr(1)
    r1 = rec(lambda: (make_h(0, True), make_h(1, True))); r2 = rec(wq_dma, 3)
    merge(A, [r1, r2]); wids[3] = r2.ret
    xstamp()
    barrier()
    cur = [a_rd(0, rt) for rt in range(4)]
    rm = rec(gemm_kv, 0, 6, cur); rb_ = rec(lambda: (make_h(2, False), make_h(3, False)))
    merge(A, [rm, rb_], [(0, 1), (0, 0.95)])
    xstamp()
    wait_vm(wids[2]); barrier()
    xstamp()
    rm = rec(gemm_kv, 6, 8, rm.ret); rb_ = rec(wq_tr, 2)
    merge(A, [rm, rb_], [(0, 1), (0, 0.7)])
    xstamp()
    wait_vm(wids[3]); barrier()
    xstamp()
    rm = rec(gemm_kv, 8, 12, rm.ret); rb_ = rec(lambda: (wq_tr(3), wq_dma(4))[1])
    merge(A, [rm, rb_], [(0, 1), (0, 0.9)]); wids[4] = rb_.ret
    xstamp()
    barrier()
    rm = rec(gemm_kv, 12, 16, rm.ret); rb_ = rec(lambda: (wq_dma(5), pf_wo(), pf_gu())[0])
    merge(A, [rm, rb_], [(0, 1), (0, 0.95)]); wids[5] = rb_.ret
    stamp()
    epi_k()
    xstamp()
    wait_vm(wids[5]); barrier()
    wq_tr(4); wq_tr(5)
    stamp()
    rb_ = rec(wo_dma)
    nset = rb_.first_dma
    setup = Rec(); setup.ops = rb_.ops[:nset]; rb_.ops = rb_.ops[nset:]
    merge(A, [setup])
    barrier()
    rm = rec(gemm_q)
    merge(A, [rm, rb_], [(0, 1), (0, 1)])
    wo_last = rb_.ret
    if STOP == 1:
        A.fence(16)
        dbg_dump([vr(accQ(k), 4) for k in range(4)] + [vr(accK(k), 4) for k in range(4)] + [vr(accV(k), 4) for k in range(4)], 0)
        return
    I("s_barrier")
    stamp()
    g = {}
    rm = rec(epi_q); rc = rec(kv_reduce_issue); rb_ = rec(lambda: (wgu_setup(), wgu_dma(0))[1])
    merge(A, [rm, rc, rb_], [(0, 1), (0.0, 0.2), (0.2, 0.9)])
    g[0] = rb_.ret
    stamp()
    kv_reduce_finish(rc.ret)
    set_flag(sT1, rm.ret)
    stamp()
    if STOP == 2: return
    gid = gm_issue([1, 2], 192)
    wo_tr(wo_last)
    wgu_traddr()
    gm_finish([1, 2], 192, gid)
    phiq_load()
    stamp()
    barrier()
    wgu_tr(0)
    stamp()
    kv_load()
    barrier()
    stamp()
    rm = rec(c_compute); rb_ = rec(lambda: (wgu_dma(1), c_xload(), wgu_dma(2)))
    merge(A, [rm, rb_], [(0, 1), (0, 0.9)])
    g[1], xid, g[2] = rb_.ret
    stamp()
    epilogueC(xid)
    stamp()
    if STOP == 3: return
    g[3] = wgu_dma(3)
    wgu_tr(1); wgu_tr(2)
    u12_prep()
    wd_setup0()
    u12_mm(0, 12)
    pid = d_start()
    wait_vm(g[3]); barrier()
    wgu_tr(3)
    wd_setup()
    stamp()
    ids, sid = d_start2(pid)
    stamp()
    u12_mm(12, 16)
    u12_fin()
    d_epilogue(sid)
    stamp()
    wd = d_gemm(ids)
    stamp()
    d_epilogue2()
    stamp()
    if STOP == 4: return
    for j in range(6, 11): wd_tr(j, wd[j])
    phaseE()
    stamp()

hdr = open(f"cdna_kernels/{NAME}.s.ref").read().split("; Override launch")[0]
A.raw(hdr.rstrip())
A.raw(f"; @launch grid=(256,1,1) block=(256,1,1) lds={LDS_BYTES}")
A.raw('.amdgcn_target "amdgcn-amd-amdhsa--gfx950"')
A.raw(".text")
A.raw(f".globl {NAME}_kernel")
A.raw(".p2align 8")
A.raw(f".type {NAME}_kernel,@function")
A.raw(f"{NAME}_kernel:")
body()
write_epoch()
stamp_out()
A.raw("L_end:")
I("s_endpgm")
A.raw("L_code_end:")
A.raw('.section .rodata,"a"')
A.raw(".p2align 6")
A.raw(f".amdhsa_kernel {NAME}_kernel")
A.raw("  .amdhsa_next_free_vgpr 512")
A.raw("  .amdhsa_next_free_sgpr 102")
A.raw("  .amdhsa_accum_offset 256")
A.raw("  .amdhsa_group_segment_fixed_size 0")
A.raw("  .amdhsa_kernarg_size 104")
A.raw("  .amdhsa_user_sgpr_count 2")
A.raw("  .amdhsa_user_sgpr_kernarg_segment_ptr 1")
A.raw("  .amdhsa_system_sgpr_workgroup_id_x 1")
A.raw(".end_amdhsa_kernel")
out = sys.argv[1] if len(sys.argv) > 1 else f"cdna_kernels/{NAME}.s"
open(out, "w").write(A.text())
print("instructions:", A.ninstr, "stamps:", stamp_idx[0], "->", out)
```

```python
import re

def vr(i, n=1):
    return f"v{i}" if n == 1 else f"v[{i}:{i+n-1}]"
def ar(i, n=1):
    return f"a{i}" if n == 1 else f"a[{i}:{i+n-1}]"
def sr(i, n=1):
    return f"s{i}" if n == 1 else f"s[{i}:{i+n-1}]"

_REG = re.compile(r"\b([vas])(?:(\d+)\b|\[(\d+):(\d+)\])")

def regs_of(tok):
    out = set()
    for m in _REG.finditer(tok):
        k = m.group(1)
        if m.group(2) is not None:
            out.add((k, int(m.group(2))))
        else:
            for i in range(int(m.group(3)), int(m.group(4)) + 1):
                out.add((k, i))
    if re.search(r"\bvcc\b", tok): out.add(("s", 106)); out.add(("s", 107))
    if re.search(r"\bexec\b", tok): out.add(("s", 126)); out.add(("s", 127))
    if re.search(r"\bm0\b", tok): out.add(("s", 124))
    return out

TRANS = ("v_exp_f32", "v_log_f32", "v_rcp_f32", "v_rsq_f32", "v_sqrt_f32", "v_sin_f32", "v_cos_f32")

class Ins:
    __slots__ = ("text", "op", "w", "r", "kind", "srcC", "srcAB", "passes", "sdata", "dpp", "states")
    def __init__(self, text):
        self.text = text
        t = text.split(";")[0].strip()
        parts = t.split(None, 1)
        self.op = op = parts[0]
        rest = parts[1] if len(parts) > 1 else ""
        ops = [o.strip() for o in re.split(r",(?![^\[]*\])", rest)] if rest else []
        self.w = set(); self.r = set(); self.srcC = set(); self.srcAB = set(); self.passes = 0
        self.sdata = set(); self.dpp = False; self.states = 1
        if op == "s_nop":
            self.kind = "nop"; self.states = int(ops[0], 0) + 1; return
        if op.startswith("v_mfma"):
            self.kind = "mfma"
            self.w = regs_of(ops[0]); self.srcAB = regs_of(ops[1]) | regs_of(ops[2]); self.srcC = regs_of(ops[3])
            self.r = self.srcAB | self.srcC
            self.passes = 8 if "32x32" in op else 4
            return
        if op.startswith("v_"):
            self.kind = "trans" if op.replace("_e32", "").replace("_e64", "") in TRANS else "valu"
            self.dpp = ("_dpp" in op) or ("row_" in rest) or ("quad_perm" in rest)
            if op.startswith("v_permlane") and "swap" in op:
                self.kind = "permlane"
                self.w = regs_of(ops[0]) | regs_of(ops[1]); self.r = set(self.w); return
            if op.startswith("v_cmp"):
                self.w = regs_of(ops[0])
                if op.startswith("v_cmpx"): self.w |= {("s", 126), ("s", 127)}
                for o in ops[1:]: self.r |= regs_of(o)
                return
            self.w = regs_of(ops[0])
            k = 1
            if op.startswith(("v_add_co", "v_sub_co", "v_addc_co", "v_subb_co", "v_subrev_co", "v_div_scale", "v_mad_u64")):
                self.w |= regs_of(ops[1]); k = 2
            for o in ops[k:]: self.r |= regs_of(o)
            if op.startswith(("v_fmac", "v_pk_fmac", "v_dot2c")) or self.dpp: self.r |= regs_of(ops[0])
            if op.startswith("v_cndmask") and len(ops) == 3: self.r |= {("s", 106), ("s", 107)}
            if op.startswith(("v_readfirstlane", "v_readlane")): self.kind = "readlane"
            return
        if op.startswith(("buffer_", "global_")):
            self.kind = "vmem"
            is_lds = bool(re.search(r"\blds\b", rest)) or "load_lds" in op
            if "load" in op and not is_lds:
                self.w = regs_of(ops[0])
                for o in ops[1:]: self.r |= regs_of(o)
                if "d16" in op: self.r |= regs_of(ops[0])
            else:
                for o in ops: self.r |= regs_of(o)
                if is_lds: self.r |= {("s", 124)}; self.kind = "vmem_lds"
                if "store" in op or "atomic" in op:
                    d = ops[0] if op.startswith("buffer_") else ops[1]
                    if ("x4" in op or "x3" in op): self.sdata = regs_of(d)
            return
        if op.startswith("ds_"):
            self.kind = "ds"
            if "read" in op or "permute" in op or "swizzle" in op:
                self.w = regs_of(ops[0])
                for o in ops[1:]: self.r |= regs_of(o)
            else:
                for o in ops: self.r |= regs_of(o)
            return
        if op.startswith("s_"):
            self.kind = "salu"
            if op.startswith(("s_cmp", "s_cbranch", "s_branch", "s_waitcnt", "s_barrier", "s_endpgm", "s_sleep", "s_setprio", "s_bitcmp")):
                for o in ops: self.r |= regs_of(o)
            else:
                if ops: self.w = regs_of(ops[0])
                for o in ops[1:]: self.r |= regs_of(o)
                if "saveexec" in op: self.w |= {("s", 126), ("s", 127)}
            return
        raise ValueError("unknown instr " + text)

def isv(x): return x[0] in "va"

def need_states(p, c):
    n = 0
    pv = p.kind in ("valu", "trans", "permlane", "readlane")
    cv = c.kind in ("valu", "trans", "permlane", "readlane")
    pw_v = {x for x in p.w if isv(x)}
    pw_s = {x for x in p.w if x[0] == "s"}
    if pv:
        if c.kind == "mfma" and (pw_v & c.r): n = max(n, 2)
        if c.kind == "permlane" and (pw_v & c.r): n = max(n, 2)
        if c.dpp and (pw_v & c.r): n = max(n, 2)
        if c.kind == "readlane" and (pw_v & c.r): n = max(n, 1)
        if p.kind == "trans" and cv and (pw_v & c.r): n = max(n, 1)
        if p.kind == "trans" and c.kind in ("vmem", "ds") and (pw_v & c.r): n = max(n, 1)
        if pw_s:
            if cv and (pw_s & c.r): n = max(n, 4 if c.kind == "readlane" else 2)
            if c.kind in ("vmem", "vmem_lds") and (pw_s & c.r): n = max(n, 5)
            if c.kind == "salu" and (pw_s & c.r): n = max(n, 1)
            if ("s", 126) in pw_s:
                if c.kind == "mfma": n = max(n, 4)
                if c.dpp: n = max(n, 5)
                if c.kind in ("readlane", "permlane"): n = max(n, 4)
    if p.kind == "mfma":
        big = {4: 8, 8: 12}[p.passes]
        if c.kind == "mfma":
            if p.w & c.srcAB: n = max(n, big)
            if (p.w & c.srcC):
                if not (p.w == c.srcC and p.passes == c.passes): n = max(n, big - 2)
            elif (p.w & c.w): n = max(n, big)
        elif c.kind in ("valu", "trans", "permlane", "readlane", "vmem", "vmem_lds", "ds"):
            if p.w & (c.r | c.w): n = max(n, big)
            if cv and (p.srcC & c.w): n = max(n, {4: 3, 8: 7}[p.passes])
    if p.kind == "salu" and ("s", 124) in p.w and c.kind == "vmem_lds": n = max(n, 1)
    if p.kind == "salu" and ("s", 126) in p.w:
        pass
    if p.kind == "vmem" and p.sdata and (p.sdata & c.w): n = max(n, 2)
    return n

class Asm:
    def __init__(self):
        self.out = []
        self.hist = []
        self.vm = []
        self.lg = []
        self.nid = 0
        self.lab = 0
        self.ninstr = 0
    def raw(self, s):
        self.out.append(s)
    def comment(self, s):
        self.out.append("    ; " + s)
    def label(self, name):
        self.out.append(name + ":")
    def newlabel(self, p="L"):
        self.lab += 1
        return f"{p}_{self.lab}"
    def I(self, text):
        ins = Ins(text)
        need = 0
        dist = 0
        for p in reversed(self.hist):
            k = need_states(p, ins)
            if k > dist: need = max(need, k - dist)
            dist += p.states
            if dist > 24: break
        while need > 0:
            k = min(need, 16)
            nop = Ins(f"s_nop {k-1}")
            self.out.append("    " + nop.text); self.hist.append(nop); need -= k
        self.out.append("    " + text)
        self.hist.append(ins)
        if len(self.hist) > 64: self.hist = self.hist[-40:]
        self.ninstr += 1
        self.nid += 1
        if ins.kind in ("vmem", "vmem_lds"): self.vm.append(self.nid)
        elif ins.kind == "ds": self.lg.append(self.nid)
        return self.nid
    def fence(self, n=16):
        self.I(f"s_nop {n-1}")
    def wait_vm(self, oid=None):
        if oid is None:
            if self.vm: self.I("s_waitcnt vmcnt(0)")
            self.vm = []
            return
        if oid not in self.vm: return
        idx = self.vm.index(oid)
        n = len(self.vm) - 1 - idx
        self.I(f"s_waitcnt vmcnt({min(n, 63)})")
        self.vm = self.vm[idx + 1:]
    def wait_lg(self, oid=None):
        if oid is None:
            if self.lg: self.I("s_waitcnt lgkmcnt(0)")
            self.lg = []
            return
        if oid not in self.lg: return
        idx = self.lg.index(oid)
        n = len(self.lg) - 1 - idx
        self.I(f"s_waitcnt lgkmcnt({min(n, 15)})")
        self.lg = self.lg[idx + 1:]
    def wait_all(self):
        self.I("s_waitcnt vmcnt(0) lgkmcnt(0)")
        self.vm = []; self.lg = []
    def barrier(self):
        self.wait_lg()
        self.I("s_barrier")
    def text(self):
        return "\n".join(self.out) + "\n"

class Rec:
    def __init__(self):
        self.ops = []
        self.grp = 0
        self._g = None
    def _add(self, op):
        self.ops.append((op, self._g))
    def I(self, text):
        ph = object()
        self._add(("I", text, ph)); return ph
    def wait_vm(self, ph=None): self._add(("wvm", ph))
    def wait_lg(self, ph=None): self._add(("wlg", ph))
    def barrier(self): self._add(("bar",))
    def wait_all(self): self._add(("wall",))
    def fence(self, n=16): self.I(f"s_nop {n-1}")
    def begin(self): self.grp += 1; self._g = self.grp
    def end(self): self._g = None
    def pad(self, cyc): self._add(("pad", cyc))

def op_cost(op):
    if op[0] == "pad": return op[1]
    if op[0] != "I": return 4
    t = op[1]
    if t.startswith("v_mfma"): return 16
    if t.startswith(("v_exp", "v_rcp", "v_rsq", "v_log")): return 8
    return 4.5

def replay_op(A, op):
    k = op[0]
    if k in ("wvm", "wlg") and op[1] is not None and not isinstance(op[1], int):
        assert op[1] in A.phmap, "wait on an op that has not been emitted yet"
    if k == "I": A.phmap[op[2]] = A.I(op[1])
    elif k == "wvm": A.wait_vm(A.phmap.get(op[1], op[1]) if op[1] is not None else None)
    elif k == "wlg": A.wait_lg(A.phmap.get(op[1], op[1]) if op[1] is not None else None)
    elif k == "bar": A.barrier()
    elif k == "wall": A.wait_all()

def merge(A, streams, spans=None):
    if not hasattr(A, "phmap"): A.phmap = {}
    n = len(streams)
    tot = [max(sum(op_cost(o) for o, _ in s.ops), 1e-9) for s in streams]
    done = [0.0] * n; pos = [0] * n
    spans = spans or [(0.0, 1.0)] * n
    def key(i):
        lo, hi = spans[i]
        return lo + (hi - lo) * done[i] / tot[i]
    while True:
        cand = [i for i in range(n) if pos[i] < len(streams[i].ops)]
        if not cand: break
        i = min(cand, key=lambda i: (key(i), i))
        s = streams[i]
        op, g = s.ops[pos[i]]
        while True:
            replay_op(A, op); done[i] += op_cost(op); pos[i] += 1
            if g is None or pos[i] >= len(s.ops) or s.ops[pos[i]][1] != g: break
            op, _ = s.ops[pos[i]]

def merge_mfma(A, main, bgs, spans=None, cap=2):
    if not hasattr(A, "phmap"): A.phmap = {}
    spans = spans or [(0.0, 1.0)] * len(bgs)
    ops = [o for o, _ in main.ops if o[0] != "pad"]
    ism = [o[0] == "I" and o[1].startswith("v_mfma") for o in ops]
    n = sum(ism)
    own = [0] * (n + 1); g = -1
    for o, m in zip(ops, ism):
        if m: g += 1
        elif g >= 0: own[g] += 1
    free = [max(0, cap - own[k]) for k in range(n)]
    place = [[] for _ in range(n)]
    for bg, (lo, hi) in zip(bgs, spans):
        items = [o for o, _ in bg.ops]
        real = [o for o in items if o[0] != "pad"]
        g0 = int(lo * n); g1 = max(g0 + 1, min(n, int(round(hi * n))))
        gaps = list(range(g0, g1))
        capn = sum(free[k] for k in gaps)
        tot = sum(op_cost(o) for o in items); acc = 0.0; pos = []
        for o in items:
            if o[0] != "pad": pos.append(acc / tot)
            acc += op_cost(o)
        extra = max(0, len(real) - capn)
        allow = {k: free[k] for k in gaps}
        if extra:
            for e in range(extra):
                allow[gaps[(e * len(gaps)) // extra]] += 1
        cum = []; c = 0
        for k in gaps:
            c += allow[k]; cum.append(c)
        total_allow = cum[-1]
        gi = 0; used = {k: 0 for k in gaps}
        for idx, (o, p) in enumerate(zip(real, pos)):
            want = gaps[min(len(gaps) - 1, int(p * len(gaps)))]
            while gi < len(gaps) - 1:
                k = gaps[gi]
                remaining_after = total_allow - cum[gi]
                left = len(real) - idx
                if used[k] >= allow[k] or (k < want and remaining_after >= left): gi += 1
                else: break
            k = gaps[gi]
            place[k].append(o); used[k] += 1
        for k in gaps: free[k] = max(0, free[k] - used[k])
    g = -1
    for o, m in zip(ops, ism):
        replay_op(A, o)
        if m:
            g += 1
            for b in place[g]: replay_op(A, b)
```

```python
import sys
from asmlib import *

NAME = "adaLN_cond__linear_kernel_hedgehog__glu_gated_bilinear__prompt"
STOP = int(sys.argv[2]) if len(sys.argv) > 2 else 99
STAMP = int(sys.argv[3]) if len(sys.argv) > 3 else 0
XST = int(sys.argv[4]) if len(sys.argv) > 4 else 0

WS_EPOCH = 0
WS_FQ = 0x80000
WS_FX = 0x88000
WS_FH = 0x90000
WS_MODF = 0x10000
WS_KVF = 0x20000
WS_STAT = 0x340000
WS_KVP = 0x100000
WS_PHIQ = 0x400000
WS_X1P = 0x800000
WS_HH = 0xA00000
WS_DBG = 0x1000000
WS_STAMP = 0x1F00000
WS_SIZE = 0x2000000
OOB = 0x7ffffff0
KVREC = 2176
K = 1024
L_MODV = 144 * K
L_MISC = 156 * K
L_UW = L_MODV
L_DUMMY = L_MODV + 2048
L_UV = L_MISC + 1024
LDS_BYTES = 160 * K
SPIN = 400000

sTag, sW, sJ = 4, 5, 6
sCtB, sRbB, sCtC, sRbC, sGrpC, sMC, sGrpD, sMD = 7, 8, 9, 10, 36, 37, 38, 39
sT0, sT1, sT2, sT3, sCnt = 11, 12, 13, 14, 15
sK, sKW, sKM = 16, 20, 24
sW4096 = 28
sP0, sP1, sP2, sP3 = 29, 30, 31, 32
sFt0, sHead, sB0 = 33, 34, 35
sTx, sTz, sB1, sB2 = 40, 41, 42, 43
SX, SWQKV, SWPHI, SWO, SWG, SWU, SWD, SC, SWMOD, SOUT, SWS = 44, 48, 52, 56, 60, 64, 68, 72, 76, 80, 84
SGU = 72
sR = 76
sSel = 88
sSelA, sSelB = 92, 93
sL, sL2, sNL, sNL2 = 94, 95, 96, 97
sHi = 98
sSelHi = 99
sSelLL = 3

A = Asm(); A.phmap = {}
class Em: pass
E = Em(); E.t = A
def I(t): return E.t.I(t)
def _ph(x):
    if E.t is A and x is not None and not isinstance(x, int): return A.phmap[x]
    return x
def wait_vm(x=None): E.t.wait_vm(_ph(x))
def wait_lg(x=None): E.t.wait_lg(_ph(x))
def barrier(): E.t.barrier()
def rec(fn, *a):
    r = Rec(); old = E.t; E.t = r
    ret = fn(*a)
    E.t = old
    r.ret = ret
    return r
def gbegin():
    if E.t is not A: E.t.begin()
def gend():
    if E.t is not A: E.t.end()
def pad(c):
    if E.t is not A: E.t.pad(c)

def srd(base, ptr, nbytes):
    I(f"s_mov_b32 s{base}, s{ptr}")
    I(f"s_and_b32 s{base+1}, s{ptr+1}, 0xffff")
    I(f"s_mov_b32 s{base+2}, {nbytes}")
    I(f"s_mov_b32 s{base+3}, 0x20000")
def S(b): return sr(b, 4)

vTid, vL, vG, vT, vTag, vL16 = 0, 1, 2, 3, 4, 5

stamp_idx = [0]
DBGSET = [0, 1, 2, 4, 5, 6, 8, 9, 12, 13, 14, 16, 17, 18, 19, 20]
def stamp():
    if not STAMP: return
    n = stamp_idx[0]; stamp_idx[0] += 1
    if STAMP == 3:
        if n not in DBGSET: return
        n = DBGSET.index(n)
    I("s_memrealtime s[100:101]" if STAMP != 2 else "s_memtime s[100:101]")
    I("s_waitcnt lgkmcnt(0)")
    A.lg = []
    I("v_mov_b32 v6, s100")
    I(f"v_lshlrev_b32 v7, 1, v{vTid}")
    I(f"v_and_b32 v7, 0x180, v7")
    I(f"s_lshl_b32 s100, s2, 9")
    I(f"s_add_u32 s100, s100, {WS_STAMP + 4*n}")
    I(f"buffer_store_dword v6, v7, {S(SWS)}, s100 offen")
def stamp_out():
    if STAMP != 3: return
    I("s_cmp_lg_u32 s2, 100")
    I("s_cbranch_scc1 L_end")
    I(f"s_load_dwordx2 s[20:21], s[0:1], 88")
    I("s_waitcnt vmcnt(0) lgkmcnt(0)")
    srd(16, 20, 64)
    I(f"v_lshlrev_b32 v7, 2, v{vTid}")
    I(f"s_mov_b32 s100, {WS_STAMP + 100*512}")
    I(f"buffer_load_dword v6, v7, {S(SWS)}, s100 offen sc1")
    I("s_waitcnt vmcnt(0)")
    I(f"buffer_store_dword v6, v7, s[16:19], 0 offen")

def xstamp():
    if STAMP in (1, 2) and XST: stamp()
def tag4(b):
    for i in range(4):
        I(f"v_perm_b32 v{b+i}, v{b+i}, v{vTag}, s{sSel+i}")
def check4(bad, b, t0, t1, first):
    I(f"v_perm_b32 v{t0}, v{b+1}, v{b}, s{sSelA}")
    I(f"v_perm_b32 v{t1}, v{b+3}, v{b+2}, s{sSelB}")
    if first:
        I(f"v_bitop3_b32 v{bad}, v{t0}, v{t1}, v{vTag} bitop3:0x96")
    else:
        I(f"v_bitop3_b32 v{t0}, v{t0}, v{t1}, v{vTag} bitop3:0x96")
        I(f"v_or_b32 v{bad}, v{bad}, v{t0}")

def round_tag16(b, t):
    I(f"v_cvt_pk_bf16_f32 v{t}, v{b}, v{b+1}")
    I(f"v_cvt_pk_bf16_f32 v{t+1}, v{b+2}, v{b+3}")
    I(f"v_perm_b32 v{b}, v{t}, v{vTag}, s{sSelLL}")
    I(f"v_perm_b32 v{b+1}, v{t}, v{vTag}, s{sSelHi}")
    I(f"v_perm_b32 v{b+2}, v{t+1}, v{vTag}, s{sSelLL}")
    I(f"v_perm_b32 v{b+3}, v{t+1}, v{vTag}, s{sSelHi}")
def check16(bad, b, t0, first):
    I(f"v_perm_b32 v{t0}, v{b+1}, v{b}, s{sSelLL}")
    if first: I(f"v_xor_b32 v{bad}, v{t0}, v{vTag}")
    else: I(f"v_bitop3_b32 v{bad}, v{bad}, v{t0}, v{vTag} bitop3:0xf6")

def spin_loop(body, first_done=False):
    lab = A.newlabel("Lspin"); done = A.newlabel("Ldone")
    saved_vm, saved_lg = list(A.vm), list(A.lg)
    if first_done:
        I(f"s_cbranch_vccz {done}")
    I(f"s_mov_b32 s{sCnt}, 0")
    A.fence(4)
    A.label(lab)
    body()
    I(f"s_cbranch_vccz {done}")
    I(f"s_add_u32 s{sCnt}, s{sCnt}, 1")
    I(f"s_cmp_lt_u32 s{sCnt}, {SPIN}")
    I(f"s_cbranch_scc1 {lab}")
    A.label(done)
    if first_done:
        A.vm, A.lg = saved_vm, saved_lg
    A.fence(2)

def poll_flags(vaddr, vtmp):
    def body():
        I(f"buffer_load_dword v{vtmp}, v{vaddr}, {S(SWS)}, 0 offen sc1")
        I("s_waitcnt vmcnt(0)"); A.vm = []
        I(f"v_cmp_ne_u32 vcc, v{vtmp}, v{vTag}")
    spin_loop(body)

vLane0 = 23
def poll_issue(vaddr, vtmp):
    return I(f"buffer_load_dword v{vtmp}, v{vaddr}, {S(SWS)}, 0 offen sc1")
def poll_finish(vaddr, vtmp, pid):
    wait_vm(pid)
    I(f"v_cmp_ne_u32 vcc, v{vtmp}, v{vTag}")
    def body():
        I(f"buffer_load_dword v{vtmp}, v{vaddr}, {S(SWS)}, 0 offen sc1")
        I("s_waitcnt vmcnt(0)"); A.vm = []
        I(f"v_cmp_ne_u32 vcc, v{vtmp}, v{vTag}")
    spin_loop(body, first_done=True)

def set_flag(soff_reg, last):
    wait_vm(last)
    I("s_barrier")
    I(f"buffer_store_dword v{vTag}, v{vLane0}, {S(SWS)}, s{soff_reg} offen sc1")

def xlane4(vals, op, mid=None):
    a, b, c, d = vals
    I(f"v_permlane32_swap_b32 v{a}, v{b}")
    I(f"v_permlane32_swap_b32 v{c}, v{d}")
    I(f"{op} v{a}, v{a}, v{b}")
    I(f"{op} v{c}, v{c}, v{d}")
    I(f"v_permlane16_swap_b32 v{a}, v{c}")
    I(f"{op} v{a}, v{a}, v{c}")
    if mid: mid(a)
    I(f"v_mov_b32 v{c}, v{a}")
    I(f"v_permlane16_swap_b32 v{a}, v{c}")
    I(f"v_mov_b32 v{b}, v{a}")
    I(f"v_mov_b32 v{d}, v{c}")
    I(f"v_permlane32_swap_b32 v{a}, v{b}")
    I(f"v_permlane32_swap_b32 v{c}, v{d}")

def xlane4x2(v1, op1, mid1, v2, op2, mid2):
    r1 = rec(xlane4, v1, op1, mid1); r2 = rec(xlane4, v2, op2, mid2)
    for (o1, _), (o2, _) in zip(r1.ops, r2.ops):
        I(o1[1]); I(o2[1])

def dbg_dump(regs, slot):
    I(f"v_lshlrev_b32 v6, 4, v{vTid}")
    for k, r in enumerate(regs):
        I(f"s_lshl_b32 s{sT0}, s2, 12")
        I(f"s_add_u32 s{sT0}, s{sT0}, {WS_DBG + (slot + k) * 256 * 4096}")
        I(f"buffer_store_dwordx4 {r}, v6, {S(SWS)}, s{sT0} offen")
    wait_vm()

def bf_round4(b, t):
    I(f"v_cvt_pk_bf16_f32 v{t}, v{b}, v{b+1}")
    I(f"v_cvt_pk_bf16_f32 v{t+1}, v{b+2}, v{b+3}")
    I(f"v_lshlrev_b32 v{b}, 16, v{t}")
    I(f"v_and_b32 v{b+1}, s{sHi}, v{t}")
    I(f"v_lshlrev_b32 v{b+2}, 16, v{t+1}")
    I(f"v_and_b32 v{b+3}, s{sHi}, v{t+1}")

def prologue():
    I("s_cmp_ge_u32 s2, 256")
    I("s_cbranch_scc1 L_end")
    I("s_load_dwordx8 s[32:39], s[0:1], 64")
    I("s_load_dwordx16 s[16:31], s[0:1], 0")
    I("s_load_dwordx2 s[40:41], s[0:1], 96")
    I("s_getpc_b64 s[100:101]")
    A.raw("L_pc:")
    I(f"v_and_b32 v{vL}, 63, v0")
    I(f"v_lshrrev_b32 v6, 6, v0")
    I(f"v_lshrrev_b32 v{vG}, 4, v{vL}")
    I(f"v_and_b32 v{vT}, 15, v0")
    I(f"v_readfirstlane_b32 s{sW}, v6")
    I(f"v_lshlrev_b32 v{vL16}, 4, v{vL}")
    I(f"s_lshr_b32 s{sJ}, s2, 3")
    I(f"s_and_b32 s3, s2, 7")
    I(f"s_sub_u32 s{sT0}, s{sJ}, 24")
    I(f"s_cmp_ge_u32 s{sJ}, 24")
    I(f"s_cselect_b32 s{sT0}, s{sT0}, s{sJ}")
    I(f"s_lshr_b32 s{sT1}, s{sT0}, 2")
    I(f"s_lshl_b32 s{sT1}, s{sT1}, 3")
    I(f"s_add_u32 s{sT1}, s{sT1}, s3")
    I(f"s_lshl_b32 s{sT1}, s{sT1}, 2")
    I(f"s_and_b32 s{sT0}, s{sT0}, 3")
    I(f"s_add_u32 s{sT3}, s{sT1}, s{sT0}")
    I(f"v_lshrrev_b32 v6, 1, v0")
    I(f"v_and_b32 v6, 31, v6")
    I(f"s_lshl_b32 s{sT0}, s{sW}, 7")
    I(f"v_add_u32 v6, s{sT0}, v6")
    I(f"v_lshlrev_b32 v7, 1, v6")
    I(f"v_mul_u32_u24 v8, 6144, v6")
    I(f"v_and_b32 v9, 1, v0")
    I(f"v_lshl_add_u32 v8, v9, 4, v8")
    I(f"s_lshl_b32 s{sT0}, s{sT3}, 5")
    I("s_waitcnt lgkmcnt(0)")
    srd(SC, 32, 1024)
    srd(SWMOD, 34, 512 * 3072 * 2)
    ids = []
    for i in range(4):
        ids.append(I(f"buffer_load_ushort v{48+i}, v7, {S(SC)}, 0 offen offset:{64*i}"))
    for i in range(4):
        I(f"s_add_u32 s{sT1}, s{sT0}, {i*32*6144}")
        ids.append(I(f"buffer_load_dwordx4 {vr(32+4*i,4)}, v8, {S(SWMOD)}, s{sT1} offen"))
    I(f"s_load_dword s{sTag}, s[40:41], {WS_EPOCH}")
    I(f"s_and_b32 s{sT0}, s{sJ}, 15")
    I(f"s_lshl_b32 s{sT0}, s{sT0}, 12")
    I(f"v_lshlrev_b32 v6, 4, v0")
    I(f"v_add_u32 v6, s{sT0}, v6")
    I(f"v_min_u32 v6, L_code_end-L_pc-16, v6")
    I(f"global_load_dwordx4 v[60:63], v6, s[100:101]")
    srd(SX, 16, 2048 * 512 * 2)
    srd(SWQKV, 18, 512 * 1536 * 2)
    srd(SWPHI, 20, 32 * 512)
    srd(SWO, 22, 512 * 512 * 2)
    srd(SWG, 26, 512 * 1376 * 2)
    srd(SWU, 28, 512 * 1376 * 2)
    srd(SWD, 30, 1376 * 512 * 2)
    srd(SOUT, 36, 2048 * 512 * 2)
    srd(SWS, 40, WS_SIZE)
    I(f"v_and_b32 v6, 7, v{vL}")
    I(f"v_lshlrev_b32 v6, 21, v6")
    I(f"buffer_load_dword a255, v6, {S(SWS)}, 0 offen offset:64")
    I(f"v_and_b32 v6, 1, v{vL}")
    I(f"v_lshlrev_b32 v6, 20, v6")
    for b in (SWO, SWG, SWU, SWD, SOUT):
        I(f"buffer_load_dword a255, v6, {S(b)}, 0 offen")
    I(f"s_lshr_b32 s{sT0}, s3, 1")
    I(f"s_and_b32 s{sT1}, s3, 1")
    I(f"s_lshr_b32 s{sT2}, s{sJ}, 2")
    I(f"s_lshl_b32 s{sRbB}, s{sT0}, 3")
    I(f"s_add_u32 s{sRbB}, s{sRbB}, s{sT2}")
    I(f"s_and_b32 s{sP0}, s{sT2}, 3")
    I(f"s_and_b32 s{sT2}, s{sJ}, 3")
    I(f"s_lshl_b32 s{sCtB}, s{sT1}, 2")
    I(f"s_add_u32 s{sCtB}, s{sCtB}, s{sT2}")
    I(f"s_and_b32 s{sT1}, s3, 3")
    I(f"s_lshl_b32 s{sMD}, s{sT1}, 2")
    I(f"s_add_u32 s{sMD}, s{sMD}, s{sT2}")
    I(f"s_lshr_b32 s{sT2}, s{sJ}, 2")
    I(f"s_lshr_b32 s{sT0}, s3, 2")
    I(f"s_lshl_b32 s{sGrpD}, s{sT0}, 3")
    I(f"s_add_u32 s{sGrpD}, s{sGrpD}, s{sT2}")
    I(f"s_lshr_b32 s{sT2}, s{sJ}, 4")
    I(f"s_lshl_b32 s{sGrpC}, s3, 1")
    I(f"s_add_u32 s{sGrpC}, s{sGrpC}, s{sT2}")
    I(f"s_and_b32 s{sMC}, s{sJ}, 15")
    I(f"s_and_b32 s{sCtC}, s{sJ}, 7")
    I(f"s_lshr_b32 s{sT2}, s{sJ}, 3")
    I(f"s_lshl_b32 s{sRbC}, s3, 2")
    I(f"s_add_u32 s{sRbC}, s{sRbC}, s{sT2}")
    for u in range(4):
        I(f"s_add_u32 s{sT0}, s{sP0}, {u}")
        I(f"s_and_b32 s{sT0}, s{sT0}, 3")
        I(f"s_lshl_b32 s{sK+u}, s{sT0}, 8")
        I(f"s_mul_i32 s{sKW+u}, s{sT0}, {128*3072}")
        I(f"s_lshl_b32 s{sKM+u}, s{sT0}, 9")
    I(f"s_lshl_b32 s{sW4096}, s{sW}, 12")
    return ids

def consts():
    for i in range(4):
        I(f"s_mov_b32 s{sSel+i}, {0x07060500 | i:#x}")
    I(f"s_mov_b32 s{sSelA}, 0x0c0c0400")
    I(f"s_mov_b32 s{sSelB}, 0x04000c0c")
    I(f"s_mov_b32 s{sL}, 0x3fb8aa3b")
    I(f"s_mov_b32 s{sL2}, 0x3fb8aa3b")
    I(f"s_mov_b32 s{sNL}, 0xbfb8aa3b")
    I(f"s_mov_b32 s{sNL2}, 0xbfb8aa3b")
    I(f"s_mov_b32 s{sHi}, 0xffff0000")
    I(f"s_mov_b32 s{sSelHi}, 0x07060302")
    I(f"s_mov_b32 s{sSelLL}, 0x05040100")
    I(f"v_cmp_eq_u32 vcc, 0, v{vTid}")
    I(f"v_mov_b32 v{vLane0}, {OOB}")
    I(f"v_cndmask_b32 v{vLane0}, v{vLane0}, 0, vcc")

XH = 64
RAW = 192
vRow = 16
def x_issue():
    ids = {}
    I(f"s_lshl_b32 s{sT0}, s{sRbB}, 6")
    I(f"s_lshl_b32 s{sT1}, s{sW}, 4")
    I(f"s_add_u32 s{sT0}, s{sT0}, s{sT1}")
    for i in range(4):
        I(f"s_add_u32 s{sT2}, s{sJ}, {i}")
        I(f"s_and_b32 s{sT2}, s{sT2}, 3")
        I(f"s_lshl_b32 s{sT2}, s{sT2}, 2")
        I(f"v_add_u32 v{vRow+i}, s{sT2}, v{vG}")
        I(f"v_add_u32 v9, s{sT0}, v{vRow+i}")
        I(f"v_lshlrev_b32 v9, 10, v9")
        I(f"v_lshl_add_u32 v9, v{vT}, 4, v9")
        for u in range(4):
            ids[(i, u)] = I(f"buffer_load_dwordx4 {vr(RAW + (i*4+u)*4, 4)}, v9, {S(SX)}, s{sK+u} offen")
    return ids

def phaseA_compute(ids):
    I(f"v_and_b32 v6, 1, v{vL}")
    I(f"v_lshlrev_b32 v6, 5, v6")
    I(f"v_lshl_add_u32 v6, v{vG}, 3, v6")
    I(f"s_lshl_b32 s{sT0}, s{sW}, 6")
    I(f"s_add_u32 s{sT0}, s{sT0}, {L_MISC}")
    I(f"v_add_u32 v6, s{sT0}, v6")
    I(f"v_lshlrev_b32 v7, 3, v{vTid}")
    I(f"v_add_u32 v7, {L_MISC + 1024}, v7")
    I(f"v_and_b32 v8, 14, v{vL}")
    I(f"v_cmp_eq_u32 vcc, 0, v8")
    I(f"v_cndmask_b32 v6, v7, v6, vcc")
    I(f"v_and_b32 v7, 3, v{vL}")
    wait_vm(ids[3])
    for i in range(4): I(f"v_lshlrev_b32 v{48+i}, 16, v{48+i}")
    for i in range(4): I(f"v_mul_f32 v{52+i}, s{sNL}, v{48+i}")
    for i in range(4): I(f"v_min_f32 v{52+i}, 0x42f00000, v{52+i}")
    for i in range(4): I(f"v_exp_f32 v{52+i}, v{52+i}")
    for i in range(4): I(f"v_add_f32 v{52+i}, 1.0, v{52+i}")
    for i in range(4): I(f"v_rcp_f32 v{56+i}, v{52+i}")
    for i in range(4): I(f"v_mul_f32 v{72+i}, v{48+i}, v{56+i}")
    for i in range(4): I(f"v_fma_f32 v{48+i}, -v{72+i}, v{52+i}, v{48+i}")
    for i in range(4): I(f"v_fma_f32 v{48+i}, v{48+i}, v{56+i}, v{72+i}")
    bf_round4(48, 52)
    AC = 64
    for i in range(4):
        wait_vm(ids[4 + i])
        for d in range(4):
            I(f"v_lshlrev_b32 v52, 16, v{32+4*i+d}")
            I(f"v_and_b32 v53, s{sHi}, v{32+4*i+d}")
            if i == 0:
                I(f"v_mul_f32 v{AC+2*d}, v{48+i}, v52")
                I(f"v_mul_f32 v{AC+1+2*d}, v{48+i}, v53")
            else:
                I(f"v_fmac_f32 v{AC+2*d}, v{48+i}, v52")
                I(f"v_fmac_f32 v{AC+1+2*d}, v{48+i}, v53")
    for e in range(4): I(f"v_permlane32_swap_b32 v{AC+e}, v{AC+4+e}")
    for e in range(4): I(f"v_add_f32 v{AC+e}, v{AC+e}, v{AC+4+e}")
    for e in range(2): I(f"v_permlane16_swap_b32 v{AC+e}, v{AC+2+e}")
    for e in range(2): I(f"v_add_f32 v{AC+e}, v{AC+e}, v{AC+2+e}")
    for r in (8, 4, 2):
        for e in range(2):
            I(f"v_add_f32_dpp v{AC+e}, v{AC+e}, v{AC+e} row_ror:{r} row_mask:0xf bank_mask:0xf")
    I(f"ds_write_b64 v6, {vr(AC,2)}")
    I(f"v_lshlrev_b32 v7, 4, v7")
    I(f"v_add_u32 v6, {L_MISC}, v7")
    I("s_waitcnt lgkmcnt(0)"); A.lg = []
    I("s_barrier")
    for w in range(4):
        I(f"ds_read_b128 {vr(32+4*w,4)}, v6 offset:{64*w}")
    I(f"s_add_u32 s{sTag}, s{sTag}, 0x9e3779b1")
    I(f"v_mov_b32 v{vTag}, s{sTag}")
    I(f"s_lshr_b32 s{sT0}, s{sT3}, 5")
    I(f"s_cmp_eq_u32 s{sT0}, 1")
    I(f"s_cselect_b32 s{sT1}, 1.0, 0")
    I(f"s_cmp_eq_u32 s{sT0}, 4")
    I(f"s_cselect_b32 s{sT1}, 1.0, s{sT1}")
    I(f"v_cmp_gt_u32 vcc, 4, v{vTid}")
    I(f"v_mov_b32 v6, {OOB}")
    I(f"v_cndmask_b32 v7, v6, v7, vcc")
    I(f"s_lshl_b32 s{sT0}, s{sT3}, 6")
    I(f"s_add_u32 s{sT0}, s{sT0}, {WS_MODF}")
    wait_lg()
    for e in (0, 2):
        I(f"v_pk_add_f32 {vr(32+e,2)}, {vr(32+e,2)}, {vr(36+e,2)}")
        I(f"v_pk_add_f32 {vr(40+e,2)}, {vr(40+e,2)}, {vr(44+e,2)}")
    for e in (0, 2):
        I(f"v_pk_add_f32 {vr(32+e,2)}, {vr(32+e,2)}, {vr(40+e,2)}")
    bf_round4(32, 36)
    for e in range(4): I(f"v_add_f32 v{32+e}, s{sT1}, v{32+e}")
    round_tag16(32, 36)
    I(f"buffer_store_dwordx4 v[32:35], v7, {S(SWS)}, s{sT0} offen sc1")

def rows128_voff(vb, pitch, std, extra_s=None):
    r_ = rec(_rows128_voff, vb, pitch, std, extra_s)
    import re as _re
    for o, _ in r_.ops:
        I(_re.sub(r"\bv([6-9])\b", lambda m: f"v{TMPV[int(m.group(1)) - 6]}", o[1]))
TMPV = [6, 7, 8, 9]
def _rows128_voff(vb, pitch, std, extra_s=None):
    I(f"v_lshrrev_b32 v6, 3, v{vL}")
    I(f"v_bfe_u32 v7, v{vL}, 4, {1 if std else 2}")
    I(f"v_bfe_u32 v8, v{vL}, 1, 2")
    I(f"v_xor_b32 v8, v8, v7")
    I(f"v_and_b32 v9, 1, v{vL}")
    I(f"v_lshlrev_b32 v9, 4, v9")
    I(f"v_lshl_add_u32 v9, v8, 5, v9")
    I(f"v_mul_u32_u24 v6, {pitch}, v6")
    if extra_s is not None: I(f"v_add_u32 v6, s{extra_s}, v6")
    I(f"v_add_u32 v{vb}, v6, v9")
    if std:
        I(f"v_xor_b32 v9, 64, v9")
        I(f"v_add_u32 v{vb+1}, v6, v9")
        I(f"v_add_u32 v{vb+1}, {8*pitch - 1024}, v{vb+1}")
    else:
        I(f"v_add_u32 v{vb+1}, {8*pitch - 1024}, v{vb}")
    I(f"v_add_u32 v{vb+2}, {2*(8*pitch - 1024)}, v{vb}")
    I(f"v_add_u32 v{vb+3}, {2*(8*pitch - 1024)}, v{vb+1}")

def dma4(vb, srd_, m0_s, m0_imm, so_s, so_imm, flags=""):
    if E.t is not A and not hasattr(E.t, "first_dma"): E.t.first_dma = len(E.t.ops)
    I(f"s_add_u32 m0, s{m0_s}, {m0_imm}")
    I(f"s_add_u32 s{sB0}, s{so_s}, {so_imm}")
    for i in range(4):
        last = I(f"buffer_load_dwordx4 v{vb[i] if isinstance(vb, list) else vb+i}, {srd_}, s{sB0} offen offset:{i*1024}{flags} lds")
        pad(100)
    return last

vBG = 24
def KF(u, s): return (u * 4 + s) * 4
def VF(u, s): return 64 + (u * 4 + s) * 4
def QF(u, s): return 128 + (u * 4 + s) * 4
USLOT = [0, 96 * K, 48 * K, 96 * K]
def wq_addr():
    I(f"s_mul_i32 s{sT0}, s{sW}, {32*3072}")
    I(f"s_lshl_b32 s{sT1}, s{sCtB}, 7")
    I(f"s_add_u32 s{sT0}, s{sT0}, s{sT1}")
    rows128_voff(vBG, 3072, True, sT0)
    I(f"v_bfe_u32 v6, v{vL}, 2, 2")
    I(f"v_lshl_add_u32 v6, v{vG}, 3, v6")
    I(f"v_lshlrev_b32 v6, 7, v6")
    I(f"v_bfe_u32 v7, v{vL}, 3, 2")
    I(f"v_xor_b32 v7, s{sW}, v7")
    I(f"v_lshl_add_u32 v6, v7, 5, v6")
    I(f"v_and_b32 v7, 3, v{vL}")
    I(f"v_lshl_add_u32 v28, v7, 3, v6")
    I(f"v_add_u32 v29, {48*K}, v28")
    I(f"v_add_u32 v30, {96*K}, v28")
def wq_dma(u, subs=(0, 1, 2)):
    for sub in subs:
        sg = (1, 2, 0)[sub]
        last = dma4(vBG, S(SWQKV), sW4096, USLOT[u] + sub * 16 * K, sKW + u, sg * 1024)
    return last
def wq_tr(u):
    base = 28 + USLOT[u] // (48 * K)
    for s in range(4):
        for sub in range(3):
            f = (KF, VF, QF)[sub](u, s)
            I(f"ds_read_b64_tr_b16 {ar(f,2)}, v{base} offset:{sub*16*K + s*4096}")
            I(f"ds_read_b64_tr_b16 {ar(f+2,2)}, v{base} offset:{sub*16*K + s*4096 + 512}")

def layernorm(xids):
    for i in range(4):
        wait_vm(xids[(i, 3)])
        xb = XH + i * 32
        for q in range(16):
            I(f"v_lshlrev_b32 v{xb+2*q}, 16, v{RAW+i*16+q}")
            I(f"v_and_b32 v{xb+2*q+1}, s{sHi}, v{RAW+i*16+q}")
        I(f"v_pk_add_f32 v[32:33], {vr(xb,2)}, {vr(xb+2,2)}")
        I(f"v_pk_add_f32 v[34:35], {vr(xb+4,2)}, {vr(xb+6,2)}")
        for q in range(4, 16, 2):
            I(f"v_pk_add_f32 v[32:33], v[32:33], {vr(xb+2*q,2)}")
            I(f"v_pk_add_f32 v[34:35], v[34:35], {vr(xb+2*q+2,2)}")
        I("v_pk_add_f32 v[32:33], v[32:33], v[34:35]")
        I("v_add_f32 v32, v32, v33")
        for r in (8, 4, 2, 1):
            I(f"v_add_f32_dpp v32, v32, v32 row_ror:{r} row_mask:0xf bank_mask:0xf")
        I("v_mul_f32 v32, 0xbb000000, v32")
        for q in range(16):
            I(f"v_pk_add_f32 {vr(xb+2*q,2)}, {vr(xb+2*q,2)}, v[32:33] op_sel_hi:[1,0]")
        I(f"v_pk_mul_f32 v[34:35], {vr(xb,2)}, {vr(xb,2)}")
        I(f"v_pk_mul_f32 v[36:37], {vr(xb+2,2)}, {vr(xb+2,2)}")
        for q in range(2, 16, 2):
            I(f"v_pk_fma_f32 v[34:35], {vr(xb+2*q,2)}, {vr(xb+2*q,2)}, v[34:35]")
            I(f"v_pk_fma_f32 v[36:37], {vr(xb+2*q+2,2)}, {vr(xb+2*q+2,2)}, v[36:37]")
        I("v_pk_add_f32 v[34:35], v[34:35], v[36:37]")
        I("v_add_f32 v34, v34, v35")
        for r in (8, 4, 2, 1):
            I(f"v_add_f32_dpp v34, v34, v34 row_ror:{r} row_mask:0xf bank_mask:0xf")
        I("v_mov_b32 v35, 0x3727c5ac")
        I("v_fmac_f32 v35, 0x3b000000, v34")
        I("v_rsq_f32 v34, v35")
        for q in range(16):
            I(f"v_pk_mul_f32 {vr(xb+2*q,2)}, {vr(xb+2*q,2)}, v[34:35] op_sel_hi:[1,0]")

def gm_loads(sets, G0):
    out = None
    for k, n in enumerate(sets):
        I(f"s_mov_b32 s{sB2}, {WS_MODF + n*4096}")
        out = I(f"buffer_load_dwordx4 {vr(G0+4*k,4)}, v11, {S(SWS)}, s{sB2} offen sc1")
    return out
def gm_issue(sets, G0):
    I(f"v_lshlrev_b32 v11, 4, v{vTid}")
    return gm_loads(sets, G0)
def gm_finish(sets, G0, last):
    def checks():
        for k in range(len(sets)):
            check16(8, G0 + 4 * k, 9, k == 0)
            check16(8, G0 + 4 * k + 2, 9, False)
        I("v_cmp_ne_u32 vcc, 0, v8")
    wait_vm(last)
    checks()
    def body():
        gm_loads(sets, G0); I("s_waitcnt vmcnt(0)"); A.vm = []; checks()
    spin_loop(body, first_done=True)
    I(f"v_add_u32 v6, {L_MODV}, v11")
    for k, n in enumerate(sets):
        for e in range(4):
            I(f"v_and_b32 v{G0+4*k+e}, s{sHi}, v{G0+4*k+e}")
        I(f"ds_write_b128 v6, {vr(G0+4*k,4)} offset:{n*4096}")
    if sets == [1, 2]:
        I(f"v_cmp_gt_u32 vcc, 128, v{vTid}")
        for e in range(4):
            I(f"v_cndmask_b32 v{G0+e}, v{G0+e}, v{G0+4+e}, vcc")
        I(f"v_perm_b32 v{G0+4}, v{G0+1}, v{G0}, s{sSelHi}")
        I(f"v_perm_b32 v{G0+5}, v{G0+3}, v{G0+2}, s{sSelHi}")
        I(f"v_lshrrev_b32 v6, 3, v{vTid}")
        I(f"v_lshlrev_b32 v6, 6, v6")
        I(f"v_and_b32 v8, 3, v{vTid}")
        I(f"v_lshl_add_u32 v6, v8, 4, v6")
        I(f"v_bfe_u32 v8, v{vTid}, 2, 1")
        I(f"v_lshl_add_u32 v6, v8, 3, v6")
        I(f"v_add_u32 v6, {L_UV}, v6")
        I(f"ds_write_b64 v6, {vr(G0+4,2)}")

def h_addr():
    for i in range(4):
        I(f"v_xor_b32 v6, v{vT}, v{vRow+i}")
        I(f"v_lshlrev_b32 v6, 4, v6")
        I(f"v_lshl_add_u32 v6, v{vRow+i}, 8, v6")
        I(f"v_add_u32 v{vRow+i}, s{sW4096}, v6")
    I(f"v_lshlrev_b32 v20, 5, v{vT}")
    I(f"v_add_u32 v20, {L_MODV}, v20")
    for s in range(4):
        I(f"v_add_u32 v6, {4*s}, v{vG}")
        I(f"v_xor_b32 v6, v6, v{vT}")
        I(f"v_lshlrev_b32 v6, 4, v6")
        I(f"v_lshl_add_u32 v{12+s}, v{vT}, 8, v6")

def make_h_rd(u, mb):
    I(f"v_add_u32 v6, s{sKM+u}, v20")
    I(f"ds_read_b128 {vr(mb,4)}, v6 offset:2048")
    I(f"ds_read_b128 {vr(mb+4,4)}, v6 offset:2064")
    I(f"ds_read_b128 {vr(mb+8,4)}, v6")
    return I(f"ds_read_b128 {vr(mb+12,4)}, v6 offset:16")
def make_h_do(u, mb, pk, x):
    wait_lg(x)
    for i in range(4):
        b = XH + (i * 4 + u) * 8
        if pk:
            for e in range(0, 8, 2):
                I(f"v_pk_fma_f32 {vr(b+e,2)}, {vr(b+e,2)}, {vr(mb+e,2)}, {vr(mb+8+e,2)}")
        else:
            for e in range(8):
                I(f"v_fma_f32 v{b+e}, v{b+e}, v{mb+e}, v{mb+8+e}")
        for e in range(4):
            I(f"v_cvt_pk_bf16_f32 v{b+e}, v{b+2*e}, v{b+2*e+1}")
        I(f"ds_write_b128 v{vRow+i}, {vr(b,4)} offset:{u*16*K}")
def make_h_first():
    xs = [make_h_rd(u, 192 + 16 * u) for u in range(4)]
    pad(100)
    for u in range(3): make_h_do(u, 192 + 16 * u, True, xs[u])

ACC = 192
def accK(rt): return ACC + rt * 4
def accV(rt): return ACC + 16 + rt * 4
def accQ(rt): return ACC + 32 + rt * 4
def a_rd(k, rt):
    u, s = k >> 2, k & 3
    b = 32 + (k % 3) * 16 + 4 * rt
    return I(f"ds_read_b128 {vr(b,4)}, v{12+s} offset:{u*16*K + rt*4096}")

def gemm_kv_chunk(u, cur):
    for s in range(4):
        k = 4 * u + s
        nxt = []
        for rt in range(4):
            if s < 3: nxt.append(a_rd(k + 1, rt))
            wait_lg(cur[rt])
            h = vr(32 + (k & 1) * 16 + 4 * rt, 4)
            I(f"v_mfma_f32_16x16x32_bf16 {vr(accK(rt),4)}, {ar(KF(u,s),4)}, {h}, {vr(accK(rt),4) if k else 0}")
            I(f"v_mfma_f32_16x16x32_bf16 {vr(accV(rt),4)}, {h}, {ar(VF(u,s),4)}, {vr(accV(rt),4) if k else 0}")
        cur = nxt

def gemm_q():
    cur = [a_rd(0, rt) for rt in range(4)]
    for k in range(16):
        nxt = []
        for rt in range(4):
            if k < 15: nxt.append(a_rd(k + 1, rt))
            if rt % 2 == 0: wait_lg(cur[rt + 1])
            h = vr(32 + (k & 1) * 16 + 4 * rt, 4)
            I(f"v_mfma_f32_16x16x32_bf16 {vr(accQ(rt),4)}, {ar(QF(k>>2,k&3),4)}, {h}, {vr(accQ(rt),4) if k else 0}")
        cur = nxt

APHI = 136
def wphi_issue():
    I(f"s_lshl_b32 s{sHead}, s{sCtB}, 2")
    I(f"s_add_u32 s{sHead}, s{sHead}, s{sW}")
    I(f"s_lshl_b32 s{sT0}, s{sHead}, 9")
    I(f"v_bfe_u32 v6, v{vL}, 3, 2")
    I(f"v_and_b32 v7, 3, v{vL}")
    I(f"v_lshl_add_u32 v6, v6, 2, v7")
    I(f"v_lshlrev_b32 v6, 1, v6")
    I(f"v_lshrrev_b32 v7, 5, v{vL}")
    I(f"v_lshl_add_u32 v6, v7, 8, v6")
    for j in range(8):
        last = I(f"buffer_load_ushort v{44+j}, v6, {S(SWPHI)}, s{sT0} offen offset:{32*j}")
    return last
def wphi_pack():
    I(f"v_bfe_u32 v6, v{vL}, 2, 1")
    I(f"v_mul_u32_u24 v6, 0x8000, v6")
    I(f"v_lshl_or_b32 v6, v6, 16, v6")
    for e in range(4):
        I(f"v_lshl_or_b32 v{44+e}, v{45+2*e}, 16, v{44+2*e}")
    for e in range(4):
        I(f"v_xor_b32 v{APHI+e}, v6, v{44+e}")

def softmax(acc, OUT):
    P = [64, 80]; XB = [96, 100]; M = [104, 112]
    for p in range(2):
        for h in range(2):
            a = acc(2 * p + h)
            I(f"v_cvt_pk_bf16_f32 v{XB[p]+2*h}, v{a}, v{a+1}")
            I(f"v_cvt_pk_bf16_f32 v{XB[p]+2*h+1}, v{a+2}, v{a+3}")
    for p in range(2):
        I(f"v_permlane16_swap_b32 v{XB[p]}, v{XB[p]+2}")
        I(f"v_permlane16_swap_b32 v{XB[p]+1}, v{XB[p]+3}")
    for p in range(2):
        I(f"v_mfma_f32_32x32x16_bf16 {vr(P[p],16)}, {vr(APHI,4)}, {vr(XB[p],4)}, 0")
    def chain(p):
        b = P[p]; m = M[p]
        for q in range(5): I(f"v_max3_f32 v{m+q}, v{b+3*q}, v{b+3*q+1}, v{b+3*q+2}")
        I(f"v_max3_f32 v{m}, v{m}, v{m+1}, v{m+2}")
        I(f"v_max3_f32 v{m+3}, v{m+3}, v{m+4}, v{b+15}")
        I(f"v_max_f32 v{m}, v{m}, v{m+3}")
        I(f"v_mul_f32 v{m}, s{sNL}, v{m}")
        for q in range(0, 16, 2):
            I(f"v_pk_fma_f32 {vr(b+q,2)}, {vr(b+q,2)}, {sr(sL,2)}, {vr(m,2)} op_sel_hi:[1,1,0]")
        for q in range(16): I(f"v_exp_f32 v{b+q}, v{b+q}")
        for q in range(4): I(f"v_pk_add_f32 {vr(m+2*q,2)}, {vr(b+4*q,2)}, {vr(b+4*q+2,2)}")
        I(f"v_pk_add_f32 {vr(m,2)}, {vr(m,2)}, {vr(m+2,2)}")
        I(f"v_pk_add_f32 {vr(m+4,2)}, {vr(m+4,2)}, {vr(m+6,2)}")
        I(f"v_pk_add_f32 {vr(m,2)}, {vr(m,2)}, {vr(m+4,2)}")
        I(f"v_add_f32 v{m}, v{m}, v{m+1}")
        I(f"v_rcp_f32 v{m}, v{m}")
        for q in range(0, 16, 2):
            I(f"v_pk_mul_f32 {vr(b+q,2)}, {vr(b+q,2)}, {vr(m,2)} op_sel_hi:[1,0]")
        for q in range(8): I(f"v_cvt_pk_bf16_f32 v{OUT+8*p+q}, v{b+2*q}, v{b+2*q+1}")
    r0 = rec(chain, 0); r1 = rec(chain, 1)
    lag = 6
    o0 = [o[1] for o, _ in r0.ops]; o1 = [o[1] for o, _ in r1.ops]
    for k in range(len(o0) + lag):
        if k < len(o0): I(o0[k])
        if k >= lag: I(o1[k - lag])

L_PT = 128 * K
def epi_k():
    PK = 144; VFR = 160; ONES = 168
    I(f"s_add_u32 s{sT1}, s{sW4096}, {L_PT}")
    I(f"v_and_b32 v8, 31, v{vL}")
    I(f"v_lshlrev_b32 v8, 6, v8")
    I(f"v_lshrrev_b32 v9, 5, v{vL}")
    I(f"v_lshlrev_b32 v9, 1, v9")
    I(f"v_bfe_u32 v10, v{vL}, 1, 2")
    I(f"v_xor_b32 v9, v9, v10")
    I(f"v_lshl_add_u32 v8, v9, 4, v8")
    I(f"v_add_u32 v8, s{sT1}, v8")
    I(f"v_xor_b32 v7, 16, v8")
    I(f"v_lshrrev_b32 v9, 2, v{vL}")
    I(f"v_lshlrev_b32 v9, 6, v9")
    I(f"v_bfe_u32 v10, v{vL}, 1, 1")
    I(f"v_bfe_u32 v11, v{vL}, 3, 2")
    I(f"v_xor_b32 v10, v10, v11")
    I(f"v_lshl_add_u32 v9, v10, 4, v9")
    I(f"v_and_b32 v10, 1, v{vL}")
    I(f"v_lshl_add_u32 v9, v10, 3, v9")
    I(f"v_add_u32 v9, s{sT1}, v9")
    I(f"v_xor_b32 v10, 32, v9")
    for e in range(4): I(f"v_mov_b32 v{ONES+e}, 0x3f803f80")
    softmax(accK, PK)
    for p in range(2):
        I(f"ds_write_b128 v8, {vr(PK+8*p,4)} offset:{p*2048}")
        I(f"ds_write_b128 v7, {vr(PK+8*p+4,4)} offset:{p*2048}")
    for kp in range(2):
        for hh in range(2):
            a = accV(2 * kp + hh)
            I(f"v_cvt_pk_bf16_f32 v{VFR+4*kp+2*hh}, v{a}, v{a+1}")
            I(f"v_cvt_pk_bf16_f32 v{VFR+4*kp+2*hh+1}, v{a+2}, v{a+3}")
    PT = 64
    for T in range(2):
        for kp in range(2):
            f = PT + (T * 2 + kp) * 4
            I(f"ds_read_b64_tr_b16 {vr(f,2)}, v{9+T} offset:{kp*2048}")
            x = I(f"ds_read_b64_tr_b16 {vr(f+2,2)}, v{9+T} offset:{kp*2048 + 1024}")
    I(f"s_lshl_b32 s{sT0}, s{sHead}, 5")
    I(f"s_add_u32 s{sT0}, s{sT0}, s{sRbB}")
    I(f"s_mul_i32 s{sT0}, s{sT0}, {KVREC}")
    I(f"s_add_u32 s{sT0}, s{sT0}, {WS_KVP}")
    I(f"v_lshlrev_b32 v8, 5, v{vG}")
    I(f"v_lshl_add_u32 v8, v{vT}, 4, v8")
    I(f"v_mov_b32 v9, {OOB}")
    I(f"v_cmp_gt_u32 vcc, 2, v{vT}")
    I(f"v_cndmask_b32 v8, v9, v8, vcc")
    I(f"v_cmp_eq_u32 vcc, 1, v{vT}")
    wait_lg(x)
    KV = 172; Z = 180
    for kp in range(2):
        for T in range(2):
            f = vr(PT + (T * 2 + kp) * 4, 4)
            I(f"v_mfma_f32_16x16x32_bf16 {vr(KV+4*T,4)}, {f}, {vr(VFR+4*kp,4)}, {vr(KV+4*T,4) if kp else 0}")
    for kp in range(2):
        for T in range(2):
            f = vr(PT + (T * 2 + kp) * 4, 4)
            I(f"v_mfma_f32_16x16x32_bf16 {vr(Z+4*T,4)}, {f}, {vr(ONES,4)}, {vr(Z+4*T,4) if kp else 0}")
    tag4(KV); tag4(KV + 4)
    I(f"buffer_store_dwordx4 {vr(KV,4)}, v{vL16}, {S(SWS)}, s{sT0} offen sc1")
    I(f"buffer_store_dwordx4 {vr(KV+4,4)}, v{vL16}, {S(SWS)}, s{sT0} offen offset:1024 sc1")
    for e in range(4):
        I(f"v_cndmask_b32 v{Z+e}, v{Z+e}, v{Z+4+e}, vcc")
    tag4(Z)
    I(f"buffer_store_dwordx4 {vr(Z,4)}, v8, {S(SWS)}, s{sT0} offen offset:2048 sc1")

def epi_q():
    PQ = 144
    I(f"s_lshl_b32 s{sT0}, s{sRbB}, 7")
    I(f"s_add_u32 s{sT0}, s{sT0}, s{sHead}")
    I(f"s_lshl_b32 s{sT0}, s{sT0}, 10")
    I(f"s_add_u32 s{sT0}, s{sT0}, {WS_PHIQ}")
    I(f"s_lshl_b32 s{sT1}, s{sRbB}, 3")
    I(f"s_add_u32 s{sT1}, s{sT1}, s{sCtB}")
    I(f"s_lshl_b32 s{sT1}, s{sT1}, 7")
    I(f"s_add_u32 s{sT1}, s{sT1}, {WS_FQ}")
    I(f"v_and_b32 v6, 1, v{vG}")
    I(f"v_lshlrev_b32 v6, 15, v6")
    I(f"v_lshrrev_b32 v7, 1, v{vG}")
    I(f"v_lshl_add_u32 v6, v7, 9, v6")
    I(f"v_lshl_add_u32 v6, v{vT}, 4, v6")
    softmax(accQ, PQ)
    for p in range(2):
        I(f"buffer_store_dwordx4 {vr(PQ+8*p,4)}, v6, {S(SWS)}, s{sT0} offen sc1")
        last = I(f"buffer_store_dwordx4 {vr(PQ+8*p+4,4)}, v6, {S(SWS)}, s{sT0} offen offset:256 sc1")
        if p == 0: I(f"s_add_u32 s{sT0}, s{sT0}, 65536")
    return last

def gemm_kv(k0, k1, rds):
    for k in range(k0, k1):
        u, s = k >> 2, k & 3
        nxt = []
        for rt in range(4):
            if k + 2 < 16: nxt.append(a_rd(k + 2, rt))
            if rt == 0: wait_lg(rds[k][3])
            h = vr(32 + (k % 3) * 16 + 4 * rt, 4)
            I(f"v_mfma_f32_16x16x32_bf16 {vr(accK(rt),4)}, {ar(KF(u,s),4)}, {h}, {vr(accK(rt),4) if k else 0}")
            I(f"v_mfma_f32_16x16x32_bf16 {vr(accV(rt),4)}, {h}, {ar(VF(u,s),4)}, {vr(accV(rt),4) if k else 0}")
            I(f"v_mfma_f32_16x16x32_bf16 {vr(accQ(rt),4)}, {ar(QF(u,s),4)}, {h}, {vr(accQ(rt),4) if k else 0}")
        rds[k + 2] = nxt
    return rds

RR = 172
def kv_reduce_issue():
    I(f"s_and_b32 s{sT2}, s2, 7")
    I(f"s_lshl_b32 s{sT3}, s{sT2}, 4")
    I(f"s_add_u32 s{sT3}, s{sT3}, 2048")
    I(f"s_lshl_b32 s{sT2}, s{sT2}, 2")
    I(f"s_add_u32 s{sT2}, s{sT2}, s{sW}")
    I(f"s_lshl_b32 s{sT2}, s{sT2}, 6")
    I(f"v_and_b32 v10, 7, v{vL}")
    I(f"v_lshlrev_b32 v11, 4, v10")
    I(f"v_add_u32 v11, s{sT2}, v11")
    I(f"v_mov_b32 v12, s{sT3}")
    I(f"v_cmp_gt_u32 vcc, 4, v10")
    I(f"v_cndmask_b32 v11, v12, v11, vcc")
    I(f"v_lshrrev_b32 v12, 3, v{vL}")
    I(f"v_mul_u32_u24 v12, {KVREC}, v12")
    I(f"v_add_u32 v12, v12, v11")
    I(f"s_mul_i32 s{sP0}, s{sJ}, {32*KVREC}")
    I(f"s_add_u32 s{sP0}, s{sP0}, {WS_KVP}")
    I(f"s_mul_i32 s{sP1}, s{sJ}, {KVREC}")
    I(f"s_add_u32 s{sP1}, s{sP1}, {WS_KVF}")
    I(f"s_mov_b32 s{sP2}, 0xffffff00")
    I(f"v_cmp_gt_u32 vcc, 5, v{vL}")
    I(f"v_mov_b32 v10, {OOB}")
    I(f"v_cndmask_b32 v11, v10, v11, vcc")
    return kv_reduce_loads()
def kv_reduce_loads():
    for n in range(4):
        I(f"s_add_u32 s{sT2}, s{sP0}, {n*8*KVREC}")
        last = I(f"buffer_load_dwordx4 {vr(RR+4*n,4)}, v12, {S(SWS)}, s{sT2} offen sc1")
    return last
def kv_reduce_finish(last):
    R = RR
    def checks():
        for n in range(4): check4(8, R + 4 * n, 9, 10, n == 0)
        I("v_cmp_ne_u32 vcc, 0, v8")
    wait_vm(last)
    checks()
    def body():
        kv_reduce_loads(); I("s_waitcnt vmcnt(0)"); A.vm = []; checks()
    spin_loop(body, first_done=True)
    for q in range(16):
        I(f"v_and_b32 v{R+q}, s{sP2}, v{R+q}")
    for st in (8, 4):
        for q in range(0, st, 2):
            I(f"v_pk_add_f32 {vr(R+q,2)}, {vr(R+q,2)}, {vr(R+st+q,2)}")
    for e in range(4):
        I(f"v_add_f32_dpp v{R+e}, v{R+e}, v{R+e} row_ror:8 row_mask:0xf bank_mask:0xf")
    for op in ("v_permlane16_swap_b32", "v_permlane32_swap_b32"):
        for e in range(4): I(f"v_mov_b32 v{R+4+e}, v{R+e}")
        for e in range(4): I(f"{op} v{R+e}, v{R+4+e}")
        for e in (0, 2): I(f"v_pk_add_f32 {vr(R+e,2)}, {vr(R+e,2)}, {vr(R+4+e,2)}")
    round_tag16(R, R + 4)
    I(f"buffer_store_dwordx4 {vr(R,4)}, v11, {S(SWS)}, s{sP1} offen sc1")

def pf_wo():
    I(f"s_lshl_b32 s{sB1}, s{sJ}, 14")
    I(f"s_add_u32 s{sB1}, s{sB1}, s{sW4096}")
    I(f"v_and_b32 v21, 31, v{vL}")
    I(f"v_lshlrev_b32 v21, 7, v21")
    I(f"buffer_load_dword a255, v21, {S(SWO)}, s{sB1} offen")
def pf_gu():
    I(f"s_cmp_ge_u32 s{sW}, 2")
    I(f"s_cselect_b32 s{SGU}, s{SWU}, s{SWG}")
    I(f"s_cselect_b32 s{SGU+1}, s{SWU+1}, s{SWG+1}")
    I(f"s_mov_b32 s{SGU+2}, {512*1376*2}")
    I(f"s_mov_b32 s{SGU+3}, 0x20000")
    I(f"s_lshl_b32 s{sB1}, s{sJ}, 1")
    I(f"s_and_b32 s{sB2}, s{sW}, 1")
    I(f"s_add_u32 s{sB1}, s{sB1}, s{sB2}")
    I(f"s_mul_i32 s{sB1}, s{sB1}, {8*2752}")
    I(f"s_and_b32 s{sB2}, s2, 3")
    I(f"s_mul_i32 s{sB2}, s{sB2}, {32*21846}")
    I(f"s_lshr_b32 s{sB2}, s{sB2}, 16")
    I(f"s_lshl_b32 s{sB2}, s{sB2}, 6")
    I(f"s_add_u32 s{sB1}, s{sB1}, s{sB2}")
    I(f"v_lshrrev_b32 v21, 3, v{vL}")
    I(f"v_mul_u32_u24 v21, 2752, v21")
    I(f"v_and_b32 v22, 7, v{vL}")
    I(f"v_mul_u32_u24 v22, 100, v22")
    I(f"v_add_u32 v21, v21, v22")
    I(f"buffer_load_dword a255, v21, {S(SGU)}, s{sB1} offen")
def pf_wd(part):
    I(f"s_mul_i32 s{sT2}, s{sJ}, {344*128}")
    I(f"s_mul_i32 s{sT3}, s{sW}, {86*128}")
    I(f"s_add_u32 s{sT2}, s{sT2}, s{sT3}")
    I(f"v_lshlrev_b32 v21, 7, v{vL}")
    if part:
        I(f"v_min_u32 v21, {21*128}, v21")
        I(f"s_add_u32 s{sT2}, s{sT2}, 8192")
    I(f"buffer_load_dword a255, v21, {S(SWD)}, s{sT2} offen")

WOF = 192
L_WO = 64 * K
def wo_dma():
    rows128_voff(vBG, 1024, False)
    I(f"s_lshl_b32 s{sB1}, s{sW}, 17")
    I(f"s_lshl_b32 s{sB2}, s{sCtC}, 7")
    I(f"s_add_u32 s{sB1}, s{sB1}, s{sB2}")
    I(f"s_lshl_b32 s{sB2}, s{sW}, 14")
    for s in range(4):
        last = dma4(vBG, S(SWO), sB2, L_WO + s * 4096, sB1, s * 32768)
    return last
def wo_tr(last):
    I(f"v_lshrrev_b32 v28, 2, v{vL}")
    I(f"v_lshlrev_b32 v28, 7, v28")
    I(f"v_bfe_u32 v29, v{vL}, 3, 2")
    I(f"s_and_b32 s{sB2}, s{sW}, 2")
    I(f"v_xor_b32 v29, s{sB2}, v29")
    I(f"v_lshl_add_u32 v28, v29, 5, v28")
    I(f"v_and_b32 v29, 3, v{vL}")
    I(f"v_lshl_add_u32 v28, v29, 3, v28")
    I(f"s_lshl_b32 s{sB2}, s{sW}, 14")
    I(f"s_add_u32 s{sB2}, s{sB2}, {L_WO}")
    I(f"v_add_u32 v28, s{sB2}, v28")
    for c in range(1, 4):
        I(f"v_xor_b32 v{28+c}, {c*32}, v28")
    wait_vm(last)
    for s in range(4):
        for c in range(4):
            f = WOF + (s * 4 + c) * 4
            I(f"ds_read_b64_tr_b16 {ar(f,2)}, v{28+c} offset:{s*4096}")
            I(f"ds_read_b64_tr_b16 {ar(f+2,2)}, v{28+c} offset:{s*4096+2048}")

def GF(c, ks): return (ks * 3 + c) * 4
GSLOT = [0, 64 * K, 0, 48 * K]
def wgu_setup():
    I(f"s_lshl_b32 s{sB1}, s{sMD}, 3")
    I(f"s_mul_i32 s{sB1}, s{sB1}, 21846")
    I(f"s_lshr_b32 s{sB1}, s{sB1}, 16")
    I(f"s_lshl_b32 s{sFt0}, s{sB1}, 1")
    for n in range(3):
        I(f"v_add_u32 v27, {64*n}, v{vL}")
        I(f"v_mul_u32_u24 v28, 5462, v27")
        I(f"v_lshrrev_b32 v28, 16, v28")
        I(f"v_mul_u32_u24 v29, 12, v28")
        I(f"v_sub_u32 v29, v27, v29")
        I(f"v_bfe_u32 v30, v28, 2, 1")
        I(f"v_lshlrev_b32 v30, 1, v30")
        I(f"v_xor_b32 v29, v29, v30")
        I(f"v_mul_u32_u24 v28, 2752, v28")
        I(f"v_lshl_add_u32 v{vBG+n}, v29, 4, v28")
        if n: I(f"v_subrev_u32 v{vBG+n}, {n*1024}, v{vBG+n}")
    I(f"s_and_b32 s{sB1}, s{sW}, 1")
    I(f"s_mul_i32 s{sB1}, s{sB1}, {64*2752}")
    I(f"s_lshl_b32 s{sB2}, s{sFt0}, 5")
    I(f"s_add_u32 s{sB1}, s{sB1}, s{sB2}")
    for q in range(4):
        I(f"s_add_u32 s{sB2}, s{sGrpD}, {q}")
        I(f"s_and_b32 s{sB2}, s{sB2}, 3")
        I(f"s_mul_i32 s{sKW+q}, s{sB2}, {128*2752}")
        I(f"s_add_u32 s{sKW+q}, s{sKW+q}, s{sB1}")
        I(f"s_lshl_b32 s{sK+q}, s{sB2}, 12")
        I(f"s_lshl_b32 s{sKM+q}, s{sB2}, 9")
    I(f"s_mul_i32 s{sB1}, s{sW}, 12288")
def wgu_traddr():
    I(f"s_lshr_b32 s{sB2}, s{sW}, 1")
    I(f"s_mul_i32 s{sTz}, s{sB2}, 3")
    I(f"s_and_b32 s{sB2}, s{sW}, 1")
    I(f"s_lshl_b32 s{sTx}, s{sB2}, 1")
    I(f"s_add_u32 s{sTx}, s{sTx}, s{sTz}")
    I(f"s_add_u32 s{sTz}, s{sTz}, 1")
    I(f"v_lshrrev_b32 v27, 2, v{vL}")
    I(f"v_mul_u32_u24 v27, 192, v27")
    I(f"v_and_b32 v31, 3, v{vL}")
    I(f"v_lshl_add_u32 v27, v31, 3, v27")
    I(f"v_and_b32 v31, 1, v{vG}")
    I(f"v_xor_b32 v30, s{sTx}, v31")
    I(f"v_lshl_add_u32 v28, v30, 5, v27")
    I(f"v_add_u32 v29, 24576, v28")
    I(f"v_xor_b32 v30, s{sTz}, v31")
    I(f"v_lshl_add_u32 v30, v30, 5, v27")
    I(f"s_mul_i32 s{sB2}, s{sB2}, 24576")
    I(f"v_add_u32 v30, s{sB2}, v30")
def wgu_dma(q):
    for p in range(4):
        I(f"s_add_u32 m0, s{sB1}, {GSLOT[q] + p*3072}")
        I(f"s_add_u32 s{sB0}, s{sKW+q}, {p*16*2752}")
        for n in range(3):
            last = I(f"buffer_load_dwordx4 v{vBG+n}, {S(SGU)}, s{sB0} offen offset:{n*1024} lds")
            pad(100)
    return last
def wgu_tr(q):
    for c in range(3):
        if GSLOT[q]:
            I(f"v_add_u32 v31, {GSLOT[q]}, v{28+c}"); b = 31
        else: b = 28 + c
        for s in range(4):
            f = GF(c, q * 4 + s)
            I(f"ds_read_b64_tr_b16 {ar(f,2)}, v{b} offset:{s*6144}")
            I(f"ds_read_b64_tr_b16 {ar(f+2,2)}, v{b} offset:{s*6144+3072}")

RK = 192; KB = 32
def PHR(n, r4): return 64 + (n * 4 + r4) * 4
def CAC(k, r4): return 192 + (k * 4 + r4) * 4
def rt_offsets(stride):
    I(f"s_lshr_b32 s{sT0}, s{sMC}, 3")
    I(f"s_lshl_b32 s{sT0}, s{sT0}, 1")
    I(f"s_and_b32 s{sT2}, s{sW}, 1")
    I(f"s_add_u32 s{sT0}, s{sT0}, s{sT2}")
    I(f"s_mul_i32 s{sR}, s{sT0}, {stride}")
    I(f"s_xor_b32 s{sT0}, s{sT0}, 1")
    I(f"s_mul_i32 s{sR+1}, s{sT0}, {stride}")
    I(f"s_add_u32 s{sR+2}, s{sR}, {4*stride}")
    I(f"s_add_u32 s{sR+3}, s{sR+1}, {4*stride}")
def phiq_load():
    I(f"s_lshl_b32 s{sT0}, s{sGrpC}, 4")
    I(f"s_lshl_b32 s{sT1}, s{sW}, 1")
    I(f"s_add_u32 s{sT0}, s{sT0}, s{sT1}")
    I(f"v_and_b32 v20, 1, v{vL}")
    I(f"v_bfe_u32 v21, v{vL}, 1, 1")
    I(f"v_lshl_add_u32 v20, v21, 3, v20")
    I(f"v_add_u32 v20, s{sT0}, v20")
    I(f"v_lshlrev_b32 v20, 7, v20")
    I(f"v_add_u32 v20, {WS_FQ}, v20")
    rt_offsets(32768)
    I(f"s_lshl_b32 s{sT0}, s{sGrpC}, 18")
    I(f"s_lshl_b32 s{sT1}, s{sW}, 13")
    I(f"s_add_u32 s{sT0}, s{sT0}, s{sT1}")
    I(f"s_add_u32 s{sT0}, s{sT0}, {WS_PHIQ}")
    I(f"v_add_u32 v22, s{sT0}, v{vL16}")
    I(f"v_add_u32 v27, 4096, v22")
    return poll_issue(20, 21)
def phiq_loads(ids, h):
    for s_ in range(4):
        for rho in range(2):
            r4 = 2 * h + rho
            for n in (2 * s_, 2 * s_ + 1):
                ids[h * 8 + s_ * 2 + rho] = I(f"buffer_load_dwordx4 {vr(PHR(n,r4),4)}, v{22 if n < 4 else 27}, {S(SWS)}, s{sR+r4} offen offset:{(n&3)*1024} sc1")
                pad(40)
RZ = 32
def kv_addr():
    I(f"s_lshl_b32 s{sT1}, s{sW}, 3")
    I(f"s_mul_i32 s{sP1}, s{sT1}, {KVREC}")
    I(f"s_add_u32 s{sP1}, s{sP1}, {WS_KVF}")
    I(f"v_and_b32 v14, 3, v{vT}")
    I(f"v_mul_u32_u24 v14, {KVREC}, v14")
    I(f"v_and_b32 v15, 1, v{vG}")
    I(f"v_lshl_add_u32 v14, v15, 6, v14")
    I(f"v_lshrrev_b32 v15, 1, v{vG}")
    I(f"v_lshl_add_u32 v14, v15, 4, v14")
    I(f"v_lshlrev_b32 v15, 9, v{vG}")
    I(f"v_lshl_add_u32 v15, v{vT}, 4, v15")
def kv_loads():
    for n in range(8):
        I(f"s_add_u32 s{sT0}, s{sP1}, {n*KVREC}")
        I(f"buffer_load_dwordx4 {vr(RK+8*n,4)}, v15, {S(SWS)}, s{sT0} offen sc1")
        last = I(f"buffer_load_dwordx4 {vr(RK+8*n+4,4)}, v15, {S(SWS)}, s{sT0} offen offset:256 sc1")
        if n % 4 == 0:
            q = n // 4
            I(f"buffer_load_dwordx4 {vr(RZ+8*q,4)}, v14, {S(SWS)}, s{sT0} offen offset:2048 sc1")
            I(f"buffer_load_dwordx4 {vr(RZ+8*q+4,4)}, v14, {S(SWS)}, s{sT0} offen offset:2080 sc1")
    return last
def kv_finish(last):
    def checks():
        for k in range(16): check16(16, RK + 4 * k, 17 + (k & 1), k == 0)
        for k in range(4): check16(16, RZ + 4 * k, 17 + (k & 1), False)
        I("v_cmp_ne_u32 vcc, 0, v16")
    wait_vm(last)
    checks()
    def body():
        kv_loads(); I("s_waitcnt vmcnt(0)"); A.vm = []; checks()
    spin_loop(body, first_done=True)
def kv_pack():
    for k in range(8):
        I(f"v_perm_b32 v{8+k}, v{RZ+2*k+1}, v{RZ+2*k}, s{sSelHi}")
    for k in range(32):
        I(f"v_perm_b32 v{KB+k}, v{RK+2*k+1}, v{RK+2*k}, s{sSelHi}")

def half_send(acc, lbase, va):
    for d in (1, 2, 3):
        rho, pi = d & 1, d >> 1
        I(f"s_xor_b32 s{sT0}, s{sW}, {d}")
        I(f"s_mul_i32 s{sT0}, s{sT0}, 6144")
        I(f"s_add_u32 s{sT0}, s{sT0}, {lbase + (d-1)*2048}")
        I(f"v_add_u32 v{va}, s{sT0}, v{vL16}")
        for k in range(2):
            I(f"ds_write_b128 v{va}, {vr(acc(2*pi+k, rho),4)} offset:{k*1024}")
def half_recv(acc, lbase, va):
    I(f"s_mul_i32 s{sT0}, s{sW}, 6144")
    I(f"s_add_u32 s{sT0}, s{sT0}, {lbase}")
    I(f"v_add_u32 v{va}, s{sT0}, v{vL16}")
    for d in (1, 2, 3):
        rho, pi = d & 1, d >> 1
        for k in range(2):
            last = I(f"ds_read_b128 {vr(acc(2*pi+k, rho),4)}, v{va} offset:{(d-1)*2048 + k*1024}")
    return last
def half_sum(acc, O):
    for k in range(2):
        for e in (0, 2):
            I(f"v_pk_add_f32 {vr(O+4*k+e,2)}, {vr(acc(k,0)+e,2)}, {vr(acc(k,1)+e,2)}")
            I(f"v_pk_add_f32 {vr(acc(2+k,0)+e,2)}, {vr(acc(2+k,0)+e,2)}, {vr(acc(2+k,1)+e,2)}")
    for k in range(2):
        for e in (0, 2):
            I(f"v_pk_add_f32 {vr(O+4*k+e,2)}, {vr(O+4*k+e,2)}, {vr(acc(2+k,0)+e,2)}")

L_RED = 96 * K
X1K = 24
def c_setup():
    I(f"s_lshr_b32 s{sT0}, s{sMC}, 3")
    I(f"s_lshl_b32 s{sT0}, s{sT0}, 1")
    I(f"s_and_b32 s{sT1}, s{sW}, 1")
    I(f"s_add_u32 s{sT0}, s{sT0}, s{sT1}")
    I(f"s_lshl_b32 s{sT1}, s{sGrpC}, 3")
    I(f"s_add_u32 s{sP2}, s{sT0}, s{sT1}")
    I(f"s_lshl_b32 s{sT0}, s{sP2}, 4")
    I(f"v_add_u32 v20, s{sT0}, v{vT}")
    I(f"v_lshlrev_b32 v21, 10, v20")
    I(f"v_lshl_add_u32 v21, v{vG}, 3, v21")
    I(f"s_lshl_b32 s{sT0}, s{sCtC}, 1")
    I(f"s_lshr_b32 s{sT1}, s{sW}, 1")
    I(f"s_add_u32 s{sP3}, s{sT0}, s{sT1}")
    I(f"s_lshl_b32 s{sT0}, s{sP3}, 6")
    I(f"s_add_u32 s{sT1}, s{sT0}, 65536")
    for h in range(2):
        for k in range(2):
            last = I(f"buffer_load_dwordx2 {vr(24+4*h+2*k,2)}, v21, {S(SX)}, s{sT1 if h else sT0} offen offset:{32*k}")
    I(f"s_lshl_b32 s{sT0}, s{sP3}, 7")
    I(f"s_add_u32 s{sT0}, s{sT0}, {L_MODV}")
    I(f"v_lshlrev_b32 v22, 4, v{vG}")
    I(f"v_add_u32 v22, s{sT0}, v22")
    return last

def c_epi_rd(GA, CB):
    for k in range(2):
        I(f"ds_read_b128 {vr(GA+4*k,4)}, v22 offset:{4096 + 64*k}")
        x = I(f"ds_read_b128 {vr(CB+4*k,4)}, v22 offset:{8192 + 64*k}")
    return x
def c_epi(h, acc, O, GA, CB, XF, xid):
    XR = 24 + 4 * h
    wait_vm(xid)
    for q in range(4):
        I(f"v_lshlrev_b32 v{XF+2*q}, 16, v{XR+q}")
        I(f"v_and_b32 v{XF+2*q+1}, s{sHi}, v{XR+q}")
    wait_lg()
    half_sum(acc, O)
    for q in range(0, 8, 2):
        I(f"v_pk_fma_f32 {vr(O+q,2)}, {vr(O+q,2)}, {vr(GA+q,2)}, {vr(XF+q,2)}")
    for q in range(4):
        I(f"v_cvt_pk_bf16_f32 v{XR+q}, v{O+2*q}, v{O+2*q+1}")
    I(f"s_lshl_b32 s{sT0}, s{sP2}, 14")
    I(f"s_lshl_b32 s{sT1}, s{sP3}, 10")
    for q in range(4):
        I(f"v_lshlrev_b32 v{O+2*q}, 16, v{XR+q}")
        I(f"v_and_b32 v{O+2*q+1}, s{sHi}, v{XR+q}")
    I(f"s_add_u32 s{sT0}, s{sT0}, s{sT1}")
    I(f"s_add_u32 s{sT0}, s{sT0}, {WS_X1P + h*4*16384}")
    for q in range(0, 8, 2):
        I(f"v_pk_mul_f32 {vr(XF+q,2)}, {vr(O+q,2)}, {vr(CB+q,2)}")
    for q in range(4):
        I(f"v_cvt_pk_bf16_f32 v{XF+q}, v{XF+2*q}, v{XF+2*q+1}")
    xlast = I(f"buffer_store_dwordx4 {vr(XF,4)}, v{vL16}, {S(SWS)}, s{sT0} offen sc1")
    T = GA
    I(f"v_pk_add_f32 v[{T}:{T+1}], {vr(O,2)}, {vr(O+2,2)}")
    I(f"v_pk_add_f32 v[{T+2}:{T+3}], {vr(O+4,2)}, {vr(O+6,2)}")
    I(f"v_pk_add_f32 v[{T}:{T+1}], v[{T}:{T+1}], v[{T+2}:{T+3}]")
    I(f"v_add_f32 v{T}, v{T}, v{T+1}")
    I(f"v_mul_f32 v{T+2}, 0xbe000000, v{T}")
    for q in range(0, 8, 2):
        I(f"v_pk_add_f32 {vr(O+q,2)}, {vr(O+q,2)}, v[{T+2}:{T+3}] op_sel_hi:[1,0]")
    I(f"v_pk_mul_f32 v[{T+4}:{T+5}], {vr(O,2)}, {vr(O,2)}")
    I(f"v_pk_mul_f32 v[{T+6}:{T+7}], {vr(O+2,2)}, {vr(O+2,2)}")
    I(f"v_pk_fma_f32 v[{T+4}:{T+5}], {vr(O+4,2)}, {vr(O+4,2)}, v[{T+4}:{T+5}]")
    I(f"v_pk_fma_f32 v[{T+6}:{T+7}], {vr(O+6,2)}, {vr(O+6,2)}, v[{T+6}:{T+7}]")
    I(f"v_pk_add_f32 v[{T+4}:{T+5}], v[{T+4}:{T+5}], v[{T+6}:{T+7}]")
    I(f"v_add_f32 v{T+1}, v{T+4}, v{T+5}")
    for op, inv in (("v_permlane16_swap_b32", 0x3d800000), ("v_permlane32_swap_b32", 0x3d000000)):
        I(f"v_mov_b32 v{T+2}, v{T}")
        I(f"v_mov_b32 v{T+3}, v{T+1}")
        I(f"{op} v{T}, v{T+2}")
        I(f"{op} v{T+1}, v{T+3}")
        I(f"v_sub_f32 v{T+4}, v{T}, v{T+2}")
        I(f"v_add_f32 v{T}, v{T}, v{T+2}")
        I(f"v_add_f32 v{T+1}, v{T+1}, v{T+3}")
        I(f"v_mul_f32 v{T+4}, v{T+4}, v{T+4}")
        I(f"v_fmac_f32 v{T+1}, {inv:#x}, v{T+4}")
    I(f"v_lshlrev_b32 v{O}, 8, v20")
    I(f"v_mov_b32 v{T+2}, v{vTag}")
    I(f"v_mov_b32 v{T+3}, v{vTag}")
    I(f"v_mov_b32 v{O+1}, {OOB}")
    I(f"v_cmp_gt_u32 vcc, 16, v{vL}")
    I(f"v_cndmask_b32 v{O}, v{O+1}, v{O}, vcc")
    I(f"s_lshl_b32 s{sT0}, s{sP3}, 4")
    I(f"s_add_u32 s{sT0}, s{sT0}, {WS_STAT + h*64*256}")
    I(f"buffer_store_dwordx4 v[{T}:{T+3}], v{O}, {S(SWS)}, s{sT0} offen sc1")
    return xlast
def flag_at(base, grp, m, last):
    I(f"s_lshl_b32 s{sT0}, s{grp}, 4")
    I(f"s_add_u32 s{sT0}, s{sT0}, s{m}")
    I(f"s_lshl_b32 s{sT0}, s{sT0}, 7")
    I(f"s_add_u32 s{sT0}, s{sT0}, {base}")
    set_flag(sT0, last)

def c_compute(pids, hooks):
    ZF = 8; EPS = 16
    for e in range(4): I(f"v_mov_b32 v{EPS+e}, 0x358637bd")
    def us(u): return (u & 7) >> 1, 2 * (u >> 3) + (u & 1)
    def f0(u): s, r = us(u); return PHR(2 * s, r)
    def f1(u): s, r = us(u); return PHR(2 * s + 1, r)
    def buf(u):
        if u < 8: return [CAC(c, 2 + (u & 1)) for c in range(4)]
        k = 2 * (u & 1)
        return [PHR(k, 0), PHR(k + 1, 0), PHR(k, 1), PHR(k + 1, 1)]
    def s1(u):
        s, r = us(u); N0, D0, N1, D1 = buf(u)
        return [f"v_mfma_f32_16x16x32_bf16 {vr(D0,4)}, {vr(ZF+4*(s>>1),4)}, {vr(f0(u),4)}, {vr(EPS,4)}",
                f"v_mfma_f32_16x16x32_bf16 {vr(D1,4)}, {vr(ZF+4*(s>>1),4)}, {vr(f1(u),4)}, {vr(EPS,4)}",
                f"v_mfma_f32_16x16x32_bf16 {vr(N0,4)}, {vr(KB+8*s,4)}, {vr(f0(u),4)}, 0",
                f"v_mfma_f32_16x16x32_bf16 {vr(N1,4)}, {vr(KB+8*s+4,4)}, {vr(f1(u),4)}, 0"]
    def s2(u):
        s, r = us(u); N0, D0, N1, D1 = buf(u)
        d0 = D0 + ((2 * s) & 3); d1 = D1 + ((2 * s + 1) & 3)
        o = [f"v_rcp_f32 v6, v{d0}", f"v_rcp_f32 v7, v{d1}"]
        o += [f"v_mul_f32 v{N0+e}, v{N0+e}, v6" for e in range(4)]
        o += [f"v_cvt_pk_bf16_f32 v{f0(u)}, v{N0}, v{N0+1}", f"v_cvt_pk_bf16_f32 v{f0(u)+1}, v{N0+2}, v{N0+3}"]
        o += [f"v_mul_f32 v{N1+e}, v{N1+e}, v7" for e in range(4)]
        o += [f"v_cvt_pk_bf16_f32 v{f0(u)+2}, v{N1}, v{N1+1}", f"v_cvt_pk_bf16_f32 v{f0(u)+3}, v{N1+2}, v{N1+3}"]
        return o
    def s3(u):
        s, r = us(u)
        return [f"v_mfma_f32_16x16x32_bf16 {vr(CAC(c,r),4)}, {ar(WOF+(s*4+c)*4,4)}, {vr(f0(u),4)}, {vr(CAC(c,r),4) if s else 0}" for c in range(4)]
    wait_vm(pids[0])
    for m in s1(0): I(m)
    for u in range(17):
        if u in hooks: hooks[u]()
        if u + 1 < 16: wait_vm(pids[u + 1])
        mf = (s3(u - 1) if u >= 1 else []) + (s1(u + 1) if u + 1 < 16 else [])
        va = s2(u) if u < 16 else []
        k = 0
        for m in mf:
            I(m)
            for _ in range(2):
                if k < len(va): I(va[k]); k += 1
        while k < len(va): I(va[k]); k += 1

L_U = L_MISC + 3072
def u12_all():
    I(f"v_lshrrev_b32 v6, 3, v{vT}")
    I(f"v_lshlrev_b32 v7, 10, v6")
    I(f"v_lshl_add_u32 v7, v{vG}, 4, v7")
    I(f"v_add_u32 v7, {L_UV}, v7")
    R = 64; UA = 192
    for q in range(4):
        I(f"s_lshr_b32 s{sT0}, s{sKM+q}, 1")
        I(f"v_add_u32 v13, s{sT0}, v7")
        for s in range(4):
            I(f"ds_read_b128 {vr(R+4*(4*q+s),4)}, v13 offset:{64*s}")
    I(f"s_mul_i32 s{sT0}, s{sW}, 384")
    I(f"s_add_u32 s{sT0}, s{sT0}, {L_UW}")
    I(f"v_lshlrev_b32 v6, 6, v6")
    I(f"v_lshl_add_u32 v6, v{vG}, 4, v6")
    I(f"v_add_u32 v6, s{sT0}, v6")
    I(f"v_add_u32 v55, {L_DUMMY}, v{vL16}")
    I(f"v_and_b32 v13, 7, v{vT}")
    I(f"v_cmp_eq_u32 vcc, 0, v13")
    I(f"v_cndmask_b32 v55, v55, v6, vcc")
    wait_lg()
def u12_mm(k0, k1):
    R = 64; UA = 192
    for ks in range(k0, k1):
        for c in range(3):
            acc = vr(UA + 4 * c, 4)
            I(f"v_mfma_f32_16x16x32_bf16 {acc}, {ar(GF(c,ks),4)}, {vr(R+4*ks,4)}, {acc if ks else 0}")
    if k1 == 16:
        for c in range(3):
            I(f"ds_write_b128 v55, {vr(UA+4*c,4)} offset:{128*c}")

def DF(j, c): return (192 + (j * 4 + c) * 4) if j < 4 else ((j - 4) * 4 + c) * 4
WDSLOT = {0: 6, 1: 7, 2: 0, 3: 1, 4: 2, 5: 0, 6: 3, 7: 1, 8: 4, 9: 5, 10: 6}
vWD = 12
def wd_setup():
    TMPV[:] = [6, 7, 17, 18]
    rows128_voff(vWD, 1024, True)
    I(f"s_mul_i32 s{sB1}, s{sW}, {352*1024}")
    I(f"s_lshl_b32 s{sB2}, s{sCtC}, 7")
    I(f"s_add_u32 s{sB1}, s{sB1}, s{sB2}")
    I(f"v_bfe_u32 v6, v{vL}, 2, 2")
    I(f"v_lshl_add_u32 v6, v{vG}, 3, v6")
    I(f"v_lshlrev_b32 v6, 7, v6")
    I(f"v_bfe_u32 v7, v{vL}, 3, 2")
    I(f"s_and_b32 s{sB2}, s{sW}, 2")
    I(f"v_xor_b32 v7, s{sB2}, v7")
    I(f"v_lshl_add_u32 v6, v7, 5, v6")
    I(f"v_and_b32 v7, 3, v{vL}")
    I(f"v_lshl_add_u32 v6, v7, 3, v6")
    I(f"v_add_u32 v16, s{sW4096}, v6")
    for c in range(1, 4):
        I(f"v_xor_b32 v{16+c}, {32*c}, v16")
def wd_dma(j):
    return dma4(vWD, S(SWD), sW4096, WDSLOT[j] * 16 * K, sB1, j * 32768)
def wd_tr(j, last):
    if last is not None: wait_vm(last)
    off = (WDSLOT[j] & 3) * 16 * K
    out = None
    for c in range(4):
        f = DF(j, c)
        I(f"ds_read_b64_tr_b16 {ar(f,2)}, v{16+c} offset:{off}")
        out = I(f"ds_read_b64_tr_b16 {ar(f+2,2)}, v{16+c} offset:{off+512}")
    return out
def wd_hi():
    for c in range(4): I(f"v_xor_b32 v{16+c}, {64*K}, v{16+c}")

L_XCH = 128 * K
L_RS = L_MISC
AF = 64; SR = 32
def DAC(p, c, sl): return 128 + p * 48 + (c * 4 + sl) * 4
vFl, vFt, vAs = 60, 61, 62
def d_setup():
    I(f"s_lshl_b32 s{sT0}, s{sGrpD}, 11")
    I(f"s_add_u32 s{sT0}, s{sT0}, {WS_FX}")
    I(f"v_lshlrev_b32 v{vFl}, 7, v{vT}")
    I(f"v_add_u32 v{vFl}, s{sT0}, v{vFl}")
    pid = poll_issue(vFl, vFt)
    I(f"s_lshl_b32 s{sT0}, s{sGrpD}, 3")
    I(f"s_add_u32 s{sT0}, s{sT0}, s{sW}")
    I(f"s_lshl_b32 s{sT0}, s{sT0}, 14")
    I(f"s_add_u32 s{sT0}, s{sT0}, {WS_X1P}")
    I(f"v_add_u32 v{vAs}, s{sT0}, v{vL16}")
    I(f"s_lshl_b32 s{sP0}, s{sGrpD}, 15")
    I(f"s_add_u32 s{sP0}, s{sP0}, {WS_STAT}")
    I(f"s_add_u32 s{sP0}, s{sP0}, s{sW4096}")
    I(f"s_and_b32 s{sT1}, s{sW}, 1")
    I(f"s_lshl_b32 s{sT1}, s{sT1}, 13")
    I(f"v_add_u32 v8, s{sT1}, v{vL16}")
    I(f"v_xor_b32 v9, 8192, v8")
    I(f"v_add_u32 v10, 65536, v8")
    I(f"v_add_u32 v11, 65536, v9")
    I(f"s_lshl_b32 s{sT0}, s{sW}, 7")
    I(f"s_add_u32 s{sT0}, s{sT0}, {L_RS}")
    I(f"v_lshlrev_b32 v53, 3, v{vG}")
    I(f"v_add_u32 v53, s{sT0}, v53")
    I(f"v_lshlrev_b32 v52, 3, v{vL}")
    I(f"v_add_u32 v52, {L_DUMMY}, v52")
    I(f"v_cmp_eq_u32 vcc, 0, v{vT}")
    I(f"v_cndmask_b32 v53, v52, v53, vcc")
    return pid
def d_adma(h, q):
    return dma4([vAs] * 4, S(SWS), sW4096, h * 64 * K + q * 16 * K, sK + q, h * 65536, " sc1")
def d_stat_loads(h):
    I(f"s_add_u32 s{sT3}, s{sP0}, {h*16384}")
    for k in range(4):
        sid = I(f"buffer_load_dwordx4 {vr(SR+4*k,4)}, v{vL16}, {S(SWS)}, s{sT3} offen offset:{1024*k} sc1")
    return sid
def d_stat_check(h, sid):
    def checks():
        I(f"v_xor_b32 v6, v{SR+2}, v{vTag}")
        for q in range(1, 4):
            I(f"v_bitop3_b32 v6, v6, v{SR+4*q+2}, v{vTag} bitop3:0xf6")
        I("v_cmp_ne_u32 vcc, 0, v6")
    wait_vm(sid)
    checks()
    def body():
        d_stat_loads(h); I("s_waitcnt vmcnt(0)"); A.vm = []; checks()
    spin_loop(body, first_done=True)
def d_stat(h, part):
    DP = ["row_ror:8", "row_ror:4", "row_ror:2", "row_ror:1"]
    if part == 0:
        for k in range(4): I(f"v_mov_b32 v{SR+4*k+2}, v{SR+4*k}")
        for d in DP:
            for k in range(4):
                I(f"v_add_f32_dpp v{SR+4*k+2}, v{SR+4*k+2}, v{SR+4*k+2} {d} row_mask:0xf bank_mask:0xf")
        for k in range(4):
            I(f"v_fmac_f32 v{SR+4*k}, 0xbd800000, v{SR+4*k+2}")
        for k in range(4):
            I(f"v_mul_f32 v{SR+4*k}, v{SR+4*k}, v{SR+4*k}")
        for k in range(4):
            I(f"v_fmac_f32 v{SR+4*k+1}, 0x3d000000, v{SR+4*k}")
        return
    for d in DP:
        for k in range(4):
            I(f"v_add_f32_dpp v{SR+4*k+1}, v{SR+4*k+1}, v{SR+4*k+1} {d} row_mask:0xf bank_mask:0xf")
    for k in range(4): I(f"v_mov_b32 v{SR+4*k}, 0x3727c5ac")
    for k in range(4): I(f"v_fmac_f32 v{SR+4*k}, 0x3b000000, v{SR+4*k+1}")
    for k in range(4): I(f"v_rsq_f32 v{SR+4*k}, v{SR+4*k}")
    for k in range(4): I(f"v_mul_f32 v{SR+4*k+1}, 0xbb000000, v{SR+4*k+2}")
    for k in range(4): I(f"v_mul_f32 v{SR+4*k+1}, v{SR+4*k+1}, v{SR+4*k}")
    for k in range(4): I(f"ds_write_b64 v53, {vr(SR+4*k,2)} offset:{h*512 + 32*k}")

def d_rd(p, ks, sl):
    b = AF + (ks % 3) * 16 + 4 * sl
    q, s = ks >> 2, ks & 3
    base = (8 if sl < 2 else 9) + 2 * p
    return I(f"ds_read_b128 {vr(b,4)}, v{base} offset:{q*16*K + (sl&1)*4096 + s*1024}")
def d_pass(p, aids, bgf, pre):
    wait_vm(aids[0]); barrier()
    rds = {0: [d_rd(p, 0, sl) for sl in range(4)], 1: [d_rd(p, 1, sl) for sl in range(4)]}
    for k2 in range(0, 16, 2):
        def main():
            for ks in (k2, k2 + 1):
                if ks in (4, 8, 12): I("s_barrier")
                if ks + 2 < 16 and (ks + 2) % 4 == 0:
                    wait_vm(aids[(ks + 2) >> 2]); I("s_barrier")
                nxt = []
                for sl in range(4):
                    if ks + 2 < 16: nxt.append(d_rd(p, ks + 2, sl))
                    if sl == 0: wait_lg(rds[ks][3])
                    for c in range(3):
                        acc = vr(DAC(p, c, sl), 4)
                        I(f"v_mfma_f32_16x16x32_bf16 {acc}, {ar(GF(c,ks),4)}, {vr(AF+(ks%3)*16+4*sl,4)}, {acc if ks else 0}")
                rds[ks + 2] = nxt
        if p == XST - 1 and k2 < 14: xstamp()
        pre(k2)
        rb_ = rec(bgf, k2); rm = rec(main)
        merge_mfma(A, rm, [rb_])

def d_epi_setup():
    I(f"s_and_b32 s{sT1}, s{sW}, 1")
    I(f"s_lshl_b32 s{sT1}, s{sT1}, 8")
    I(f"s_add_u32 s{sT1}, s{sT1}, {L_RS}")
    I(f"v_lshlrev_b32 v56, 3, v{vT}")
    I(f"v_add_u32 v56, s{sT1}, v56")
    I(f"s_mul_i32 s{sT0}, s{sW}, 384")
    I(f"s_add_u32 s{sT0}, s{sT0}, {L_UW}")
    I(f"v_lshlrev_b32 v57, 4, v{vG}")
    I(f"v_add_u32 v57, s{sT0}, v57")
    I(f"s_lshl_b32 s{sT0}, s{sW}, 11")
    I(f"s_add_u32 s{sT0}, s{sT0}, {L_XCH}")
    I(f"v_add_u32 v58, s{sT0}, v{vL16}")
    I(f"v_and_b32 v59, 1, v{vG}")
    I(f"v_mul_u32_u24 v59, {43*1024}, v59")
    I(f"v_lshrrev_b32 v63, 1, v{vG}")
    I(f"v_lshl_add_u32 v59, v63, 8, v59")
    I(f"v_lshl_add_u32 v59, v{vT}, 4, v59")
    I(f"s_mul_i32 s{sT0}, s{sGrpD}, {8*43*1024}")
    I(f"s_add_u32 s{sT0}, s{sT0}, {WS_HH}")
    for dst, tile in ((sP1, sTx), (sHead, sTz)):
        I(f"s_add_u32 s{dst}, s{sFt0}, s{tile}")
        I(f"s_lshl_b32 s{dst}, s{dst}, 9")
        I(f"s_add_u32 s{dst}, s{dst}, s{sT0}")
def d_epi(p):
    RS = 32; U = 40 - 0;
    U = 224
    barrier()
    I(f"v_xor_b32 v63, 256, v56")
    for sl in (2, 3, 0, 1):
        I(f"ds_read_b64 {vr(RS+2*sl,2)}, v{56 if sl < 2 else 63} offset:{p*512 + (sl&1)*128}")
    if p == 0:
        for c in (2, 0, 1):
            I(f"ds_read_b128 {vr(U+8*c,4)}, v57 offset:{128*c}")
            I(f"ds_read_b128 {vr(U+8*c+4,4)}, v57 offset:{128*c+64}")
    I(f"s_and_b32 s{sT1}, s{sW}, 1")
    I(f"s_mul_i32 s{sT1}, s{sT1}, {2*43*1024}")
    I(f"s_xor_b32 s{sT2}, s{sT1}, {2*43*1024}")
    wait_lg()
    tc = [0]
    def fix(c, sl):
        a = DAC(p, c, sl)
        for e in (0, 2):
            t = 40 + 2 * (tc[0] & 3); tc[0] += 1
            I(f"v_pk_fma_f32 {vr(t,2)}, {vr(U+8*c+e,2)}, {vr(RS+2*sl,2)}, {vr(U+8*c+4+e,2)} op_sel:[0,1,0] op_sel_hi:[1,1,1]")
            I(f"v_pk_fma_f32 {vr(a+e,2)}, {vr(a+e,2)}, {vr(RS+2*sl,2)}, {vr(t,2)} op_sel_hi:[1,0,1]")
    for sl in (2, 3):
        fix(2, sl)
        I(f"ds_write_b128 v58, {vr(DAC(p,2,sl),4)} offset:{(sl-2)*1024}")
    def hh_pack(dst, ga, ua):
        for e in (0, 2):
            I(f"v_pk_mul_f32 {vr(ga+e,2)}, {vr(ga+e,2)}, {vr(ua+e,2)}")
        I(f"v_cvt_pk_bf16_f32 v{dst}, v{ga}, v{ga+1}")
        I(f"v_cvt_pk_bf16_f32 v{dst+1}, v{ga+2}, v{ga+3}")
    def store_pair(d, slot, base_s, ga0, ua0, ga1, ua1):
        hh_pack(d, ga0, ua0)
        hh_pack(d + 2, ga1, ua1)
        I(f"s_add_u32 s{sT0}, s{base_s}, s{sT1 if slot < 2 else sT2}")
        I(f"s_add_u32 s{sT0}, s{sT0}, {p*4*43*1024}")
        I(f"v_permlane16_swap_b32 v{d}, v{d+2}")
        I(f"v_permlane16_swap_b32 v{d+1}, v{d+3}")
        return I(f"buffer_store_dwordx4 {vr(d,4)}, v59, {S(SWS)}, s{sT0} offen sc1")
    for k, sl in enumerate((0, 2)):
        for c in (0, 1):
            fix(c, sl); fix(c, sl + 1)
        store_pair(72 + 4 * k, sl, sP1, DAC(p,0,sl), DAC(p,1,sl), DAC(p,0,sl+1), DAC(p,1,sl+1))
        if k == 0:
            barrier()
            I(f"v_xor_b32 v63, 2048, v58")
            for s2 in range(2):
                I(f"ds_read_b128 {vr(DAC(p,2,2+s2),4)}, v63 offset:{s2*1024}")
    for sl in range(2): fix(2, sl)
    wait_lg()
    return store_pair(DAC(p,0,0), 0, sHead, DAC(p,2,0), DAC(p,2,2), DAC(p,2,1), DAC(p,2,3))

EQ = list(range(96, 176, 4)) + [64, 68]
def EAR(j, rho): return EQ[j * 2 + rho]
def ECC(k, r4): return 176 + (r4 * 4 + k) * 4
def e_setup():
    I(f"s_lshl_b32 s{sT0}, s{sGrpC}, 11")
    I(f"s_add_u32 s{sT0}, s{sT0}, {WS_FH}")
    I(f"v_lshlrev_b32 v{vFl}, 7, v{vT}")
    I(f"v_add_u32 v{vFl}, s{sT0}, v{vFl}")
    rt_offsets(43 * 1024)
    I(f"s_mul_i32 s{sT0}, s{sGrpC}, {8*43*1024}")
    I(f"s_mul_i32 s{sT1}, s{sW}, {11*1024}")
    I(f"s_add_u32 s{sT0}, s{sT0}, s{sT1}")
    I(f"s_add_u32 s{sT0}, s{sT0}, {WS_HH}")
    I(f"v_add_u32 v248, s{sT0}, v{vL16}")
    I(f"v_add_u32 v249, 4096, v248")
    I(f"v_add_u32 v250, 8192, v248")
    I(f"s_cmp_eq_u32 s{sW}, 3")
    I(f"s_cselect_b32 s{sT0}, 1024, 0")
    I(f"v_subrev_u32 v251, s{sT0}, v250")
    return poll_issue(vFl, vFt)
def e_ld(h, j, rho):
    base = 251 if j == 10 else 248 + (j >> 2)
    return I(f"buffer_load_dwordx4 {vr(EAR(j,rho),4)}, v{base}, {S(SWS)}, s{sR+2*h+rho} offen offset:{(j&3)*1024} sc1")
def e_mm(h, ids, trw, late, j0=0, j1=11):
    for j in range(j0, j1):
        if j in trw: wait_lg(trw[j])
        for rho in range(2):
            if (j, rho) in late: ids[late[(j, rho)]] = e_ld(h, *late[(j, rho)])
            wait_vm(ids[(j, rho)])
            for c in range(4):
                acc = vr(ECC(c, 2 * h + rho), 4)
                I(f"v_mfma_f32_16x16x32_bf16 {acc}, {ar(DF(j,c),4)}, {vr(EAR(j,rho),4)}, {acc if j else 0}")
def e_fin(h, GB):
    O = 32 + 16 * h; XF = 40 + 16 * h; XR = 24 + 4 * h
    acc = lambda k, rho: ECC(k, 2 * h + rho)
    for q in range(4):
        I(f"v_lshlrev_b32 v{XF+2*q}, 16, v{XR+q}")
        I(f"v_and_b32 v{XF+2*q+1}, s{sHi}, v{XR+q}")
    wait_lg()
    half_sum(acc, O)
    for q in range(0, 8, 2):
        I(f"v_pk_fma_f32 {vr(O+q,2)}, {vr(O+q,2)}, {vr(GB+q,2)}, {vr(XF+q,2)}")
    for q in range(4):
        I(f"v_cvt_pk_bf16_f32 v{XF+q}, v{O+2*q}, v{O+2*q+1}")
    I(f"s_lshl_b32 s{sT1}, s{sP3}, 6")
    if h: I(f"s_add_u32 s{sT1}, s{sT1}, 65536")
    I(f"v_permlane16_swap_b32 v{XF}, v{XF+2}")
    I(f"v_permlane16_swap_b32 v{XF+1}, v{XF+3}")
    I(f"buffer_store_dwordx4 {vr(XF,4)}, v21, {S(SOUT)}, s{sT1} offen")

def write_epoch():
    I(f"s_lshl_b32 s{sT0}, s2, 8")
    I(f"v_or_b32 v6, s{sT0}, v{vTid}")
    I(f"v_cmp_eq_u32 vcc, 0, v6")
    I(f"v_mov_b32 v7, {OOB}")
    I(f"v_cndmask_b32 v7, v7, {WS_EPOCH}, vcc")
    I(f"buffer_store_dword v{vTag}, v7, {S(SWS)}, 0 offen")

def body():
    aids = prologue()
    stamp()
    xids = x_issue()
    consts()
    wq_addr()
    h_addr()
    phaseA_compute(aids)
    stamp()
    wphi_issue()
    wids = {}
    r1 = rec(layernorm, xids)
    r2 = rec(lambda: (wq_dma(0), wq_dma(1), gm_issue([0], 40)))
    merge(A, [r1, r2], [(0, 1), (0, 0.9)])
    wids[0], wids[1], gid = r2.ret
    stamp()
    wait_vm(wids[0]); barrier()
    r1 = rec(wq_tr, 0); r2 = rec(lambda: (wq_dma(2), pf_wo())[0])
    merge(A, [r1, r2]); wids[2] = r2.ret
    stamp()
    gm_finish([0], 40, gid)
    barrier()
    stamp()
    pf_wd(0)
    r1 = rec(make_h_first); r2 = rec(wq_tr, 1)
    merge(A, [r1, r2], [(0, 1), (0.12, 0.6)])
    wphi_pack()
    barrier()
    cur = {k: [a_rd(k, rt) for rt in range(4)] for k in range(2)}
    rm = rec(gemm_kv, 0, 4, cur); rc = rec(lambda: (wq_dma(3), pf_gu(), pf_wd(1))[0])
    merge_mfma(A, rm, [rc]); wids[3] = rc.ret
    wait_vm(wids[2]); I("s_barrier")
    rwo = rec(wo_dma)
    nset = rwo.first_dma
    setup = Rec(); setup.ops = rwo.ops[:nset]; rwo.ops = rwo.ops[nset:]
    rm = rec(gemm_kv, 4, 6, rm.ret); rc = rec(wq_tr, 2)
    merge_mfma(A, rm, [rc, setup], [(0, 0.8), (0, 1)])
    wait_vm(wids[3]); barrier()
    rm = rec(gemm_kv, 6, 10, rm.ret); rb_ = rec(make_h_do, 3, 240, False, -1); rc = rec(wq_tr, 3)
    merge_mfma(A, rm, [rb_, rc], [(0, 0.95), (0, 0.95)])
    barrier()
    rm = rec(gemm_kv, 10, 16, rm.ret); rc = rec(wgu_setup)
    merge_mfma(A, rm, [rwo, rc], [(0, 0.6), (0.62, 1)])
    wo_last = rwo.ret
    if STOP == 1:
        A.fence(16)
        dbg_dump([vr(accQ(k), 4) for k in range(4)] + [vr(accK(k), 4) for k in range(4)] + [vr(accV(k), 4) for k in range(4)], 0)
        return
    I("s_barrier")
    stamp()
    g = {}
    rm = rec(epi_k); rb_ = rec(wgu_dma, 0)
    merge(A, [rm, rb_], [(0, 1), (0, 0.7)])
    g[0] = rb_.ret
    wo_tr(wo_last)
    barrier()
    stamp()
    rm = rec(epi_q); rc = rec(kv_reduce_issue); rb_ = rec(wgu_dma, 1)
    merge(A, [rm, rc, rb_], [(0, 1), (0.55, 0.75), (0.0, 0.55)])
    g[1] = rb_.ret
    stamp()
    kv_reduce_finish(rc.ret)
    wgu_traddr()
    stamp()
    set_flag(sT1, rm.ret)
    stamp()
    if STOP == 2: return
    gid = gm_issue([1, 2], 192)
    wgu_tr(0); wgu_tr(1)
    barrier()
    g[2] = wgu_dma(2); g[3] = wgu_dma(3)
    gm_finish([1, 2], 192, gid)
    pid = phiq_load()
    kv_addr()
    kid = kv_loads()
    wait_vm(g[3]); barrier()
    stamp()
    wgu_tr(2); wgu_tr(3)
    stamp()
    pids = {}
    poll_finish(20, 21, pid)
    phiq_loads(pids, 0)
    kv_finish(kid)
    kv_pack()
    stamp()
    st = {}
    accA = lambda k, rho: CAC(k, rho)
    accB = lambda k, rho: CAC(k, 2 + rho)
    def h1(): phiq_loads(pids, 1)
    def h4(): st["x"] = c_setup()
    def h9(): half_send(accA, L_RED, 6)
    def h10():
        barrier()
        half_recv(accA, L_RED, 6); c_epi_rd(144, 160)
    def h11():
        st["xa"] = c_epi(0, accA, 128, 144, 160, 176, st["x"])
    def h15(): flag_at(WS_FX, sGrpC, sMC, st["xa"])
    c_compute(pids, {1: h1, 5: h4, 9: h9, 10: h10, 11: h11, 15: h15})
    stamp()
    half_send(accB, L_RED + 24 * K, 6)
    c_epi_rd(144, 160)
    barrier()
    half_recv(accB, L_RED + 24 * K, 6)
    xb = c_epi(1, accB, 128, 144, 160, 176, st["x"])
    stamp()
    if STOP == 3:
        flag_at(WS_FX + 0x10000, sGrpC, sMC, xb)
        return
    pid = d_setup()
    u12_all()
    rm = rec(u12_mm, 0, 9); rb_ = rec(lambda: (wd_setup(), d_epi_setup()))
    merge_mfma(A, rm, [rb_])
    flag_at(WS_FX + 0x10000, sGrpC, sMC, xb)
    poll_finish(vFl, vFt, pid)
    stamp()
    aA = [d_adma(0, 0)]
    rm = rec(u12_mm, 9, 16); rb_ = rec(lambda: (d_stat_loads(0), [d_adma(0, q) for q in (1, 2, 3)]))
    merge_mfma(A, rm, [rb_])
    sid = rb_.ret[0]; aA += rb_.ret[1]
    I(f"v_add_u32 v{vFl}, 0x10000, v{vFl}")
    stamp()
    wd = {}; aB = []; dd = {}
    def bgA(ks):
        if ks == 0: wd[0] = wd_dma(0); dd["p"] = poll_issue(vFl, vFt)
        if ks == 2: wd[1] = wd_dma(1)
        if ks == 4: wd[2] = wd_dma(2)
        if ks == 6: aB.append(d_adma(1, 0)); d_stat(0, 0)
        if ks == 8:
            aB.append(d_adma(1, 1)); wd_hi(); wd_tr(0, wd[0]); dd["t"] = wd_tr(1, wd[1]); wd_hi()
        if ks == 10: wait_lg(dd["t"]); aB.append(d_adma(1, 2)); wd[3] = wd_dma(3)
        if ks == 12: aB.append(d_adma(1, 3)); dd["t"] = wd_tr(2, wd[2])
        if ks == 14: wd[4] = wd_dma(4); d_stat(0, 1)
    def preA(ks):
        if ks == 6: poll_finish(vFl, vFt, dd["p"]); d_stat_check(0, sid)
    d_pass(0, aA, bgA, preA)
    stamp()
    ha = d_epi(0)
    stamp()
    def bgB(ks):
        if ks == 0: dd["s"] = d_stat_loads(1); wd[5] = wd_dma(5); dd["t"] = wd_tr(3, wd[3])
        if ks == 2: wd[6] = wd_dma(6)
        if ks == 4: wait_lg(dd["t"]); wd[7] = wd_dma(7)
        if ks == 6: wd[8] = wd_dma(8)
        if ks == 8: wd[9] = wd_dma(9)
        if ks == 10: dd["e"] = e_setup()
        if ks == 12: wd[10] = wd_dma(10); d_stat(1, 0)
        if ks == 14: d_stat(1, 1)
    def preB(ks):
        if ks == 4: flag_at(WS_FH, sGrpD, sMD, ha)
        if ks == 10: d_stat_check(1, dd["s"])
    d_pass(1, aB, bgB, preB)
    stamp()
    poll_finish(vFl, vFt, dd["e"])
    ea = {}
    for j in range(6):
        for rho in range(2): ea[(j, rho)] = e_ld(0, j, rho)
    hb = d_epi(1)
    if STOP == 4:
        flag_at(WS_FH + 0x10000, sGrpD, sMD, hb)
        return
    stamp()
    I(f"v_add_u32 v{vFl}, 0x10000, v{vFl}")
    trw = {}
    def trs(j0, j1):
        for j in range(j0, j1):
            if j == 8: wd_hi()
            trw[j] = wd_tr(j, None)
    order = [(j, rho) for j in range(11) for rho in range(2)]
    rb_ = rec(trs, 4, 8); rm = rec(e_mm, 0, ea, trw, {order[k]: order[12 + k] for k in range(8)}, 0, 4)
    merge_mfma(A, rm, [rb_])
    flag_at(WS_FH + 0x10000, sGrpD, sMD, hb)
    rb_ = rec(lambda: (trs(8, 11), pad(300), poll_issue(vFl, vFt))[2]); rm = rec(e_mm, 0, ea, trw, {order[8 + k]: order[20 + k] for k in range(2)}, 4, 11)
    merge_mfma(A, rm, [rb_], [(0, 1.0)])
    dd["f"] = rb_.ret
    stamp()
    accEa = lambda k, rho: ECC(k, rho)
    accEb = lambda k, rho: ECC(k, 2 + rho)
    poll_finish(vFl, vFt, dd["f"])
    eb = {}
    for jr in order[:14]: eb[jr] = e_ld(1, *jr)
    barrier()
    half_send(accEa, 0, 6)
    GB = 240
    for k in range(2):
        I(f"ds_read_b128 {vr(GB+4*k,4)}, v22 offset:{10240 + 64*k}")
    I(f"v_lshlrev_b32 v21, 10, v20")
    I(f"v_and_b32 v7, 1, v{vG}")
    I(f"v_lshl_add_u32 v21, v7, 5, v21")
    I(f"v_lshrrev_b32 v7, 1, v{vG}")
    I(f"v_lshl_add_u32 v21, v7, 4, v21")
    barrier()
    half_recv(accEa, 0, 6)
    e_fin(0, GB)
    stamp()
    e_mm(1, eb, {}, {order[k]: order[14 + k] for k in range(8)})
    stamp()
    half_send(accEb, 24 * K, 6)
    barrier()
    half_recv(accEb, 24 * K, 6)
    e_fin(1, GB)
    stamp()

hdr = open(f"cdna_kernels/{NAME}.s.ref").read().split("; Override launch")[0]
A.raw(hdr.rstrip())
A.raw(f"; @launch grid=(256,1,1) block=(256,1,1) lds={LDS_BYTES}")
A.raw('.amdgcn_target "amdgcn-amd-amdhsa--gfx950"')
A.raw(".text")
A.raw(f".globl {NAME}_kernel")
A.raw(".p2align 8")
A.raw(f".type {NAME}_kernel,@function")
A.raw(f"{NAME}_kernel:")
body()
write_epoch()
stamp_out()
A.raw("L_end:")
I("s_endpgm")
A.raw("L_code_end:")
A.raw('.section .rodata,"a"')
A.raw(".p2align 6")
A.raw(f".amdhsa_kernel {NAME}_kernel")
A.raw("  .amdhsa_next_free_vgpr 512")
A.raw("  .amdhsa_next_free_sgpr 102")
A.raw("  .amdhsa_accum_offset 256")
A.raw("  .amdhsa_group_segment_fixed_size 0")
A.raw("  .amdhsa_kernarg_size 104")
A.raw("  .amdhsa_user_sgpr_count 2")
A.raw("  .amdhsa_user_sgpr_kernarg_segment_ptr 1")
A.raw("  .amdhsa_system_sgpr_workgroup_id_x 1")
A.raw(".end_amdhsa_kernel")
out = sys.argv[1] if len(sys.argv) > 1 else f"cdna_kernels/{NAME}.s"
open(out, "w").write(A.text())
print("instructions:", A.ninstr, "stamps:", stamp_idx[0], "->", out)
```

```python
import sys
from asmlib import *

NAME = "adaLN_cond__linear_kernel_hedgehog__glu_gated_bilinear__prompt"
STOP = int(sys.argv[2]) if len(sys.argv) > 2 else 99
STAMP = int(sys.argv[3]) if len(sys.argv) > 3 else 0
XST = int(sys.argv[4]) if len(sys.argv) > 4 else 0

WS_EPOCH = 0
WS_FQ = 0x80000
WS_FX = 0x88000
WS_FH = 0x90000
WS_MODF = 0x10000
WS_KVF = 0x20000
WS_STAT = 0x340000
WS_KVP = 0x100000
WS_PHIQ = 0x400000
WS_X1P = 0x800000
WS_HH = 0xA00000
WS_DBG = 0x1000000
WS_STAMP = 0x1F00000
WS_SIZE = 0x2000000
OOB = 0x7ffffff0
KVREC = 2176
K = 1024
L_MODV = 144 * K
L_MISC = 156 * K
L_UW = L_MODV
L_DUMMY = L_MODV + 2048
L_UV = L_MISC + 1024
LDS_BYTES = 160 * K
SPIN = 400000

sTag, sW, sJ = 4, 5, 6
sCtB, sRbB, sCtC, sRbC, sGrpC, sMC, sGrpD, sMD = 7, 8, 9, 10, 36, 37, 38, 39
sT0, sT1, sT2, sT3, sCnt = 11, 12, 13, 14, 15
sK, sKW, sKM = 16, 20, 24
sW4096 = 28
sP0, sP1, sP2, sP3 = 29, 30, 31, 32
sFt0, sHead, sB0 = 33, 34, 35
sTx, sTz, sB1, sB2 = 40, 41, 42, 43
SX, SWQKV, SWPHI, SWO, SWG, SWU, SWD, SC, SWMOD, SOUT, SWS = 44, 48, 52, 56, 60, 64, 68, 72, 76, 80, 84
SGU = 72
sR = 76
sSel = 88
sSelA, sSelB = 92, 93
sL, sL2, sNL, sNL2 = 94, 95, 96, 97
sHi = 98
sSelHi = 99
sSelLL = 3

A = Asm(); A.phmap = {}
class Em: pass
E = Em(); E.t = A
def I(t): return E.t.I(t)
def _ph(x):
    if E.t is A and x is not None and not isinstance(x, int): return A.phmap[x]
    return x
def wait_vm(x=None): E.t.wait_vm(_ph(x))
def wait_lg(x=None): E.t.wait_lg(_ph(x))
def barrier(): E.t.barrier()
def rec(fn, *a):
    r = Rec(); old = E.t; E.t = r
    ret = fn(*a)
    E.t = old
    r.ret = ret
    return r
def gbegin():
    if E.t is not A: E.t.begin()
def gend():
    if E.t is not A: E.t.end()
def pad(c):
    if E.t is not A: E.t.pad(c)

def srd(base, ptr, nbytes):
    I(f"s_mov_b32 s{base}, s{ptr}")
    I(f"s_and_b32 s{base+1}, s{ptr+1}, 0xffff")
    I(f"s_mov_b32 s{base+2}, {nbytes}")
    I(f"s_mov_b32 s{base+3}, 0x20000")
def S(b): return sr(b, 4)

vTid, vL, vG, vT, vTag, vL16 = 0, 1, 2, 3, 4, 5

stamp_idx = [0]
DBGSET = [0, 1, 2, 4, 5, 6, 8, 9, 12, 13, 14, 16, 17, 18, 19, 20]
def stamp():
    if not STAMP: return
    n = stamp_idx[0]; stamp_idx[0] += 1
    if STAMP == 3:
        if n not in DBGSET: return
        n = DBGSET.index(n)
    I("s_memrealtime s[100:101]" if STAMP != 2 else "s_memtime s[100:101]")
    I("s_waitcnt lgkmcnt(0)")
    A.lg = []
    I("v_mov_b32 v6, s100")
    I(f"v_lshlrev_b32 v7, 1, v{vTid}")
    I(f"v_and_b32 v7, 0x180, v7")
    I(f"s_lshl_b32 s100, s2, 9")
    I(f"s_add_u32 s100, s100, {WS_STAMP + 4*n}")
    I(f"buffer_store_dword v6, v7, {S(SWS)}, s100 offen")
def stamp_out():
    if STAMP != 3: return
    I("s_cmp_lg_u32 s2, 100")
    I("s_cbranch_scc1 L_end")
    I(f"s_load_dwordx2 s[20:21], s[0:1], 88")
    I("s_waitcnt vmcnt(0) lgkmcnt(0)")
    srd(16, 20, 64)
    I(f"v_lshlrev_b32 v7, 2, v{vTid}")
    I(f"s_mov_b32 s100, {WS_STAMP + 100*512}")
    I(f"buffer_load_dword v6, v7, {S(SWS)}, s100 offen sc1")
    I("s_waitcnt vmcnt(0)")
    I(f"buffer_store_dword v6, v7, s[16:19], 0 offen")

def xstamp():
    if STAMP in (1, 2) and XST: stamp()
def xstamp3():
    if STAMP in (1, 2) and XST == 3: stamp()
def tag4(b):
    for i in range(4):
        I(f"v_perm_b32 v{b+i}, v{b+i}, v{vTag}, s{sSel+i}")
def check4(bad, b, t0, t1, first):
    I(f"v_perm_b32 v{t0}, v{b+1}, v{b}, s{sSelA}")
    I(f"v_perm_b32 v{t1}, v{b+3}, v{b+2}, s{sSelB}")
    if first:
        I(f"v_bitop3_b32 v{bad}, v{t0}, v{t1}, v{vTag} bitop3:0x96")
    else:
        I(f"v_bitop3_b32 v{t0}, v{t0}, v{t1}, v{vTag} bitop3:0x96")
        I(f"v_or_b32 v{bad}, v{bad}, v{t0}")

def round_tag16(b, t):
    I(f"v_cvt_pk_bf16_f32 v{t}, v{b}, v{b+1}")
    I(f"v_cvt_pk_bf16_f32 v{t+1}, v{b+2}, v{b+3}")
    I(f"v_perm_b32 v{b}, v{t}, v{vTag}, s{sSelLL}")
    I(f"v_perm_b32 v{b+1}, v{t}, v{vTag}, s{sSelHi}")
    I(f"v_perm_b32 v{b+2}, v{t+1}, v{vTag}, s{sSelLL}")
    I(f"v_perm_b32 v{b+3}, v{t+1}, v{vTag}, s{sSelHi}")
def check16(bad, b, t0, first):
    I(f"v_perm_b32 v{t0}, v{b+1}, v{b}, s{sSelLL}")
    if first: I(f"v_xor_b32 v{bad}, v{t0}, v{vTag}")
    else: I(f"v_bitop3_b32 v{bad}, v{bad}, v{t0}, v{vTag} bitop3:0xf6")

def spin_loop(body, first_done=False):
    lab = A.newlabel("Lspin"); done = A.newlabel("Ldone")
    saved_vm, saved_lg = list(A.vm), list(A.lg)
    if first_done:
        I(f"s_cbranch_vccz {done}")
    I(f"s_mov_b32 s{sCnt}, 0")
    A.fence(4)
    A.label(lab)
    body()
    I(f"s_cbranch_vccz {done}")
    I(f"s_add_u32 s{sCnt}, s{sCnt}, 1")
    I(f"s_cmp_lt_u32 s{sCnt}, {SPIN}")
    I(f"s_cbranch_scc1 {lab}")
    A.label(done)
    if first_done:
        A.vm, A.lg = saved_vm, saved_lg
    A.fence(2)

def poll_flags(vaddr, vtmp):
    def body():
        I(f"buffer_load_dword v{vtmp}, v{vaddr}, {S(SWS)}, 0 offen sc1")
        I("s_waitcnt vmcnt(0)"); A.vm = []
        I(f"v_cmp_ne_u32 vcc, v{vtmp}, v{vTag}")
    spin_loop(body)

vLane0 = 23
def poll_issue(vaddr, vtmp):
    return I(f"buffer_load_dword v{vtmp}, v{vaddr}, {S(SWS)}, 0 offen sc1")
def poll_finish(vaddr, vtmp, pid):
    wait_vm(pid)
    I(f"v_cmp_ne_u32 vcc, v{vtmp}, v{vTag}")
    def body():
        I(f"buffer_load_dword v{vtmp}, v{vaddr}, {S(SWS)}, 0 offen sc1")
        I("s_waitcnt vmcnt(0)"); A.vm = []
        I(f"v_cmp_ne_u32 vcc, v{vtmp}, v{vTag}")
    spin_loop(body, first_done=True)

def set_flag(soff_reg, last):
    wait_vm(last)
    I("s_barrier")
    I(f"buffer_store_dword v{vTag}, v{vLane0}, {S(SWS)}, s{soff_reg} offen sc1")

def xlane4(vals, op, mid=None):
    a, b, c, d = vals
    I(f"v_permlane32_swap_b32 v{a}, v{b}")
    I(f"v_permlane32_swap_b32 v{c}, v{d}")
    I(f"{op} v{a}, v{a}, v{b}")
    I(f"{op} v{c}, v{c}, v{d}")
    I(f"v_permlane16_swap_b32 v{a}, v{c}")
    I(f"{op} v{a}, v{a}, v{c}")
    if mid: mid(a)
    I(f"v_mov_b32 v{c}, v{a}")
    I(f"v_permlane16_swap_b32 v{a}, v{c}")
    I(f"v_mov_b32 v{b}, v{a}")
    I(f"v_mov_b32 v{d}, v{c}")
    I(f"v_permlane32_swap_b32 v{a}, v{b}")
    I(f"v_permlane32_swap_b32 v{c}, v{d}")

def xlane4x2(v1, op1, mid1, v2, op2, mid2):
    r1 = rec(xlane4, v1, op1, mid1); r2 = rec(xlane4, v2, op2, mid2)
    for (o1, _), (o2, _) in zip(r1.ops, r2.ops):
        I(o1[1]); I(o2[1])

def dbg_dump(regs, slot):
    I(f"v_lshlrev_b32 v6, 4, v{vTid}")
    for k, r in enumerate(regs):
        I(f"s_lshl_b32 s{sT0}, s2, 12")
        I(f"s_add_u32 s{sT0}, s{sT0}, {WS_DBG + (slot + k) * 256 * 4096}")
        I(f"buffer_store_dwordx4 {r}, v6, {S(SWS)}, s{sT0} offen")
    wait_vm()

def bf_round4(b, t):
    I(f"v_cvt_pk_bf16_f32 v{t}, v{b}, v{b+1}")
    I(f"v_cvt_pk_bf16_f32 v{t+1}, v{b+2}, v{b+3}")
    I(f"v_lshlrev_b32 v{b}, 16, v{t}")
    I(f"v_and_b32 v{b+1}, s{sHi}, v{t}")
    I(f"v_lshlrev_b32 v{b+2}, 16, v{t+1}")
    I(f"v_and_b32 v{b+3}, s{sHi}, v{t+1}")

def prologue():
    I("s_cmp_ge_u32 s2, 256")
    I("s_cbranch_scc1 L_end")
    I("s_load_dwordx8 s[32:39], s[0:1], 64")
    I("s_load_dwordx16 s[16:31], s[0:1], 0")
    I("s_load_dwordx2 s[40:41], s[0:1], 96")
    I("s_getpc_b64 s[100:101]")
    A.raw("L_pc:")
    I(f"v_and_b32 v{vL}, 63, v0")
    I(f"v_lshrrev_b32 v6, 6, v0")
    I(f"v_lshrrev_b32 v{vG}, 4, v{vL}")
    I(f"v_and_b32 v{vT}, 15, v0")
    I(f"v_readfirstlane_b32 s{sW}, v6")
    I(f"v_lshlrev_b32 v{vL16}, 4, v{vL}")
    I(f"s_lshr_b32 s{sJ}, s2, 3")
    I(f"s_and_b32 s3, s2, 7")
    I(f"s_sub_u32 s{sT0}, s{sJ}, 24")
    I(f"s_cmp_ge_u32 s{sJ}, 24")
    I(f"s_cselect_b32 s{sT0}, s{sT0}, s{sJ}")
    I(f"s_lshr_b32 s{sT1}, s{sT0}, 2")
    I(f"s_lshl_b32 s{sT1}, s{sT1}, 3")
    I(f"s_add_u32 s{sT1}, s{sT1}, s3")
    I(f"s_lshl_b32 s{sT1}, s{sT1}, 2")
    I(f"s_and_b32 s{sT0}, s{sT0}, 3")
    I(f"s_add_u32 s{sT3}, s{sT1}, s{sT0}")
    I(f"v_lshrrev_b32 v6, 1, v0")
    I(f"v_and_b32 v6, 31, v6")
    I(f"s_lshl_b32 s{sT0}, s{sW}, 7")
    I(f"v_add_u32 v6, s{sT0}, v6")
    I(f"v_lshlrev_b32 v7, 1, v6")
    I(f"v_mul_u32_u24 v8, 6144, v6")
    I(f"v_and_b32 v9, 1, v0")
    I(f"v_lshl_add_u32 v8, v9, 4, v8")
    I(f"s_lshl_b32 s{sT0}, s{sT3}, 5")
    I("s_waitcnt lgkmcnt(0)")
    srd(SC, 32, 1024)
    srd(SWMOD, 34, 512 * 3072 * 2)
    ids = []
    for i in range(4):
        ids.append(I(f"buffer_load_ushort v{48+i}, v7, {S(SC)}, 0 offen offset:{64*i}"))
    for i in range(4):
        I(f"s_add_u32 s{sT1}, s{sT0}, {i*32*6144}")
        ids.append(I(f"buffer_load_dwordx4 {vr(32+4*i,4)}, v8, {S(SWMOD)}, s{sT1} offen"))
    I(f"s_load_dword s{sTag}, s[40:41], {WS_EPOCH}")
    I(f"s_and_b32 s{sT0}, s{sJ}, 15")
    I(f"s_lshl_b32 s{sT0}, s{sT0}, 12")
    I(f"v_lshlrev_b32 v6, 4, v0")
    I(f"v_add_u32 v6, s{sT0}, v6")
    I(f"v_min_u32 v6, L_code_end-L_pc-16, v6")
    I(f"global_load_dwordx4 v[60:63], v6, s[100:101]")
    srd(SX, 16, 2048 * 512 * 2)
    srd(SWQKV, 18, 512 * 1536 * 2)
    srd(SWPHI, 20, 32 * 512)
    srd(SWO, 22, 512 * 512 * 2)
    srd(SWG, 26, 512 * 1376 * 2)
    srd(SWU, 28, 512 * 1376 * 2)
    srd(SWD, 30, 1376 * 512 * 2)
    srd(SOUT, 36, 2048 * 512 * 2)
    srd(SWS, 40, WS_SIZE)
    I(f"v_and_b32 v6, 7, v{vL}")
    I(f"v_lshlrev_b32 v6, 21, v6")
    I(f"buffer_load_dword a255, v6, {S(SWS)}, 0 offen offset:64")
    I(f"v_and_b32 v6, 1, v{vL}")
    I(f"v_lshlrev_b32 v6, 20, v6")
    for b in (SWO, SWG, SWU, SWD, SOUT):
        I(f"buffer_load_dword a255, v6, {S(b)}, 0 offen")
    I(f"s_lshr_b32 s{sT0}, s3, 1")
    I(f"s_and_b32 s{sT1}, s3, 1")
    I(f"s_lshr_b32 s{sT2}, s{sJ}, 2")
    I(f"s_lshl_b32 s{sRbB}, s{sT0}, 3")
    I(f"s_add_u32 s{sRbB}, s{sRbB}, s{sT2}")
    I(f"s_and_b32 s{sP0}, s{sT2}, 3")
    I(f"s_and_b32 s{sT2}, s{sJ}, 3")
    I(f"s_lshl_b32 s{sCtB}, s{sT1}, 2")
    I(f"s_add_u32 s{sCtB}, s{sCtB}, s{sT2}")
    I(f"s_and_b32 s{sT1}, s3, 3")
    I(f"s_lshl_b32 s{sMD}, s{sT1}, 2")
    I(f"s_add_u32 s{sMD}, s{sMD}, s{sT2}")
    I(f"s_lshr_b32 s{sT2}, s{sJ}, 2")
    I(f"s_lshr_b32 s{sT0}, s3, 2")
    I(f"s_lshl_b32 s{sGrpD}, s{sT0}, 3")
    I(f"s_add_u32 s{sGrpD}, s{sGrpD}, s{sT2}")
    I(f"s_lshr_b32 s{sT2}, s{sJ}, 4")
    I(f"s_lshl_b32 s{sGrpC}, s3, 1")
    I(f"s_add_u32 s{sGrpC}, s{sGrpC}, s{sT2}")
    I(f"s_and_b32 s{sMC}, s{sJ}, 15")
    I(f"s_and_b32 s{sCtC}, s{sJ}, 7")
    I(f"s_lshr_b32 s{sT2}, s{sJ}, 3")
    I(f"s_lshl_b32 s{sRbC}, s3, 2")
    I(f"s_add_u32 s{sRbC}, s{sRbC}, s{sT2}")
    for u in range(4):
        I(f"s_add_u32 s{sT0}, s{sP0}, {u}")
        I(f"s_and_b32 s{sT0}, s{sT0}, 3")
        I(f"s_lshl_b32 s{sK+u}, s{sT0}, 8")
        I(f"s_mul_i32 s{sKW+u}, s{sT0}, {128*3072}")
        I(f"s_lshl_b32 s{sKM+u}, s{sT0}, 9")
    I(f"s_lshl_b32 s{sW4096}, s{sW}, 12")
    return ids

def consts():
    for i in range(4):
        I(f"s_mov_b32 s{sSel+i}, {0x07060500 | i:#x}")
    I(f"s_mov_b32 s{sSelA}, 0x0c0c0400")
    I(f"s_mov_b32 s{sSelB}, 0x04000c0c")
    I(f"s_mov_b32 s{sL}, 0x3fb8aa3b")
    I(f"s_mov_b32 s{sL2}, 0x3fb8aa3b")
    I(f"s_mov_b32 s{sNL}, 0xbfb8aa3b")
    I(f"s_mov_b32 s{sNL2}, 0xbfb8aa3b")
    I(f"s_mov_b32 s{sHi}, 0xffff0000")
    I(f"s_mov_b32 s{sSelHi}, 0x07060302")
    I(f"s_mov_b32 s{sSelLL}, 0x05040100")
    I(f"v_cmp_eq_u32 vcc, 0, v{vTid}")
    I(f"v_mov_b32 v{vLane0}, {OOB}")
    I(f"v_cndmask_b32 v{vLane0}, v{vLane0}, 0, vcc")

XH = 64
RAW = 192
vRow = 16
def x_issue():
    ids = {}
    I(f"s_lshl_b32 s{sT0}, s{sRbB}, 6")
    I(f"s_lshl_b32 s{sT1}, s{sW}, 4")
    I(f"s_add_u32 s{sT0}, s{sT0}, s{sT1}")
    for i in range(4):
        I(f"s_add_u32 s{sT2}, s{sJ}, {i}")
        I(f"s_and_b32 s{sT2}, s{sT2}, 3")
        I(f"s_lshl_b32 s{sT2}, s{sT2}, 2")
        I(f"v_add_u32 v{vRow+i}, s{sT2}, v{vG}")
        I(f"v_add_u32 v9, s{sT0}, v{vRow+i}")
        I(f"v_lshlrev_b32 v9, 10, v9")
        I(f"v_lshl_add_u32 v9, v{vT}, 4, v9")
        for u in range(4):
            ids[(i, u)] = I(f"buffer_load_dwordx4 {vr(RAW + (i*4+u)*4, 4)}, v9, {S(SX)}, s{sK+u} offen")
    return ids

def phaseA_compute(ids):
    I(f"v_and_b32 v6, 1, v{vL}")
    I(f"v_lshlrev_b32 v6, 5, v6")
    I(f"v_lshl_add_u32 v6, v{vG}, 3, v6")
    I(f"s_lshl_b32 s{sT0}, s{sW}, 6")
    I(f"s_add_u32 s{sT0}, s{sT0}, {L_MISC}")
    I(f"v_add_u32 v6, s{sT0}, v6")
    I(f"v_lshlrev_b32 v7, 3, v{vTid}")
    I(f"v_add_u32 v7, {L_MISC + 1024}, v7")
    I(f"v_and_b32 v8, 14, v{vL}")
    I(f"v_cmp_eq_u32 vcc, 0, v8")
    I(f"v_cndmask_b32 v6, v7, v6, vcc")
    I(f"v_and_b32 v7, 3, v{vL}")
    wait_vm(ids[3])
    for i in range(4): I(f"v_lshlrev_b32 v{48+i}, 16, v{48+i}")
    for i in range(4): I(f"v_mul_f32 v{52+i}, s{sNL}, v{48+i}")
    for i in range(4): I(f"v_min_f32 v{52+i}, 0x42f00000, v{52+i}")
    for i in range(4): I(f"v_exp_f32 v{52+i}, v{52+i}")
    for i in range(4): I(f"v_add_f32 v{52+i}, 1.0, v{52+i}")
    for i in range(4): I(f"v_rcp_f32 v{56+i}, v{52+i}")
    for i in range(4): I(f"v_mul_f32 v{72+i}, v{48+i}, v{56+i}")
    for i in range(4): I(f"v_fma_f32 v{48+i}, -v{72+i}, v{52+i}, v{48+i}")
    for i in range(4): I(f"v_fma_f32 v{48+i}, v{48+i}, v{56+i}, v{72+i}")
    bf_round4(48, 52)
    AC = 64
    for i in range(4):
        wait_vm(ids[4 + i])
        for d in range(4):
            I(f"v_lshlrev_b32 v52, 16, v{32+4*i+d}")
            I(f"v_and_b32 v53, s{sHi}, v{32+4*i+d}")
            if i == 0:
                I(f"v_mul_f32 v{AC+2*d}, v{48+i}, v52")
                I(f"v_mul_f32 v{AC+1+2*d}, v{48+i}, v53")
            else:
                I(f"v_fmac_f32 v{AC+2*d}, v{48+i}, v52")
                I(f"v_fmac_f32 v{AC+1+2*d}, v{48+i}, v53")
    for e in range(4): I(f"v_permlane32_swap_b32 v{AC+e}, v{AC+4+e}")
    for e in range(4): I(f"v_add_f32 v{AC+e}, v{AC+e}, v{AC+4+e}")
    for e in range(2): I(f"v_permlane16_swap_b32 v{AC+e}, v{AC+2+e}")
    for e in range(2): I(f"v_add_f32 v{AC+e}, v{AC+e}, v{AC+2+e}")
    for r in (8, 4, 2):
        for e in range(2):
            I(f"v_add_f32_dpp v{AC+e}, v{AC+e}, v{AC+e} row_ror:{r} row_mask:0xf bank_mask:0xf")
    I(f"ds_write_b64 v6, {vr(AC,2)}")
    I(f"v_lshlrev_b32 v7, 4, v7")
    I(f"v_add_u32 v6, {L_MISC}, v7")
    I("s_waitcnt lgkmcnt(0)"); A.lg = []
    I("s_barrier")
    for w in range(4):
        I(f"ds_read_b128 {vr(32+4*w,4)}, v6 offset:{64*w}")
    I(f"s_add_u32 s{sTag}, s{sTag}, 0x9e3779b1")
    I(f"v_mov_b32 v{vTag}, s{sTag}")
    I(f"s_lshr_b32 s{sT0}, s{sT3}, 5")
    I(f"s_cmp_eq_u32 s{sT0}, 1")
    I(f"s_cselect_b32 s{sT1}, 1.0, 0")
    I(f"s_cmp_eq_u32 s{sT0}, 4")
    I(f"s_cselect_b32 s{sT1}, 1.0, s{sT1}")
    I(f"v_cmp_gt_u32 vcc, 4, v{vTid}")
    I(f"v_mov_b32 v6, {OOB}")
    I(f"v_cndmask_b32 v7, v6, v7, vcc")
    I(f"s_lshl_b32 s{sT0}, s{sT3}, 6")
    I(f"s_add_u32 s{sT0}, s{sT0}, {WS_MODF}")
    wait_lg()
    for e in (0, 2):
        I(f"v_pk_add_f32 {vr(32+e,2)}, {vr(32+e,2)}, {vr(36+e,2)}")
        I(f"v_pk_add_f32 {vr(40+e,2)}, {vr(40+e,2)}, {vr(44+e,2)}")
    for e in (0, 2):
        I(f"v_pk_add_f32 {vr(32+e,2)}, {vr(32+e,2)}, {vr(40+e,2)}")
    bf_round4(32, 36)
    for e in range(4): I(f"v_add_f32 v{32+e}, s{sT1}, v{32+e}")
    round_tag16(32, 36)
    I(f"buffer_store_dwordx4 v[32:35], v7, {S(SWS)}, s{sT0} offen sc1")

def rows128_voff(vb, pitch, std, extra_s=None):
    r_ = rec(_rows128_voff, vb, pitch, std, extra_s)
    import re as _re
    for o, _ in r_.ops:
        I(_re.sub(r"\bv([6-9])\b", lambda m: f"v{TMPV[int(m.group(1)) - 6]}", o[1]))
TMPV = [6, 7, 8, 9]
def _rows128_voff(vb, pitch, std, extra_s=None):
    I(f"v_lshrrev_b32 v6, 3, v{vL}")
    I(f"v_bfe_u32 v7, v{vL}, 4, {1 if std else 2}")
    I(f"v_bfe_u32 v8, v{vL}, 1, 2")
    I(f"v_xor_b32 v8, v8, v7")
    I(f"v_and_b32 v9, 1, v{vL}")
    I(f"v_lshlrev_b32 v9, 4, v9")
    I(f"v_lshl_add_u32 v9, v8, 5, v9")
    I(f"v_mul_u32_u24 v6, {pitch}, v6")
    if extra_s is not None: I(f"v_add_u32 v6, s{extra_s}, v6")
    I(f"v_add_u32 v{vb}, v6, v9")
    if std:
        I(f"v_xor_b32 v9, 64, v9")
        I(f"v_add_u32 v{vb+1}, v6, v9")
        I(f"v_add_u32 v{vb+1}, {8*pitch - 1024}, v{vb+1}")
    else:
        I(f"v_add_u32 v{vb+1}, {8*pitch - 1024}, v{vb}")
    I(f"v_add_u32 v{vb+2}, {2*(8*pitch - 1024)}, v{vb}")
    I(f"v_add_u32 v{vb+3}, {2*(8*pitch - 1024)}, v{vb+1}")

def dma4(vb, srd_, m0_s, m0_imm, so_s, so_imm, flags=""):
    if E.t is not A and not hasattr(E.t, "first_dma"): E.t.first_dma = len(E.t.ops)
    I(f"s_add_u32 m0, s{m0_s}, {m0_imm}")
    I(f"s_add_u32 s{sB0}, s{so_s}, {so_imm}")
    for i in range(4):
        last = I(f"buffer_load_dwordx4 v{vb[i] if isinstance(vb, list) else vb+i}, {srd_}, s{sB0} offen offset:{i*1024}{flags} lds")
        pad(100)
    return last

vBG = 24
def KF(u, s): return (u * 4 + s) * 4
def VF(u, s): return 64 + (u * 4 + s) * 4
def QF(u, s): return 128 + (u * 4 + s) * 4
USLOT = [0, 96 * K, 48 * K, 96 * K]
def wq_addr():
    I(f"s_mul_i32 s{sT0}, s{sW}, {32*3072}")
    I(f"s_lshl_b32 s{sT1}, s{sCtB}, 7")
    I(f"s_add_u32 s{sT0}, s{sT0}, s{sT1}")
    rows128_voff(vBG, 3072, True, sT0)
    I(f"v_bfe_u32 v6, v{vL}, 2, 2")
    I(f"v_lshl_add_u32 v6, v{vG}, 3, v6")
    I(f"v_lshlrev_b32 v6, 7, v6")
    I(f"v_bfe_u32 v7, v{vL}, 3, 2")
    I(f"v_xor_b32 v7, s{sW}, v7")
    I(f"v_lshl_add_u32 v6, v7, 5, v6")
    I(f"v_and_b32 v7, 3, v{vL}")
    I(f"v_lshl_add_u32 v28, v7, 3, v6")
    I(f"v_add_u32 v29, {48*K}, v28")
    I(f"v_add_u32 v30, {96*K}, v28")
def wq_dma(u, subs=(0, 1, 2)):
    for sub in subs:
        sg = (1, 2, 0)[sub]
        last = dma4(vBG, S(SWQKV), sW4096, USLOT[u] + sub * 16 * K, sKW + u, sg * 1024)
    return last
def wq_tr(u):
    base = 28 + USLOT[u] // (48 * K)
    for s in range(4):
        for sub in range(3):
            f = (KF, VF, QF)[sub](u, s)
            I(f"ds_read_b64_tr_b16 {ar(f,2)}, v{base} offset:{sub*16*K + s*4096}")
            I(f"ds_read_b64_tr_b16 {ar(f+2,2)}, v{base} offset:{sub*16*K + s*4096 + 512}")

def layernorm(xids):
    for i in range(4):
        wait_vm(xids[(i, 3)])
        xb = XH + i * 32
        for q in range(16):
            I(f"v_lshlrev_b32 v{xb+2*q}, 16, v{RAW+i*16+q}")
            I(f"v_and_b32 v{xb+2*q+1}, s{sHi}, v{RAW+i*16+q}")
        I(f"v_pk_add_f32 v[32:33], {vr(xb,2)}, {vr(xb+2,2)}")
        I(f"v_pk_add_f32 v[34:35], {vr(xb+4,2)}, {vr(xb+6,2)}")
        for q in range(4, 16, 2):
            I(f"v_pk_add_f32 v[32:33], v[32:33], {vr(xb+2*q,2)}")
            I(f"v_pk_add_f32 v[34:35], v[34:35], {vr(xb+2*q+2,2)}")
        I("v_pk_add_f32 v[32:33], v[32:33], v[34:35]")
        I("v_add_f32 v32, v32, v33")
        for r in (8, 4, 2, 1):
            I(f"v_add_f32_dpp v32, v32, v32 row_ror:{r} row_mask:0xf bank_mask:0xf")
        I("v_mul_f32 v32, 0xbb000000, v32")
        for q in range(16):
            I(f"v_pk_add_f32 {vr(xb+2*q,2)}, {vr(xb+2*q,2)}, v[32:33] op_sel_hi:[1,0]")
        I(f"v_pk_mul_f32 v[34:35], {vr(xb,2)}, {vr(xb,2)}")
        I(f"v_pk_mul_f32 v[36:37], {vr(xb+2,2)}, {vr(xb+2,2)}")
        for q in range(2, 16, 2):
            I(f"v_pk_fma_f32 v[34:35], {vr(xb+2*q,2)}, {vr(xb+2*q,2)}, v[34:35]")
            I(f"v_pk_fma_f32 v[36:37], {vr(xb+2*q+2,2)}, {vr(xb+2*q+2,2)}, v[36:37]")
        I("v_pk_add_f32 v[34:35], v[34:35], v[36:37]")
        I("v_add_f32 v34, v34, v35")
        for r in (8, 4, 2, 1):
            I(f"v_add_f32_dpp v34, v34, v34 row_ror:{r} row_mask:0xf bank_mask:0xf")
        I("v_mov_b32 v35, 0x3727c5ac")
        I("v_fmac_f32 v35, 0x3b000000, v34")
        I("v_rsq_f32 v34, v35")
        for q in range(16):
            I(f"v_pk_mul_f32 {vr(xb+2*q,2)}, {vr(xb+2*q,2)}, v[34:35] op_sel_hi:[1,0]")

def gm_loads(sets, G0):
    out = None
    for k, n in enumerate(sets):
        I(f"s_mov_b32 s{sB2}, {WS_MODF + n*4096}")
        out = I(f"buffer_load_dwordx4 {vr(G0+4*k,4)}, v11, {S(SWS)}, s{sB2} offen sc1")
    return out
def gm_issue(sets, G0):
    I(f"v_lshlrev_b32 v11, 4, v{vTid}")
    return gm_loads(sets, G0)
def gm_finish(sets, G0, last):
    def checks():
        for k in range(len(sets)):
            check16(8, G0 + 4 * k, 9, k == 0)
            check16(8, G0 + 4 * k + 2, 9, False)
        I("v_cmp_ne_u32 vcc, 0, v8")
    wait_vm(last)
    checks()
    def body():
        gm_loads(sets, G0); I("s_waitcnt vmcnt(0)"); A.vm = []; checks()
    spin_loop(body, first_done=True)
    I(f"v_add_u32 v6, {L_MODV}, v11")
    for k, n in enumerate(sets):
        for e in range(4):
            I(f"v_and_b32 v{G0+4*k+e}, s{sHi}, v{G0+4*k+e}")
        I(f"ds_write_b128 v6, {vr(G0+4*k,4)} offset:{n*4096}")
    if sets == [1, 2]:
        I(f"v_cmp_gt_u32 vcc, 128, v{vTid}")
        for e in range(4):
            I(f"v_cndmask_b32 v{G0+e}, v{G0+e}, v{G0+4+e}, vcc")
        I(f"v_perm_b32 v{G0+4}, v{G0+1}, v{G0}, s{sSelHi}")
        I(f"v_perm_b32 v{G0+5}, v{G0+3}, v{G0+2}, s{sSelHi}")
        I(f"v_lshrrev_b32 v6, 3, v{vTid}")
        I(f"v_lshlrev_b32 v6, 6, v6")
        I(f"v_and_b32 v8, 3, v{vTid}")
        I(f"v_lshl_add_u32 v6, v8, 4, v6")
        I(f"v_bfe_u32 v8, v{vTid}, 2, 1")
        I(f"v_lshl_add_u32 v6, v8, 3, v6")
        I(f"v_add_u32 v6, {L_UV}, v6")
        I(f"ds_write_b64 v6, {vr(G0+4,2)}")

def h_addr():
    for i in range(4):
        I(f"v_xor_b32 v6, v{vT}, v{vRow+i}")
        I(f"v_lshlrev_b32 v6, 4, v6")
        I(f"v_lshl_add_u32 v6, v{vRow+i}, 8, v6")
        I(f"v_add_u32 v{vRow+i}, s{sW4096}, v6")
    I(f"v_lshlrev_b32 v20, 5, v{vT}")
    I(f"v_add_u32 v20, {L_MODV}, v20")
    for s in range(4):
        I(f"v_add_u32 v6, {4*s}, v{vG}")
        I(f"v_xor_b32 v6, v6, v{vT}")
        I(f"v_lshlrev_b32 v6, 4, v6")
        I(f"v_lshl_add_u32 v{12+s}, v{vT}, 8, v6")

def make_h_rd(u, mb):
    I(f"v_add_u32 v6, s{sKM+u}, v20")
    I(f"ds_read_b128 {vr(mb,4)}, v6 offset:2048")
    I(f"ds_read_b128 {vr(mb+4,4)}, v6 offset:2064")
    I(f"ds_read_b128 {vr(mb+8,4)}, v6")
    return I(f"ds_read_b128 {vr(mb+12,4)}, v6 offset:16")
def make_h_do(u, mb, pk, x):
    wait_lg(x)
    for i in range(4):
        b = XH + (i * 4 + u) * 8
        if pk:
            for e in range(0, 8, 2):
                I(f"v_pk_fma_f32 {vr(b+e,2)}, {vr(b+e,2)}, {vr(mb+e,2)}, {vr(mb+8+e,2)}")
        else:
            for e in range(8):
                I(f"v_fma_f32 v{b+e}, v{b+e}, v{mb+e}, v{mb+8+e}")
        for e in range(4):
            I(f"v_cvt_pk_bf16_f32 v{b+e}, v{b+2*e}, v{b+2*e+1}")
        I(f"ds_write_b128 v{vRow+i}, {vr(b,4)} offset:{u*16*K}")
def make_h_first():
    xs = [make_h_rd(u, 192 + 16 * u) for u in range(4)]
    pad(100)
    for u in range(3): make_h_do(u, 192 + 16 * u, True, xs[u])

ACC = 192
def accK(rt): return ACC + rt * 4
def accV(rt): return ACC + 16 + rt * 4
def accQ(rt): return ACC + 32 + rt * 4
def a_rd(k, rt):
    u, s = k >> 2, k & 3
    b = 32 + (k % 3) * 16 + 4 * rt
    return I(f"ds_read_b128 {vr(b,4)}, v{12+s} offset:{u*16*K + rt*4096}")

def gemm_kv_chunk(u, cur):
    for s in range(4):
        k = 4 * u + s
        nxt = []
        for rt in range(4):
            if s < 3: nxt.append(a_rd(k + 1, rt))
            wait_lg(cur[rt])
            h = vr(32 + (k & 1) * 16 + 4 * rt, 4)
            I(f"v_mfma_f32_16x16x32_bf16 {vr(accK(rt),4)}, {ar(KF(u,s),4)}, {h}, {vr(accK(rt),4) if k else 0}")
            I(f"v_mfma_f32_16x16x32_bf16 {vr(accV(rt),4)}, {h}, {ar(VF(u,s),4)}, {vr(accV(rt),4) if k else 0}")
        cur = nxt

def gemm_q():
    cur = [a_rd(0, rt) for rt in range(4)]
    for k in range(16):
        nxt = []
        for rt in range(4):
            if k < 15: nxt.append(a_rd(k + 1, rt))
            if rt % 2 == 0: wait_lg(cur[rt + 1])
            h = vr(32 + (k & 1) * 16 + 4 * rt, 4)
            I(f"v_mfma_f32_16x16x32_bf16 {vr(accQ(rt),4)}, {ar(QF(k>>2,k&3),4)}, {h}, {vr(accQ(rt),4) if k else 0}")
        cur = nxt

APHI = 136
def wphi_issue():
    I(f"s_lshl_b32 s{sHead}, s{sCtB}, 2")
    I(f"s_add_u32 s{sHead}, s{sHead}, s{sW}")
    I(f"s_lshl_b32 s{sT0}, s{sHead}, 9")
    I(f"v_bfe_u32 v6, v{vL}, 3, 2")
    I(f"v_and_b32 v7, 3, v{vL}")
    I(f"v_lshl_add_u32 v6, v6, 2, v7")
    I(f"v_lshlrev_b32 v6, 1, v6")
    I(f"v_lshrrev_b32 v7, 5, v{vL}")
    I(f"v_lshl_add_u32 v6, v7, 8, v6")
    for j in range(8):
        last = I(f"buffer_load_ushort v{44+j}, v6, {S(SWPHI)}, s{sT0} offen offset:{32*j}")
    return last
def wphi_pack():
    I(f"v_bfe_u32 v6, v{vL}, 2, 1")
    I(f"v_mul_u32_u24 v6, 0x8000, v6")
    I(f"v_lshl_or_b32 v6, v6, 16, v6")
    for e in range(4):
        I(f"v_lshl_or_b32 v{44+e}, v{45+2*e}, 16, v{44+2*e}")
    for e in range(4):
        I(f"v_xor_b32 v{APHI+e}, v6, v{44+e}")

def softmax(acc, OUT):
    P = [64, 80]; XB = [96, 100]; M = [104, 112]
    for p in range(2):
        for h in range(2):
            a = acc(2 * p + h)
            I(f"v_cvt_pk_bf16_f32 v{XB[p]+2*h}, v{a}, v{a+1}")
            I(f"v_cvt_pk_bf16_f32 v{XB[p]+2*h+1}, v{a+2}, v{a+3}")
    for p in range(2):
        I(f"v_permlane16_swap_b32 v{XB[p]}, v{XB[p]+2}")
        I(f"v_permlane16_swap_b32 v{XB[p]+1}, v{XB[p]+3}")
    for p in range(2):
        I(f"v_mfma_f32_32x32x16_bf16 {vr(P[p],16)}, {vr(APHI,4)}, {vr(XB[p],4)}, 0")
    def chain(p):
        b = P[p]; m = M[p]
        for q in range(5): I(f"v_max3_f32 v{m+q}, v{b+3*q}, v{b+3*q+1}, v{b+3*q+2}")
        I(f"v_max3_f32 v{m}, v{m}, v{m+1}, v{m+2}")
        I(f"v_max3_f32 v{m+3}, v{m+3}, v{m+4}, v{b+15}")
        I(f"v_max_f32 v{m}, v{m}, v{m+3}")
        I(f"v_mul_f32 v{m}, s{sNL}, v{m}")
        for q in range(0, 16, 2):
            I(f"v_pk_fma_f32 {vr(b+q,2)}, {vr(b+q,2)}, {sr(sL,2)}, {vr(m,2)} op_sel_hi:[1,1,0]")
        for q in range(16): I(f"v_exp_f32 v{b+q}, v{b+q}")
        for q in range(4): I(f"v_pk_add_f32 {vr(m+2*q,2)}, {vr(b+4*q,2)}, {vr(b+4*q+2,2)}")
        I(f"v_pk_add_f32 {vr(m,2)}, {vr(m,2)}, {vr(m+2,2)}")
        I(f"v_pk_add_f32 {vr(m+4,2)}, {vr(m+4,2)}, {vr(m+6,2)}")
        I(f"v_pk_add_f32 {vr(m,2)}, {vr(m,2)}, {vr(m+4,2)}")
        I(f"v_add_f32 v{m}, v{m}, v{m+1}")
        I(f"v_rcp_f32 v{m}, v{m}")
        for q in range(0, 16, 2):
            I(f"v_pk_mul_f32 {vr(b+q,2)}, {vr(b+q,2)}, {vr(m,2)} op_sel_hi:[1,0]")
        for q in range(8): I(f"v_cvt_pk_bf16_f32 v{OUT+8*p+q}, v{b+2*q}, v{b+2*q+1}")
    r0 = rec(chain, 0); r1 = rec(chain, 1)
    lag = 6
    o0 = [o[1] for o, _ in r0.ops]; o1 = [o[1] for o, _ in r1.ops]
    for k in range(len(o0) + lag):
        if k < len(o0): I(o0[k])
        if k >= lag: I(o1[k - lag])

L_PT = 128 * K
def epi_k():
    PK = 144; VFR = 160; ONES = 168
    I(f"s_add_u32 s{sT1}, s{sW4096}, {L_PT}")
    I(f"v_and_b32 v8, 31, v{vL}")
    I(f"v_lshlrev_b32 v8, 6, v8")
    I(f"v_lshrrev_b32 v9, 5, v{vL}")
    I(f"v_lshlrev_b32 v9, 1, v9")
    I(f"v_bfe_u32 v10, v{vL}, 1, 2")
    I(f"v_xor_b32 v9, v9, v10")
    I(f"v_lshl_add_u32 v8, v9, 4, v8")
    I(f"v_add_u32 v8, s{sT1}, v8")
    I(f"v_xor_b32 v7, 16, v8")
    I(f"v_lshrrev_b32 v9, 2, v{vL}")
    I(f"v_lshlrev_b32 v9, 6, v9")
    I(f"v_bfe_u32 v10, v{vL}, 1, 1")
    I(f"v_bfe_u32 v11, v{vL}, 3, 2")
    I(f"v_xor_b32 v10, v10, v11")
    I(f"v_lshl_add_u32 v9, v10, 4, v9")
    I(f"v_and_b32 v10, 1, v{vL}")
    I(f"v_lshl_add_u32 v9, v10, 3, v9")
    I(f"v_add_u32 v9, s{sT1}, v9")
    I(f"v_xor_b32 v10, 32, v9")
    for e in range(4): I(f"v_mov_b32 v{ONES+e}, 0x3f803f80")
    softmax(accK, PK)
    for p in range(2):
        I(f"ds_write_b128 v8, {vr(PK+8*p,4)} offset:{p*2048}")
        I(f"ds_write_b128 v7, {vr(PK+8*p+4,4)} offset:{p*2048}")
    for kp in range(2):
        for hh in range(2):
            a = accV(2 * kp + hh)
            I(f"v_cvt_pk_bf16_f32 v{VFR+4*kp+2*hh}, v{a}, v{a+1}")
            I(f"v_cvt_pk_bf16_f32 v{VFR+4*kp+2*hh+1}, v{a+2}, v{a+3}")
    PT = 64
    for T in range(2):
        for kp in range(2):
            f = PT + (T * 2 + kp) * 4
            I(f"ds_read_b64_tr_b16 {vr(f,2)}, v{9+T} offset:{kp*2048}")
            x = I(f"ds_read_b64_tr_b16 {vr(f+2,2)}, v{9+T} offset:{kp*2048 + 1024}")
    I(f"s_lshl_b32 s{sT0}, s{sHead}, 5")
    I(f"s_add_u32 s{sT0}, s{sT0}, s{sRbB}")
    I(f"s_mul_i32 s{sT0}, s{sT0}, {KVREC}")
    I(f"s_add_u32 s{sT0}, s{sT0}, {WS_KVP}")
    I(f"v_lshlrev_b32 v8, 5, v{vG}")
    I(f"v_lshl_add_u32 v8, v{vT}, 4, v8")
    I(f"v_mov_b32 v9, {OOB}")
    I(f"v_cmp_gt_u32 vcc, 2, v{vT}")
    I(f"v_cndmask_b32 v8, v9, v8, vcc")
    I(f"v_cmp_eq_u32 vcc, 1, v{vT}")
    wait_lg(x)
    KV = 172; Z = 180
    for kp in range(2):
        for T in range(2):
            f = vr(PT + (T * 2 + kp) * 4, 4)
            I(f"v_mfma_f32_16x16x32_bf16 {vr(KV+4*T,4)}, {f}, {vr(VFR+4*kp,4)}, {vr(KV+4*T,4) if kp else 0}")
    for kp in range(2):
        for T in range(2):
            f = vr(PT + (T * 2 + kp) * 4, 4)
            I(f"v_mfma_f32_16x16x32_bf16 {vr(Z+4*T,4)}, {f}, {vr(ONES,4)}, {vr(Z+4*T,4) if kp else 0}")
    tag4(KV); tag4(KV + 4)
    I(f"buffer_store_dwordx4 {vr(KV,4)}, v{vL16}, {S(SWS)}, s{sT0} offen sc1")
    I(f"buffer_store_dwordx4 {vr(KV+4,4)}, v{vL16}, {S(SWS)}, s{sT0} offen offset:1024 sc1")
    for e in range(4):
        I(f"v_cndmask_b32 v{Z+e}, v{Z+e}, v{Z+4+e}, vcc")
    tag4(Z)
    I(f"buffer_store_dwordx4 {vr(Z,4)}, v8, {S(SWS)}, s{sT0} offen offset:2048 sc1")

def epi_q():
    PQ = 144
    I(f"s_lshl_b32 s{sT0}, s{sRbB}, 7")
    I(f"s_add_u32 s{sT0}, s{sT0}, s{sHead}")
    I(f"s_lshl_b32 s{sT0}, s{sT0}, 10")
    I(f"s_add_u32 s{sT0}, s{sT0}, {WS_PHIQ}")
    I(f"s_lshl_b32 s{sT1}, s{sRbB}, 3")
    I(f"s_add_u32 s{sT1}, s{sT1}, s{sCtB}")
    I(f"s_lshl_b32 s{sT1}, s{sT1}, 7")
    I(f"s_add_u32 s{sT1}, s{sT1}, {WS_FQ}")
    I(f"v_and_b32 v6, 1, v{vG}")
    I(f"v_lshlrev_b32 v6, 15, v6")
    I(f"v_lshrrev_b32 v7, 1, v{vG}")
    I(f"v_lshl_add_u32 v6, v7, 9, v6")
    I(f"v_lshl_add_u32 v6, v{vT}, 4, v6")
    softmax(accQ, PQ)
    for p in range(2):
        I(f"buffer_store_dwordx4 {vr(PQ+8*p,4)}, v6, {S(SWS)}, s{sT0} offen sc1")
        last = I(f"buffer_store_dwordx4 {vr(PQ+8*p+4,4)}, v6, {S(SWS)}, s{sT0} offen offset:256 sc1")
        if p == 0: I(f"s_add_u32 s{sT0}, s{sT0}, 65536")
    return last

def gemm_kv(k0, k1, rds):
    for k in range(k0, k1):
        u, s = k >> 2, k & 3
        nxt = []
        for rt in range(4):
            if k + 2 < 16: nxt.append(a_rd(k + 2, rt))
            if rt == 0: wait_lg(rds[k][3])
            h = vr(32 + (k % 3) * 16 + 4 * rt, 4)
            I(f"v_mfma_f32_16x16x32_bf16 {vr(accK(rt),4)}, {ar(KF(u,s),4)}, {h}, {vr(accK(rt),4) if k else 0}")
            I(f"v_mfma_f32_16x16x32_bf16 {vr(accV(rt),4)}, {h}, {ar(VF(u,s),4)}, {vr(accV(rt),4) if k else 0}")
            I(f"v_mfma_f32_16x16x32_bf16 {vr(accQ(rt),4)}, {ar(QF(u,s),4)}, {h}, {vr(accQ(rt),4) if k else 0}")
        rds[k + 2] = nxt
    return rds

RR = 172
def kv_reduce_issue():
    I(f"s_and_b32 s{sT2}, s2, 7")
    I(f"s_lshl_b32 s{sT3}, s{sT2}, 4")
    I(f"s_add_u32 s{sT3}, s{sT3}, 2048")
    I(f"s_lshl_b32 s{sT2}, s{sT2}, 2")
    I(f"s_add_u32 s{sT2}, s{sT2}, s{sW}")
    I(f"s_lshl_b32 s{sT2}, s{sT2}, 6")
    I(f"v_and_b32 v10, 7, v{vL}")
    I(f"v_lshlrev_b32 v11, 4, v10")
    I(f"v_add_u32 v11, s{sT2}, v11")
    I(f"v_mov_b32 v12, s{sT3}")
    I(f"v_cmp_gt_u32 vcc, 4, v10")
    I(f"v_cndmask_b32 v11, v12, v11, vcc")
    I(f"v_lshrrev_b32 v12, 3, v{vL}")
    I(f"v_mul_u32_u24 v12, {KVREC}, v12")
    I(f"v_add_u32 v12, v12, v11")
    I(f"s_mul_i32 s{sP0}, s{sJ}, {32*KVREC}")
    I(f"s_add_u32 s{sP0}, s{sP0}, {WS_KVP}")
    I(f"s_mul_i32 s{sP1}, s{sJ}, {KVREC}")
    I(f"s_add_u32 s{sP1}, s{sP1}, {WS_KVF}")
    I(f"s_mov_b32 s{sP2}, 0xffffff00")
    I(f"v_cmp_gt_u32 vcc, 5, v{vL}")
    I(f"v_mov_b32 v10, {OOB}")
    I(f"v_cndmask_b32 v11, v10, v11, vcc")
    return kv_reduce_loads()
def kv_reduce_loads():
    for n in range(4):
        I(f"s_add_u32 s{sT2}, s{sP0}, {n*8*KVREC}")
        last = I(f"buffer_load_dwordx4 {vr(RR+4*n,4)}, v12, {S(SWS)}, s{sT2} offen sc1")
    return last
def kv_reduce_finish(last):
    R = RR
    def checks():
        for n in range(4): check4(8, R + 4 * n, 9, 10, n == 0)
        I("v_cmp_ne_u32 vcc, 0, v8")
    wait_vm(last)
    checks()
    def body():
        kv_reduce_loads(); I("s_waitcnt vmcnt(0)"); A.vm = []; checks()
    spin_loop(body, first_done=True)
    for q in range(16):
        I(f"v_and_b32 v{R+q}, s{sP2}, v{R+q}")
    for st in (8, 4):
        for q in range(0, st, 2):
            I(f"v_pk_add_f32 {vr(R+q,2)}, {vr(R+q,2)}, {vr(R+st+q,2)}")
    for e in range(4):
        I(f"v_add_f32_dpp v{R+e}, v{R+e}, v{R+e} row_ror:8 row_mask:0xf bank_mask:0xf")
    for op in ("v_permlane16_swap_b32", "v_permlane32_swap_b32"):
        for e in range(4): I(f"v_mov_b32 v{R+4+e}, v{R+e}")
        for e in range(4): I(f"{op} v{R+e}, v{R+4+e}")
        for e in (0, 2): I(f"v_pk_add_f32 {vr(R+e,2)}, {vr(R+e,2)}, {vr(R+4+e,2)}")
    round_tag16(R, R + 4)
    I(f"buffer_store_dwordx4 {vr(R,4)}, v11, {S(SWS)}, s{sP1} offen sc1")

def pf_wo():
    I(f"s_lshl_b32 s{sB1}, s{sJ}, 14")
    I(f"s_add_u32 s{sB1}, s{sB1}, s{sW4096}")
    I(f"v_and_b32 v21, 31, v{vL}")
    I(f"v_lshlrev_b32 v21, 7, v21")
    I(f"buffer_load_dword a255, v21, {S(SWO)}, s{sB1} offen")
def pf_gu():
    I(f"s_cmp_ge_u32 s{sW}, 2")
    I(f"s_cselect_b32 s{SGU}, s{SWU}, s{SWG}")
    I(f"s_cselect_b32 s{SGU+1}, s{SWU+1}, s{SWG+1}")
    I(f"s_mov_b32 s{SGU+2}, {512*1376*2}")
    I(f"s_mov_b32 s{SGU+3}, 0x20000")
    I(f"s_lshl_b32 s{sB1}, s{sJ}, 1")
    I(f"s_and_b32 s{sB2}, s{sW}, 1")
    I(f"s_add_u32 s{sB1}, s{sB1}, s{sB2}")
    I(f"s_mul_i32 s{sB1}, s{sB1}, {8*2752}")
    I(f"s_and_b32 s{sB2}, s2, 3")
    I(f"s_mul_i32 s{sB2}, s{sB2}, {32*21846}")
    I(f"s_lshr_b32 s{sB2}, s{sB2}, 16")
    I(f"s_lshl_b32 s{sB2}, s{sB2}, 6")
    I(f"s_add_u32 s{sB1}, s{sB1}, s{sB2}")
    I(f"v_lshrrev_b32 v21, 3, v{vL}")
    I(f"v_mul_u32_u24 v21, 2752, v21")
    I(f"v_and_b32 v22, 7, v{vL}")
    I(f"v_mul_u32_u24 v22, 100, v22")
    I(f"v_add_u32 v21, v21, v22")
    I(f"buffer_load_dword a255, v21, {S(SGU)}, s{sB1} offen")
def pf_wd():
    I(f"s_mul_i32 s{sT2}, s2, {43*128}")
    I(f"s_mul_i32 s{sT3}, s{sW}, {11*128}")
    I(f"s_add_u32 s{sT2}, s{sT2}, s{sT3}")
    I(f"v_min_u32 v21, 10, v{vL}")
    I(f"v_lshlrev_b32 v21, 7, v21")
    I(f"buffer_load_dword a255, v21, {S(SWD)}, s{sT2} offen")

WOF = 192
L_WO = 64 * K
def wo_dma():
    rows128_voff(vBG, 1024, False)
    I(f"s_lshl_b32 s{sB1}, s{sW}, 17")
    I(f"s_lshl_b32 s{sB2}, s{sCtC}, 7")
    I(f"s_add_u32 s{sB1}, s{sB1}, s{sB2}")
    I(f"s_lshl_b32 s{sB2}, s{sW}, 14")
    for s in range(4):
        last = dma4(vBG, S(SWO), sB2, L_WO + s * 4096, sB1, s * 32768)
    return last
def wo_tr(last):
    I(f"v_lshrrev_b32 v28, 2, v{vL}")
    I(f"v_lshlrev_b32 v28, 7, v28")
    I(f"v_bfe_u32 v29, v{vL}, 3, 2")
    I(f"s_and_b32 s{sB2}, s{sW}, 2")
    I(f"v_xor_b32 v29, s{sB2}, v29")
    I(f"v_lshl_add_u32 v28, v29, 5, v28")
    I(f"v_and_b32 v29, 3, v{vL}")
    I(f"v_lshl_add_u32 v28, v29, 3, v28")
    I(f"s_lshl_b32 s{sB2}, s{sW}, 14")
    I(f"s_add_u32 s{sB2}, s{sB2}, {L_WO}")
    I(f"v_add_u32 v28, s{sB2}, v28")
    for c in range(1, 4):
        I(f"v_xor_b32 v{28+c}, {c*32}, v28")
    wait_vm(last)
    for s in range(4):
        for c in range(4):
            f = WOF + (s * 4 + c) * 4
            I(f"ds_read_b64_tr_b16 {ar(f,2)}, v{28+c} offset:{s*4096}")
            I(f"ds_read_b64_tr_b16 {ar(f+2,2)}, v{28+c} offset:{s*4096+2048}")

def GF(c, ks): return (ks * 3 + c) * 4
GSLOT = [0, 64 * K, 0, 48 * K]
def wgu_setup():
    I(f"s_lshl_b32 s{sB1}, s{sMD}, 3")
    I(f"s_mul_i32 s{sB1}, s{sB1}, 21846")
    I(f"s_lshr_b32 s{sB1}, s{sB1}, 16")
    I(f"s_lshl_b32 s{sFt0}, s{sB1}, 1")
    for n in range(3):
        I(f"v_add_u32 v27, {64*n}, v{vL}")
        I(f"v_mul_u32_u24 v28, 5462, v27")
        I(f"v_lshrrev_b32 v28, 16, v28")
        I(f"v_mul_u32_u24 v29, 12, v28")
        I(f"v_sub_u32 v29, v27, v29")
        I(f"v_bfe_u32 v30, v28, 2, 1")
        I(f"v_lshlrev_b32 v30, 1, v30")
        I(f"v_xor_b32 v29, v29, v30")
        I(f"v_mul_u32_u24 v28, 2752, v28")
        I(f"v_lshl_add_u32 v{vBG+n}, v29, 4, v28")
        if n: I(f"v_subrev_u32 v{vBG+n}, {n*1024}, v{vBG+n}")
    I(f"s_and_b32 s{sB1}, s{sW}, 1")
    I(f"s_mul_i32 s{sB1}, s{sB1}, {64*2752}")
    I(f"s_lshl_b32 s{sB2}, s{sFt0}, 5")
    I(f"s_add_u32 s{sB1}, s{sB1}, s{sB2}")
    for q in range(4):
        I(f"s_add_u32 s{sB2}, s{sGrpD}, {q}")
        I(f"s_and_b32 s{sB2}, s{sB2}, 3")
        I(f"s_mul_i32 s{sKW+q}, s{sB2}, {128*2752}")
        I(f"s_add_u32 s{sKW+q}, s{sKW+q}, s{sB1}")
        I(f"s_lshl_b32 s{sK+q}, s{sB2}, 12")
        I(f"s_lshl_b32 s{sKM+q}, s{sB2}, 9")
    I(f"s_mul_i32 s{sB1}, s{sW}, 12288")
def wgu_traddr():
    I(f"s_lshr_b32 s{sB2}, s{sW}, 1")
    I(f"s_mul_i32 s{sTz}, s{sB2}, 3")
    I(f"s_and_b32 s{sB2}, s{sW}, 1")
    I(f"s_lshl_b32 s{sTx}, s{sB2}, 1")
    I(f"s_add_u32 s{sTx}, s{sTx}, s{sTz}")
    I(f"s_add_u32 s{sTz}, s{sTz}, 1")
    I(f"v_lshrrev_b32 v27, 2, v{vL}")
    I(f"v_mul_u32_u24 v27, 192, v27")
    I(f"v_and_b32 v31, 3, v{vL}")
    I(f"v_lshl_add_u32 v27, v31, 3, v27")
    I(f"v_and_b32 v31, 1, v{vG}")
    I(f"v_xor_b32 v30, s{sTx}, v31")
    I(f"v_lshl_add_u32 v28, v30, 5, v27")
    I(f"v_add_u32 v29, 24576, v28")
    I(f"v_xor_b32 v30, s{sTz}, v31")
    I(f"v_lshl_add_u32 v30, v30, 5, v27")
    I(f"s_mul_i32 s{sB2}, s{sB2}, 24576")
    I(f"v_add_u32 v30, s{sB2}, v30")
def wgu_dma(q):
    for p in range(4):
        I(f"s_add_u32 m0, s{sB1}, {GSLOT[q] + p*3072}")
        I(f"s_add_u32 s{sB0}, s{sKW+q}, {p*16*2752}")
        for n in range(3):
            last = I(f"buffer_load_dwordx4 v{vBG+n}, {S(SGU)}, s{sB0} offen offset:{n*1024} lds")
            pad(100)
    return last
def wgu_tr(q):
    for c in range(3):
        if GSLOT[q]:
            I(f"v_add_u32 v31, {GSLOT[q]}, v{28+c}"); b = 31
        else: b = 28 + c
        for s in range(4):
            f = GF(c, q * 4 + s)
            I(f"ds_read_b64_tr_b16 {ar(f,2)}, v{b} offset:{s*6144}")
            I(f"ds_read_b64_tr_b16 {ar(f+2,2)}, v{b} offset:{s*6144+3072}")

def wgu_tr3():
    r_ = rec(lambda: (wgu_traddr(), wgu_tr(3)))
    import re as _re
    for o, _ in r_.ops:
        I(_re.sub(r"\bv(2[7-9]|3[01])\b", lambda m: f"v{int(m.group(1)) + 20}", o[1]))

RK = 192; KB = 32
def PHR(n, r4): return 64 + (n * 4 + r4) * 4
def CAC(k, r4): return 192 + (k * 4 + r4) * 4
def rt_offsets(stride):
    I(f"s_lshr_b32 s{sT0}, s{sMC}, 3")
    I(f"s_lshl_b32 s{sT0}, s{sT0}, 1")
    I(f"s_and_b32 s{sT2}, s{sW}, 1")
    I(f"s_add_u32 s{sT0}, s{sT0}, s{sT2}")
    I(f"s_mul_i32 s{sR}, s{sT0}, {stride}")
    I(f"s_xor_b32 s{sT0}, s{sT0}, 1")
    I(f"s_mul_i32 s{sR+1}, s{sT0}, {stride}")
    I(f"s_add_u32 s{sR+2}, s{sR}, {4*stride}")
    I(f"s_add_u32 s{sR+3}, s{sR+1}, {4*stride}")
def phiq_load():
    I(f"s_lshl_b32 s{sT0}, s{sGrpC}, 4")
    I(f"s_lshl_b32 s{sT1}, s{sW}, 1")
    I(f"s_add_u32 s{sT0}, s{sT0}, s{sT1}")
    I(f"v_and_b32 v20, 1, v{vL}")
    I(f"v_bfe_u32 v21, v{vL}, 1, 1")
    I(f"v_lshl_add_u32 v20, v21, 3, v20")
    I(f"v_add_u32 v20, s{sT0}, v20")
    I(f"v_lshlrev_b32 v20, 7, v20")
    I(f"v_add_u32 v20, {WS_FQ}, v20")
    rt_offsets(32768)
    I(f"s_lshl_b32 s{sT0}, s{sGrpC}, 18")
    I(f"s_lshl_b32 s{sT1}, s{sW}, 13")
    I(f"s_add_u32 s{sT0}, s{sT0}, s{sT1}")
    I(f"s_add_u32 s{sT0}, s{sT0}, {WS_PHIQ}")
    I(f"v_add_u32 v22, s{sT0}, v{vL16}")
    I(f"v_add_u32 v27, 4096, v22")
    return poll_issue(20, 21)
def phiq_loads(ids, h):
    for s_ in range(4):
        for rho in range(2):
            r4 = 2 * h + rho
            for n in (2 * s_, 2 * s_ + 1):
                ids[h * 8 + s_ * 2 + rho] = I(f"buffer_load_dwordx4 {vr(PHR(n,r4),4)}, v{22 if n < 4 else 27}, {S(SWS)}, s{sR+r4} offen offset:{(n&3)*1024} sc1")
                pad(40)
RZ = 32
def kv_addr():
    I(f"s_lshl_b32 s{sT1}, s{sW}, 3")
    I(f"s_mul_i32 s{sP1}, s{sT1}, {KVREC}")
    I(f"s_add_u32 s{sP1}, s{sP1}, {WS_KVF}")
    I(f"v_and_b32 v14, 3, v{vT}")
    I(f"v_mul_u32_u24 v14, {KVREC}, v14")
    I(f"v_and_b32 v15, 1, v{vG}")
    I(f"v_lshl_add_u32 v14, v15, 6, v14")
    I(f"v_lshrrev_b32 v15, 1, v{vG}")
    I(f"v_lshl_add_u32 v14, v15, 4, v14")
    I(f"v_lshlrev_b32 v15, 9, v{vG}")
    I(f"v_lshl_add_u32 v15, v{vT}, 4, v15")
def kv_loads():
    for n in range(8):
        I(f"s_add_u32 s{sT0}, s{sP1}, {n*KVREC}")
        I(f"buffer_load_dwordx4 {vr(RK+8*n,4)}, v15, {S(SWS)}, s{sT0} offen sc1")
        last = I(f"buffer_load_dwordx4 {vr(RK+8*n+4,4)}, v15, {S(SWS)}, s{sT0} offen offset:256 sc1")
        if n % 4 == 0:
            q = n // 4
            I(f"buffer_load_dwordx4 {vr(RZ+8*q,4)}, v14, {S(SWS)}, s{sT0} offen offset:2048 sc1")
            I(f"buffer_load_dwordx4 {vr(RZ+8*q+4,4)}, v14, {S(SWS)}, s{sT0} offen offset:2080 sc1")
    return last
def kv_finish(last):
    def checks():
        for k in range(16): check16(16, RK + 4 * k, 17 + (k & 1), k == 0)
        for k in range(4): check16(16, RZ + 4 * k, 17 + (k & 1), False)
        I("v_cmp_ne_u32 vcc, 0, v16")
    wait_vm(last)
    checks()
    def body():
        kv_loads(); I("s_waitcnt vmcnt(0)"); A.vm = []; checks()
    spin_loop(body, first_done=True)
def kv_pack():
    for k in range(8):
        I(f"v_perm_b32 v{8+k}, v{RZ+2*k+1}, v{RZ+2*k}, s{sSelHi}")
    for k in range(32):
        I(f"v_perm_b32 v{KB+k}, v{RK+2*k+1}, v{RK+2*k}, s{sSelHi}")

def half_send(acc, lbase, va):
    for d in (1, 2, 3):
        rho, pi = d & 1, d >> 1
        I(f"s_xor_b32 s{sT0}, s{sW}, {d}")
        I(f"s_mul_i32 s{sT0}, s{sT0}, 6144")
        I(f"s_add_u32 s{sT0}, s{sT0}, {lbase + (d-1)*2048}")
        I(f"v_add_u32 v{va}, s{sT0}, v{vL16}")
        for k in range(2):
            I(f"ds_write_b128 v{va}, {vr(acc(2*pi+k, rho),4)} offset:{k*1024}")
def half_recv(acc, lbase, va):
    I(f"s_mul_i32 s{sT0}, s{sW}, 6144")
    I(f"s_add_u32 s{sT0}, s{sT0}, {lbase}")
    I(f"v_add_u32 v{va}, s{sT0}, v{vL16}")
    for d in (1, 2, 3):
        rho, pi = d & 1, d >> 1
        for k in range(2):
            last = I(f"ds_read_b128 {vr(acc(2*pi+k, rho),4)}, v{va} offset:{(d-1)*2048 + k*1024}")
    return last
def half_sum(acc, O):
    for k in range(2):
        for e in (0, 2):
            I(f"v_pk_add_f32 {vr(O+4*k+e,2)}, {vr(acc(k,0)+e,2)}, {vr(acc(k,1)+e,2)}")
            I(f"v_pk_add_f32 {vr(acc(2+k,0)+e,2)}, {vr(acc(2+k,0)+e,2)}, {vr(acc(2+k,1)+e,2)}")
    for k in range(2):
        for e in (0, 2):
            I(f"v_pk_add_f32 {vr(O+4*k+e,2)}, {vr(O+4*k+e,2)}, {vr(acc(2+k,0)+e,2)}")

L_RED = 96 * K
X1K = 24
def c_setup():
    I(f"s_lshr_b32 s{sT0}, s{sMC}, 3")
    I(f"s_lshl_b32 s{sT0}, s{sT0}, 1")
    I(f"s_and_b32 s{sT1}, s{sW}, 1")
    I(f"s_add_u32 s{sT0}, s{sT0}, s{sT1}")
    I(f"s_lshl_b32 s{sT1}, s{sGrpC}, 3")
    I(f"s_add_u32 s{sP2}, s{sT0}, s{sT1}")
    I(f"s_lshl_b32 s{sT0}, s{sP2}, 4")
    I(f"v_add_u32 v20, s{sT0}, v{vT}")
    I(f"v_lshlrev_b32 v21, 10, v20")
    I(f"v_lshl_add_u32 v21, v{vG}, 3, v21")
    I(f"s_lshl_b32 s{sT0}, s{sCtC}, 1")
    I(f"s_lshr_b32 s{sT1}, s{sW}, 1")
    I(f"s_add_u32 s{sP3}, s{sT0}, s{sT1}")
    I(f"s_lshl_b32 s{sT0}, s{sP3}, 6")
    I(f"s_add_u32 s{sT1}, s{sT0}, 65536")
    for h in range(2):
        for k in range(2):
            last = I(f"buffer_load_dwordx2 {vr(24+4*h+2*k,2)}, v21, {S(SX)}, s{sT1 if h else sT0} offen offset:{32*k}")
    I(f"s_lshl_b32 s{sT0}, s{sP3}, 7")
    I(f"s_add_u32 s{sT0}, s{sT0}, {L_MODV}")
    I(f"v_lshlrev_b32 v22, 4, v{vG}")
    I(f"v_add_u32 v22, s{sT0}, v22")
    return last

def c_epi_rd(GA, CB):
    for k in range(2):
        I(f"ds_read_b128 {vr(GA+4*k,4)}, v22 offset:{4096 + 64*k}")
        x = I(f"ds_read_b128 {vr(CB+4*k,4)}, v22 offset:{8192 + 64*k}")
    return x
def c_epi(h, acc, O, GA, CB, XF, xid):
    XR = 24 + 4 * h
    wait_vm(xid)
    for q in range(4):
        I(f"v_lshlrev_b32 v{XF+2*q}, 16, v{XR+q}")
        I(f"v_and_b32 v{XF+2*q+1}, s{sHi}, v{XR+q}")
    wait_lg()
    half_sum(acc, O)
    for q in range(0, 8, 2):
        I(f"v_pk_fma_f32 {vr(O+q,2)}, {vr(O+q,2)}, {vr(GA+q,2)}, {vr(XF+q,2)}")
    for q in range(4):
        I(f"v_cvt_pk_bf16_f32 v{XR+q}, v{O+2*q}, v{O+2*q+1}")
    I(f"s_lshl_b32 s{sT0}, s{sP2}, 14")
    I(f"s_lshl_b32 s{sT1}, s{sP3}, 10")
    for q in range(4):
        I(f"v_lshlrev_b32 v{O+2*q}, 16, v{XR+q}")
        I(f"v_and_b32 v{O+2*q+1}, s{sHi}, v{XR+q}")
    I(f"s_add_u32 s{sT0}, s{sT0}, s{sT1}")
    I(f"s_add_u32 s{sT0}, s{sT0}, {WS_X1P + h*4*16384}")
    for q in range(0, 8, 2):
        I(f"v_pk_mul_f32 {vr(XF+q,2)}, {vr(O+q,2)}, {vr(CB+q,2)}")
    for q in range(4):
        I(f"v_cvt_pk_bf16_f32 v{XF+q}, v{XF+2*q}, v{XF+2*q+1}")
    xlast = I(f"buffer_store_dwordx4 {vr(XF,4)}, v{vL16}, {S(SWS)}, s{sT0} offen sc1")
    T = GA
    I(f"v_pk_add_f32 v[{T}:{T+1}], {vr(O,2)}, {vr(O+2,2)}")
    I(f"v_pk_add_f32 v[{T+2}:{T+3}], {vr(O+4,2)}, {vr(O+6,2)}")
    I(f"v_pk_add_f32 v[{T}:{T+1}], v[{T}:{T+1}], v[{T+2}:{T+3}]")
    I(f"v_add_f32 v{T}, v{T}, v{T+1}")
    I(f"v_mul_f32 v{T+2}, 0xbe000000, v{T}")
    for q in range(0, 8, 2):
        I(f"v_pk_add_f32 {vr(O+q,2)}, {vr(O+q,2)}, v[{T+2}:{T+3}] op_sel_hi:[1,0]")
    I(f"v_pk_mul_f32 v[{T+4}:{T+5}], {vr(O,2)}, {vr(O,2)}")
    I(f"v_pk_mul_f32 v[{T+6}:{T+7}], {vr(O+2,2)}, {vr(O+2,2)}")
    I(f"v_pk_fma_f32 v[{T+4}:{T+5}], {vr(O+4,2)}, {vr(O+4,2)}, v[{T+4}:{T+5}]")
    I(f"v_pk_fma_f32 v[{T+6}:{T+7}], {vr(O+6,2)}, {vr(O+6,2)}, v[{T+6}:{T+7}]")
    I(f"v_pk_add_f32 v[{T+4}:{T+5}], v[{T+4}:{T+5}], v[{T+6}:{T+7}]")
    I(f"v_add_f32 v{T+1}, v{T+4}, v{T+5}")
    for op, inv in (("v_permlane16_swap_b32", 0x3d800000), ("v_permlane32_swap_b32", 0x3d000000)):
        I(f"v_mov_b32 v{T+2}, v{T}")
        I(f"v_mov_b32 v{T+3}, v{T+1}")
        I(f"{op} v{T}, v{T+2}")
        I(f"{op} v{T+1}, v{T+3}")
        I(f"v_sub_f32 v{T+4}, v{T}, v{T+2}")
        I(f"v_add_f32 v{T}, v{T}, v{T+2}")
        I(f"v_add_f32 v{T+1}, v{T+1}, v{T+3}")
        I(f"v_mul_f32 v{T+4}, v{T+4}, v{T+4}")
        I(f"v_fmac_f32 v{T+1}, {inv:#x}, v{T+4}")
    I(f"v_lshlrev_b32 v{O}, 8, v20")
    I(f"v_mov_b32 v{T+2}, v{vTag}")
    I(f"v_mov_b32 v{T+3}, v{vTag}")
    I(f"v_mov_b32 v{O+1}, {OOB}")
    I(f"v_cmp_gt_u32 vcc, 16, v{vL}")
    I(f"v_cndmask_b32 v{O}, v{O+1}, v{O}, vcc")
    I(f"s_lshl_b32 s{sT0}, s{sP3}, 4")
    I(f"s_add_u32 s{sT0}, s{sT0}, {WS_STAT + h*64*256}")
    I(f"buffer_store_dwordx4 v[{T}:{T+3}], v{O}, {S(SWS)}, s{sT0} offen sc1")
    return xlast
def flag_at(base, grp, m, last):
    I(f"s_lshl_b32 s{sT0}, s{grp}, 4")
    I(f"s_add_u32 s{sT0}, s{sT0}, s{m}")
    I(f"s_lshl_b32 s{sT0}, s{sT0}, 7")
    I(f"s_add_u32 s{sT0}, s{sT0}, {base}")
    set_flag(sT0, last)

def c_compute(pids, hooks):
    ZF = 8; EPS = 16
    for e in range(4): I(f"v_mov_b32 v{EPS+e}, 0x358637bd")
    def us(u): return (u & 7) >> 1, 2 * (u >> 3) + (u & 1)
    def f0(u): s, r = us(u); return PHR(2 * s, r)
    def f1(u): s, r = us(u); return PHR(2 * s + 1, r)
    def buf(u):
        if u < 8: return [CAC(c, 2 + (u & 1)) for c in range(4)]
        k = 2 * (u & 1)
        return [PHR(k, 0), PHR(k + 1, 0), PHR(k, 1), PHR(k + 1, 1)]
    def s1(u):
        s, r = us(u); N0, D0, N1, D1 = buf(u)
        return [f"v_mfma_f32_16x16x32_bf16 {vr(D0,4)}, {vr(ZF+4*(s>>1),4)}, {vr(f0(u),4)}, {vr(EPS,4)}",
                f"v_mfma_f32_16x16x32_bf16 {vr(D1,4)}, {vr(ZF+4*(s>>1),4)}, {vr(f1(u),4)}, {vr(EPS,4)}",
                f"v_mfma_f32_16x16x32_bf16 {vr(N0,4)}, {vr(KB+8*s,4)}, {vr(f0(u),4)}, 0",
                f"v_mfma_f32_16x16x32_bf16 {vr(N1,4)}, {vr(KB+8*s+4,4)}, {vr(f1(u),4)}, 0"]
    def s2(u):
        s, r = us(u); N0, D0, N1, D1 = buf(u)
        d0 = D0 + ((2 * s) & 3); d1 = D1 + ((2 * s + 1) & 3)
        o = [f"v_rcp_f32 v6, v{d0}", f"v_rcp_f32 v7, v{d1}"]
        o += [f"v_mul_f32 v{N0+e}, v{N0+e}, v6" for e in range(4)]
        o += [f"v_cvt_pk_bf16_f32 v{f0(u)}, v{N0}, v{N0+1}", f"v_cvt_pk_bf16_f32 v{f0(u)+1}, v{N0+2}, v{N0+3}"]
        o += [f"v_mul_f32 v{N1+e}, v{N1+e}, v7" for e in range(4)]
        o += [f"v_cvt_pk_bf16_f32 v{f0(u)+2}, v{N1}, v{N1+1}", f"v_cvt_pk_bf16_f32 v{f0(u)+3}, v{N1+2}, v{N1+3}"]
        return o
    def s3(u):
        s, r = us(u)
        return [f"v_mfma_f32_16x16x32_bf16 {vr(CAC(c,r),4)}, {ar(WOF+(s*4+c)*4,4)}, {vr(f0(u),4)}, {vr(CAC(c,r),4) if s else 0}" for c in range(4)]
    wait_vm(pids[0])
    for m in s1(0): I(m)
    for u in range(17):
        if u in hooks: hooks[u]()
        if u + 1 < 16: wait_vm(pids[u + 1])
        mf = (s3(u - 1) if u >= 1 else []) + (s1(u + 1) if u + 1 < 16 else [])
        va = s2(u) if u < 16 else []
        k = 0
        for m in mf:
            I(m)
            for _ in range(2):
                if k < len(va): I(va[k]); k += 1
        while k < len(va): I(va[k]); k += 1

L_U = L_MISC + 3072
def u12_all():
    I(f"v_lshrrev_b32 v6, 3, v{vT}")
    I(f"v_lshlrev_b32 v7, 10, v6")
    I(f"v_lshl_add_u32 v7, v{vG}, 4, v7")
    I(f"v_add_u32 v7, {L_UV}, v7")
    R = 64; UA = 192
    for q in range(4):
        I(f"s_lshr_b32 s{sT0}, s{sKM+q}, 1")
        I(f"v_add_u32 v13, s{sT0}, v7")
        for s in range(4):
            I(f"ds_read_b128 {vr(R+4*(4*q+s),4)}, v13 offset:{64*s}")
    I(f"s_mul_i32 s{sT0}, s{sW}, 384")
    I(f"s_add_u32 s{sT0}, s{sT0}, {L_UW}")
    I(f"v_lshlrev_b32 v6, 6, v6")
    I(f"v_lshl_add_u32 v6, v{vG}, 4, v6")
    I(f"v_add_u32 v6, s{sT0}, v6")
    I(f"v_add_u32 v55, {L_DUMMY}, v{vL16}")
    I(f"v_and_b32 v13, 7, v{vT}")
    I(f"v_cmp_eq_u32 vcc, 0, v13")
    I(f"v_cndmask_b32 v55, v55, v6, vcc")
    wait_lg()
def u12_mm(k0, k1):
    R = 64; UA = 192
    for ks in range(k0, k1):
        for c in range(3):
            acc = vr(UA + 4 * c, 4)
            I(f"v_mfma_f32_16x16x32_bf16 {acc}, {ar(GF(c,ks),4)}, {vr(R+4*ks,4)}, {acc if ks else 0}")
    if k1 == 16:
        for c in range(3):
            I(f"ds_write_b128 v55, {vr(UA+4*c,4)} offset:{128*c}")

def DF(j, c): return (192 + (j * 4 + c) * 4) if j < 4 else ((j - 4) * 4 + c) * 4
WDSLOT = {0: 6, 1: 7, 2: 0, 3: 1, 4: 2, 5: 0, 6: 3, 7: 1, 8: 4, 9: 5, 10: 6}
vWD = 12
def wd_setup():
    TMPV[:] = [6, 7, 17, 18]
    rows128_voff(vWD, 1024, True)
    I(f"s_mul_i32 s{sB1}, s{sW}, {352*1024}")
    I(f"s_lshl_b32 s{sB2}, s{sCtC}, 7")
    I(f"s_add_u32 s{sB1}, s{sB1}, s{sB2}")
    I(f"v_bfe_u32 v6, v{vL}, 2, 2")
    I(f"v_lshl_add_u32 v6, v{vG}, 3, v6")
    I(f"v_lshlrev_b32 v6, 7, v6")
    I(f"v_bfe_u32 v7, v{vL}, 3, 2")
    I(f"s_and_b32 s{sB2}, s{sW}, 2")
    I(f"v_xor_b32 v7, s{sB2}, v7")
    I(f"v_lshl_add_u32 v6, v7, 5, v6")
    I(f"v_and_b32 v7, 3, v{vL}")
    I(f"v_lshl_add_u32 v6, v7, 3, v6")
    I(f"v_add_u32 v16, s{sW4096}, v6")
    for c in range(1, 4):
        I(f"v_xor_b32 v{16+c}, {32*c}, v16")
def wd_dma(j):
    return dma4(vWD, S(SWD), sW4096, WDSLOT[j] * 16 * K, sB1, j * 32768)
def wd_tr(j, last):
    if last is not None: wait_vm(last)
    off = (WDSLOT[j] & 3) * 16 * K
    out = None
    for c in range(4):
        f = DF(j, c)
        I(f"ds_read_b64_tr_b16 {ar(f,2)}, v{16+c} offset:{off}")
        out = I(f"ds_read_b64_tr_b16 {ar(f+2,2)}, v{16+c} offset:{off+512}")
    return out
def wd_hi():
    for c in range(4): I(f"v_xor_b32 v{16+c}, {64*K}, v{16+c}")

L_XCH = 128 * K
L_RS = L_MISC
AF = 64; SR = 32
def DAC(p, c, sl): return 128 + p * 48 + (c * 4 + sl) * 4
vFl, vFt, vAs = 60, 61, 62
def d_setup():
    I(f"s_lshl_b32 s{sT0}, s{sGrpD}, 11")
    I(f"s_add_u32 s{sT0}, s{sT0}, {WS_FX}")
    I(f"v_lshlrev_b32 v{vFl}, 7, v{vT}")
    I(f"v_add_u32 v{vFl}, s{sT0}, v{vFl}")
    pid = poll_issue(vFl, vFt)
    I(f"s_lshl_b32 s{sT0}, s{sGrpD}, 3")
    I(f"s_add_u32 s{sT0}, s{sT0}, s{sW}")
    I(f"s_lshl_b32 s{sT0}, s{sT0}, 14")
    I(f"s_add_u32 s{sT0}, s{sT0}, {WS_X1P}")
    I(f"v_add_u32 v{vAs}, s{sT0}, v{vL16}")
    I(f"s_lshl_b32 s{sP0}, s{sGrpD}, 15")
    I(f"s_add_u32 s{sP0}, s{sP0}, {WS_STAT}")
    I(f"s_add_u32 s{sP0}, s{sP0}, s{sW4096}")
    I(f"s_and_b32 s{sT1}, s{sW}, 1")
    I(f"s_lshl_b32 s{sT1}, s{sT1}, 13")
    I(f"v_add_u32 v8, s{sT1}, v{vL16}")
    I(f"v_xor_b32 v9, 8192, v8")
    I(f"v_add_u32 v10, 65536, v8")
    I(f"v_add_u32 v11, 65536, v9")
    I(f"s_lshl_b32 s{sT0}, s{sW}, 7")
    I(f"s_add_u32 s{sT0}, s{sT0}, {L_RS}")
    I(f"v_lshlrev_b32 v53, 3, v{vG}")
    I(f"v_add_u32 v53, s{sT0}, v53")
    I(f"v_lshlrev_b32 v52, 3, v{vL}")
    I(f"v_add_u32 v52, {L_DUMMY}, v52")
    I(f"v_cmp_eq_u32 vcc, 0, v{vT}")
    I(f"v_cndmask_b32 v53, v52, v53, vcc")
    return pid
def d_adma(h, q):
    return dma4([vAs] * 4, S(SWS), sW4096, h * 64 * K + q * 16 * K, sK + q, h * 65536, " sc1")
def d_stat_loads(h):
    I(f"s_add_u32 s{sT3}, s{sP0}, {h*16384}")
    for k in range(4):
        sid = I(f"buffer_load_dwordx4 {vr(SR+4*k,4)}, v{vL16}, {S(SWS)}, s{sT3} offen offset:{1024*k} sc1")
    return sid
def d_stat_check(h, sid):
    def checks():
        I(f"v_xor_b32 v6, v{SR+2}, v{vTag}")
        for q in range(1, 4):
            I(f"v_bitop3_b32 v6, v6, v{SR+4*q+2}, v{vTag} bitop3:0xf6")
        I("v_cmp_ne_u32 vcc, 0, v6")
    wait_vm(sid)
    checks()
    def body():
        d_stat_loads(h); I("s_waitcnt vmcnt(0)"); A.vm = []; checks()
    spin_loop(body, first_done=True)
def d_stat(h, part):
    DP = ["row_ror:8", "row_ror:4", "row_ror:2", "row_ror:1"]
    if part == 0:
        for k in range(4): I(f"v_mov_b32 v{SR+4*k+2}, v{SR+4*k}")
        for d in DP:
            for k in range(4):
                I(f"v_add_f32_dpp v{SR+4*k+2}, v{SR+4*k+2}, v{SR+4*k+2} {d} row_mask:0xf bank_mask:0xf")
        for k in range(4):
            I(f"v_fmac_f32 v{SR+4*k}, 0xbd800000, v{SR+4*k+2}")
        for k in range(4):
            I(f"v_mul_f32 v{SR+4*k}, v{SR+4*k}, v{SR+4*k}")
        for k in range(4):
            I(f"v_fmac_f32 v{SR+4*k+1}, 0x3d000000, v{SR+4*k}")
        return
    for d in DP:
        for k in range(4):
            I(f"v_add_f32_dpp v{SR+4*k+1}, v{SR+4*k+1}, v{SR+4*k+1} {d} row_mask:0xf bank_mask:0xf")
    for k in range(4): I(f"v_mov_b32 v{SR+4*k}, 0x3727c5ac")
    for k in range(4): I(f"v_fmac_f32 v{SR+4*k}, 0x3b000000, v{SR+4*k+1}")
    for k in range(4): I(f"v_rsq_f32 v{SR+4*k}, v{SR+4*k}")
    for k in range(4): I(f"v_mul_f32 v{SR+4*k+1}, 0xbb000000, v{SR+4*k+2}")
    for k in range(4): I(f"v_mul_f32 v{SR+4*k+1}, v{SR+4*k+1}, v{SR+4*k}")
    for k in range(4): I(f"ds_write_b64 v53, {vr(SR+4*k,2)} offset:{h*512 + 32*k}")

def d_rd(p, ks, sl):
    b = AF + (ks % 3) * 16 + 4 * sl
    q, s = ks >> 2, ks & 3
    base = (8 if sl < 2 else 9) + 2 * p
    return I(f"ds_read_b128 {vr(b,4)}, v{base} offset:{q*16*K + (sl&1)*4096 + s*1024}")
def d_pass(p, aids, bgf, pre):
    wait_vm(aids[0]); barrier()
    rds = {0: [d_rd(p, 0, sl) for sl in range(4)], 1: [d_rd(p, 1, sl) for sl in range(4)]}
    for k2 in range(0, 16, 2):
        def main():
            for ks in (k2, k2 + 1):
                if ks in (4, 8, 12): I("s_barrier")
                if ks + 2 < 16 and (ks + 2) % 4 == 0:
                    wait_vm(aids[(ks + 2) >> 2]); I("s_barrier")
                nxt = []
                for sl in range(4):
                    if ks + 2 < 16: nxt.append(d_rd(p, ks + 2, sl))
                    if sl == 0: wait_lg(rds[ks][3])
                    for c in range(3):
                        acc = vr(DAC(p, c, sl), 4)
                        I(f"v_mfma_f32_16x16x32_bf16 {acc}, {ar(GF(c,ks),4)}, {vr(AF+(ks%3)*16+4*sl,4)}, {acc if ks else 0}")
                rds[ks + 2] = nxt
        if p == XST - 1 and k2 < 14: xstamp()
        pre(k2)
        rb_ = rec(bgf, k2); rm = rec(main)
        merge_mfma(A, rm, [rb_])

def d_epi_setup():
    I(f"s_and_b32 s{sT1}, s{sW}, 1")
    I(f"s_lshl_b32 s{sT1}, s{sT1}, 8")
    I(f"s_add_u32 s{sT1}, s{sT1}, {L_RS}")
    I(f"v_lshlrev_b32 v56, 3, v{vT}")
    I(f"v_add_u32 v56, s{sT1}, v56")
    I(f"s_mul_i32 s{sT0}, s{sW}, 384")
    I(f"s_add_u32 s{sT0}, s{sT0}, {L_UW}")
    I(f"v_lshlrev_b32 v57, 4, v{vG}")
    I(f"v_add_u32 v57, s{sT0}, v57")
    I(f"s_lshl_b32 s{sT0}, s{sW}, 11")
    I(f"s_add_u32 s{sT0}, s{sT0}, {L_XCH}")
    I(f"v_add_u32 v58, s{sT0}, v{vL16}")
    I(f"v_and_b32 v59, 1, v{vG}")
    I(f"v_mul_u32_u24 v59, {43*1024}, v59")
    I(f"v_lshrrev_b32 v63, 1, v{vG}")
    I(f"v_lshl_add_u32 v59, v63, 8, v59")
    I(f"v_lshl_add_u32 v59, v{vT}, 4, v59")
    I(f"s_mul_i32 s{sT0}, s{sGrpD}, {8*43*1024}")
    I(f"s_add_u32 s{sT0}, s{sT0}, {WS_HH}")
    for dst, tile in ((sP1, sTx), (sHead, sTz)):
        I(f"s_add_u32 s{dst}, s{sFt0}, s{tile}")
        I(f"s_lshl_b32 s{dst}, s{dst}, 9")
        I(f"s_add_u32 s{dst}, s{dst}, s{sT0}")
def d_epi(p):
    RS = 32; U = 40 - 0;
    U = 224
    barrier()
    I(f"v_xor_b32 v63, 256, v56")
    for sl in (2, 3, 0, 1):
        I(f"ds_read_b64 {vr(RS+2*sl,2)}, v{56 if sl < 2 else 63} offset:{p*512 + (sl&1)*128}")
    if p == 0:
        for c in (2, 0, 1):
            I(f"ds_read_b128 {vr(U+8*c,4)}, v57 offset:{128*c}")
            I(f"ds_read_b128 {vr(U+8*c+4,4)}, v57 offset:{128*c+64}")
    I(f"s_and_b32 s{sT1}, s{sW}, 1")
    I(f"s_mul_i32 s{sT1}, s{sT1}, {2*43*1024}")
    I(f"s_xor_b32 s{sT2}, s{sT1}, {2*43*1024}")
    wait_lg()
    tc = [0]
    def fix(c, sl):
        a = DAC(p, c, sl)
        for e in (0, 2):
            t = 40 + 2 * (tc[0] & 3); tc[0] += 1
            I(f"v_pk_fma_f32 {vr(t,2)}, {vr(U+8*c+e,2)}, {vr(RS+2*sl,2)}, {vr(U+8*c+4+e,2)} op_sel:[0,1,0] op_sel_hi:[1,1,1]")
            I(f"v_pk_fma_f32 {vr(a+e,2)}, {vr(a+e,2)}, {vr(RS+2*sl,2)}, {vr(t,2)} op_sel_hi:[1,0,1]")
    for sl in (2, 3):
        fix(2, sl)
        I(f"ds_write_b128 v58, {vr(DAC(p,2,sl),4)} offset:{(sl-2)*1024}")
    def hh_pack(dst, ga, ua):
        for e in (0, 2):
            I(f"v_pk_mul_f32 {vr(ga+e,2)}, {vr(ga+e,2)}, {vr(ua+e,2)}")
        I(f"v_cvt_pk_bf16_f32 v{dst}, v{ga}, v{ga+1}")
        I(f"v_cvt_pk_bf16_f32 v{dst+1}, v{ga+2}, v{ga+3}")
    def store_pair(d, slot, base_s, ga0, ua0, ga1, ua1):
        hh_pack(d, ga0, ua0)
        hh_pack(d + 2, ga1, ua1)
        I(f"s_add_u32 s{sT0}, s{base_s}, s{sT1 if slot < 2 else sT2}")
        I(f"s_add_u32 s{sT0}, s{sT0}, {p*4*43*1024}")
        I(f"v_permlane16_swap_b32 v{d}, v{d+2}")
        I(f"v_permlane16_swap_b32 v{d+1}, v{d+3}")
        return I(f"buffer_store_dwordx4 {vr(d,4)}, v59, {S(SWS)}, s{sT0} offen sc1")
    for k, sl in enumerate((0, 2)):
        for c in (0, 1):
            fix(c, sl); fix(c, sl + 1)
        store_pair(72 + 4 * k, sl, sP1, DAC(p,0,sl), DAC(p,1,sl), DAC(p,0,sl+1), DAC(p,1,sl+1))
        if k == 0:
            barrier()
            I(f"v_xor_b32 v63, 2048, v58")
            for s2 in range(2):
                I(f"ds_read_b128 {vr(DAC(p,2,2+s2),4)}, v63 offset:{s2*1024}")
    for sl in range(2): fix(2, sl)
    wait_lg()
    return store_pair(DAC(p,0,0), 0, sHead, DAC(p,2,0), DAC(p,2,2), DAC(p,2,1), DAC(p,2,3))

EQ = list(range(96, 176, 4)) + [64, 68]
def EAR(j, rho): return EQ[j * 2 + rho]
def ECC(k, r4): return 176 + (r4 * 4 + k) * 4
def e_setup():
    I(f"s_lshl_b32 s{sT0}, s{sGrpC}, 11")
    I(f"s_add_u32 s{sT0}, s{sT0}, {WS_FH}")
    I(f"v_lshlrev_b32 v{vFl}, 7, v{vT}")
    I(f"v_add_u32 v{vFl}, s{sT0}, v{vFl}")
    rt_offsets(43 * 1024)
    I(f"s_mul_i32 s{sT0}, s{sGrpC}, {8*43*1024}")
    I(f"s_mul_i32 s{sT1}, s{sW}, {11*1024}")
    I(f"s_add_u32 s{sT0}, s{sT0}, s{sT1}")
    I(f"s_add_u32 s{sT0}, s{sT0}, {WS_HH}")
    I(f"v_add_u32 v248, s{sT0}, v{vL16}")
    I(f"v_add_u32 v249, 4096, v248")
    I(f"v_add_u32 v250, 8192, v248")
    I(f"s_cmp_eq_u32 s{sW}, 3")
    I(f"s_cselect_b32 s{sT0}, 1024, 0")
    I(f"v_subrev_u32 v251, s{sT0}, v250")
    return poll_issue(vFl, vFt)
def e_ld(h, j, rho):
    base = 251 if j == 10 else 248 + (j >> 2)
    return I(f"buffer_load_dwordx4 {vr(EAR(j,rho),4)}, v{base}, {S(SWS)}, s{sR+2*h+rho} offen offset:{(j&3)*1024} sc1")
def e_mm(h, ids, trw, late, j0=0, j1=11):
    for j in range(j0, j1):
        if j in trw: wait_lg(trw[j])
        for rho in range(2):
            if (j, rho) in late: ids[late[(j, rho)]] = e_ld(h, *late[(j, rho)])
            wait_vm(ids[(j, rho)])
            for c in range(4):
                acc = vr(ECC(c, 2 * h + rho), 4)
                I(f"v_mfma_f32_16x16x32_bf16 {acc}, {ar(DF(j,c),4)}, {vr(EAR(j,rho),4)}, {acc if j else 0}")
def e_fin(h, GB):
    O = 32 + 16 * h; XF = 40 + 16 * h; XR = 24 + 4 * h
    acc = lambda k, rho: ECC(k, 2 * h + rho)
    for q in range(4):
        I(f"v_lshlrev_b32 v{XF+2*q}, 16, v{XR+q}")
        I(f"v_and_b32 v{XF+2*q+1}, s{sHi}, v{XR+q}")
    wait_lg()
    half_sum(acc, O)
    for q in range(0, 8, 2):
        I(f"v_pk_fma_f32 {vr(O+q,2)}, {vr(O+q,2)}, {vr(GB+q,2)}, {vr(XF+q,2)}")
    for q in range(4):
        I(f"v_cvt_pk_bf16_f32 v{XF+q}, v{O+2*q}, v{O+2*q+1}")
    I(f"s_lshl_b32 s{sT1}, s{sP3}, 6")
    if h: I(f"s_add_u32 s{sT1}, s{sT1}, 65536")
    I(f"v_permlane16_swap_b32 v{XF}, v{XF+2}")
    I(f"v_permlane16_swap_b32 v{XF+1}, v{XF+3}")
    I(f"buffer_store_dwordx4 {vr(XF,4)}, v21, {S(SOUT)}, s{sT1} offen")

def write_epoch():
    I(f"s_lshl_b32 s{sT0}, s2, 8")
    I(f"v_or_b32 v6, s{sT0}, v{vTid}")
    I(f"v_cmp_eq_u32 vcc, 0, v6")
    I(f"v_mov_b32 v7, {OOB}")
    I(f"v_cndmask_b32 v7, v7, {WS_EPOCH}, vcc")
    I(f"buffer_store_dword v{vTag}, v7, {S(SWS)}, 0 offen")

def body():
    aids = prologue()
    stamp()
    xids = x_issue()
    consts()
    wq_addr()
    h_addr()
    phaseA_compute(aids)
    stamp()
    wphi_issue()
    wids = {}
    r1 = rec(layernorm, xids)
    r2 = rec(lambda: (wq_dma(0), wq_dma(1), gm_issue([0], 40)))
    merge(A, [r1, r2], [(0, 1), (0, 0.9)])
    wids[0], wids[1], gid = r2.ret
    stamp()
    wait_vm(wids[0]); barrier()
    r1 = rec(wq_tr, 0); r2 = rec(lambda: (wq_dma(2), pf_wo())[0])
    merge(A, [r1, r2]); wids[2] = r2.ret
    stamp()
    gm_finish([0], 40, gid)
    barrier()
    stamp()
    r1 = rec(make_h_first); r2 = rec(wq_tr, 1)
    merge(A, [r1, r2], [(0, 1), (0.12, 0.6)])
    wphi_pack()
    barrier()
    cur = {k: [a_rd(k, rt) for rt in range(4)] for k in range(2)}
    rm = rec(gemm_kv, 0, 4, cur); rc = rec(lambda: (wq_dma(3), pf_gu(), pf_wd())[0])
    merge_mfma(A, rm, [rc]); wids[3] = rc.ret
    wait_vm(wids[2]); I("s_barrier")
    rwo = rec(wo_dma)
    nset = rwo.first_dma
    setup = Rec(); setup.ops = rwo.ops[:nset]; rwo.ops = rwo.ops[nset:]
    rm = rec(gemm_kv, 4, 6, rm.ret); rc = rec(wq_tr, 2)
    merge_mfma(A, rm, [rc, setup], [(0, 0.8), (0, 1)])
    wait_vm(wids[3]); barrier()
    rm = rec(gemm_kv, 6, 10, rm.ret); rb_ = rec(make_h_do, 3, 240, False, -1); rc = rec(wq_tr, 3)
    merge_mfma(A, rm, [rb_, rc], [(0, 0.95), (0, 0.95)])
    barrier()
    rm = rec(gemm_kv, 10, 16, rm.ret); rc = rec(wgu_setup)
    merge_mfma(A, rm, [rwo, rc], [(0, 0.6), (0.62, 1)])
    wo_last = rwo.ret
    if STOP == 1:
        A.fence(16)
        dbg_dump([vr(accQ(k), 4) for k in range(4)] + [vr(accK(k), 4) for k in range(4)] + [vr(accV(k), 4) for k in range(4)], 0)
        return
    I("s_barrier")
    stamp()
    g = {}
    rm = rec(epi_k); rb_ = rec(wgu_dma, 0)
    merge(A, [rm, rb_], [(0, 1), (0, 0.7)])
    g[0] = rb_.ret
    wo_tr(wo_last)
    barrier()
    stamp()
    rm = rec(epi_q); rc = rec(kv_reduce_issue); rb_ = rec(wgu_dma, 1)
    merge(A, [rm, rc, rb_], [(0, 1), (0.55, 0.75), (0.0, 0.55)])
    g[1] = rb_.ret
    stamp()
    kv_reduce_finish(rc.ret)
    wgu_traddr()
    stamp()
    set_flag(sT1, rm.ret)
    stamp()
    if STOP == 2: return
    gid = gm_issue([1, 2], 192)
    wgu_tr(0); wgu_tr(1)
    barrier()
    r1 = rec(lambda: (wgu_dma(2), wgu_dma(3))); r2 = rec(lambda: (kv_addr(), phiq_load())[1])
    merge(A, [r1, r2], [(0, 1), (0.3, 1)])
    g[2], g[3] = r1.ret; pid = r2.ret
    gm_finish([1, 2], 192, gid)
    kid = kv_loads()
    wait_vm(g[3]); barrier()
    stamp()
    pids = {}
    poll_finish(20, 21, pid)
    r1 = rec(phiq_loads, pids, 0); r2 = rec(lambda: (wgu_tr(2), wgu_tr(3)))
    merge(A, [r1, r2])
    stamp()
    kv_finish(kid)
    kv_pack()
    stamp()
    st = {}
    accA = lambda k, rho: CAC(k, rho)
    accB = lambda k, rho: CAC(k, 2 + rho)
    rg = rec(phiq_loads, pids, 1)
    parts = [rg.ops[k*8:(k+1)*8] for k in range(4)]
    def hg(k):
        def f():
            r_ = Rec(); r_.ops = parts[k]; merge(A, [r_])
        return f
    def h4(): st["x"] = c_setup()
    def h9(): half_send(accA, L_RED, 6)
    def h10():
        barrier()
        half_recv(accA, L_RED, 6); c_epi_rd(144, 160)
    def h11():
        st["xa"] = c_epi(0, accA, 128, 144, 160, 176, st["x"])
    def h15(): flag_at(WS_FX, sGrpC, sMC, st["xa"])
    c_compute(pids, {0: hg(0), 1: hg(1), 2: hg(2), 3: hg(3), 5: h4, 9: h9, 10: h10, 11: h11, 15: h15})
    stamp()
    half_send(accB, L_RED + 24 * K, 6)
    c_epi_rd(144, 160)
    barrier()
    half_recv(accB, L_RED + 24 * K, 6)
    xb = c_epi(1, accB, 128, 144, 160, 176, st["x"])
    stamp()
    if STOP == 3:
        flag_at(WS_FX + 0x10000, sGrpC, sMC, xb)
        return
    pid = d_setup()
    u12_all()
    rm = rec(u12_mm, 0, 9); rb_ = rec(lambda: (wd_setup(), d_epi_setup()))
    merge_mfma(A, rm, [rb_])
    flag_at(WS_FX + 0x10000, sGrpC, sMC, xb)
    poll_finish(vFl, vFt, pid)
    stamp()
    aA = [d_adma(0, 0)]
    rm = rec(u12_mm, 9, 16); rb_ = rec(lambda: (d_stat_loads(0), [d_adma(0, q) for q in (1, 2, 3)]))
    merge_mfma(A, rm, [rb_])
    sid = rb_.ret[0]; aA += rb_.ret[1]
    I(f"v_add_u32 v{vFl}, 0x10000, v{vFl}")
    stamp()
    wd = {}; aB = []; dd = {}
    def bgA(ks):
        if ks == 0: wd[0] = wd_dma(0); dd["p"] = poll_issue(vFl, vFt)
        if ks == 2: wd[1] = wd_dma(1)
        if ks == 4: wd[2] = wd_dma(2)
        if ks == 6: aB.append(d_adma(1, 0)); d_stat(0, 0)
        if ks == 8:
            aB.append(d_adma(1, 1)); wd_hi(); wd_tr(0, wd[0]); dd["t"] = wd_tr(1, wd[1]); wd_hi()
        if ks == 10: wait_lg(dd["t"]); aB.append(d_adma(1, 2)); wd[3] = wd_dma(3)
        if ks == 12: aB.append(d_adma(1, 3)); dd["t"] = wd_tr(2, wd[2])
        if ks == 14: wd[4] = wd_dma(4); d_stat(0, 1)
    def preA(ks):
        if ks == 6: poll_finish(vFl, vFt, dd["p"]); d_stat_check(0, sid)
    d_pass(0, aA, bgA, preA)
    stamp()
    ha = d_epi(0)
    stamp()
    def bgB(ks):
        if ks == 0: dd["s"] = d_stat_loads(1); wd[5] = wd_dma(5); dd["t"] = wd_tr(3, wd[3])
        if ks == 2: wd[6] = wd_dma(6)
        if ks == 4: wait_lg(dd["t"]); wd[7] = wd_dma(7)
        if ks == 6: wd[8] = wd_dma(8)
        if ks == 8: wd[9] = wd_dma(9)
        if ks == 10: dd["e"] = e_setup()
        if ks == 12: wd[10] = wd_dma(10); d_stat(1, 0)
        if ks == 14: d_stat(1, 1)
    def preB(ks):
        if ks == 4: flag_at(WS_FH, sGrpD, sMD, ha)
        if ks == 10: d_stat_check(1, dd["s"])
    d_pass(1, aB, bgB, preB)
    stamp()
    poll_finish(vFl, vFt, dd["e"])
    ea = {}
    for j in range(6):
        for rho in range(2): ea[(j, rho)] = e_ld(0, j, rho)
    hb = d_epi(1)
    if STOP == 4:
        flag_at(WS_FH + 0x10000, sGrpD, sMD, hb)
        return
    stamp()
    I(f"v_add_u32 v{vFl}, 0x10000, v{vFl}")
    trw = {}
    def trs(j0, j1):
        for j in range(j0, j1):
            if j == 8: wd_hi()
            trw[j] = wd_tr(j, None)
    order = [(j, rho) for j in range(11) for rho in range(2)]
    rb_ = rec(trs, 4, 8); rm = rec(e_mm, 0, ea, trw, {order[k]: order[12 + k] for k in range(8)}, 0, 4)
    merge_mfma(A, rm, [rb_])
    flag_at(WS_FH + 0x10000, sGrpD, sMD, hb)
    rb_ = rec(lambda: (trs(8, 11), pad(300), poll_issue(vFl, vFt))[2]); rm = rec(e_mm, 0, ea, trw, {order[8 + k]: order[20 + k] for k in range(2)}, 4, 11)
    merge_mfma(A, rm, [rb_], [(0, 1.0)])
    dd["f"] = rb_.ret
    stamp()
    accEa = lambda k, rho: ECC(k, rho)
    accEb = lambda k, rho: ECC(k, 2 + rho)
    poll_finish(vFl, vFt, dd["f"])
    eb = {}
    for jr in order[:14]: eb[jr] = e_ld(1, *jr)
    barrier()
    half_send(accEa, 0, 6)
    GB = 240
    for k in range(2):
        I(f"ds_read_b128 {vr(GB+4*k,4)}, v22 offset:{10240 + 64*k}")
    I(f"v_lshlrev_b32 v21, 10, v20")
    I(f"v_and_b32 v7, 1, v{vG}")
    I(f"v_lshl_add_u32 v21, v7, 5, v21")
    I(f"v_lshrrev_b32 v7, 1, v{vG}")
    I(f"v_lshl_add_u32 v21, v7, 4, v21")
    barrier()
    half_recv(accEa, 0, 6)
    e_fin(0, GB)
    stamp()
    e_mm(1, eb, {}, {order[k]: order[14 + k] for k in range(8)})
    stamp()
    half_send(accEb, 24 * K, 6)
    barrier()
    half_recv(accEb, 24 * K, 6)
    e_fin(1, GB)
    stamp()

hdr = open(f"cdna_kernels/{NAME}.s.ref").read().split("; Override launch")[0]
A.raw(hdr.rstrip())
A.raw(f"; @launch grid=(256,1,1) block=(256,1,1) lds={LDS_BYTES}")
A.raw('.amdgcn_target "amdgcn-amd-amdhsa--gfx950"')
A.raw(".text")
A.raw(f".globl {NAME}_kernel")
A.raw(".p2align 8")
A.raw(f".type {NAME}_kernel,@function")
A.raw(f"{NAME}_kernel:")
body()
write_epoch()
stamp_out()
A.raw("L_end:")
I("s_endpgm")
A.raw("L_code_end:")
A.raw('.section .rodata,"a"')
A.raw(".p2align 6")
A.raw(f".amdhsa_kernel {NAME}_kernel")
A.raw("  .amdhsa_next_free_vgpr 512")
A.raw("  .amdhsa_next_free_sgpr 102")
A.raw("  .amdhsa_accum_offset 256")
A.raw("  .amdhsa_group_segment_fixed_size 0")
A.raw("  .amdhsa_kernarg_size 104")
A.raw("  .amdhsa_user_sgpr_count 2")
A.raw("  .amdhsa_user_sgpr_kernarg_segment_ptr 1")
A.raw("  .amdhsa_system_sgpr_workgroup_id_x 1")
A.raw(".end_amdhsa_kernel")
out = sys.argv[1] if len(sys.argv) > 1 else f"cdna_kernels/{NAME}.s"
open(out, "w").write(A.text())
print("instructions:", A.ninstr, "stamps:", stamp_idx[0], "->", out)
```

```python
import sys
from asmlib import *

NAME = "adaLN_cond__linear_kernel_hedgehog__glu_gated_bilinear__prompt"
STOP = int(sys.argv[2]) if len(sys.argv) > 2 else 99
STAMP = int(sys.argv[3]) if len(sys.argv) > 3 else 0
XST = int(sys.argv[4]) if len(sys.argv) > 4 else 0

WS_EPOCH = 0
WS_FQ = 0x80000
WS_FX = 0x88000
WS_FH = 0x90000
WS_MODF = 0x10000
WS_KVF = 0x20000
WS_STAT = 0x340000
WS_KVP = 0x100000
WS_PHIQ = 0x400000
WS_X1P = 0x800000
WS_HH = 0xA00000
WS_DBG = 0x1000000
WS_STAMP = 0x1F00000
WS_SIZE = 0x2000000
OOB = 0x7ffffff0
KVREC = 2176
K = 1024
L_MODV = 144 * K
L_MISC = 156 * K
L_UW = L_MODV
L_DUMMY = L_MODV + 2048
L_UV = L_MISC + 1024
LDS_BYTES = 160 * K
SPIN = 400000

sTag, sW, sJ = 4, 5, 6
sCtB, sRbB, sCtC, sRbC, sGrpC, sMC, sGrpD, sMD = 7, 8, 9, 10, 36, 37, 38, 39
sT0, sT1, sT2, sT3, sCnt = 11, 12, 13, 14, 15
sK, sKW, sKM = 16, 20, 24
sW4096 = 28
sP0, sP1, sP2, sP3 = 29, 30, 31, 32
sFt0, sHead, sB0 = 33, 34, 35
sTx, sTz, sB1, sB2 = 40, 41, 42, 43
SX, SWQKV, SWPHI, SWO, SWG, SWU, SWD, SC, SWMOD, SOUT, SWS = 44, 48, 52, 56, 60, 64, 68, 72, 76, 80, 84
SGU = 72
sR = 76
sSel = 88
sSelA, sSelB = 92, 93
sL, sL2, sNL, sNL2 = 94, 95, 96, 97
sHi = 98
sSelHi = 99
sSelLL = 3

A = Asm(); A.phmap = {}
class Em: pass
E = Em(); E.t = A
def I(t): return E.t.I(t)
def _ph(x):
    if E.t is A and x is not None and not isinstance(x, int): return A.phmap[x]
    return x
def wait_vm(x=None): E.t.wait_vm(_ph(x))
def wait_lg(x=None): E.t.wait_lg(_ph(x))
def barrier(): E.t.barrier()
def rec(fn, *a):
    r = Rec(); old = E.t; E.t = r
    ret = fn(*a)
    E.t = old
    r.ret = ret
    return r
def gbegin():
    if E.t is not A: E.t.begin()
def gend():
    if E.t is not A: E.t.end()
def pad(c):
    if E.t is not A: E.t.pad(c)

def srd(base, ptr, nbytes):
    I(f"s_mov_b32 s{base}, s{ptr}")
    I(f"s_and_b32 s{base+1}, s{ptr+1}, 0xffff")
    I(f"s_mov_b32 s{base+2}, {nbytes}")
    I(f"s_mov_b32 s{base+3}, 0x20000")
def S(b): return sr(b, 4)

vTid, vL, vG, vT, vTag, vL16 = 0, 1, 2, 3, 4, 5

stamp_idx = [0]
DBGSET = [0, 1, 2, 4, 5, 6, 8, 9, 12, 13, 14, 16, 17, 18, 19, 20]
def stamp():
    if not STAMP: return
    n = stamp_idx[0]; stamp_idx[0] += 1
    if STAMP == 4:
        if n == XST:
            I("s_memrealtime s[100:101]"); I("s_waitcnt lgkmcnt(0)"); A.lg = []; I("s_mov_b32 s0, s100")
        return
    if STAMP == 3:
        if n not in DBGSET: return
        n = DBGSET.index(n)
    I("s_memrealtime s[100:101]" if STAMP != 2 else "s_memtime s[100:101]")
    I("s_waitcnt lgkmcnt(0)")
    A.lg = []
    I("v_mov_b32 v6, s100")
    I(f"v_lshlrev_b32 v7, 1, v{vTid}")
    I(f"v_and_b32 v7, 0x180, v7")
    I(f"s_lshl_b32 s100, s2, 9")
    I(f"s_add_u32 s100, s100, {WS_STAMP + 4*n}")
    I(f"buffer_store_dword v6, v7, {S(SWS)}, s100 offen")
def stamp_out():
    if STAMP == 4:
        A.raw("L_padloop:")
        I("s_memrealtime s[100:101]"); I("s_waitcnt lgkmcnt(0)"); I("s_sub_u32 s100, s100, s0"); I("s_cmp_lt_u32 s100, 6000"); I("s_cbranch_scc1 L_padloop")
    if STAMP != 3: return
    I("s_cmp_lg_u32 s2, 100")
    I("s_cbranch_scc1 L_end")
    I(f"s_load_dwordx2 s[20:21], s[0:1], 88")
    I("s_waitcnt vmcnt(0) lgkmcnt(0)")
    srd(16, 20, 64)
    I(f"v_lshlrev_b32 v7, 2, v{vTid}")
    I(f"s_mov_b32 s100, {WS_STAMP + 100*512}")
    I(f"buffer_load_dword v6, v7, {S(SWS)}, s100 offen sc1")
    I("s_waitcnt vmcnt(0)")
    I(f"buffer_store_dword v6, v7, s[16:19], 0 offen")

def xstamp():
    if STAMP in (1, 2) and XST: stamp()
def xstamp3():
    if STAMP in (1, 2) and XST == 3: stamp()
def tag4(b):
    for i in range(4):
        I(f"v_perm_b32 v{b+i}, v{b+i}, v{vTag}, s{sSel+i}")
def check4(bad, b, t0, t1, first):
    I(f"v_perm_b32 v{t0}, v{b+1}, v{b}, s{sSelA}")
    I(f"v_perm_b32 v{t1}, v{b+3}, v{b+2}, s{sSelB}")
    if first:
        I(f"v_bitop3_b32 v{bad}, v{t0}, v{t1}, v{vTag} bitop3:0x96")
    else:
        I(f"v_bitop3_b32 v{t0}, v{t0}, v{t1}, v{vTag} bitop3:0x96")
        I(f"v_or_b32 v{bad}, v{bad}, v{t0}")

def round_tag16(b, t):
    I(f"v_cvt_pk_bf16_f32 v{t}, v{b}, v{b+1}")
    I(f"v_cvt_pk_bf16_f32 v{t+1}, v{b+2}, v{b+3}")
    I(f"v_perm_b32 v{b}, v{t}, v{vTag}, s{sSelLL}")
    I(f"v_perm_b32 v{b+1}, v{t}, v{vTag}, s{sSelHi}")
    I(f"v_perm_b32 v{b+2}, v{t+1}, v{vTag}, s{sSelLL}")
    I(f"v_perm_b32 v{b+3}, v{t+1}, v{vTag}, s{sSelHi}")
def check16(bad, b, t0, first):
    I(f"v_perm_b32 v{t0}, v{b+1}, v{b}, s{sSelLL}")
    if first: I(f"v_xor_b32 v{bad}, v{t0}, v{vTag}")
    else: I(f"v_bitop3_b32 v{bad}, v{bad}, v{t0}, v{vTag} bitop3:0xf6")

def spin_loop(body, first_done=False):
    lab = A.newlabel("Lspin"); done = A.newlabel("Ldone")
    saved_vm, saved_lg = list(A.vm), list(A.lg)
    if first_done:
        I(f"s_cbranch_vccz {done}")
    I(f"s_mov_b32 s{sCnt}, 0")
    A.fence(4)
    A.label(lab)
    body()
    I(f"s_cbranch_vccz {done}")
    I(f"s_add_u32 s{sCnt}, s{sCnt}, 1")
    I(f"s_cmp_lt_u32 s{sCnt}, {SPIN}")
    I(f"s_cbranch_scc1 {lab}")
    A.label(done)
    if first_done:
        A.vm, A.lg = saved_vm, saved_lg
    A.fence(2)

def poll_flags(vaddr, vtmp):
    def body():
        I(f"buffer_load_dword v{vtmp}, v{vaddr}, {S(SWS)}, 0 offen sc1")
        I("s_waitcnt vmcnt(0)"); A.vm = []
        I(f"v_cmp_ne_u32 vcc, v{vtmp}, v{vTag}")
    spin_loop(body)

vLane0 = 23
def poll_issue(vaddr, vtmp):
    return I(f"buffer_load_dword v{vtmp}, v{vaddr}, {S(SWS)}, 0 offen sc1")
def poll_finish(vaddr, vtmp, pid):
    wait_vm(pid)
    I(f"v_cmp_ne_u32 vcc, v{vtmp}, v{vTag}")
    def body():
        I(f"buffer_load_dword v{vtmp}, v{vaddr}, {S(SWS)}, 0 offen sc1")
        I("s_waitcnt vmcnt(0)"); A.vm = []
        I(f"v_cmp_ne_u32 vcc, v{vtmp}, v{vTag}")
    spin_loop(body, first_done=True)

def set_flag(soff_reg, last):
    wait_vm(last)
    I("s_barrier")
    I(f"buffer_store_dword v{vTag}, v{vLane0}, {S(SWS)}, s{soff_reg} offen sc1")

def xlane4(vals, op, mid=None):
    a, b, c, d = vals
    I(f"v_permlane32_swap_b32 v{a}, v{b}")
    I(f"v_permlane32_swap_b32 v{c}, v{d}")
    I(f"{op} v{a}, v{a}, v{b}")
    I(f"{op} v{c}, v{c}, v{d}")
    I(f"v_permlane16_swap_b32 v{a}, v{c}")
    I(f"{op} v{a}, v{a}, v{c}")
    if mid: mid(a)
    I(f"v_mov_b32 v{c}, v{a}")
    I(f"v_permlane16_swap_b32 v{a}, v{c}")
    I(f"v_mov_b32 v{b}, v{a}")
    I(f"v_mov_b32 v{d}, v{c}")
    I(f"v_permlane32_swap_b32 v{a}, v{b}")
    I(f"v_permlane32_swap_b32 v{c}, v{d}")

def xlane4x2(v1, op1, mid1, v2, op2, mid2):
    r1 = rec(xlane4, v1, op1, mid1); r2 = rec(xlane4, v2, op2, mid2)
    for (o1, _), (o2, _) in zip(r1.ops, r2.ops):
        I(o1[1]); I(o2[1])

def dbg_dump(regs, slot):
    I(f"v_lshlrev_b32 v6, 4, v{vTid}")
    for k, r in enumerate(regs):
        I(f"s_lshl_b32 s{sT0}, s2, 12")
        I(f"s_add_u32 s{sT0}, s{sT0}, {WS_DBG + (slot + k) * 256 * 4096}")
        I(f"buffer_store_dwordx4 {r}, v6, {S(SWS)}, s{sT0} offen")
    wait_vm()

def bf_round4(b, t):
    I(f"v_cvt_pk_bf16_f32 v{t}, v{b}, v{b+1}")
    I(f"v_cvt_pk_bf16_f32 v{t+1}, v{b+2}, v{b+3}")
    I(f"v_lshlrev_b32 v{b}, 16, v{t}")
    I(f"v_and_b32 v{b+1}, s{sHi}, v{t}")
    I(f"v_lshlrev_b32 v{b+2}, 16, v{t+1}")
    I(f"v_and_b32 v{b+3}, s{sHi}, v{t+1}")

def prologue():
    I("s_cmp_ge_u32 s2, 256")
    I("s_cbranch_scc1 L_end")
    I("s_load_dwordx8 s[32:39], s[0:1], 64")
    I("s_load_dwordx16 s[16:31], s[0:1], 0")
    I("s_load_dwordx2 s[40:41], s[0:1], 96")
    I("s_getpc_b64 s[100:101]")
    A.raw("L_pc:")
    I(f"v_and_b32 v{vL}, 63, v0")
    I(f"v_lshrrev_b32 v6, 6, v0")
    I(f"v_lshrrev_b32 v{vG}, 4, v{vL}")
    I(f"v_and_b32 v{vT}, 15, v0")
    I(f"v_readfirstlane_b32 s{sW}, v6")
    I(f"v_lshlrev_b32 v{vL16}, 4, v{vL}")
    I(f"s_lshr_b32 s{sJ}, s2, 3")
    I(f"s_and_b32 s3, s2, 7")
    I(f"s_sub_u32 s{sT0}, s{sJ}, 24")
    I(f"s_cmp_ge_u32 s{sJ}, 24")
    I(f"s_cselect_b32 s{sT0}, s{sT0}, s{sJ}")
    I(f"s_lshr_b32 s{sT1}, s{sT0}, 2")
    I(f"s_lshl_b32 s{sT1}, s{sT1}, 3")
    I(f"s_add_u32 s{sT1}, s{sT1}, s3")
    I(f"s_lshl_b32 s{sT1}, s{sT1}, 2")
    I(f"s_and_b32 s{sT0}, s{sT0}, 3")
    I(f"s_add_u32 s{sT3}, s{sT1}, s{sT0}")
    I(f"v_lshrrev_b32 v6, 1, v0")
    I(f"v_and_b32 v6, 31, v6")
    I(f"s_lshl_b32 s{sT0}, s{sW}, 7")
    I(f"v_add_u32 v6, s{sT0}, v6")
    I(f"v_lshlrev_b32 v7, 1, v6")
    I(f"v_mul_u32_u24 v8, 6144, v6")
    I(f"v_and_b32 v9, 1, v0")
    I(f"v_lshl_add_u32 v8, v9, 4, v8")
    I(f"s_lshl_b32 s{sT0}, s{sT3}, 5")
    I("s_waitcnt lgkmcnt(0)")
    srd(SC, 32, 1024)
    srd(SWMOD, 34, 512 * 3072 * 2)
    ids = []
    for i in range(4):
        ids.append(I(f"buffer_load_ushort v{48+i}, v7, {S(SC)}, 0 offen offset:{64*i}"))
    for i in range(4):
        I(f"s_add_u32 s{sT1}, s{sT0}, {i*32*6144}")
        ids.append(I(f"buffer_load_dwordx4 {vr(32+4*i,4)}, v8, {S(SWMOD)}, s{sT1} offen"))
    I(f"s_load_dword s{sTag}, s[40:41], {WS_EPOCH}")
    I(f"s_and_b32 s{sT0}, s{sJ}, 15")
    I(f"s_lshl_b32 s{sT0}, s{sT0}, 12")
    I(f"v_lshlrev_b32 v6, 4, v0")
    I(f"v_add_u32 v6, s{sT0}, v6")
    I(f"v_min_u32 v6, L_code_end-L_pc-16, v6")
    I(f"global_load_dwordx4 v[60:63], v6, s[100:101]")
    srd(SX, 16, 2048 * 512 * 2)
    srd(SWQKV, 18, 512 * 1536 * 2)
    srd(SWPHI, 20, 32 * 512)
    srd(SWO, 22, 512 * 512 * 2)
    srd(SWG, 26, 512 * 1376 * 2)
    srd(SWU, 28, 512 * 1376 * 2)
    srd(SWD, 30, 1376 * 512 * 2)
    srd(SOUT, 36, 2048 * 512 * 2)
    srd(SWS, 40, WS_SIZE)
    I(f"v_and_b32 v6, 7, v{vL}")
    I(f"v_lshlrev_b32 v6, 21, v6")
    I(f"buffer_load_dword a255, v6, {S(SWS)}, 0 offen offset:64")
    I(f"v_and_b32 v6, 1, v{vL}")
    I(f"v_lshlrev_b32 v6, 20, v6")
    for b in (SWO, SWG, SWU, SWD, SOUT):
        I(f"buffer_load_dword a255, v6, {S(b)}, 0 offen")
    I(f"s_lshr_b32 s{sT0}, s3, 1")
    I(f"s_and_b32 s{sT1}, s3, 1")
    I(f"s_lshr_b32 s{sT2}, s{sJ}, 2")
    I(f"s_lshl_b32 s{sRbB}, s{sT0}, 3")
    I(f"s_add_u32 s{sRbB}, s{sRbB}, s{sT2}")
    I(f"s_and_b32 s{sP0}, s{sT2}, 3")
    I(f"s_and_b32 s{sT2}, s{sJ}, 3")
    I(f"s_lshl_b32 s{sCtB}, s{sT1}, 2")
    I(f"s_add_u32 s{sCtB}, s{sCtB}, s{sT2}")
    I(f"s_and_b32 s{sT1}, s3, 3")
    I(f"s_lshl_b32 s{sMD}, s{sT1}, 2")
    I(f"s_add_u32 s{sMD}, s{sMD}, s{sT2}")
    I(f"s_lshr_b32 s{sT2}, s{sJ}, 2")
    I(f"s_lshr_b32 s{sT0}, s3, 2")
    I(f"s_lshl_b32 s{sGrpD}, s{sT0}, 3")
    I(f"s_add_u32 s{sGrpD}, s{sGrpD}, s{sT2}")
    I(f"s_lshr_b32 s{sT2}, s{sJ}, 4")
    I(f"s_lshl_b32 s{sGrpC}, s3, 1")
    I(f"s_add_u32 s{sGrpC}, s{sGrpC}, s{sT2}")
    I(f"s_and_b32 s{sMC}, s{sJ}, 15")
    I(f"s_and_b32 s{sCtC}, s{sJ}, 7")
    I(f"s_lshr_b32 s{sT2}, s{sJ}, 3")
    I(f"s_lshl_b32 s{sRbC}, s3, 2")
    I(f"s_add_u32 s{sRbC}, s{sRbC}, s{sT2}")
    for u in range(4):
        I(f"s_add_u32 s{sT0}, s{sP0}, {u}")
        I(f"s_and_b32 s{sT0}, s{sT0}, 3")
        I(f"s_lshl_b32 s{sK+u}, s{sT0}, 8")
        I(f"s_mul_i32 s{sKW+u}, s{sT0}, {128*3072}")
        I(f"s_lshl_b32 s{sKM+u}, s{sT0}, 9")
    I(f"s_lshl_b32 s{sW4096}, s{sW}, 12")
    return ids

def consts():
    for i in range(4):
        I(f"s_mov_b32 s{sSel+i}, {0x07060500 | i:#x}")
    I(f"s_mov_b32 s{sSelA}, 0x0c0c0400")
    I(f"s_mov_b32 s{sSelB}, 0x04000c0c")
    I(f"s_mov_b32 s{sL}, 0x3fb8aa3b")
    I(f"s_mov_b32 s{sL2}, 0x3fb8aa3b")
    I(f"s_mov_b32 s{sNL}, 0xbfb8aa3b")
    I(f"s_mov_b32 s{sNL2}, 0xbfb8aa3b")
    I(f"s_mov_b32 s{sHi}, 0xffff0000")
    I(f"s_mov_b32 s{sSelHi}, 0x07060302")
    I(f"s_mov_b32 s{sSelLL}, 0x05040100")
    I(f"v_cmp_eq_u32 vcc, 0, v{vTid}")
    I(f"v_mov_b32 v{vLane0}, {OOB}")
    I(f"v_cndmask_b32 v{vLane0}, v{vLane0}, 0, vcc")

XH = 64
RAW = 192
vRow = 16
def x_issue():
    ids = {}
    I(f"s_lshl_b32 s{sT0}, s{sRbB}, 6")
    I(f"s_lshl_b32 s{sT1}, s{sW}, 4")
    I(f"s_add_u32 s{sT0}, s{sT0}, s{sT1}")
    for i in range(4):
        I(f"s_add_u32 s{sT2}, s{sJ}, {i}")
        I(f"s_and_b32 s{sT2}, s{sT2}, 3")
        I(f"s_lshl_b32 s{sT2}, s{sT2}, 2")
        I(f"v_add_u32 v{vRow+i}, s{sT2}, v{vG}")
        I(f"v_add_u32 v9, s{sT0}, v{vRow+i}")
        I(f"v_lshlrev_b32 v9, 10, v9")
        I(f"v_lshl_add_u32 v9, v{vT}, 4, v9")
        for u in range(4):
            ids[(i, u)] = I(f"buffer_load_dwordx4 {vr(RAW + (i*4+u)*4, 4)}, v9, {S(SX)}, s{sK+u} offen")
    return ids

def phaseA_compute(ids):
    I(f"v_and_b32 v6, 1, v{vL}")
    I(f"v_lshlrev_b32 v6, 5, v6")
    I(f"v_lshl_add_u32 v6, v{vG}, 3, v6")
    I(f"s_lshl_b32 s{sT0}, s{sW}, 6")
    I(f"s_add_u32 s{sT0}, s{sT0}, {L_MISC}")
    I(f"v_add_u32 v6, s{sT0}, v6")
    I(f"v_lshlrev_b32 v7, 3, v{vTid}")
    I(f"v_add_u32 v7, {L_MISC + 1024}, v7")
    I(f"v_and_b32 v8, 14, v{vL}")
    I(f"v_cmp_eq_u32 vcc, 0, v8")
    I(f"v_cndmask_b32 v6, v7, v6, vcc")
    I(f"v_and_b32 v7, 3, v{vL}")
    wait_vm(ids[3])
    for i in range(4): I(f"v_lshlrev_b32 v{48+i}, 16, v{48+i}")
    for i in range(4): I(f"v_mul_f32 v{52+i}, s{sNL}, v{48+i}")
    for i in range(4): I(f"v_min_f32 v{52+i}, 0x42f00000, v{52+i}")
    for i in range(4): I(f"v_exp_f32 v{52+i}, v{52+i}")
    for i in range(4): I(f"v_add_f32 v{52+i}, 1.0, v{52+i}")
    for i in range(4): I(f"v_rcp_f32 v{56+i}, v{52+i}")
    for i in range(4): I(f"v_mul_f32 v{72+i}, v{48+i}, v{56+i}")
    for i in range(4): I(f"v_fma_f32 v{48+i}, -v{72+i}, v{52+i}, v{48+i}")
    for i in range(4): I(f"v_fma_f32 v{48+i}, v{48+i}, v{56+i}, v{72+i}")
    bf_round4(48, 52)
    AC = 64
    for i in range(4):
        wait_vm(ids[4 + i])
        for d in range(4):
            I(f"v_lshlrev_b32 v52, 16, v{32+4*i+d}")
            I(f"v_and_b32 v53, s{sHi}, v{32+4*i+d}")
            if i == 0:
                I(f"v_mul_f32 v{AC+2*d}, v{48+i}, v52")
                I(f"v_mul_f32 v{AC+1+2*d}, v{48+i}, v53")
            else:
                I(f"v_fmac_f32 v{AC+2*d}, v{48+i}, v52")
                I(f"v_fmac_f32 v{AC+1+2*d}, v{48+i}, v53")
    for e in range(4): I(f"v_permlane32_swap_b32 v{AC+e}, v{AC+4+e}")
    for e in range(4): I(f"v_add_f32 v{AC+e}, v{AC+e}, v{AC+4+e}")
    for e in range(2): I(f"v_permlane16_swap_b32 v{AC+e}, v{AC+2+e}")
    for e in range(2): I(f"v_add_f32 v{AC+e}, v{AC+e}, v{AC+2+e}")
    for r in (8, 4, 2):
        for e in range(2):
            I(f"v_add_f32_dpp v{AC+e}, v{AC+e}, v{AC+e} row_ror:{r} row_mask:0xf bank_mask:0xf")
    I(f"ds_write_b64 v6, {vr(AC,2)}")
    I(f"v_lshlrev_b32 v7, 4, v7")
    I(f"v_add_u32 v6, {L_MISC}, v7")
    I("s_waitcnt lgkmcnt(0)"); A.lg = []
    I("s_barrier")
    for w in range(4):
        I(f"ds_read_b128 {vr(32+4*w,4)}, v6 offset:{64*w}")
    I(f"s_add_u32 s{sTag}, s{sTag}, 0x9e3779b1")
    I(f"v_mov_b32 v{vTag}, s{sTag}")
    I(f"s_lshr_b32 s{sT0}, s{sT3}, 5")
    I(f"s_cmp_eq_u32 s{sT0}, 1")
    I(f"s_cselect_b32 s{sT1}, 1.0, 0")
    I(f"s_cmp_eq_u32 s{sT0}, 4")
    I(f"s_cselect_b32 s{sT1}, 1.0, s{sT1}")
    I(f"v_cmp_gt_u32 vcc, 4, v{vTid}")
    I(f"v_mov_b32 v6, {OOB}")
    I(f"v_cndmask_b32 v7, v6, v7, vcc")
    I(f"s_lshl_b32 s{sT0}, s{sT3}, 6")
    I(f"s_add_u32 s{sT0}, s{sT0}, {WS_MODF}")
    wait_lg()
    for e in (0, 2):
        I(f"v_pk_add_f32 {vr(32+e,2)}, {vr(32+e,2)}, {vr(36+e,2)}")
        I(f"v_pk_add_f32 {vr(40+e,2)}, {vr(40+e,2)}, {vr(44+e,2)}")
    for e in (0, 2):
        I(f"v_pk_add_f32 {vr(32+e,2)}, {vr(32+e,2)}, {vr(40+e,2)}")
    bf_round4(32, 36)
    for e in range(4): I(f"v_add_f32 v{32+e}, s{sT1}, v{32+e}")
    round_tag16(32, 36)
    I(f"buffer_store_dwordx4 v[32:35], v7, {S(SWS)}, s{sT0} offen sc1")

def rows128_voff(vb, pitch, std, extra_s=None):
    r_ = rec(_rows128_voff, vb, pitch, std, extra_s)
    import re as _re
    for o, _ in r_.ops:
        I(_re.sub(r"\bv([6-9])\b", lambda m: f"v{TMPV[int(m.group(1)) - 6]}", o[1]))
TMPV = [6, 7, 8, 9]
def _rows128_voff(vb, pitch, std, extra_s=None):
    I(f"v_lshrrev_b32 v6, 3, v{vL}")
    I(f"v_bfe_u32 v7, v{vL}, 4, {1 if std else 2}")
    I(f"v_bfe_u32 v8, v{vL}, 1, 2")
    I(f"v_xor_b32 v8, v8, v7")
    I(f"v_and_b32 v9, 1, v{vL}")
    I(f"v_lshlrev_b32 v9, 4, v9")
    I(f"v_lshl_add_u32 v9, v8, 5, v9")
    I(f"v_mul_u32_u24 v6, {pitch}, v6")
    if extra_s is not None: I(f"v_add_u32 v6, s{extra_s}, v6")
    I(f"v_add_u32 v{vb}, v6, v9")
    if std:
        I(f"v_xor_b32 v9, 64, v9")
        I(f"v_add_u32 v{vb+1}, v6, v9")
        I(f"v_add_u32 v{vb+1}, {8*pitch - 1024}, v{vb+1}")
    else:
        I(f"v_add_u32 v{vb+1}, {8*pitch - 1024}, v{vb}")
    I(f"v_add_u32 v{vb+2}, {2*(8*pitch - 1024)}, v{vb}")
    I(f"v_add_u32 v{vb+3}, {2*(8*pitch - 1024)}, v{vb+1}")

def dma4(vb, srd_, m0_s, m0_imm, so_s, so_imm, flags=""):
    if E.t is not A and not hasattr(E.t, "first_dma"): E.t.first_dma = len(E.t.ops)
    I(f"s_add_u32 m0, s{m0_s}, {m0_imm}")
    I(f"s_add_u32 s{sB0}, s{so_s}, {so_imm}")
    for i in range(4):
        last = I(f"buffer_load_dwordx4 v{vb[i] if isinstance(vb, list) else vb+i}, {srd_}, s{sB0} offen offset:{i*1024}{flags} lds")
        pad(100)
    return last

vBG = 24
def KF(u, s): return (u * 4 + s) * 4
def VF(u, s): return 64 + (u * 4 + s) * 4
def QF(u, s): return 128 + (u * 4 + s) * 4
USLOT = [0, 96 * K, 48 * K, 96 * K]
def wq_addr():
    I(f"s_mul_i32 s{sT0}, s{sW}, {32*3072}")
    I(f"s_lshl_b32 s{sT1}, s{sCtB}, 7")
    I(f"s_add_u32 s{sT0}, s{sT0}, s{sT1}")
    rows128_voff(vBG, 3072, True, sT0)
    I(f"v_bfe_u32 v6, v{vL}, 2, 2")
    I(f"v_lshl_add_u32 v6, v{vG}, 3, v6")
    I(f"v_lshlrev_b32 v6, 7, v6")
    I(f"v_bfe_u32 v7, v{vL}, 3, 2")
    I(f"v_xor_b32 v7, s{sW}, v7")
    I(f"v_lshl_add_u32 v6, v7, 5, v6")
    I(f"v_and_b32 v7, 3, v{vL}")
    I(f"v_lshl_add_u32 v28, v7, 3, v6")
    I(f"v_add_u32 v29, {48*K}, v28")
    I(f"v_add_u32 v30, {96*K}, v28")
def wq_dma(u, subs=(0, 1, 2)):
    for sub in subs:
        sg = (1, 2, 0)[sub]
        last = dma4(vBG, S(SWQKV), sW4096, USLOT[u] + sub * 16 * K, sKW + u, sg * 1024)
    return last
def wq_tr(u):
    base = 28 + USLOT[u] // (48 * K)
    for s in range(4):
        for sub in range(3):
            f = (KF, VF, QF)[sub](u, s)
            I(f"ds_read_b64_tr_b16 {ar(f,2)}, v{base} offset:{sub*16*K + s*4096}")
            I(f"ds_read_b64_tr_b16 {ar(f+2,2)}, v{base} offset:{sub*16*K + s*4096 + 512}")

def layernorm(xids):
    for i in range(4):
        wait_vm(xids[(i, 3)])
        xb = XH + i * 32
        for q in range(16):
            I(f"v_lshlrev_b32 v{xb+2*q}, 16, v{RAW+i*16+q}")
            I(f"v_and_b32 v{xb+2*q+1}, s{sHi}, v{RAW+i*16+q}")
        I(f"v_pk_add_f32 v[32:33], {vr(xb,2)}, {vr(xb+2,2)}")
        I(f"v_pk_add_f32 v[34:35], {vr(xb+4,2)}, {vr(xb+6,2)}")
        for q in range(4, 16, 2):
            I(f"v_pk_add_f32 v[32:33], v[32:33], {vr(xb+2*q,2)}")
            I(f"v_pk_add_f32 v[34:35], v[34:35], {vr(xb+2*q+2,2)}")
        I("v_pk_add_f32 v[32:33], v[32:33], v[34:35]")
        I("v_add_f32 v32, v32, v33")
        for r in (8, 4, 2, 1):
            I(f"v_add_f32_dpp v32, v32, v32 row_ror:{r} row_mask:0xf bank_mask:0xf")
        I("v_mul_f32 v32, 0xbb000000, v32")
        for q in range(16):
            I(f"v_pk_add_f32 {vr(xb+2*q,2)}, {vr(xb+2*q,2)}, v[32:33] op_sel_hi:[1,0]")
        I(f"v_pk_mul_f32 v[34:35], {vr(xb,2)}, {vr(xb,2)}")
        I(f"v_pk_mul_f32 v[36:37], {vr(xb+2,2)}, {vr(xb+2,2)}")
        for q in range(2, 16, 2):
            I(f"v_pk_fma_f32 v[34:35], {vr(xb+2*q,2)}, {vr(xb+2*q,2)}, v[34:35]")
            I(f"v_pk_fma_f32 v[36:37], {vr(xb+2*q+2,2)}, {vr(xb+2*q+2,2)}, v[36:37]")
        I("v_pk_add_f32 v[34:35], v[34:35], v[36:37]")
        I("v_add_f32 v34, v34, v35")
        for r in (8, 4, 2, 1):
            I(f"v_add_f32_dpp v34, v34, v34 row_ror:{r} row_mask:0xf bank_mask:0xf")
        I("v_mov_b32 v35, 0x3727c5ac")
        I("v_fmac_f32 v35, 0x3b000000, v34")
        I("v_rsq_f32 v34, v35")
        for q in range(16):
            I(f"v_pk_mul_f32 {vr(xb+2*q,2)}, {vr(xb+2*q,2)}, v[34:35] op_sel_hi:[1,0]")

def gm_loads(sets, G0):
    out = None
    for k, n in enumerate(sets):
        I(f"s_mov_b32 s{sB2}, {WS_MODF + n*4096}")
        out = I(f"buffer_load_dwordx4 {vr(G0+4*k,4)}, v11, {S(SWS)}, s{sB2} offen sc1")
    return out
def gm_issue(sets, G0):
    I(f"v_lshlrev_b32 v11, 4, v{vTid}")
    return gm_loads(sets, G0)
def gm_finish(sets, G0, last):
    def checks():
        for k in range(len(sets)):
            check16(8, G0 + 4 * k, 9, k == 0)
            check16(8, G0 + 4 * k + 2, 9, False)
        I("v_cmp_ne_u32 vcc, 0, v8")
    wait_vm(last)
    checks()
    def body():
        gm_loads(sets, G0); I("s_waitcnt vmcnt(0)"); A.vm = []; checks()
    spin_loop(body, first_done=True)
    I(f"v_add_u32 v6, {L_MODV}, v11")
    for k, n in enumerate(sets):
        for e in range(4):
            I(f"v_and_b32 v{G0+4*k+e}, s{sHi}, v{G0+4*k+e}")
        I(f"ds_write_b128 v6, {vr(G0+4*k,4)} offset:{n*4096}")
    if sets == [1, 2]:
        I(f"v_cmp_gt_u32 vcc, 128, v{vTid}")
        for e in range(4):
            I(f"v_cndmask_b32 v{G0+e}, v{G0+e}, v{G0+4+e}, vcc")
        I(f"v_perm_b32 v{G0+4}, v{G0+1}, v{G0}, s{sSelHi}")
        I(f"v_perm_b32 v{G0+5}, v{G0+3}, v{G0+2}, s{sSelHi}")
        I(f"v_lshrrev_b32 v6, 3, v{vTid}")
        I(f"v_lshlrev_b32 v6, 6, v6")
        I(f"v_and_b32 v8, 3, v{vTid}")
        I(f"v_lshl_add_u32 v6, v8, 4, v6")
        I(f"v_bfe_u32 v8, v{vTid}, 2, 1")
        I(f"v_lshl_add_u32 v6, v8, 3, v6")
        I(f"v_add_u32 v6, {L_UV}, v6")
        I(f"ds_write_b64 v6, {vr(G0+4,2)}")

def h_addr():
    for i in range(4):
        I(f"v_xor_b32 v6, v{vT}, v{vRow+i}")
        I(f"v_lshlrev_b32 v6, 4, v6")
        I(f"v_lshl_add_u32 v6, v{vRow+i}, 8, v6")
        I(f"v_add_u32 v{vRow+i}, s{sW4096}, v6")
    I(f"v_lshlrev_b32 v20, 5, v{vT}")
    I(f"v_add_u32 v20, {L_MODV}, v20")
    for s in range(4):
        I(f"v_add_u32 v6, {4*s}, v{vG}")
        I(f"v_xor_b32 v6, v6, v{vT}")
        I(f"v_lshlrev_b32 v6, 4, v6")
        I(f"v_lshl_add_u32 v{12+s}, v{vT}, 8, v6")

def make_h_rd(u, mb):
    I(f"v_add_u32 v6, s{sKM+u}, v20")
    I(f"ds_read_b128 {vr(mb,4)}, v6 offset:2048")
    I(f"ds_read_b128 {vr(mb+4,4)}, v6 offset:2064")
    I(f"ds_read_b128 {vr(mb+8,4)}, v6")
    return I(f"ds_read_b128 {vr(mb+12,4)}, v6 offset:16")
def make_h_do(u, mb, pk, x):
    wait_lg(x)
    for i in range(4):
        b = XH + (i * 4 + u) * 8
        if pk:
            for e in range(0, 8, 2):
                I(f"v_pk_fma_f32 {vr(b+e,2)}, {vr(b+e,2)}, {vr(mb+e,2)}, {vr(mb+8+e,2)}")
        else:
            for e in range(8):
                I(f"v_fma_f32 v{b+e}, v{b+e}, v{mb+e}, v{mb+8+e}")
        for e in range(4):
            I(f"v_cvt_pk_bf16_f32 v{b+e}, v{b+2*e}, v{b+2*e+1}")
        I(f"ds_write_b128 v{vRow+i}, {vr(b,4)} offset:{u*16*K}")
def make_h_first():
    xs = [make_h_rd(u, 192 + 16 * u) for u in range(4)]
    pad(100)
    for u in range(3): make_h_do(u, 192 + 16 * u, True, xs[u])

ACC = 192
def accK(rt): return ACC + rt * 4
def accV(rt): return ACC + 16 + rt * 4
def accQ(rt): return ACC + 32 + rt * 4
def a_rd(k, rt):
    u, s = k >> 2, k & 3
    b = 32 + (k % 3) * 16 + 4 * rt
    return I(f"ds_read_b128 {vr(b,4)}, v{12+s} offset:{u*16*K + rt*4096}")

def gemm_kv_chunk(u, cur):
    for s in range(4):
        k = 4 * u + s
        nxt = []
        for rt in range(4):
            if s < 3: nxt.append(a_rd(k + 1, rt))
            wait_lg(cur[rt])
            h = vr(32 + (k & 1) * 16 + 4 * rt, 4)
            I(f"v_mfma_f32_16x16x32_bf16 {vr(accK(rt),4)}, {ar(KF(u,s),4)}, {h}, {vr(accK(rt),4) if k else 0}")
            I(f"v_mfma_f32_16x16x32_bf16 {vr(accV(rt),4)}, {h}, {ar(VF(u,s),4)}, {vr(accV(rt),4) if k else 0}")
        cur = nxt

def gemm_q():
    cur = [a_rd(0, rt) for rt in range(4)]
    for k in range(16):
        nxt = []
        for rt in range(4):
            if k < 15: nxt.append(a_rd(k + 1, rt))
            if rt % 2 == 0: wait_lg(cur[rt + 1])
            h = vr(32 + (k & 1) * 16 + 4 * rt, 4)
            I(f"v_mfma_f32_16x16x32_bf16 {vr(accQ(rt),4)}, {ar(QF(k>>2,k&3),4)}, {h}, {vr(accQ(rt),4) if k else 0}")
        cur = nxt

APHI = 136
def wphi_issue():
    I(f"s_lshl_b32 s{sHead}, s{sCtB}, 2")
    I(f"s_add_u32 s{sHead}, s{sHead}, s{sW}")
    I(f"s_lshl_b32 s{sT0}, s{sHead}, 9")
    I(f"v_bfe_u32 v6, v{vL}, 3, 2")
    I(f"v_and_b32 v7, 3, v{vL}")
    I(f"v_lshl_add_u32 v6, v6, 2, v7")
    I(f"v_lshlrev_b32 v6, 1, v6")
    I(f"v_lshrrev_b32 v7, 5, v{vL}")
    I(f"v_lshl_add_u32 v6, v7, 8, v6")
    for j in range(8):
        last = I(f"buffer_load_ushort v{44+j}, v6, {S(SWPHI)}, s{sT0} offen offset:{32*j}")
    return last
def wphi_pack():
    I(f"v_bfe_u32 v6, v{vL}, 2, 1")
    I(f"v_mul_u32_u24 v6, 0x8000, v6")
    I(f"v_lshl_or_b32 v6, v6, 16, v6")
    for e in range(4):
        I(f"v_lshl_or_b32 v{44+e}, v{45+2*e}, 16, v{44+2*e}")
    for e in range(4):
        I(f"v_xor_b32 v{APHI+e}, v6, v{44+e}")

def softmax(acc, OUT):
    P = [64, 80]; XB = [96, 100]; M = [104, 112]
    for p in range(2):
        for h in range(2):
            a = acc(2 * p + h)
            I(f"v_cvt_pk_bf16_f32 v{XB[p]+2*h}, v{a}, v{a+1}")
            I(f"v_cvt_pk_bf16_f32 v{XB[p]+2*h+1}, v{a+2}, v{a+3}")
    for p in range(2):
        I(f"v_permlane16_swap_b32 v{XB[p]}, v{XB[p]+2}")
        I(f"v_permlane16_swap_b32 v{XB[p]+1}, v{XB[p]+3}")
    for p in range(2):
        I(f"v_mfma_f32_32x32x16_bf16 {vr(P[p],16)}, {vr(APHI,4)}, {vr(XB[p],4)}, 0")
    def chain(p):
        b = P[p]; m = M[p]
        for q in range(5): I(f"v_max3_f32 v{m+q}, v{b+3*q}, v{b+3*q+1}, v{b+3*q+2}")
        I(f"v_max3_f32 v{m}, v{m}, v{m+1}, v{m+2}")
        I(f"v_max3_f32 v{m+3}, v{m+3}, v{m+4}, v{b+15}")
        I(f"v_max_f32 v{m}, v{m}, v{m+3}")
        I(f"v_mul_f32 v{m}, s{sNL}, v{m}")
        for q in range(0, 16, 2):
            I(f"v_pk_fma_f32 {vr(b+q,2)}, {vr(b+q,2)}, {sr(sL,2)}, {vr(m,2)} op_sel_hi:[1,1,0]")
        for q in range(16): I(f"v_exp_f32 v{b+q}, v{b+q}")
        for q in range(4): I(f"v_pk_add_f32 {vr(m+2*q,2)}, {vr(b+4*q,2)}, {vr(b+4*q+2,2)}")
        I(f"v_pk_add_f32 {vr(m,2)}, {vr(m,2)}, {vr(m+2,2)}")
        I(f"v_pk_add_f32 {vr(m+4,2)}, {vr(m+4,2)}, {vr(m+6,2)}")
        I(f"v_pk_add_f32 {vr(m,2)}, {vr(m,2)}, {vr(m+4,2)}")
        I(f"v_add_f32 v{m}, v{m}, v{m+1}")
        I(f"v_rcp_f32 v{m}, v{m}")
        for q in range(0, 16, 2):
            I(f"v_pk_mul_f32 {vr(b+q,2)}, {vr(b+q,2)}, {vr(m,2)} op_sel_hi:[1,0]")
        for q in range(8): I(f"v_cvt_pk_bf16_f32 v{OUT+8*p+q}, v{b+2*q}, v{b+2*q+1}")
    r0 = rec(chain, 0); r1 = rec(chain, 1)
    lag = 6
    o0 = [o[1] for o, _ in r0.ops]; o1 = [o[1] for o, _ in r1.ops]
    for k in range(len(o0) + lag):
        if k < len(o0): I(o0[k])
        if k >= lag: I(o1[k - lag])

L_PT = 128 * K
def epi_k():
    PK = 144; VFR = 160; ONES = 168
    I(f"s_add_u32 s{sT1}, s{sW4096}, {L_PT}")
    I(f"v_and_b32 v8, 31, v{vL}")
    I(f"v_lshlrev_b32 v8, 6, v8")
    I(f"v_lshrrev_b32 v9, 5, v{vL}")
    I(f"v_lshlrev_b32 v9, 1, v9")
    I(f"v_bfe_u32 v10, v{vL}, 1, 2")
    I(f"v_xor_b32 v9, v9, v10")
    I(f"v_lshl_add_u32 v8, v9, 4, v8")
    I(f"v_add_u32 v8, s{sT1}, v8")
    I(f"v_xor_b32 v7, 16, v8")
    I(f"v_lshrrev_b32 v9, 2, v{vL}")
    I(f"v_lshlrev_b32 v9, 6, v9")
    I(f"v_bfe_u32 v10, v{vL}, 1, 1")
    I(f"v_bfe_u32 v11, v{vL}, 3, 2")
    I(f"v_xor_b32 v10, v10, v11")
    I(f"v_lshl_add_u32 v9, v10, 4, v9")
    I(f"v_and_b32 v10, 1, v{vL}")
    I(f"v_lshl_add_u32 v9, v10, 3, v9")
    I(f"v_add_u32 v9, s{sT1}, v9")
    I(f"v_xor_b32 v10, 32, v9")
    for e in range(4): I(f"v_mov_b32 v{ONES+e}, 0x3f803f80")
    softmax(accK, PK)
    for p in range(2):
        I(f"ds_write_b128 v8, {vr(PK+8*p,4)} offset:{p*2048}")
        I(f"ds_write_b128 v7, {vr(PK+8*p+4,4)} offset:{p*2048}")
    for kp in range(2):
        for hh in range(2):
            a = accV(2 * kp + hh)
            I(f"v_cvt_pk_bf16_f32 v{VFR+4*kp+2*hh}, v{a}, v{a+1}")
            I(f"v_cvt_pk_bf16_f32 v{VFR+4*kp+2*hh+1}, v{a+2}, v{a+3}")
    PT = 64
    for T in range(2):
        for kp in range(2):
            f = PT + (T * 2 + kp) * 4
            I(f"ds_read_b64_tr_b16 {vr(f,2)}, v{9+T} offset:{kp*2048}")
            x = I(f"ds_read_b64_tr_b16 {vr(f+2,2)}, v{9+T} offset:{kp*2048 + 1024}")
    I(f"s_lshl_b32 s{sT0}, s{sHead}, 5")
    I(f"s_add_u32 s{sT0}, s{sT0}, s{sRbB}")
    I(f"s_mul_i32 s{sT0}, s{sT0}, {KVREC}")
    I(f"s_add_u32 s{sT0}, s{sT0}, {WS_KVP}")
    I(f"v_lshlrev_b32 v8, 5, v{vG}")
    I(f"v_lshl_add_u32 v8, v{vT}, 4, v8")
    I(f"v_mov_b32 v9, {OOB}")
    I(f"v_cmp_gt_u32 vcc, 2, v{vT}")
    I(f"v_cndmask_b32 v8, v9, v8, vcc")
    I(f"v_cmp_eq_u32 vcc, 1, v{vT}")
    wait_lg(x)
    KV = 172; Z = 180
    for kp in range(2):
        for T in range(2):
            f = vr(PT + (T * 2 + kp) * 4, 4)
            I(f"v_mfma_f32_16x16x32_bf16 {vr(KV+4*T,4)}, {f}, {vr(VFR+4*kp,4)}, {vr(KV+4*T,4) if kp else 0}")
    for kp in range(2):
        for T in range(2):
            f = vr(PT + (T * 2 + kp) * 4, 4)
            I(f"v_mfma_f32_16x16x32_bf16 {vr(Z+4*T,4)}, {f}, {vr(ONES,4)}, {vr(Z+4*T,4) if kp else 0}")
    tag4(KV); tag4(KV + 4)
    I(f"buffer_store_dwordx4 {vr(KV,4)}, v{vL16}, {S(SWS)}, s{sT0} offen sc1")
    I(f"buffer_store_dwordx4 {vr(KV+4,4)}, v{vL16}, {S(SWS)}, s{sT0} offen offset:1024 sc1")
    for e in range(4):
        I(f"v_cndmask_b32 v{Z+e}, v{Z+e}, v{Z+4+e}, vcc")
    tag4(Z)
    I(f"buffer_store_dwordx4 {vr(Z,4)}, v8, {S(SWS)}, s{sT0} offen offset:2048 sc1")

def epi_q():
    PQ = 144
    I(f"s_lshl_b32 s{sT0}, s{sRbB}, 7")
    I(f"s_add_u32 s{sT0}, s{sT0}, s{sHead}")
    I(f"s_lshl_b32 s{sT0}, s{sT0}, 10")
    I(f"s_add_u32 s{sT0}, s{sT0}, {WS_PHIQ}")
    I(f"s_lshl_b32 s{sT1}, s{sRbB}, 3")
    I(f"s_add_u32 s{sT1}, s{sT1}, s{sCtB}")
    I(f"s_lshl_b32 s{sT1}, s{sT1}, 7")
    I(f"s_add_u32 s{sT1}, s{sT1}, {WS_FQ}")
    I(f"v_and_b32 v6, 1, v{vG}")
    I(f"v_lshlrev_b32 v6, 15, v6")
    I(f"v_lshrrev_b32 v7, 1, v{vG}")
    I(f"v_lshl_add_u32 v6, v7, 9, v6")
    I(f"v_lshl_add_u32 v6, v{vT}, 4, v6")
    softmax(accQ, PQ)
    for p in range(2):
        I(f"buffer_store_dwordx4 {vr(PQ+8*p,4)}, v6, {S(SWS)}, s{sT0} offen sc1")
        last = I(f"buffer_store_dwordx4 {vr(PQ+8*p+4,4)}, v6, {S(SWS)}, s{sT0} offen offset:256 sc1")
        if p == 0: I(f"s_add_u32 s{sT0}, s{sT0}, 65536")
    return last

def gemm_kv(k0, k1, rds):
    for k in range(k0, k1):
        u, s = k >> 2, k & 3
        nxt = []
        for rt in range(4):
            if k + 2 < 16: nxt.append(a_rd(k + 2, rt))
            if rt == 0: wait_lg(rds[k][3])
            h = vr(32 + (k % 3) * 16 + 4 * rt, 4)
            I(f"v_mfma_f32_16x16x32_bf16 {vr(accK(rt),4)}, {ar(KF(u,s),4)}, {h}, {vr(accK(rt),4) if k else 0}")
            I(f"v_mfma_f32_16x16x32_bf16 {vr(accV(rt),4)}, {h}, {ar(VF(u,s),4)}, {vr(accV(rt),4) if k else 0}")
            I(f"v_mfma_f32_16x16x32_bf16 {vr(accQ(rt),4)}, {ar(QF(u,s),4)}, {h}, {vr(accQ(rt),4) if k else 0}")
        rds[k + 2] = nxt
    return rds

RR = 172
def kv_reduce_issue():
    I(f"s_and_b32 s{sT2}, s2, 7")
    I(f"s_lshl_b32 s{sT3}, s{sT2}, 4")
    I(f"s_add_u32 s{sT3}, s{sT3}, 2048")
    I(f"s_lshl_b32 s{sT2}, s{sT2}, 2")
    I(f"s_add_u32 s{sT2}, s{sT2}, s{sW}")
    I(f"s_lshl_b32 s{sT2}, s{sT2}, 6")
    I(f"v_and_b32 v10, 7, v{vL}")
    I(f"v_lshlrev_b32 v11, 4, v10")
    I(f"v_add_u32 v11, s{sT2}, v11")
    I(f"v_mov_b32 v12, s{sT3}")
    I(f"v_cmp_gt_u32 vcc, 4, v10")
    I(f"v_cndmask_b32 v11, v12, v11, vcc")
    I(f"v_lshrrev_b32 v12, 3, v{vL}")
    I(f"v_mul_u32_u24 v12, {KVREC}, v12")
    I(f"v_add_u32 v12, v12, v11")
    I(f"s_mul_i32 s{sP0}, s{sJ}, {32*KVREC}")
    I(f"s_add_u32 s{sP0}, s{sP0}, {WS_KVP}")
    I(f"s_mul_i32 s{sP1}, s{sJ}, {KVREC}")
    I(f"s_add_u32 s{sP1}, s{sP1}, {WS_KVF}")
    I(f"s_mov_b32 s{sP2}, 0xffffff00")
    I(f"v_cmp_gt_u32 vcc, 5, v{vL}")
    I(f"v_mov_b32 v10, {OOB}")
    I(f"v_cndmask_b32 v11, v10, v11, vcc")
    return kv_reduce_loads()
def kv_reduce_loads():
    for n in range(4):
        I(f"s_add_u32 s{sT2}, s{sP0}, {n*8*KVREC}")
        last = I(f"buffer_load_dwordx4 {vr(RR+4*n,4)}, v12, {S(SWS)}, s{sT2} offen sc1")
    return last
def kv_reduce_finish(last):
    R = RR
    def checks():
        for n in range(4): check4(8, R + 4 * n, 9, 10, n == 0)
        I("v_cmp_ne_u32 vcc, 0, v8")
    wait_vm(last)
    checks()
    def body():
        kv_reduce_loads(); I("s_waitcnt vmcnt(0)"); A.vm = []; checks()
    spin_loop(body, first_done=True)
    for q in range(16):
        I(f"v_and_b32 v{R+q}, s{sP2}, v{R+q}")
    for st in (8, 4):
        for q in range(0, st, 2):
            I(f"v_pk_add_f32 {vr(R+q,2)}, {vr(R+q,2)}, {vr(R+st+q,2)}")
    for e in range(4):
        I(f"v_add_f32_dpp v{R+e}, v{R+e}, v{R+e} row_ror:8 row_mask:0xf bank_mask:0xf")
    for op in ("v_permlane16_swap_b32", "v_permlane32_swap_b32"):
        for e in range(4): I(f"v_mov_b32 v{R+4+e}, v{R+e}")
        for e in range(4): I(f"{op} v{R+e}, v{R+4+e}")
        for e in (0, 2): I(f"v_pk_add_f32 {vr(R+e,2)}, {vr(R+e,2)}, {vr(R+4+e,2)}")
    round_tag16(R, R + 4)
    I(f"buffer_store_dwordx4 {vr(R,4)}, v11, {S(SWS)}, s{sP1} offen sc1")

def pf_wo():
    I(f"s_lshl_b32 s{sB1}, s{sJ}, 14")
    I(f"s_add_u32 s{sB1}, s{sB1}, s{sW4096}")
    I(f"v_and_b32 v21, 31, v{vL}")
    I(f"v_lshlrev_b32 v21, 7, v21")
    I(f"buffer_load_dword a255, v21, {S(SWO)}, s{sB1} offen")
def pf_gu():
    I(f"s_cmp_ge_u32 s{sW}, 2")
    I(f"s_cselect_b32 s{SGU}, s{SWU}, s{SWG}")
    I(f"s_cselect_b32 s{SGU+1}, s{SWU+1}, s{SWG+1}")
    I(f"s_mov_b32 s{SGU+2}, {512*1376*2}")
    I(f"s_mov_b32 s{SGU+3}, 0x20000")
    I(f"s_lshl_b32 s{sB1}, s{sJ}, 1")
    I(f"s_and_b32 s{sB2}, s{sW}, 1")
    I(f"s_add_u32 s{sB1}, s{sB1}, s{sB2}")
    I(f"s_mul_i32 s{sB1}, s{sB1}, {8*2752}")
    I(f"s_and_b32 s{sB2}, s2, 3")
    I(f"s_mul_i32 s{sB2}, s{sB2}, {32*21846}")
    I(f"s_lshr_b32 s{sB2}, s{sB2}, 16")
    I(f"s_lshl_b32 s{sB2}, s{sB2}, 6")
    I(f"s_add_u32 s{sB1}, s{sB1}, s{sB2}")
    I(f"v_lshrrev_b32 v21, 3, v{vL}")
    I(f"v_mul_u32_u24 v21, 2752, v21")
    I(f"v_and_b32 v22, 7, v{vL}")
    I(f"v_mul_u32_u24 v22, 100, v22")
    I(f"v_add_u32 v21, v21, v22")
    I(f"buffer_load_dword a255, v21, {S(SGU)}, s{sB1} offen")
def pf_wd():
    I(f"s_mul_i32 s{sT2}, s2, {43*128}")
    I(f"s_mul_i32 s{sT3}, s{sW}, {11*128}")
    I(f"s_add_u32 s{sT2}, s{sT2}, s{sT3}")
    I(f"v_min_u32 v21, 10, v{vL}")
    I(f"v_lshlrev_b32 v21, 7, v21")
    I(f"buffer_load_dword a255, v21, {S(SWD)}, s{sT2} offen")

WOF = 192
L_WO = 64 * K
def wo_dma():
    rows128_voff(vBG, 1024, False)
    I(f"s_lshl_b32 s{sB1}, s{sW}, 17")
    I(f"s_lshl_b32 s{sB2}, s{sCtC}, 7")
    I(f"s_add_u32 s{sB1}, s{sB1}, s{sB2}")
    I(f"s_lshl_b32 s{sB2}, s{sW}, 14")
    for s in range(4):
        last = dma4(vBG, S(SWO), sB2, L_WO + s * 4096, sB1, s * 32768)
    return last
def wo_tr(last):
    I(f"v_lshrrev_b32 v28, 2, v{vL}")
    I(f"v_lshlrev_b32 v28, 7, v28")
    I(f"v_bfe_u32 v29, v{vL}, 3, 2")
    I(f"s_and_b32 s{sB2}, s{sW}, 2")
    I(f"v_xor_b32 v29, s{sB2}, v29")
    I(f"v_lshl_add_u32 v28, v29, 5, v28")
    I(f"v_and_b32 v29, 3, v{vL}")
    I(f"v_lshl_add_u32 v28, v29, 3, v28")
    I(f"s_lshl_b32 s{sB2}, s{sW}, 14")
    I(f"s_add_u32 s{sB2}, s{sB2}, {L_WO}")
    I(f"v_add_u32 v28, s{sB2}, v28")
    for c in range(1, 4):
        I(f"v_xor_b32 v{28+c}, {c*32}, v28")
    wait_vm(last)
    for s in range(4):
        for c in range(4):
            f = WOF + (s * 4 + c) * 4
            I(f"ds_read_b64_tr_b16 {ar(f,2)}, v{28+c} offset:{s*4096}")
            I(f"ds_read_b64_tr_b16 {ar(f+2,2)}, v{28+c} offset:{s*4096+2048}")

def GF(c, ks): return (ks * 3 + c) * 4
GSLOT = [0, 64 * K, 0, 48 * K]
def wgu_setup():
    I(f"s_lshl_b32 s{sB1}, s{sMD}, 3")
    I(f"s_mul_i32 s{sB1}, s{sB1}, 21846")
    I(f"s_lshr_b32 s{sB1}, s{sB1}, 16")
    I(f"s_lshl_b32 s{sFt0}, s{sB1}, 1")
    for n in range(3):
        I(f"v_add_u32 v27, {64*n}, v{vL}")
        I(f"v_mul_u32_u24 v28, 5462, v27")
        I(f"v_lshrrev_b32 v28, 16, v28")
        I(f"v_mul_u32_u24 v29, 12, v28")
        I(f"v_sub_u32 v29, v27, v29")
        I(f"v_bfe_u32 v30, v28, 2, 1")
        I(f"v_lshlrev_b32 v30, 1, v30")
        I(f"v_xor_b32 v29, v29, v30")
        I(f"v_mul_u32_u24 v28, 2752, v28")
        I(f"v_lshl_add_u32 v{vBG+n}, v29, 4, v28")
        if n: I(f"v_subrev_u32 v{vBG+n}, {n*1024}, v{vBG+n}")
    I(f"s_and_b32 s{sB1}, s{sW}, 1")
    I(f"s_mul_i32 s{sB1}, s{sB1}, {64*2752}")
    I(f"s_lshl_b32 s{sB2}, s{sFt0}, 5")
    I(f"s_add_u32 s{sB1}, s{sB1}, s{sB2}")
    for q in range(4):
        I(f"s_add_u32 s{sB2}, s{sGrpD}, {q}")
        I(f"s_and_b32 s{sB2}, s{sB2}, 3")
        I(f"s_mul_i32 s{sKW+q}, s{sB2}, {128*2752}")
        I(f"s_add_u32 s{sKW+q}, s{sKW+q}, s{sB1}")
        I(f"s_lshl_b32 s{sK+q}, s{sB2}, 12")
        I(f"s_lshl_b32 s{sKM+q}, s{sB2}, 9")
    I(f"s_mul_i32 s{sB1}, s{sW}, 12288")
def wgu_traddr():
    I(f"s_lshr_b32 s{sB2}, s{sW}, 1")
    I(f"s_mul_i32 s{sTz}, s{sB2}, 3")
    I(f"s_and_b32 s{sB2}, s{sW}, 1")
    I(f"s_lshl_b32 s{sTx}, s{sB2}, 1")
    I(f"s_add_u32 s{sTx}, s{sTx}, s{sTz}")
    I(f"s_add_u32 s{sTz}, s{sTz}, 1")
    I(f"v_lshrrev_b32 v27, 2, v{vL}")
    I(f"v_mul_u32_u24 v27, 192, v27")
    I(f"v_and_b32 v31, 3, v{vL}")
    I(f"v_lshl_add_u32 v27, v31, 3, v27")
    I(f"v_and_b32 v31, 1, v{vG}")
    I(f"v_xor_b32 v30, s{sTx}, v31")
    I(f"v_lshl_add_u32 v28, v30, 5, v27")
    I(f"v_add_u32 v29, 24576, v28")
    I(f"v_xor_b32 v30, s{sTz}, v31")
    I(f"v_lshl_add_u32 v30, v30, 5, v27")
    I(f"s_mul_i32 s{sB2}, s{sB2}, 24576")
    I(f"v_add_u32 v30, s{sB2}, v30")
def wgu_dma(q):
    for p in range(4):
        I(f"s_add_u32 m0, s{sB1}, {GSLOT[q] + p*3072}")
        I(f"s_add_u32 s{sB0}, s{sKW+q}, {p*16*2752}")
        for n in range(3):
            last = I(f"buffer_load_dwordx4 v{vBG+n}, {S(SGU)}, s{sB0} offen offset:{n*1024} lds")
            pad(100)
    return last
def wgu_tr(q):
    for c in range(3):
        if GSLOT[q]:
            I(f"v_add_u32 v31, {GSLOT[q]}, v{28+c}"); b = 31
        else: b = 28 + c
        for s in range(4):
            f = GF(c, q * 4 + s)
            I(f"ds_read_b64_tr_b16 {ar(f,2)}, v{b} offset:{s*6144}")
            I(f"ds_read_b64_tr_b16 {ar(f+2,2)}, v{b} offset:{s*6144+3072}")

def wgu_tr3():
    r_ = rec(lambda: (wgu_traddr(), wgu_tr(3)))
    import re as _re
    for o, _ in r_.ops:
        I(_re.sub(r"\bv(2[7-9]|3[01])\b", lambda m: f"v{int(m.group(1)) + 20}", o[1]))

RK = 192; KB = 32
def PHR(n, r4): return 64 + (n * 4 + r4) * 4
def CAC(k, r4): return 192 + (k * 4 + r4) * 4
def rt_offsets(stride):
    I(f"s_lshr_b32 s{sT0}, s{sMC}, 3")
    I(f"s_lshl_b32 s{sT0}, s{sT0}, 1")
    I(f"s_and_b32 s{sT2}, s{sW}, 1")
    I(f"s_add_u32 s{sT0}, s{sT0}, s{sT2}")
    I(f"s_mul_i32 s{sR}, s{sT0}, {stride}")
    I(f"s_xor_b32 s{sT0}, s{sT0}, 1")
    I(f"s_mul_i32 s{sR+1}, s{sT0}, {stride}")
    I(f"s_add_u32 s{sR+2}, s{sR}, {4*stride}")
    I(f"s_add_u32 s{sR+3}, s{sR+1}, {4*stride}")
def phiq_load():
    I(f"s_lshl_b32 s{sT0}, s{sGrpC}, 4")
    I(f"s_lshl_b32 s{sT1}, s{sW}, 1")
    I(f"s_add_u32 s{sT0}, s{sT0}, s{sT1}")
    I(f"v_and_b32 v20, 1, v{vL}")
    I(f"v_bfe_u32 v21, v{vL}, 1, 1")
    I(f"v_lshl_add_u32 v20, v21, 3, v20")
    I(f"v_add_u32 v20, s{sT0}, v20")
    I(f"v_lshlrev_b32 v20, 7, v20")
    I(f"v_add_u32 v20, {WS_FQ}, v20")
    rt_offsets(32768)
    I(f"s_lshl_b32 s{sT0}, s{sGrpC}, 18")
    I(f"s_lshl_b32 s{sT1}, s{sW}, 13")
    I(f"s_add_u32 s{sT0}, s{sT0}, s{sT1}")
    I(f"s_add_u32 s{sT0}, s{sT0}, {WS_PHIQ}")
    I(f"v_add_u32 v22, s{sT0}, v{vL16}")
    I(f"v_add_u32 v27, 4096, v22")
    return poll_issue(20, 21)
def phiq_loads(ids, h):
    for s_ in range(4):
        for rho in range(2):
            r4 = 2 * h + rho
            for n in (2 * s_, 2 * s_ + 1):
                ids[h * 8 + s_ * 2 + rho] = I(f"buffer_load_dwordx4 {vr(PHR(n,r4),4)}, v{22 if n < 4 else 27}, {S(SWS)}, s{sR+r4} offen offset:{(n&3)*1024} sc1")
                pad(40)
RZ = 32
def kv_addr():
    I(f"s_lshl_b32 s{sT1}, s{sW}, 3")
    I(f"s_mul_i32 s{sP1}, s{sT1}, {KVREC}")
    I(f"s_add_u32 s{sP1}, s{sP1}, {WS_KVF}")
    I(f"v_and_b32 v14, 3, v{vT}")
    I(f"v_mul_u32_u24 v14, {KVREC}, v14")
    I(f"v_and_b32 v15, 1, v{vG}")
    I(f"v_lshl_add_u32 v14, v15, 6, v14")
    I(f"v_lshrrev_b32 v15, 1, v{vG}")
    I(f"v_lshl_add_u32 v14, v15, 4, v14")
    I(f"v_lshlrev_b32 v15, 9, v{vG}")
    I(f"v_lshl_add_u32 v15, v{vT}, 4, v15")
def kv_loads():
    for n in range(8):
        I(f"s_add_u32 s{sT0}, s{sP1}, {n*KVREC}")
        I(f"buffer_load_dwordx4 {vr(RK+8*n,4)}, v15, {S(SWS)}, s{sT0} offen sc1")
        last = I(f"buffer_load_dwordx4 {vr(RK+8*n+4,4)}, v15, {S(SWS)}, s{sT0} offen offset:256 sc1")
        if n % 4 == 0:
            q = n // 4
            I(f"buffer_load_dwordx4 {vr(RZ+8*q,4)}, v14, {S(SWS)}, s{sT0} offen offset:2048 sc1")
            I(f"buffer_load_dwordx4 {vr(RZ+8*q+4,4)}, v14, {S(SWS)}, s{sT0} offen offset:2080 sc1")
    return last
def kv_finish(last):
    def checks():
        for k in range(16): check16(16, RK + 4 * k, 17 + (k & 1), k == 0)
        for k in range(4): check16(16, RZ + 4 * k, 17 + (k & 1), False)
        I("v_cmp_ne_u32 vcc, 0, v16")
    wait_vm(last)
    checks()
    def body():
        kv_loads(); I("s_waitcnt vmcnt(0)"); A.vm = []; checks()
    spin_loop(body, first_done=True)
def kv_pack():
    for k in range(8):
        I(f"v_perm_b32 v{8+k}, v{RZ+2*k+1}, v{RZ+2*k}, s{sSelHi}")
    for k in range(32):
        I(f"v_perm_b32 v{KB+k}, v{RK+2*k+1}, v{RK+2*k}, s{sSelHi}")

def half_send(acc, lbase, va):
    for d in (1, 2, 3):
        rho, pi = d & 1, d >> 1
        I(f"s_xor_b32 s{sT0}, s{sW}, {d}")
        I(f"s_mul_i32 s{sT0}, s{sT0}, 6144")
        I(f"s_add_u32 s{sT0}, s{sT0}, {lbase + (d-1)*2048}")
        I(f"v_add_u32 v{va}, s{sT0}, v{vL16}")
        for k in range(2):
            I(f"ds_write_b128 v{va}, {vr(acc(2*pi+k, rho),4)} offset:{k*1024}")
def half_recv(acc, lbase, va):
    I(f"s_mul_i32 s{sT0}, s{sW}, 6144")
    I(f"s_add_u32 s{sT0}, s{sT0}, {lbase}")
    I(f"v_add_u32 v{va}, s{sT0}, v{vL16}")
    for d in (1, 2, 3):
        rho, pi = d & 1, d >> 1
        for k in range(2):
            last = I(f"ds_read_b128 {vr(acc(2*pi+k, rho),4)}, v{va} offset:{(d-1)*2048 + k*1024}")
    return last
def half_sum(acc, O):
    for k in range(2):
        for e in (0, 2):
            I(f"v_pk_add_f32 {vr(O+4*k+e,2)}, {vr(acc(k,0)+e,2)}, {vr(acc(k,1)+e,2)}")
            I(f"v_pk_add_f32 {vr(acc(2+k,0)+e,2)}, {vr(acc(2+k,0)+e,2)}, {vr(acc(2+k,1)+e,2)}")
    for k in range(2):
        for e in (0, 2):
            I(f"v_pk_add_f32 {vr(O+4*k+e,2)}, {vr(O+4*k+e,2)}, {vr(acc(2+k,0)+e,2)}")

L_RED = 96 * K
X1K = 24
def c_setup():
    I(f"s_lshr_b32 s{sT0}, s{sMC}, 3")
    I(f"s_lshl_b32 s{sT0}, s{sT0}, 1")
    I(f"s_and_b32 s{sT1}, s{sW}, 1")
    I(f"s_add_u32 s{sT0}, s{sT0}, s{sT1}")
    I(f"s_lshl_b32 s{sT1}, s{sGrpC}, 3")
    I(f"s_add_u32 s{sP2}, s{sT0}, s{sT1}")
    I(f"s_lshl_b32 s{sT0}, s{sP2}, 4")
    I(f"v_add_u32 v20, s{sT0}, v{vT}")
    I(f"v_lshlrev_b32 v21, 10, v20")
    I(f"v_lshl_add_u32 v21, v{vG}, 3, v21")
    I(f"s_lshl_b32 s{sT0}, s{sCtC}, 1")
    I(f"s_lshr_b32 s{sT1}, s{sW}, 1")
    I(f"s_add_u32 s{sP3}, s{sT0}, s{sT1}")
    I(f"s_lshl_b32 s{sT0}, s{sP3}, 6")
    I(f"s_add_u32 s{sT1}, s{sT0}, 65536")
    for h in range(2):
        for k in range(2):
            last = I(f"buffer_load_dwordx2 {vr(24+4*h+2*k,2)}, v21, {S(SX)}, s{sT1 if h else sT0} offen offset:{32*k}")
    I(f"s_lshl_b32 s{sT0}, s{sP3}, 7")
    I(f"s_add_u32 s{sT0}, s{sT0}, {L_MODV}")
    I(f"v_lshlrev_b32 v22, 4, v{vG}")
    I(f"v_add_u32 v22, s{sT0}, v22")
    return last

def c_epi_rd(GA, CB):
    for k in range(2):
        I(f"ds_read_b128 {vr(GA+4*k,4)}, v22 offset:{4096 + 64*k}")
        x = I(f"ds_read_b128 {vr(CB+4*k,4)}, v22 offset:{8192 + 64*k}")
    return x
def c_epi(h, acc, O, GA, CB, XF, xid):
    XR = 24 + 4 * h
    wait_vm(xid)
    for q in range(4):
        I(f"v_lshlrev_b32 v{XF+2*q}, 16, v{XR+q}")
        I(f"v_and_b32 v{XF+2*q+1}, s{sHi}, v{XR+q}")
    wait_lg()
    half_sum(acc, O)
    for q in range(0, 8, 2):
        I(f"v_pk_fma_f32 {vr(O+q,2)}, {vr(O+q,2)}, {vr(GA+q,2)}, {vr(XF+q,2)}")
    for q in range(4):
        I(f"v_cvt_pk_bf16_f32 v{XR+q}, v{O+2*q}, v{O+2*q+1}")
    I(f"s_lshl_b32 s{sT0}, s{sP2}, 14")
    I(f"s_lshl_b32 s{sT1}, s{sP3}, 10")
    for q in range(4):
        I(f"v_lshlrev_b32 v{O+2*q}, 16, v{XR+q}")
        I(f"v_and_b32 v{O+2*q+1}, s{sHi}, v{XR+q}")
    I(f"s_add_u32 s{sT0}, s{sT0}, s{sT1}")
    I(f"s_add_u32 s{sT0}, s{sT0}, {WS_X1P + h*4*16384}")
    for q in range(0, 8, 2):
        I(f"v_pk_mul_f32 {vr(XF+q,2)}, {vr(O+q,2)}, {vr(CB+q,2)}")
    for q in range(4):
        I(f"v_cvt_pk_bf16_f32 v{XF+q}, v{XF+2*q}, v{XF+2*q+1}")
    xlast = I(f"buffer_store_dwordx4 {vr(XF,4)}, v{vL16}, {S(SWS)}, s{sT0} offen sc1")
    T = GA
    I(f"v_pk_add_f32 v[{T}:{T+1}], {vr(O,2)}, {vr(O+2,2)}")
    I(f"v_pk_add_f32 v[{T+2}:{T+3}], {vr(O+4,2)}, {vr(O+6,2)}")
    I(f"v_pk_add_f32 v[{T}:{T+1}], v[{T}:{T+1}], v[{T+2}:{T+3}]")
    I(f"v_add_f32 v{T}, v{T}, v{T+1}")
    I(f"v_mul_f32 v{T+2}, 0xbe000000, v{T}")
    for q in range(0, 8, 2):
        I(f"v_pk_add_f32 {vr(O+q,2)}, {vr(O+q,2)}, v[{T+2}:{T+3}] op_sel_hi:[1,0]")
    I(f"v_pk_mul_f32 v[{T+4}:{T+5}], {vr(O,2)}, {vr(O,2)}")
    I(f"v_pk_mul_f32 v[{T+6}:{T+7}], {vr(O+2,2)}, {vr(O+2,2)}")
    I(f"v_pk_fma_f32 v[{T+4}:{T+5}], {vr(O+4,2)}, {vr(O+4,2)}, v[{T+4}:{T+5}]")
    I(f"v_pk_fma_f32 v[{T+6}:{T+7}], {vr(O+6,2)}, {vr(O+6,2)}, v[{T+6}:{T+7}]")
    I(f"v_pk_add_f32 v[{T+4}:{T+5}], v[{T+4}:{T+5}], v[{T+6}:{T+7}]")
    I(f"v_add_f32 v{T+1}, v{T+4}, v{T+5}")
    for op, inv in (("v_permlane16_swap_b32", 0x3d800000), ("v_permlane32_swap_b32", 0x3d000000)):
        I(f"v_mov_b32 v{T+2}, v{T}")
        I(f"v_mov_b32 v{T+3}, v{T+1}")
        I(f"{op} v{T}, v{T+2}")
        I(f"{op} v{T+1}, v{T+3}")
        I(f"v_sub_f32 v{T+4}, v{T}, v{T+2}")
        I(f"v_add_f32 v{T}, v{T}, v{T+2}")
        I(f"v_add_f32 v{T+1}, v{T+1}, v{T+3}")
        I(f"v_mul_f32 v{T+4}, v{T+4}, v{T+4}")
        I(f"v_fmac_f32 v{T+1}, {inv:#x}, v{T+4}")
    I(f"v_lshlrev_b32 v{O}, 8, v20")
    I(f"v_mov_b32 v{T+2}, v{vTag}")
    I(f"v_mov_b32 v{T+3}, v{vTag}")
    I(f"v_mov_b32 v{O+1}, {OOB}")
    I(f"v_cmp_gt_u32 vcc, 16, v{vL}")
    I(f"v_cndmask_b32 v{O}, v{O+1}, v{O}, vcc")
    I(f"s_lshl_b32 s{sT0}, s{sP3}, 4")
    I(f"s_add_u32 s{sT0}, s{sT0}, {WS_STAT + h*64*256}")
    I(f"buffer_store_dwordx4 v[{T}:{T+3}], v{O}, {S(SWS)}, s{sT0} offen sc1")
    return xlast
def flag_at(base, grp, m, last):
    I(f"s_lshl_b32 s{sT0}, s{grp}, 4")
    I(f"s_add_u32 s{sT0}, s{sT0}, s{m}")
    I(f"s_lshl_b32 s{sT0}, s{sT0}, 7")
    I(f"s_add_u32 s{sT0}, s{sT0}, {base}")
    set_flag(sT0, last)

def c_compute(pids, hooks):
    ZF = 8; EPS = 16
    for e in range(4): I(f"v_mov_b32 v{EPS+e}, 0x358637bd")
    def us(u): return (u & 7) >> 1, 2 * (u >> 3) + (u & 1)
    def f0(u): s, r = us(u); return PHR(2 * s, r)
    def f1(u): s, r = us(u); return PHR(2 * s + 1, r)
    def buf(u):
        if u < 8: return [CAC(c, 2 + (u & 1)) for c in range(4)]
        k = 2 * (u & 1)
        return [PHR(k, 0), PHR(k + 1, 0), PHR(k, 1), PHR(k + 1, 1)]
    def s1(u):
        s, r = us(u); N0, D0, N1, D1 = buf(u)
        return [f"v_mfma_f32_16x16x32_bf16 {vr(D0,4)}, {vr(ZF+4*(s>>1),4)}, {vr(f0(u),4)}, {vr(EPS,4)}",
                f"v_mfma_f32_16x16x32_bf16 {vr(D1,4)}, {vr(ZF+4*(s>>1),4)}, {vr(f1(u),4)}, {vr(EPS,4)}",
                f"v_mfma_f32_16x16x32_bf16 {vr(N0,4)}, {vr(KB+8*s,4)}, {vr(f0(u),4)}, 0",
                f"v_mfma_f32_16x16x32_bf16 {vr(N1,4)}, {vr(KB+8*s+4,4)}, {vr(f1(u),4)}, 0"]
    def s2(u):
        s, r = us(u); N0, D0, N1, D1 = buf(u)
        d0 = D0 + ((2 * s) & 3); d1 = D1 + ((2 * s + 1) & 3)
        o = [f"v_rcp_f32 v6, v{d0}", f"v_rcp_f32 v7, v{d1}"]
        o += [f"v_mul_f32 v{N0+e}, v{N0+e}, v6" for e in range(4)]
        o += [f"v_cvt_pk_bf16_f32 v{f0(u)}, v{N0}, v{N0+1}", f"v_cvt_pk_bf16_f32 v{f0(u)+1}, v{N0+2}, v{N0+3}"]
        o += [f"v_mul_f32 v{N1+e}, v{N1+e}, v7" for e in range(4)]
        o += [f"v_cvt_pk_bf16_f32 v{f0(u)+2}, v{N1}, v{N1+1}", f"v_cvt_pk_bf16_f32 v{f0(u)+3}, v{N1+2}, v{N1+3}"]
        return o
    def s3(u):
        s, r = us(u)
        return [f"v_mfma_f32_16x16x32_bf16 {vr(CAC(c,r),4)}, {ar(WOF+(s*4+c)*4,4)}, {vr(f0(u),4)}, {vr(CAC(c,r),4) if s else 0}" for c in range(4)]
    wait_vm(pids[0])
    for m in s1(0): I(m)
    for u in range(17):
        if u in hooks: hooks[u]()
        if u + 1 < 16: wait_vm(pids[u + 1])
        mf = (s3(u - 1) if u >= 1 else []) + (s1(u + 1) if u + 1 < 16 else [])
        va = s2(u) if u < 16 else []
        k = 0
        for m in mf:
            I(m)
            for _ in range(2):
                if k < len(va): I(va[k]); k += 1
        while k < len(va): I(va[k]); k += 1

L_U = L_MISC + 3072
def u12_all():
    I(f"v_lshrrev_b32 v6, 3, v{vT}")
    I(f"v_lshlrev_b32 v7, 10, v6")
    I(f"v_lshl_add_u32 v7, v{vG}, 4, v7")
    I(f"v_add_u32 v7, {L_UV}, v7")
    R = 64; UA = 192
    for q in range(4):
        I(f"s_lshr_b32 s{sT0}, s{sKM+q}, 1")
        I(f"v_add_u32 v13, s{sT0}, v7")
        for s in range(4):
            I(f"ds_read_b128 {vr(R+4*(4*q+s),4)}, v13 offset:{64*s}")
    I(f"s_mul_i32 s{sT0}, s{sW}, 384")
    I(f"s_add_u32 s{sT0}, s{sT0}, {L_UW}")
    I(f"v_lshlrev_b32 v6, 6, v6")
    I(f"v_lshl_add_u32 v6, v{vG}, 4, v6")
    I(f"v_add_u32 v6, s{sT0}, v6")
    I(f"v_add_u32 v55, {L_DUMMY}, v{vL16}")
    I(f"v_and_b32 v13, 7, v{vT}")
    I(f"v_cmp_eq_u32 vcc, 0, v13")
    I(f"v_cndmask_b32 v55, v55, v6, vcc")
    wait_lg()
def u12_mm(k0, k1):
    R = 64; UA = 192
    for ks in range(k0, k1):
        for c in range(3):
            acc = vr(UA + 4 * c, 4)
            I(f"v_mfma_f32_16x16x32_bf16 {acc}, {ar(GF(c,ks),4)}, {vr(R+4*ks,4)}, {acc if ks else 0}")
    if k1 == 16:
        for c in range(3):
            I(f"ds_write_b128 v55, {vr(UA+4*c,4)} offset:{128*c}")

def DF(j, c): return (192 + (j * 4 + c) * 4) if j < 4 else ((j - 4) * 4 + c) * 4
WDSLOT = {0: 6, 1: 7, 2: 0, 3: 1, 4: 2, 5: 0, 6: 3, 7: 1, 8: 4, 9: 5, 10: 6}
vWD = 12
def wd_setup():
    TMPV[:] = [6, 7, 17, 18]
    rows128_voff(vWD, 1024, True)
    I(f"s_mul_i32 s{sB1}, s{sW}, {352*1024}")
    I(f"s_lshl_b32 s{sB2}, s{sCtC}, 7")
    I(f"s_add_u32 s{sB1}, s{sB1}, s{sB2}")
    I(f"v_bfe_u32 v6, v{vL}, 2, 2")
    I(f"v_lshl_add_u32 v6, v{vG}, 3, v6")
    I(f"v_lshlrev_b32 v6, 7, v6")
    I(f"v_bfe_u32 v7, v{vL}, 3, 2")
    I(f"s_and_b32 s{sB2}, s{sW}, 2")
    I(f"v_xor_b32 v7, s{sB2}, v7")
    I(f"v_lshl_add_u32 v6, v7, 5, v6")
    I(f"v_and_b32 v7, 3, v{vL}")
    I(f"v_lshl_add_u32 v6, v7, 3, v6")
    I(f"v_add_u32 v16, s{sW4096}, v6")
    for c in range(1, 4):
        I(f"v_xor_b32 v{16+c}, {32*c}, v16")
def wd_dma(j):
    return dma4(vWD, S(SWD), sW4096, WDSLOT[j] * 16 * K, sB1, j * 32768)
def wd_tr(j, last):
    if last is not None: wait_vm(last)
    off = (WDSLOT[j] & 3) * 16 * K
    out = None
    for c in range(4):
        f = DF(j, c)
        I(f"ds_read_b64_tr_b16 {ar(f,2)}, v{16+c} offset:{off}")
        out = I(f"ds_read_b64_tr_b16 {ar(f+2,2)}, v{16+c} offset:{off+512}")
    return out
def wd_hi():
    for c in range(4): I(f"v_xor_b32 v{16+c}, {64*K}, v{16+c}")

L_XCH = 128 * K
L_RS = L_MISC
AF = 64; SR = 32
def DAC(p, c, sl): return 128 + p * 48 + (c * 4 + sl) * 4
vFl, vFt, vAs = 60, 61, 62
def d_setup():
    I(f"s_lshl_b32 s{sT0}, s{sGrpD}, 11")
    I(f"s_add_u32 s{sT0}, s{sT0}, {WS_FX}")
    I(f"v_lshlrev_b32 v{vFl}, 7, v{vT}")
    I(f"v_add_u32 v{vFl}, s{sT0}, v{vFl}")
    pid = poll_issue(vFl, vFt)
    I(f"s_lshl_b32 s{sT0}, s{sGrpD}, 3")
    I(f"s_add_u32 s{sT0}, s{sT0}, s{sW}")
    I(f"s_lshl_b32 s{sT0}, s{sT0}, 14")
    I(f"s_add_u32 s{sT0}, s{sT0}, {WS_X1P}")
    I(f"v_add_u32 v{vAs}, s{sT0}, v{vL16}")
    I(f"s_lshl_b32 s{sP0}, s{sGrpD}, 15")
    I(f"s_add_u32 s{sP0}, s{sP0}, {WS_STAT}")
    I(f"s_add_u32 s{sP0}, s{sP0}, s{sW4096}")
    I(f"s_and_b32 s{sT1}, s{sW}, 1")
    I(f"s_lshl_b32 s{sT1}, s{sT1}, 13")
    I(f"v_add_u32 v8, s{sT1}, v{vL16}")
    I(f"v_xor_b32 v9, 8192, v8")
    I(f"v_add_u32 v10, 65536, v8")
    I(f"v_add_u32 v11, 65536, v9")
    I(f"s_lshl_b32 s{sT0}, s{sW}, 7")
    I(f"s_add_u32 s{sT0}, s{sT0}, {L_RS}")
    I(f"v_lshlrev_b32 v53, 3, v{vG}")
    I(f"v_add_u32 v53, s{sT0}, v53")
    I(f"v_lshlrev_b32 v52, 3, v{vL}")
    I(f"v_add_u32 v52, {L_DUMMY}, v52")
    I(f"v_cmp_eq_u32 vcc, 0, v{vT}")
    I(f"v_cndmask_b32 v53, v52, v53, vcc")
    return pid
def d_adma(h, q):
    return dma4([vAs] * 4, S(SWS), sW4096, h * 64 * K + q * 16 * K, sK + q, h * 65536, " sc1")
def d_stat_loads(h):
    I(f"s_add_u32 s{sT3}, s{sP0}, {h*16384}")
    for k in range(4):
        sid = I(f"buffer_load_dwordx4 {vr(SR+4*k,4)}, v{vL16}, {S(SWS)}, s{sT3} offen offset:{1024*k} sc1")
    return sid
def d_stat_check(h, sid):
    def checks():
        I(f"v_xor_b32 v6, v{SR+2}, v{vTag}")
        for q in range(1, 4):
            I(f"v_bitop3_b32 v6, v6, v{SR+4*q+2}, v{vTag} bitop3:0xf6")
        I("v_cmp_ne_u32 vcc, 0, v6")
    wait_vm(sid)
    checks()
    def body():
        d_stat_loads(h); I("s_waitcnt vmcnt(0)"); A.vm = []; checks()
    spin_loop(body, first_done=True)
def d_stat(h, part):
    DP = ["row_ror:8", "row_ror:4", "row_ror:2", "row_ror:1"]
    if part == 0:
        for k in range(4): I(f"v_mov_b32 v{SR+4*k+2}, v{SR+4*k}")
        for d in DP:
            for k in range(4):
                I(f"v_add_f32_dpp v{SR+4*k+2}, v{SR+4*k+2}, v{SR+4*k+2} {d} row_mask:0xf bank_mask:0xf")
        for k in range(4):
            I(f"v_fmac_f32 v{SR+4*k}, 0xbd800000, v{SR+4*k+2}")
        for k in range(4):
            I(f"v_mul_f32 v{SR+4*k}, v{SR+4*k}, v{SR+4*k}")
        for k in range(4):
            I(f"v_fmac_f32 v{SR+4*k+1}, 0x3d000000, v{SR+4*k}")
        return
    for d in DP:
        for k in range(4):
            I(f"v_add_f32_dpp v{SR+4*k+1}, v{SR+4*k+1}, v{SR+4*k+1} {d} row_mask:0xf bank_mask:0xf")
    for k in range(4): I(f"v_mov_b32 v{SR+4*k}, 0x3727c5ac")
    for k in range(4): I(f"v_fmac_f32 v{SR+4*k}, 0x3b000000, v{SR+4*k+1}")
    for k in range(4): I(f"v_rsq_f32 v{SR+4*k}, v{SR+4*k}")
    for k in range(4): I(f"v_mul_f32 v{SR+4*k+1}, 0xbb000000, v{SR+4*k+2}")
    for k in range(4): I(f"v_mul_f32 v{SR+4*k+1}, v{SR+4*k+1}, v{SR+4*k}")
    for k in range(4): I(f"ds_write_b64 v53, {vr(SR+4*k,2)} offset:{h*512 + 32*k}")

def d_rd(p, ks, sl):
    b = AF + (ks % 3) * 16 + 4 * sl
    q, s = ks >> 2, ks & 3
    base = (8 if sl < 2 else 9) + 2 * p
    return I(f"ds_read_b128 {vr(b,4)}, v{base} offset:{q*16*K + (sl&1)*4096 + s*1024}")
def d_pass(p, aids, bgf, pre):
    wait_vm(aids[0]); barrier()
    rds = {0: [d_rd(p, 0, sl) for sl in range(4)], 1: [d_rd(p, 1, sl) for sl in range(4)]}
    for k2 in range(0, 16, 2):
        def main():
            for ks in (k2, k2 + 1):
                if ks in (4, 8, 12): I("s_barrier")
                if ks + 2 < 16 and (ks + 2) % 4 == 0:
                    wait_vm(aids[(ks + 2) >> 2]); I("s_barrier")
                nxt = []
                for sl in range(4):
                    if ks + 2 < 16: nxt.append(d_rd(p, ks + 2, sl))
                    if sl == 0: wait_lg(rds[ks][3])
                    for c in range(3):
                        acc = vr(DAC(p, c, sl), 4)
                        I(f"v_mfma_f32_16x16x32_bf16 {acc}, {ar(GF(c,ks),4)}, {vr(AF+(ks%3)*16+4*sl,4)}, {acc if ks else 0}")
                rds[ks + 2] = nxt
        if p == XST - 1 and k2 < 14: xstamp()
        pre(k2)
        rb_ = rec(bgf, k2); rm = rec(main)
        merge_mfma(A, rm, [rb_])

def d_epi_setup():
    I(f"s_and_b32 s{sT1}, s{sW}, 1")
    I(f"s_lshl_b32 s{sT1}, s{sT1}, 8")
    I(f"s_add_u32 s{sT1}, s{sT1}, {L_RS}")
    I(f"v_lshlrev_b32 v56, 3, v{vT}")
    I(f"v_add_u32 v56, s{sT1}, v56")
    I(f"s_mul_i32 s{sT0}, s{sW}, 384")
    I(f"s_add_u32 s{sT0}, s{sT0}, {L_UW}")
    I(f"v_lshlrev_b32 v57, 4, v{vG}")
    I(f"v_add_u32 v57, s{sT0}, v57")
    I(f"s_lshl_b32 s{sT0}, s{sW}, 11")
    I(f"s_add_u32 s{sT0}, s{sT0}, {L_XCH}")
    I(f"v_add_u32 v58, s{sT0}, v{vL16}")
    I(f"v_and_b32 v59, 1, v{vG}")
    I(f"v_mul_u32_u24 v59, {43*1024}, v59")
    I(f"v_lshrrev_b32 v63, 1, v{vG}")
    I(f"v_lshl_add_u32 v59, v63, 8, v59")
    I(f"v_lshl_add_u32 v59, v{vT}, 4, v59")
    I(f"s_mul_i32 s{sT0}, s{sGrpD}, {8*43*1024}")
    I(f"s_add_u32 s{sT0}, s{sT0}, {WS_HH}")
    for dst, tile in ((sP1, sTx), (sHead, sTz)):
        I(f"s_add_u32 s{dst}, s{sFt0}, s{tile}")
        I(f"s_lshl_b32 s{dst}, s{dst}, 9")
        I(f"s_add_u32 s{dst}, s{dst}, s{sT0}")
def d_epi(p):
    RS = 32; U = 40 - 0;
    U = 224
    barrier()
    I(f"v_xor_b32 v63, 256, v56")
    for sl in (2, 3, 0, 1):
        I(f"ds_read_b64 {vr(RS+2*sl,2)}, v{56 if sl < 2 else 63} offset:{p*512 + (sl&1)*128}")
    if p == 0:
        for c in (2, 0, 1):
            I(f"ds_read_b128 {vr(U+8*c,4)}, v57 offset:{128*c}")
            I(f"ds_read_b128 {vr(U+8*c+4,4)}, v57 offset:{128*c+64}")
    I(f"s_and_b32 s{sT1}, s{sW}, 1")
    I(f"s_mul_i32 s{sT1}, s{sT1}, {2*43*1024}")
    I(f"s_xor_b32 s{sT2}, s{sT1}, {2*43*1024}")
    wait_lg()
    tc = [0]
    def fix(c, sl):
        a = DAC(p, c, sl)
        for e in (0, 2):
            t = 40 + 2 * (tc[0] & 3); tc[0] += 1
            I(f"v_pk_fma_f32 {vr(t,2)}, {vr(U+8*c+e,2)}, {vr(RS+2*sl,2)}, {vr(U+8*c+4+e,2)} op_sel:[0,1,0] op_sel_hi:[1,1,1]")
            I(f"v_pk_fma_f32 {vr(a+e,2)}, {vr(a+e,2)}, {vr(RS+2*sl,2)}, {vr(t,2)} op_sel_hi:[1,0,1]")
    for sl in (2, 3):
        fix(2, sl)
        I(f"ds_write_b128 v58, {vr(DAC(p,2,sl),4)} offset:{(sl-2)*1024}")
    def hh_pack(dst, ga, ua):
        for e in (0, 2):
            I(f"v_pk_mul_f32 {vr(ga+e,2)}, {vr(ga+e,2)}, {vr(ua+e,2)}")
        I(f"v_cvt_pk_bf16_f32 v{dst}, v{ga}, v{ga+1}")
        I(f"v_cvt_pk_bf16_f32 v{dst+1}, v{ga+2}, v{ga+3}")
    def store_pair(d, slot, base_s, ga0, ua0, ga1, ua1):
        hh_pack(d, ga0, ua0)
        hh_pack(d + 2, ga1, ua1)
        I(f"s_add_u32 s{sT0}, s{base_s}, s{sT1 if slot < 2 else sT2}")
        I(f"s_add_u32 s{sT0}, s{sT0}, {p*4*43*1024}")
        I(f"v_permlane16_swap_b32 v{d}, v{d+2}")
        I(f"v_permlane16_swap_b32 v{d+1}, v{d+3}")
        return I(f"buffer_store_dwordx4 {vr(d,4)}, v59, {S(SWS)}, s{sT0} offen sc1")
    for k, sl in enumerate((0, 2)):
        for c in (0, 1):
            fix(c, sl); fix(c, sl + 1)
        store_pair(72 + 4 * k, sl, sP1, DAC(p,0,sl), DAC(p,1,sl), DAC(p,0,sl+1), DAC(p,1,sl+1))
        if k == 0:
            barrier()
            I(f"v_xor_b32 v63, 2048, v58")
            for s2 in range(2):
                I(f"ds_read_b128 {vr(DAC(p,2,2+s2),4)}, v63 offset:{s2*1024}")
    for sl in range(2): fix(2, sl)
    wait_lg()
    return store_pair(DAC(p,0,0), 0, sHead, DAC(p,2,0), DAC(p,2,2), DAC(p,2,1), DAC(p,2,3))

EQ = list(range(96, 176, 4)) + [64, 68]
def EAR(j, rho): return EQ[j * 2 + rho]
def ECC(k, r4): return 176 + (r4 * 4 + k) * 4
def e_setup():
    I(f"s_lshl_b32 s{sT0}, s{sGrpC}, 11")
    I(f"s_add_u32 s{sT0}, s{sT0}, {WS_FH}")
    I(f"v_lshlrev_b32 v{vFl}, 7, v{vT}")
    I(f"v_add_u32 v{vFl}, s{sT0}, v{vFl}")
    rt_offsets(43 * 1024)
    I(f"s_mul_i32 s{sT0}, s{sGrpC}, {8*43*1024}")
    I(f"s_mul_i32 s{sT1}, s{sW}, {11*1024}")
    I(f"s_add_u32 s{sT0}, s{sT0}, s{sT1}")
    I(f"s_add_u32 s{sT0}, s{sT0}, {WS_HH}")
    I(f"v_add_u32 v248, s{sT0}, v{vL16}")
    I(f"v_add_u32 v249, 4096, v248")
    I(f"v_add_u32 v250, 8192, v248")
    I(f"s_cmp_eq_u32 s{sW}, 3")
    I(f"s_cselect_b32 s{sT0}, 1024, 0")
    I(f"v_subrev_u32 v251, s{sT0}, v250")
    return poll_issue(vFl, vFt)
def e_ld(h, j, rho):
    base = 251 if j == 10 else 248 + (j >> 2)
    return I(f"buffer_load_dwordx4 {vr(EAR(j,rho),4)}, v{base}, {S(SWS)}, s{sR+2*h+rho} offen offset:{(j&3)*1024} sc1")
def e_mm(h, ids, trw, late, j0=0, j1=11):
    for j in range(j0, j1):
        if j in trw: wait_lg(trw[j])
        for rho in range(2):
            if (j, rho) in late: ids[late[(j, rho)]] = e_ld(h, *late[(j, rho)])
            wait_vm(ids[(j, rho)])
            for c in range(4):
                acc = vr(ECC(c, 2 * h + rho), 4)
                I(f"v_mfma_f32_16x16x32_bf16 {acc}, {ar(DF(j,c),4)}, {vr(EAR(j,rho),4)}, {acc if j else 0}")
def e_fin(h, GB):
    O = 32 + 16 * h; XF = 40 + 16 * h; XR = 24 + 4 * h
    acc = lambda k, rho: ECC(k, 2 * h + rho)
    for q in range(4):
        I(f"v_lshlrev_b32 v{XF+2*q}, 16, v{XR+q}")
        I(f"v_and_b32 v{XF+2*q+1}, s{sHi}, v{XR+q}")
    wait_lg()
    half_sum(acc, O)
    for q in range(0, 8, 2):
        I(f"v_pk_fma_f32 {vr(O+q,2)}, {vr(O+q,2)}, {vr(GB+q,2)}, {vr(XF+q,2)}")
    for q in range(4):
        I(f"v_cvt_pk_bf16_f32 v{XF+q}, v{O+2*q}, v{O+2*q+1}")
    I(f"s_lshl_b32 s{sT1}, s{sP3}, 6")
    if h: I(f"s_add_u32 s{sT1}, s{sT1}, 65536")
    I(f"v_permlane16_swap_b32 v{XF}, v{XF+2}")
    I(f"v_permlane16_swap_b32 v{XF+1}, v{XF+3}")
    I(f"buffer_store_dwordx4 {vr(XF,4)}, v21, {S(SOUT)}, s{sT1} offen")

def write_epoch():
    I(f"s_lshl_b32 s{sT0}, s2, 8")
    I(f"v_or_b32 v6, s{sT0}, v{vTid}")
    I(f"v_cmp_eq_u32 vcc, 0, v6")
    I(f"v_mov_b32 v7, {OOB}")
    I(f"v_cndmask_b32 v7, v7, {WS_EPOCH}, vcc")
    I(f"buffer_store_dword v{vTag}, v7, {S(SWS)}, 0 offen")

def body():
    aids = prologue()
    stamp()
    xids = x_issue()
    consts()
    wq_addr()
    h_addr()
    phaseA_compute(aids)
    stamp()
    wphi_issue()
    wids = {}
    r1 = rec(layernorm, xids)
    r2 = rec(lambda: (wq_dma(0), wq_dma(1), gm_issue([0], 40)))
    merge(A, [r1, r2], [(0, 1), (0, 0.9)])
    wids[0], wids[1], gid = r2.ret
    stamp()
    wait_vm(wids[0]); barrier()
    r1 = rec(wq_tr, 0); r2 = rec(lambda: (wq_dma(2), pf_wo())[0])
    merge(A, [r1, r2]); wids[2] = r2.ret
    stamp()
    gm_finish([0], 40, gid)
    barrier()
    stamp()
    r1 = rec(make_h_first); r2 = rec(wq_tr, 1)
    merge(A, [r1, r2], [(0, 1), (0.12, 0.6)])
    wphi_pack()
    barrier()
    cur = {k: [a_rd(k, rt) for rt in range(4)] for k in range(2)}
    rm = rec(gemm_kv, 0, 4, cur); rc = rec(lambda: (wq_dma(3), pf_gu(), pf_wd())[0])
    merge_mfma(A, rm, [rc]); wids[3] = rc.ret
    wait_vm(wids[2]); I("s_barrier")
    rwo = rec(wo_dma)
    nset = rwo.first_dma
    setup = Rec(); setup.ops = rwo.ops[:nset]; rwo.ops = rwo.ops[nset:]
    rm = rec(gemm_kv, 4, 6, rm.ret); rc = rec(wq_tr, 2)
    merge_mfma(A, rm, [rc, setup], [(0, 0.8), (0, 1)])
    wait_vm(wids[3]); barrier()
    rm = rec(gemm_kv, 6, 10, rm.ret); rb_ = rec(make_h_do, 3, 240, False, -1); rc = rec(wq_tr, 3)
    merge_mfma(A, rm, [rb_, rc], [(0, 0.95), (0, 0.95)])
    barrier()
    rm = rec(gemm_kv, 10, 16, rm.ret); rc = rec(wgu_setup)
    merge_mfma(A, rm, [rwo, rc], [(0, 0.6), (0.62, 1)])
    wo_last = rwo.ret
    if STOP == 1:
        A.fence(16)
        dbg_dump([vr(accQ(k), 4) for k in range(4)] + [vr(accK(k), 4) for k in range(4)] + [vr(accV(k), 4) for k in range(4)], 0)
        return
    I("s_barrier")
    stamp()
    g = {}
    rm = rec(epi_k); rb_ = rec(wgu_dma, 0)
    merge(A, [rm, rb_], [(0, 1), (0, 0.7)])
    g[0] = rb_.ret
    wo_tr(wo_last)
    barrier()
    stamp()
    rm = rec(epi_q); rc = rec(kv_reduce_issue); rb_ = rec(wgu_dma, 1)
    merge(A, [rm, rc, rb_], [(0, 1), (0.55, 0.75), (0.0, 0.55)])
    g[1] = rb_.ret
    stamp()
    kv_reduce_finish(rc.ret)
    wgu_traddr()
    stamp()
    set_flag(sT1, rm.ret)
    stamp()
    if STOP == 2: return
    gid = gm_issue([1, 2], 192)
    wgu_tr(0); wgu_tr(1)
    barrier()
    r1 = rec(lambda: (wgu_dma(2), wgu_dma(3))); r2 = rec(lambda: (kv_addr(), phiq_load())[1])
    merge(A, [r1, r2], [(0, 1), (0.3, 1)])
    g[2], g[3] = r1.ret; pid = r2.ret
    gm_finish([1, 2], 192, gid)
    kid = kv_loads()
    wait_vm(g[3]); barrier()
    stamp()
    pids = {}
    poll_finish(20, 21, pid)
    r1 = rec(phiq_loads, pids, 0); r2 = rec(lambda: (wgu_tr(2), wgu_tr(3)))
    merge(A, [r1, r2])
    stamp()
    kv_finish(kid)
    kv_pack()
    stamp()
    st = {}
    accA = lambda k, rho: CAC(k, rho)
    accB = lambda k, rho: CAC(k, 2 + rho)
    rg = rec(phiq_loads, pids, 1)
    parts = [rg.ops[k*8:(k+1)*8] for k in range(4)]
    def hg(k):
        def f():
            r_ = Rec(); r_.ops = parts[k]; merge(A, [r_])
        return f
    def h4(): st["x"] = c_setup()
    def h9(): half_send(accA, L_RED, 6)
    def h10():
        barrier()
        half_recv(accA, L_RED, 6); c_epi_rd(144, 160)
    def h11():
        st["xa"] = c_epi(0, accA, 128, 144, 160, 176, st["x"])
    def h15(): flag_at(WS_FX, sGrpC, sMC, st["xa"])
    c_compute(pids, {0: hg(0), 1: hg(1), 2: hg(2), 3: hg(3), 5: h4, 9: h9, 10: h10, 11: h11, 15: h15})
    stamp()
    half_send(accB, L_RED + 24 * K, 6)
    c_epi_rd(144, 160)
    barrier()
    half_recv(accB, L_RED + 24 * K, 6)
    xb = c_epi(1, accB, 128, 144, 160, 176, st["x"])
    stamp()
    if STOP == 3:
        flag_at(WS_FX + 0x10000, sGrpC, sMC, xb)
        return
    pid = d_setup()
    u12_all()
    rm = rec(u12_mm, 0, 9); rb_ = rec(lambda: (wd_setup(), d_epi_setup()))
    merge_mfma(A, rm, [rb_])
    flag_at(WS_FX + 0x10000, sGrpC, sMC, xb)
    poll_finish(vFl, vFt, pid)
    stamp()
    aA = [d_adma(0, 0)]
    rm = rec(u12_mm, 9, 16); rb_ = rec(lambda: (d_stat_loads(0), [d_adma(0, q) for q in (1, 2, 3)]))
    merge_mfma(A, rm, [rb_])
    sid = rb_.ret[0]; aA += rb_.ret[1]
    I(f"v_add_u32 v{vFl}, 0x10000, v{vFl}")
    stamp()
    wd = {}; aB = []; dd = {}
    def bgA(ks):
        if ks == 0: wd[0] = wd_dma(0); dd["p"] = poll_issue(vFl, vFt)
        if ks == 2: wd[1] = wd_dma(1)
        if ks == 4: wd[2] = wd_dma(2)
        if ks == 6: aB.append(d_adma(1, 0)); d_stat(0, 0)
        if ks == 8:
            aB.append(d_adma(1, 1)); wd_hi(); wd_tr(0, wd[0]); dd["t"] = wd_tr(1, wd[1]); wd_hi()
        if ks == 10: wait_lg(dd["t"]); aB.append(d_adma(1, 2)); wd[3] = wd_dma(3)
        if ks == 12: aB.append(d_adma(1, 3)); dd["t"] = wd_tr(2, wd[2])
        if ks == 14: wd[4] = wd_dma(4); d_stat(0, 1)
    def preA(ks):
        if ks == 6: poll_finish(vFl, vFt, dd["p"]); d_stat_check(0, sid)
    d_pass(0, aA, bgA, preA)
    stamp()
    ha = d_epi(0)
    stamp()
    def bgB(ks):
        if ks == 0: dd["s"] = d_stat_loads(1); wd[5] = wd_dma(5); dd["t"] = wd_tr(3, wd[3])
        if ks == 2: wd[6] = wd_dma(6)
        if ks == 4: wait_lg(dd["t"]); wd[7] = wd_dma(7)
        if ks == 6: wd[8] = wd_dma(8)
        if ks == 8: wd[9] = wd_dma(9)
        if ks == 10: dd["e"] = e_setup()
        if ks == 12: wd[10] = wd_dma(10); d_stat(1, 0)
        if ks == 14: d_stat(1, 1)
    def preB(ks):
        if ks == 4: flag_at(WS_FH, sGrpD, sMD, ha)
        if ks == 10: d_stat_check(1, dd["s"])
    d_pass(1, aB, bgB, preB)
    stamp()
    poll_finish(vFl, vFt, dd["e"])
    ea = {}
    for j in range(6):
        for rho in range(2): ea[(j, rho)] = e_ld(0, j, rho)
    hb = d_epi(1)
    if STOP == 4:
        flag_at(WS_FH + 0x10000, sGrpD, sMD, hb)
        return
    stamp()
    I(f"v_add_u32 v{vFl}, 0x10000, v{vFl}")
    trw = {}
    def trs(j0, j1):
        for j in range(j0, j1):
            if j == 8: wd_hi()
            trw[j] = wd_tr(j, None)
    order = [(j, rho) for j in range(11) for rho in range(2)]
    rb_ = rec(trs, 4, 8); rm = rec(e_mm, 0, ea, trw, {order[k]: order[12 + k] for k in range(8)}, 0, 4)
    merge_mfma(A, rm, [rb_])
    flag_at(WS_FH + 0x10000, sGrpD, sMD, hb)
    rb_ = rec(lambda: (trs(8, 11), pad(300), poll_issue(vFl, vFt))[2]); rm = rec(e_mm, 0, ea, trw, {order[8 + k]: order[20 + k] for k in range(2)}, 4, 11)
    merge_mfma(A, rm, [rb_], [(0, 1.0)])
    dd["f"] = rb_.ret
    stamp()
    accEa = lambda k, rho: ECC(k, rho)
    accEb = lambda k, rho: ECC(k, 2 + rho)
    poll_finish(vFl, vFt, dd["f"])
    eb = {}
    for jr in order[:14]: eb[jr] = e_ld(1, *jr)
    barrier()
    half_send(accEa, 0, 6)
    GB = 240
    for k in range(2):
        I(f"ds_read_b128 {vr(GB+4*k,4)}, v22 offset:{10240 + 64*k}")
    I(f"v_lshlrev_b32 v21, 10, v20")
    I(f"v_and_b32 v7, 1, v{vG}")
    I(f"v_lshl_add_u32 v21, v7, 5, v21")
    I(f"v_lshrrev_b32 v7, 1, v{vG}")
    I(f"v_lshl_add_u32 v21, v7, 4, v21")
    barrier()
    half_recv(accEa, 0, 6)
    e_fin(0, GB)
    stamp()
    e_mm(1, eb, {}, {order[k]: order[14 + k] for k in range(8)})
    stamp()
    half_send(accEb, 24 * K, 6)
    barrier()
    half_recv(accEb, 24 * K, 6)
    e_fin(1, GB)
    stamp()

hdr = open(f"cdna_kernels/{NAME}.s.ref").read().split("; Override launch")[0]
A.raw(hdr.rstrip())
A.raw(f"; @launch grid=(256,1,1) block=(256,1,1) lds={LDS_BYTES}")
A.raw('.amdgcn_target "amdgcn-amd-amdhsa--gfx950"')
A.raw(".text")
A.raw(f".globl {NAME}_kernel")
A.raw(".p2align 8")
A.raw(f".type {NAME}_kernel,@function")
A.raw(f"{NAME}_kernel:")
body()
write_epoch()
stamp_out()
A.raw("L_end:")
I("s_endpgm")
A.raw("L_code_end:")
A.raw('.section .rodata,"a"')
A.raw(".p2align 6")
A.raw(f".amdhsa_kernel {NAME}_kernel")
A.raw("  .amdhsa_next_free_vgpr 512")
A.raw("  .amdhsa_next_free_sgpr 102")
A.raw("  .amdhsa_accum_offset 256")
A.raw("  .amdhsa_group_segment_fixed_size 0")
A.raw("  .amdhsa_kernarg_size 104")
A.raw("  .amdhsa_user_sgpr_count 2")
A.raw("  .amdhsa_user_sgpr_kernarg_segment_ptr 1")
A.raw("  .amdhsa_system_sgpr_workgroup_id_x 1")
A.raw(".end_amdhsa_kernel")
out = sys.argv[1] if len(sys.argv) > 1 else f"cdna_kernels/{NAME}.s"
open(out, "w").write(A.text())
print("instructions:", A.ninstr, "stamps:", stamp_idx[0], "->", out)
```

```python
import sys
from asmlib import *

NAME = "adaLN_cond__linear_kernel_hedgehog__glu_gated_bilinear__prompt"
STOP = int(sys.argv[2]) if len(sys.argv) > 2 else 99
STAMP = int(sys.argv[3]) if len(sys.argv) > 3 else 0
XST = int(sys.argv[4]) if len(sys.argv) > 4 else 0

WS_EPOCH = 0
WS_FQ = 0x80000
WS_FX = 0x88000
WS_FH = 0x90000
WS_MODF = 0x10000
WS_KVF = 0x20000
WS_STAT = 0x340000
WS_KVP = 0x100000
WS_PHIQ = 0x400000
WS_X1P = 0x800000
WS_HH = 0xA00000
WS_DBG = 0x1000000
WS_STAMP = 0x1F00000
WS_SIZE = 0x2000000
OOB = 0x7ffffff0
KVREC = 2176
K = 1024
L_MODV = 144 * K
L_MISC = 156 * K
L_UW = L_MODV
L_DUMMY = L_MODV + 2048
L_UV = L_MISC + 1024
LDS_BYTES = 160 * K
SPIN = 400000

sTag, sW, sJ = 4, 5, 6
sCtB, sRbB, sCtC, sRbC, sGrpC, sMC, sGrpD, sMD = 7, 8, 9, 10, 36, 37, 38, 39
sT0, sT1, sT2, sT3, sCnt = 11, 12, 13, 14, 15
sK, sKW, sKM = 16, 20, 24
sW4096 = 28
sP0, sP1, sP2, sP3 = 29, 30, 31, 32
sFt0, sHead, sB0 = 33, 34, 35
sTx, sTz, sB1, sB2 = 40, 41, 42, 43
SX, SWQKV, SWPHI, SWO, SWG, SWU, SWD, SC, SWMOD, SOUT, SWS = 44, 48, 52, 56, 60, 64, 68, 72, 76, 80, 84
SGU = 72
sR = 76
sSel = 88
sSelA, sSelB = 92, 93
sL, sL2, sNL, sNL2 = 94, 95, 96, 97
sHi = 98
sSelHi = 99
sSelLL = 3

A = Asm(); A.phmap = {}
class Em: pass
E = Em(); E.t = A
def I(t): return E.t.I(t)
def _ph(x):
    if E.t is A and x is not None and not isinstance(x, int): return A.phmap[x]
    return x
def wait_vm(x=None): E.t.wait_vm(_ph(x))
def wait_lg(x=None): E.t.wait_lg(_ph(x))
def barrier(): E.t.barrier()
def rec(fn, *a):
    r = Rec(); old = E.t; E.t = r
    ret = fn(*a)
    E.t = old
    r.ret = ret
    return r
def gbegin():
    if E.t is not A: E.t.begin()
def gend():
    if E.t is not A: E.t.end()
def pad(c):
    if E.t is not A: E.t.pad(c)

def srd(base, ptr, nbytes):
    I(f"s_mov_b32 s{base}, s{ptr}")
    I(f"s_and_b32 s{base+1}, s{ptr+1}, 0xffff")
    I(f"s_mov_b32 s{base+2}, {nbytes}")
    I(f"s_mov_b32 s{base+3}, 0x20000")
def S(b): return sr(b, 4)

vTid, vL, vG, vT, vTag, vL16 = 0, 1, 2, 3, 4, 5

stamp_idx = [0]
DBGSET = [0, 1, 2, 4, 5, 6, 8, 9, 12, 13, 14, 16, 17, 18, 19, 20]
def stamp():
    if not STAMP: return
    n = stamp_idx[0]; stamp_idx[0] += 1
    if STAMP == 4:
        if n == XST:
            I("s_memrealtime s[100:101]"); I("s_waitcnt lgkmcnt(0)"); A.lg = []; I("s_mov_b32 s0, s100")
        return
    if STAMP == 3:
        if n not in DBGSET: return
        n = DBGSET.index(n)
    I("s_memrealtime s[100:101]" if STAMP != 2 else "s_memtime s[100:101]")
    I("s_waitcnt lgkmcnt(0)")
    A.lg = []
    I("v_mov_b32 v6, s100")
    I(f"v_lshlrev_b32 v7, 1, v{vTid}")
    I(f"v_and_b32 v7, 0x180, v7")
    I(f"s_lshl_b32 s100, s2, 9")
    I(f"s_add_u32 s100, s100, {WS_STAMP + 4*n}")
    I(f"buffer_store_dword v6, v7, {S(SWS)}, s100 offen")
def stamp_out():
    if STAMP == 4:
        A.raw("L_padloop:")
        I("s_memrealtime s[100:101]"); I("s_waitcnt lgkmcnt(0)"); I("s_sub_u32 s100, s100, s0"); I("s_cmp_lt_u32 s100, 6000"); I("s_cbranch_scc1 L_padloop")
    if STAMP != 3: return
    I("s_cmp_lg_u32 s2, 100")
    I("s_cbranch_scc1 L_end")
    I(f"s_load_dwordx2 s[20:21], s[0:1], 88")
    I("s_waitcnt vmcnt(0) lgkmcnt(0)")
    srd(16, 20, 64)
    I(f"v_lshlrev_b32 v7, 2, v{vTid}")
    I(f"s_mov_b32 s100, {WS_STAMP + 100*512}")
    I(f"buffer_load_dword v6, v7, {S(SWS)}, s100 offen sc1")
    I("s_waitcnt vmcnt(0)")
    I(f"buffer_store_dword v6, v7, s[16:19], 0 offen")

def xstamp():
    if STAMP in (1, 2) and XST: stamp()
def xstamp3():
    if STAMP in (1, 2) and XST == 3: stamp()
def tag4(b):
    for i in range(4):
        I(f"v_perm_b32 v{b+i}, v{b+i}, v{vTag}, s{sSel+i}")
def check4(bad, b, t0, t1, first):
    I(f"v_perm_b32 v{t0}, v{b+1}, v{b}, s{sSelA}")
    I(f"v_perm_b32 v{t1}, v{b+3}, v{b+2}, s{sSelB}")
    if first:
        I(f"v_bitop3_b32 v{bad}, v{t0}, v{t1}, v{vTag} bitop3:0x96")
    else:
        I(f"v_bitop3_b32 v{t0}, v{t0}, v{t1}, v{vTag} bitop3:0x96")
        I(f"v_or_b32 v{bad}, v{bad}, v{t0}")

def round_tag16(b, t):
    I(f"v_cvt_pk_bf16_f32 v{t}, v{b}, v{b+1}")
    I(f"v_cvt_pk_bf16_f32 v{t+1}, v{b+2}, v{b+3}")
    I(f"v_perm_b32 v{b}, v{t}, v{vTag}, s{sSelLL}")
    I(f"v_perm_b32 v{b+1}, v{t}, v{vTag}, s{sSelHi}")
    I(f"v_perm_b32 v{b+2}, v{t+1}, v{vTag}, s{sSelLL}")
    I(f"v_perm_b32 v{b+3}, v{t+1}, v{vTag}, s{sSelHi}")
def check16(bad, b, t0, first):
    I(f"v_perm_b32 v{t0}, v{b+1}, v{b}, s{sSelLL}")
    if first: I(f"v_xor_b32 v{bad}, v{t0}, v{vTag}")
    else: I(f"v_bitop3_b32 v{bad}, v{bad}, v{t0}, v{vTag} bitop3:0xf6")

def spin_loop(body, first_done=False):
    lab = A.newlabel("Lspin"); done = A.newlabel("Ldone")
    saved_vm, saved_lg = list(A.vm), list(A.lg)
    if first_done:
        I(f"s_cbranch_vccz {done}")
    I(f"s_mov_b32 s{sCnt}, 0")
    A.fence(4)
    A.label(lab)
    body()
    I(f"s_cbranch_vccz {done}")
    I(f"s_add_u32 s{sCnt}, s{sCnt}, 1")
    I(f"s_cmp_lt_u32 s{sCnt}, {SPIN}")
    I(f"s_cbranch_scc1 {lab}")
    A.label(done)
    if first_done:
        A.vm, A.lg = saved_vm, saved_lg
    A.fence(2)

def poll_flags(vaddr, vtmp):
    def body():
        I(f"buffer_load_dword v{vtmp}, v{vaddr}, {S(SWS)}, 0 offen sc1")
        I("s_waitcnt vmcnt(0)"); A.vm = []
        I(f"v_cmp_ne_u32 vcc, v{vtmp}, v{vTag}")
    spin_loop(body)

vLane0 = 23
def poll_issue(vaddr, vtmp):
    return I(f"buffer_load_dword v{vtmp}, v{vaddr}, {S(SWS)}, 0 offen sc1")
def poll_finish(vaddr, vtmp, pid):
    wait_vm(pid)
    I(f"v_cmp_ne_u32 vcc, v{vtmp}, v{vTag}")
    def body():
        I(f"buffer_load_dword v{vtmp}, v{vaddr}, {S(SWS)}, 0 offen sc1")
        I("s_waitcnt vmcnt(0)"); A.vm = []
        I(f"v_cmp_ne_u32 vcc, v{vtmp}, v{vTag}")
    spin_loop(body, first_done=True)

def set_flag(soff_reg, last):
    wait_vm(last)
    I("s_barrier")
    I(f"buffer_store_dword v{vTag}, v{vLane0}, {S(SWS)}, s{soff_reg} offen sc1")

def xlane4(vals, op, mid=None):
    a, b, c, d = vals
    I(f"v_permlane32_swap_b32 v{a}, v{b}")
    I(f"v_permlane32_swap_b32 v{c}, v{d}")
    I(f"{op} v{a}, v{a}, v{b}")
    I(f"{op} v{c}, v{c}, v{d}")
    I(f"v_permlane16_swap_b32 v{a}, v{c}")
    I(f"{op} v{a}, v{a}, v{c}")
    if mid: mid(a)
    I(f"v_mov_b32 v{c}, v{a}")
    I(f"v_permlane16_swap_b32 v{a}, v{c}")
    I(f"v_mov_b32 v{b}, v{a}")
    I(f"v_mov_b32 v{d}, v{c}")
    I(f"v_permlane32_swap_b32 v{a}, v{b}")
    I(f"v_permlane32_swap_b32 v{c}, v{d}")

def xlane4x2(v1, op1, mid1, v2, op2, mid2):
    r1 = rec(xlane4, v1, op1, mid1); r2 = rec(xlane4, v2, op2, mid2)
    for (o1, _), (o2, _) in zip(r1.ops, r2.ops):
        I(o1[1]); I(o2[1])

def dbg_dump(regs, slot):
    I(f"v_lshlrev_b32 v6, 4, v{vTid}")
    for k, r in enumerate(regs):
        I(f"s_lshl_b32 s{sT0}, s2, 12")
        I(f"s_add_u32 s{sT0}, s{sT0}, {WS_DBG + (slot + k) * 256 * 4096}")
        I(f"buffer_store_dwordx4 {r}, v6, {S(SWS)}, s{sT0} offen")
    wait_vm()

def bf_round4(b, t):
    I(f"v_cvt_pk_bf16_f32 v{t}, v{b}, v{b+1}")
    I(f"v_cvt_pk_bf16_f32 v{t+1}, v{b+2}, v{b+3}")
    I(f"v_lshlrev_b32 v{b}, 16, v{t}")
    I(f"v_and_b32 v{b+1}, s{sHi}, v{t}")
    I(f"v_lshlrev_b32 v{b+2}, 16, v{t+1}")
    I(f"v_and_b32 v{b+3}, s{sHi}, v{t+1}")

def prologue():
    I("s_cmp_ge_u32 s2, 256")
    I("s_cbranch_scc1 L_end")
    I("s_load_dwordx8 s[32:39], s[0:1], 64")
    I("s_load_dwordx16 s[16:31], s[0:1], 0")
    I("s_load_dwordx2 s[40:41], s[0:1], 96")
    I("s_getpc_b64 s[100:101]")
    A.raw("L_pc:")
    I(f"v_and_b32 v{vL}, 63, v0")
    I(f"v_lshrrev_b32 v6, 6, v0")
    I(f"v_lshrrev_b32 v{vG}, 4, v{vL}")
    I(f"v_and_b32 v{vT}, 15, v0")
    I(f"v_readfirstlane_b32 s{sW}, v6")
    I(f"v_lshlrev_b32 v{vL16}, 4, v{vL}")
    I(f"s_lshr_b32 s{sJ}, s2, 3")
    I(f"s_and_b32 s3, s2, 7")
    I(f"s_sub_u32 s{sT0}, s{sJ}, 24")
    I(f"s_cmp_ge_u32 s{sJ}, 24")
    I(f"s_cselect_b32 s{sT0}, s{sT0}, s{sJ}")
    I(f"s_lshr_b32 s{sT1}, s{sT0}, 2")
    I(f"s_lshl_b32 s{sT1}, s{sT1}, 3")
    I(f"s_add_u32 s{sT1}, s{sT1}, s3")
    I(f"s_lshl_b32 s{sT1}, s{sT1}, 2")
    I(f"s_and_b32 s{sT0}, s{sT0}, 3")
    I(f"s_add_u32 s{sT3}, s{sT1}, s{sT0}")
    I(f"v_lshrrev_b32 v6, 1, v0")
    I(f"v_and_b32 v6, 31, v6")
    I(f"s_lshl_b32 s{sT0}, s{sW}, 7")
    I(f"v_add_u32 v6, s{sT0}, v6")
    I(f"v_lshlrev_b32 v7, 1, v6")
    I(f"v_mul_u32_u24 v8, 6144, v6")
    I(f"v_and_b32 v9, 1, v0")
    I(f"v_lshl_add_u32 v8, v9, 4, v8")
    I(f"s_lshl_b32 s{sT0}, s{sT3}, 5")
    I("s_waitcnt lgkmcnt(0)")
    srd(SC, 32, 1024)
    srd(SWMOD, 34, 512 * 3072 * 2)
    ids = []
    for i in range(4):
        ids.append(I(f"buffer_load_ushort v{48+i}, v7, {S(SC)}, 0 offen offset:{64*i}"))
    for i in range(4):
        I(f"s_add_u32 s{sT1}, s{sT0}, {i*32*6144}")
        ids.append(I(f"buffer_load_dwordx4 {vr(32+4*i,4)}, v8, {S(SWMOD)}, s{sT1} offen"))
    I(f"s_load_dword s{sTag}, s[40:41], {WS_EPOCH}")
    I(f"s_and_b32 s{sT0}, s{sJ}, 15")
    I(f"s_lshl_b32 s{sT0}, s{sT0}, 12")
    I(f"v_lshlrev_b32 v6, 4, v0")
    I(f"v_add_u32 v6, s{sT0}, v6")
    I(f"v_min_u32 v6, L_code_end-L_pc-16, v6")
    I(f"global_load_dwordx4 v[60:63], v6, s[100:101]")
    srd(SX, 16, 2048 * 512 * 2)
    srd(SWQKV, 18, 512 * 1536 * 2)
    srd(SWPHI, 20, 32 * 512)
    srd(SWO, 22, 512 * 512 * 2)
    srd(SWG, 26, 512 * 1376 * 2)
    srd(SWU, 28, 512 * 1376 * 2)
    srd(SWD, 30, 1376 * 512 * 2)
    srd(SOUT, 36, 2048 * 512 * 2)
    srd(SWS, 40, WS_SIZE)
    I(f"v_and_b32 v6, 7, v{vL}")
    I(f"v_lshlrev_b32 v6, 21, v6")
    I(f"buffer_load_dword a255, v6, {S(SWS)}, 0 offen offset:64")
    I(f"v_and_b32 v6, 1, v{vL}")
    I(f"v_lshlrev_b32 v6, 20, v6")
    for b in (SWO, SWG, SWU, SWD, SOUT):
        I(f"buffer_load_dword a255, v6, {S(b)}, 0 offen")
    I(f"s_lshr_b32 s{sT0}, s3, 1")
    I(f"s_and_b32 s{sT1}, s3, 1")
    I(f"s_lshr_b32 s{sT2}, s{sJ}, 2")
    I(f"s_lshl_b32 s{sRbB}, s{sT0}, 3")
    I(f"s_add_u32 s{sRbB}, s{sRbB}, s{sT2}")
    I(f"s_and_b32 s{sP0}, s{sT2}, 3")
    I(f"s_and_b32 s{sT2}, s{sJ}, 3")
    I(f"s_lshl_b32 s{sCtB}, s{sT1}, 2")
    I(f"s_add_u32 s{sCtB}, s{sCtB}, s{sT2}")
    I(f"s_and_b32 s{sT1}, s3, 3")
    I(f"s_lshl_b32 s{sMD}, s{sT1}, 2")
    I(f"s_add_u32 s{sMD}, s{sMD}, s{sT2}")
    I(f"s_lshr_b32 s{sT2}, s{sJ}, 2")
    I(f"s_lshr_b32 s{sT0}, s3, 2")
    I(f"s_lshl_b32 s{sGrpD}, s{sT0}, 3")
    I(f"s_add_u32 s{sGrpD}, s{sGrpD}, s{sT2}")
    I(f"s_lshr_b32 s{sT2}, s{sJ}, 4")
    I(f"s_lshl_b32 s{sGrpC}, s3, 1")
    I(f"s_add_u32 s{sGrpC}, s{sGrpC}, s{sT2}")
    I(f"s_and_b32 s{sMC}, s{sJ}, 15")
    I(f"s_and_b32 s{sCtC}, s{sJ}, 7")
    I(f"s_lshr_b32 s{sT2}, s{sJ}, 3")
    I(f"s_lshl_b32 s{sRbC}, s3, 2")
    I(f"s_add_u32 s{sRbC}, s{sRbC}, s{sT2}")
    for u in range(4):
        I(f"s_add_u32 s{sT0}, s{sP0}, {u}")
        I(f"s_and_b32 s{sT0}, s{sT0}, 3")
        I(f"s_lshl_b32 s{sK+u}, s{sT0}, 8")
        I(f"s_mul_i32 s{sKW+u}, s{sT0}, {128*3072}")
        I(f"s_lshl_b32 s{sKM+u}, s{sT0}, 9")
    I(f"s_lshl_b32 s{sW4096}, s{sW}, 12")
    return ids

def consts():
    for i in range(4):
        I(f"s_mov_b32 s{sSel+i}, {0x07060500 | i:#x}")
    I(f"s_mov_b32 s{sSelA}, 0x0c0c0400")
    I(f"s_mov_b32 s{sSelB}, 0x04000c0c")
    I(f"s_mov_b32 s{sL}, 0x3fb8aa3b")
    I(f"s_mov_b32 s{sL2}, 0x3fb8aa3b")
    I(f"s_mov_b32 s{sNL}, 0xbfb8aa3b")
    I(f"s_mov_b32 s{sNL2}, 0xbfb8aa3b")
    I(f"s_mov_b32 s{sHi}, 0xffff0000")
    I(f"s_mov_b32 s{sSelHi}, 0x07060302")
    I(f"s_mov_b32 s{sSelLL}, 0x05040100")
    I(f"v_cmp_eq_u32 vcc, 0, v{vTid}")
    I(f"v_mov_b32 v{vLane0}, {OOB}")
    I(f"v_cndmask_b32 v{vLane0}, v{vLane0}, 0, vcc")

XH = 64
RAW = 192
vRow = 16
def x_issue():
    ids = {}
    I(f"s_lshl_b32 s{sT0}, s{sRbB}, 6")
    I(f"s_lshl_b32 s{sT1}, s{sW}, 4")
    I(f"s_add_u32 s{sT0}, s{sT0}, s{sT1}")
    for i in range(4):
        I(f"s_add_u32 s{sT2}, s{sJ}, {i}")
        I(f"s_and_b32 s{sT2}, s{sT2}, 3")
        I(f"s_lshl_b32 s{sT2}, s{sT2}, 2")
        I(f"v_add_u32 v{vRow+i}, s{sT2}, v{vG}")
        I(f"v_add_u32 v9, s{sT0}, v{vRow+i}")
        I(f"v_lshlrev_b32 v9, 10, v9")
        I(f"v_lshl_add_u32 v9, v{vT}, 4, v9")
        for u in range(4):
            ids[(i, u)] = I(f"buffer_load_dwordx4 {vr(RAW + (i*4+u)*4, 4)}, v9, {S(SX)}, s{sK+u} offen")
    return ids

def phaseA_compute(ids):
    I(f"v_and_b32 v6, 1, v{vL}")
    I(f"v_lshlrev_b32 v6, 5, v6")
    I(f"v_lshl_add_u32 v6, v{vG}, 3, v6")
    I(f"s_lshl_b32 s{sT0}, s{sW}, 6")
    I(f"s_add_u32 s{sT0}, s{sT0}, {L_MISC}")
    I(f"v_add_u32 v6, s{sT0}, v6")
    I(f"v_lshlrev_b32 v7, 3, v{vTid}")
    I(f"v_add_u32 v7, {L_MISC + 1024}, v7")
    I(f"v_and_b32 v8, 14, v{vL}")
    I(f"v_cmp_eq_u32 vcc, 0, v8")
    I(f"v_cndmask_b32 v6, v7, v6, vcc")
    I(f"v_and_b32 v7, 3, v{vL}")
    wait_vm(ids[3])
    for i in range(4): I(f"v_lshlrev_b32 v{48+i}, 16, v{48+i}")
    for i in range(4): I(f"v_mul_f32 v{52+i}, s{sNL}, v{48+i}")
    for i in range(4): I(f"v_min_f32 v{52+i}, 0x42f00000, v{52+i}")
    for i in range(4): I(f"v_exp_f32 v{52+i}, v{52+i}")
    for i in range(4): I(f"v_add_f32 v{52+i}, 1.0, v{52+i}")
    for i in range(4): I(f"v_rcp_f32 v{56+i}, v{52+i}")
    for i in range(4): I(f"v_mul_f32 v{72+i}, v{48+i}, v{56+i}")
    for i in range(4): I(f"v_fma_f32 v{48+i}, -v{72+i}, v{52+i}, v{48+i}")
    for i in range(4): I(f"v_fma_f32 v{48+i}, v{48+i}, v{56+i}, v{72+i}")
    bf_round4(48, 52)
    AC = 64
    for i in range(4):
        wait_vm(ids[4 + i])
        for d in range(4):
            I(f"v_lshlrev_b32 v52, 16, v{32+4*i+d}")
            I(f"v_and_b32 v53, s{sHi}, v{32+4*i+d}")
            if i == 0:
                I(f"v_mul_f32 v{AC+2*d}, v{48+i}, v52")
                I(f"v_mul_f32 v{AC+1+2*d}, v{48+i}, v53")
            else:
                I(f"v_fmac_f32 v{AC+2*d}, v{48+i}, v52")
                I(f"v_fmac_f32 v{AC+1+2*d}, v{48+i}, v53")
    for e in range(4): I(f"v_permlane32_swap_b32 v{AC+e}, v{AC+4+e}")
    for e in range(4): I(f"v_add_f32 v{AC+e}, v{AC+e}, v{AC+4+e}")
    for e in range(2): I(f"v_permlane16_swap_b32 v{AC+e}, v{AC+2+e}")
    for e in range(2): I(f"v_add_f32 v{AC+e}, v{AC+e}, v{AC+2+e}")
    for r in (8, 4, 2):
        for e in range(2):
            I(f"v_add_f32_dpp v{AC+e}, v{AC+e}, v{AC+e} row_ror:{r} row_mask:0xf bank_mask:0xf")
    I(f"ds_write_b64 v6, {vr(AC,2)}")
    I(f"v_lshlrev_b32 v7, 4, v7")
    I(f"v_add_u32 v6, {L_MISC}, v7")
    I("s_waitcnt lgkmcnt(0)"); A.lg = []
    I("s_barrier")
    for w in range(4):
        I(f"ds_read_b128 {vr(32+4*w,4)}, v6 offset:{64*w}")
    I(f"s_add_u32 s{sTag}, s{sTag}, 0x9e3779b1")
    I(f"v_mov_b32 v{vTag}, s{sTag}")
    I(f"s_lshr_b32 s{sT0}, s{sT3}, 5")
    I(f"s_cmp_eq_u32 s{sT0}, 1")
    I(f"s_cselect_b32 s{sT1}, 1.0, 0")
    I(f"s_cmp_eq_u32 s{sT0}, 4")
    I(f"s_cselect_b32 s{sT1}, 1.0, s{sT1}")
    I(f"v_cmp_gt_u32 vcc, 4, v{vTid}")
    I(f"v_mov_b32 v6, {OOB}")
    I(f"v_cndmask_b32 v7, v6, v7, vcc")
    I(f"s_lshl_b32 s{sT0}, s{sT3}, 6")
    I(f"s_add_u32 s{sT0}, s{sT0}, {WS_MODF}")
    wait_lg()
    for e in (0, 2):
        I(f"v_pk_add_f32 {vr(32+e,2)}, {vr(32+e,2)}, {vr(36+e,2)}")
        I(f"v_pk_add_f32 {vr(40+e,2)}, {vr(40+e,2)}, {vr(44+e,2)}")
    for e in (0, 2):
        I(f"v_pk_add_f32 {vr(32+e,2)}, {vr(32+e,2)}, {vr(40+e,2)}")
    bf_round4(32, 36)
    for e in range(4): I(f"v_add_f32 v{32+e}, s{sT1}, v{32+e}")
    round_tag16(32, 36)
    I(f"buffer_store_dwordx4 v[32:35], v7, {S(SWS)}, s{sT0} offen sc1")

def rows128_voff(vb, pitch, std, extra_s=None):
    r_ = rec(_rows128_voff, vb, pitch, std, extra_s)
    import re as _re
    for o, _ in r_.ops:
        I(_re.sub(r"\bv([6-9])\b", lambda m: f"v{TMPV[int(m.group(1)) - 6]}", o[1]))
TMPV = [6, 7, 8, 9]
def _rows128_voff(vb, pitch, std, extra_s=None):
    I(f"v_lshrrev_b32 v6, 3, v{vL}")
    I(f"v_bfe_u32 v7, v{vL}, 4, {1 if std else 2}")
    I(f"v_bfe_u32 v8, v{vL}, 1, 2")
    I(f"v_xor_b32 v8, v8, v7")
    I(f"v_and_b32 v9, 1, v{vL}")
    I(f"v_lshlrev_b32 v9, 4, v9")
    I(f"v_lshl_add_u32 v9, v8, 5, v9")
    I(f"v_mul_u32_u24 v6, {pitch}, v6")
    if extra_s is not None: I(f"v_add_u32 v6, s{extra_s}, v6")
    I(f"v_add_u32 v{vb}, v6, v9")
    if std:
        I(f"v_xor_b32 v9, 64, v9")
        I(f"v_add_u32 v{vb+1}, v6, v9")
        I(f"v_add_u32 v{vb+1}, {8*pitch - 1024}, v{vb+1}")
    else:
        I(f"v_add_u32 v{vb+1}, {8*pitch - 1024}, v{vb}")
    I(f"v_add_u32 v{vb+2}, {2*(8*pitch - 1024)}, v{vb}")
    I(f"v_add_u32 v{vb+3}, {2*(8*pitch - 1024)}, v{vb+1}")

def dma4(vb, srd_, m0_s, m0_imm, so_s, so_imm, flags=""):
    if E.t is not A and not hasattr(E.t, "first_dma"): E.t.first_dma = len(E.t.ops)
    I(f"s_add_u32 m0, s{m0_s}, {m0_imm}")
    I(f"s_add_u32 s{sB0}, s{so_s}, {so_imm}")
    for i in range(4):
        last = I(f"buffer_load_dwordx4 v{vb[i] if isinstance(vb, list) else vb+i}, {srd_}, s{sB0} offen offset:{i*1024}{flags} lds")
        pad(100)
    return last

vBG = 24
def KF(u, s): return (u * 4 + s) * 4
def VF(u, s): return 64 + (u * 4 + s) * 4
def QF(u, s): return 128 + (u * 4 + s) * 4
USLOT = [0, 96 * K, 48 * K, 96 * K]
def wq_addr():
    I(f"s_mul_i32 s{sT0}, s{sW}, {32*3072}")
    I(f"s_lshl_b32 s{sT1}, s{sCtB}, 7")
    I(f"s_add_u32 s{sT0}, s{sT0}, s{sT1}")
    rows128_voff(vBG, 3072, True, sT0)
    I(f"v_bfe_u32 v6, v{vL}, 2, 2")
    I(f"v_lshl_add_u32 v6, v{vG}, 3, v6")
    I(f"v_lshlrev_b32 v6, 7, v6")
    I(f"v_bfe_u32 v7, v{vL}, 3, 2")
    I(f"v_xor_b32 v7, s{sW}, v7")
    I(f"v_lshl_add_u32 v6, v7, 5, v6")
    I(f"v_and_b32 v7, 3, v{vL}")
    I(f"v_lshl_add_u32 v28, v7, 3, v6")
    I(f"v_add_u32 v29, {48*K}, v28")
    I(f"v_add_u32 v30, {96*K}, v28")
def wq_dma(u, subs=(0, 1, 2)):
    for sub in subs:
        sg = (1, 2, 0)[sub]
        last = dma4(vBG, S(SWQKV), sW4096, USLOT[u] + sub * 16 * K, sKW + u, sg * 1024)
    return last
def wq_tr(u):
    base = 28 + USLOT[u] // (48 * K)
    for s in range(4):
        for sub in range(3):
            f = (KF, VF, QF)[sub](u, s)
            I(f"ds_read_b64_tr_b16 {ar(f,2)}, v{base} offset:{sub*16*K + s*4096}")
            I(f"ds_read_b64_tr_b16 {ar(f+2,2)}, v{base} offset:{sub*16*K + s*4096 + 512}")

def layernorm(xids):
    for i in range(4):
        wait_vm(xids[(i, 3)])
        xb = XH + i * 32
        for q in range(16):
            I(f"v_lshlrev_b32 v{xb+2*q}, 16, v{RAW+i*16+q}")
            I(f"v_and_b32 v{xb+2*q+1}, s{sHi}, v{RAW+i*16+q}")
        I(f"v_pk_add_f32 v[32:33], {vr(xb,2)}, {vr(xb+2,2)}")
        I(f"v_pk_add_f32 v[34:35], {vr(xb+4,2)}, {vr(xb+6,2)}")
        for q in range(4, 16, 2):
            I(f"v_pk_add_f32 v[32:33], v[32:33], {vr(xb+2*q,2)}")
            I(f"v_pk_add_f32 v[34:35], v[34:35], {vr(xb+2*q+2,2)}")
        I("v_pk_add_f32 v[32:33], v[32:33], v[34:35]")
        I("v_add_f32 v32, v32, v33")
        for r in (8, 4, 2, 1):
            I(f"v_add_f32_dpp v32, v32, v32 row_ror:{r} row_mask:0xf bank_mask:0xf")
        I("v_mul_f32 v32, 0xbb000000, v32")
        for q in range(16):
            I(f"v_pk_add_f32 {vr(xb+2*q,2)}, {vr(xb+2*q,2)}, v[32:33] op_sel_hi:[1,0]")
        I(f"v_pk_mul_f32 v[34:35], {vr(xb,2)}, {vr(xb,2)}")
        I(f"v_pk_mul_f32 v[36:37], {vr(xb+2,2)}, {vr(xb+2,2)}")
        for q in range(2, 16, 2):
            I(f"v_pk_fma_f32 v[34:35], {vr(xb+2*q,2)}, {vr(xb+2*q,2)}, v[34:35]")
            I(f"v_pk_fma_f32 v[36:37], {vr(xb+2*q+2,2)}, {vr(xb+2*q+2,2)}, v[36:37]")
        I("v_pk_add_f32 v[34:35], v[34:35], v[36:37]")
        I("v_add_f32 v34, v34, v35")
        for r in (8, 4, 2, 1):
            I(f"v_add_f32_dpp v34, v34, v34 row_ror:{r} row_mask:0xf bank_mask:0xf")
        I("v_mov_b32 v35, 0x3727c5ac")
        I("v_fmac_f32 v35, 0x3b000000, v34")
        I("v_rsq_f32 v34, v35")
        for q in range(16):
            I(f"v_pk_mul_f32 {vr(xb+2*q,2)}, {vr(xb+2*q,2)}, v[34:35] op_sel_hi:[1,0]")

def gm_loads(sets, G0):
    out = None
    for k, n in enumerate(sets):
        I(f"s_mov_b32 s{sB2}, {WS_MODF + n*4096}")
        out = I(f"buffer_load_dwordx4 {vr(G0+4*k,4)}, v11, {S(SWS)}, s{sB2} offen sc1")
    return out
def gm_issue(sets, G0):
    I(f"v_lshlrev_b32 v11, 4, v{vTid}")
    return gm_loads(sets, G0)
def gm_finish(sets, G0, last):
    def checks():
        for k in range(len(sets)):
            check16(8, G0 + 4 * k, 9, k == 0)
            check16(8, G0 + 4 * k + 2, 9, False)
        I("v_cmp_ne_u32 vcc, 0, v8")
    wait_vm(last)
    checks()
    def body():
        gm_loads(sets, G0); I("s_waitcnt vmcnt(0)"); A.vm = []; checks()
    spin_loop(body, first_done=True)
    if sets == [0]:
        I(f"v_lshrrev_b32 v6, 5, v{vTid}")
        I(f"v_lshlrev_b32 v6, 9, v6")
        I(f"v_and_b32 v8, 1, v{vTid}")
        I(f"v_lshl_add_u32 v6, v8, 8, v6")
        I(f"v_bfe_u32 v8, v{vTid}, 1, 4")
        I(f"v_lshl_add_u32 v6, v8, 4, v6")
        I(f"v_add_u32 v6, {L_MODV}, v6")
    else:
        I(f"v_add_u32 v6, {L_MODV}, v11")
    for k, n in enumerate(sets):
        for e in range(4):
            I(f"v_and_b32 v{G0+4*k+e}, s{sHi}, v{G0+4*k+e}")
        I(f"ds_write_b128 v6, {vr(G0+4*k,4)} offset:{n*4096}")
    if sets == [1, 2]:
        I(f"v_cmp_gt_u32 vcc, 128, v{vTid}")
        for e in range(4):
            I(f"v_cndmask_b32 v{G0+e}, v{G0+e}, v{G0+4+e}, vcc")
        I(f"v_perm_b32 v{G0+4}, v{G0+1}, v{G0}, s{sSelHi}")
        I(f"v_perm_b32 v{G0+5}, v{G0+3}, v{G0+2}, s{sSelHi}")
        I(f"v_lshrrev_b32 v6, 3, v{vTid}")
        I(f"v_lshlrev_b32 v6, 6, v6")
        I(f"v_and_b32 v8, 3, v{vTid}")
        I(f"v_lshl_add_u32 v6, v8, 4, v6")
        I(f"v_bfe_u32 v8, v{vTid}, 2, 1")
        I(f"v_lshl_add_u32 v6, v8, 3, v6")
        I(f"v_add_u32 v6, {L_UV}, v6")
        I(f"ds_write_b64 v6, {vr(G0+4,2)}")

def h_addr():
    for i in range(4):
        I(f"v_xor_b32 v6, v{vT}, v{vRow+i}")
        I(f"v_lshlrev_b32 v6, 4, v6")
        I(f"v_lshl_add_u32 v6, v{vRow+i}, 8, v6")
        I(f"v_add_u32 v{vRow+i}, s{sW4096}, v6")
    I(f"v_lshlrev_b32 v20, 4, v{vT}")
    I(f"v_add_u32 v20, {L_MODV}, v20")
    for s in range(4):
        I(f"v_add_u32 v6, {4*s}, v{vG}")
        I(f"v_xor_b32 v6, v6, v{vT}")
        I(f"v_lshlrev_b32 v6, 4, v6")
        I(f"v_lshl_add_u32 v{12+s}, v{vT}, 8, v6")

def make_h_rd(u, mb):
    I(f"v_add_u32 v6, s{sKM+u}, v20")
    I(f"ds_read_b128 {vr(mb,4)}, v6 offset:2048")
    I(f"ds_read_b128 {vr(mb+4,4)}, v6 offset:2304")
    I(f"ds_read_b128 {vr(mb+8,4)}, v6")
    return I(f"ds_read_b128 {vr(mb+12,4)}, v6 offset:256")
def make_h_do(u, mb, pk, x):
    wait_lg(x)
    for i in range(4):
        b = XH + (i * 4 + u) * 8
        if pk:
            for e in range(0, 8, 2):
                I(f"v_pk_fma_f32 {vr(b+e,2)}, {vr(b+e,2)}, {vr(mb+e,2)}, {vr(mb+8+e,2)}")
        else:
            for e in range(8):
                I(f"v_fma_f32 v{b+e}, v{b+e}, v{mb+e}, v{mb+8+e}")
        for e in range(4):
            I(f"v_cvt_pk_bf16_f32 v{b+e}, v{b+2*e}, v{b+2*e+1}")
        I(f"ds_write_b128 v{vRow+i}, {vr(b,4)} offset:{u*16*K}")
def make_h_first():
    xs = [make_h_rd(u, 192 + 16 * u) for u in range(4)]
    pad(100)
    for u in range(3): make_h_do(u, 192 + 16 * u, True, xs[u])

ACC = 192
def accK(rt): return ACC + rt * 4
def accV(rt): return ACC + 16 + rt * 4
def accQ(rt): return ACC + 32 + rt * 4
def a_rd(k, rt):
    u, s = k >> 2, k & 3
    b = 32 + (k % 3) * 16 + 4 * rt
    return I(f"ds_read_b128 {vr(b,4)}, v{12+s} offset:{u*16*K + rt*4096}")

def gemm_kv_chunk(u, cur):
    for s in range(4):
        k = 4 * u + s
        nxt = []
        for rt in range(4):
            if s < 3: nxt.append(a_rd(k + 1, rt))
            wait_lg(cur[rt])
            h = vr(32 + (k & 1) * 16 + 4 * rt, 4)
            I(f"v_mfma_f32_16x16x32_bf16 {vr(accK(rt),4)}, {ar(KF(u,s),4)}, {h}, {vr(accK(rt),4) if k else 0}")
            I(f"v_mfma_f32_16x16x32_bf16 {vr(accV(rt),4)}, {h}, {ar(VF(u,s),4)}, {vr(accV(rt),4) if k else 0}")
        cur = nxt

def gemm_q():
    cur = [a_rd(0, rt) for rt in range(4)]
    for k in range(16):
        nxt = []
        for rt in range(4):
            if k < 15: nxt.append(a_rd(k + 1, rt))
            if rt % 2 == 0: wait_lg(cur[rt + 1])
            h = vr(32 + (k & 1) * 16 + 4 * rt, 4)
            I(f"v_mfma_f32_16x16x32_bf16 {vr(accQ(rt),4)}, {ar(QF(k>>2,k&3),4)}, {h}, {vr(accQ(rt),4) if k else 0}")
        cur = nxt

APHI = 136
def wphi_issue():
    I(f"s_lshl_b32 s{sHead}, s{sCtB}, 2")
    I(f"s_add_u32 s{sHead}, s{sHead}, s{sW}")
    I(f"s_lshl_b32 s{sT0}, s{sHead}, 9")
    I(f"v_bfe_u32 v6, v{vL}, 3, 2")
    I(f"v_and_b32 v7, 3, v{vL}")
    I(f"v_lshl_add_u32 v6, v6, 2, v7")
    I(f"v_lshlrev_b32 v6, 1, v6")
    I(f"v_lshrrev_b32 v7, 5, v{vL}")
    I(f"v_lshl_add_u32 v6, v7, 8, v6")
    for j in range(8):
        last = I(f"buffer_load_ushort v{44+j}, v6, {S(SWPHI)}, s{sT0} offen offset:{32*j}")
    return last
def wphi_pack():
    I(f"v_bfe_u32 v6, v{vL}, 2, 1")
    I(f"v_mul_u32_u24 v6, 0x8000, v6")
    I(f"v_lshl_or_b32 v6, v6, 16, v6")
    for e in range(4):
        I(f"v_lshl_or_b32 v{44+e}, v{45+2*e}, 16, v{44+2*e}")
    for e in range(4):
        I(f"v_xor_b32 v{APHI+e}, v6, v{44+e}")

def softmax(acc, OUT, fill=None):
    P = [64, 80]; XB = [96, 100]; M = [104, 112]
    for p in range(2):
        for h in range(2):
            a = acc(2 * p + h)
            I(f"v_cvt_pk_bf16_f32 v{XB[p]+2*h}, v{a}, v{a+1}")
            I(f"v_cvt_pk_bf16_f32 v{XB[p]+2*h+1}, v{a+2}, v{a+3}")
    for p in range(2):
        I(f"v_permlane16_swap_b32 v{XB[p]}, v{XB[p]+2}")
        I(f"v_permlane16_swap_b32 v{XB[p]+1}, v{XB[p]+3}")
    for p in range(2):
        I(f"v_mfma_f32_32x32x16_bf16 {vr(P[p],16)}, {vr(APHI,4)}, {vr(XB[p],4)}, 0")
    if fill: fill()
    def chain(p):
        b = P[p]; m = M[p]
        for q in range(5): I(f"v_max3_f32 v{m+q}, v{b+3*q}, v{b+3*q+1}, v{b+3*q+2}")
        I(f"v_max3_f32 v{m}, v{m}, v{m+1}, v{m+2}")
        I(f"v_max3_f32 v{m+3}, v{m+3}, v{m+4}, v{b+15}")
        I(f"v_max_f32 v{m}, v{m}, v{m+3}")
        I(f"v_mul_f32 v{m}, s{sNL}, v{m}")
        for q in range(0, 16, 2):
            I(f"v_pk_fma_f32 {vr(b+q,2)}, {vr(b+q,2)}, {sr(sL,2)}, {vr(m,2)} op_sel_hi:[1,1,0]")
        for q in range(16): I(f"v_exp_f32 v{b+q}, v{b+q}")
        for q in range(4): I(f"v_pk_add_f32 {vr(m+2*q,2)}, {vr(b+4*q,2)}, {vr(b+4*q+2,2)}")
        I(f"v_pk_add_f32 {vr(m,2)}, {vr(m,2)}, {vr(m+2,2)}")
        I(f"v_pk_add_f32 {vr(m+4,2)}, {vr(m+4,2)}, {vr(m+6,2)}")
        I(f"v_pk_add_f32 {vr(m,2)}, {vr(m,2)}, {vr(m+4,2)}")
        I(f"v_add_f32 v{m}, v{m}, v{m+1}")
        I(f"v_rcp_f32 v{m}, v{m}")
        for q in range(0, 16, 2):
            I(f"v_pk_mul_f32 {vr(b+q,2)}, {vr(b+q,2)}, {vr(m,2)} op_sel_hi:[1,0]")
        for q in range(8): I(f"v_cvt_pk_bf16_f32 v{OUT+8*p+q}, v{b+2*q}, v{b+2*q+1}")
    r0 = rec(chain, 0); r1 = rec(chain, 1)
    lag = 6
    o0 = [o[1] for o, _ in r0.ops]; o1 = [o[1] for o, _ in r1.ops]
    for k in range(len(o0) + lag):
        if k < len(o0): I(o0[k])
        if k >= lag: I(o1[k - lag])

L_PT = 128 * K
def epi_k_pre():
    ONES = 168
    I(f"s_add_u32 s{sT1}, s{sW4096}, {L_PT}")
    I(f"v_and_b32 v8, 31, v{vL}")
    I(f"v_lshlrev_b32 v8, 6, v8")
    I(f"v_lshrrev_b32 v9, 5, v{vL}")
    I(f"v_lshlrev_b32 v9, 1, v9")
    I(f"v_bfe_u32 v10, v{vL}, 1, 2")
    I(f"v_xor_b32 v9, v9, v10")
    I(f"v_lshl_add_u32 v8, v9, 4, v8")
    I(f"v_add_u32 v8, s{sT1}, v8")
    I(f"v_xor_b32 v143, 16, v8")
    I(f"v_lshrrev_b32 v9, 2, v{vL}")
    I(f"v_lshlrev_b32 v9, 6, v9")
    I(f"v_bfe_u32 v10, v{vL}, 1, 1")
    I(f"v_bfe_u32 v11, v{vL}, 3, 2")
    I(f"v_xor_b32 v10, v10, v11")
    I(f"v_lshl_add_u32 v9, v10, 4, v9")
    I(f"v_and_b32 v10, 1, v{vL}")
    I(f"v_lshl_add_u32 v9, v10, 3, v9")
    I(f"v_add_u32 v9, s{sT1}, v9")
    I(f"v_xor_b32 v10, 32, v9")
    for e in range(4): I(f"v_mov_b32 v{ONES+e}, 0x3f803f80")
def epi_k():
    PK = 144; VFR = 160; ONES = 168
    def fill():
        for kp in range(2):
            for hh in range(2):
                a = accV(2 * kp + hh)
                I(f"v_cvt_pk_bf16_f32 v{VFR+4*kp+2*hh}, v{a}, v{a+1}")
                I(f"v_cvt_pk_bf16_f32 v{VFR+4*kp+2*hh+1}, v{a+2}, v{a+3}")
    softmax(accK, PK, fill)
    for p in range(2):
        I(f"ds_write_b128 v8, {vr(PK+8*p,4)} offset:{p*2048}")
        I(f"ds_write_b128 v143, {vr(PK+8*p+4,4)} offset:{p*2048}")
    PT = 64
    for T in range(2):
        for kp in range(2):
            f = PT + (T * 2 + kp) * 4
            I(f"ds_read_b64_tr_b16 {vr(f,2)}, v{9+T} offset:{kp*2048}")
            x = I(f"ds_read_b64_tr_b16 {vr(f+2,2)}, v{9+T} offset:{kp*2048 + 1024}")
    I(f"s_lshl_b32 s{sT0}, s{sHead}, 5")
    I(f"s_add_u32 s{sT0}, s{sT0}, s{sRbB}")
    I(f"s_mul_i32 s{sT0}, s{sT0}, {KVREC}")
    I(f"s_add_u32 s{sT0}, s{sT0}, {WS_KVP}")
    I(f"v_lshlrev_b32 v8, 5, v{vG}")
    I(f"v_lshl_add_u32 v8, v{vT}, 4, v8")
    I(f"v_mov_b32 v9, {OOB}")
    I(f"v_cmp_gt_u32 vcc, 2, v{vT}")
    I(f"v_cndmask_b32 v8, v9, v8, vcc")
    I(f"v_cmp_eq_u32 vcc, 1, v{vT}")
    wait_lg(x)
    KV = 172; Z = 180
    for kp in range(2):
        for T in range(2):
            f = vr(PT + (T * 2 + kp) * 4, 4)
            I(f"v_mfma_f32_16x16x32_bf16 {vr(KV+4*T,4)}, {f}, {vr(VFR+4*kp,4)}, {vr(KV+4*T,4) if kp else 0}")
    for kp in range(2):
        for T in range(2):
            f = vr(PT + (T * 2 + kp) * 4, 4)
            I(f"v_mfma_f32_16x16x32_bf16 {vr(Z+4*T,4)}, {f}, {vr(ONES,4)}, {vr(Z+4*T,4) if kp else 0}")
    tag4(KV); tag4(KV + 4)
    I(f"buffer_store_dwordx4 {vr(KV,4)}, v{vL16}, {S(SWS)}, s{sT0} offen sc1")
    I(f"buffer_store_dwordx4 {vr(KV+4,4)}, v{vL16}, {S(SWS)}, s{sT0} offen offset:1024 sc1")
    for e in range(4):
        I(f"v_cndmask_b32 v{Z+e}, v{Z+e}, v{Z+4+e}, vcc")
    tag4(Z)
    I(f"buffer_store_dwordx4 {vr(Z,4)}, v8, {S(SWS)}, s{sT0} offen offset:2048 sc1")

def epi_q():
    PQ = 144
    def fill():
        I(f"s_lshl_b32 s{sT0}, s{sRbB}, 7")
        I(f"s_add_u32 s{sT0}, s{sT0}, s{sHead}")
        I(f"s_lshl_b32 s{sT0}, s{sT0}, 10")
        I(f"s_add_u32 s{sT0}, s{sT0}, {WS_PHIQ}")
        I(f"s_lshl_b32 s{sT1}, s{sRbB}, 3")
        I(f"s_add_u32 s{sT1}, s{sT1}, s{sCtB}")
        I(f"s_lshl_b32 s{sT1}, s{sT1}, 7")
        I(f"s_add_u32 s{sT1}, s{sT1}, {WS_FQ}")
        I(f"v_and_b32 v6, 1, v{vG}")
        I(f"v_lshlrev_b32 v6, 15, v6")
        I(f"v_lshrrev_b32 v7, 1, v{vG}")
        I(f"v_lshl_add_u32 v6, v7, 9, v6")
        I(f"v_lshl_add_u32 v6, v{vT}, 4, v6")
    softmax(accQ, PQ, fill)
    for p in range(2):
        I(f"buffer_store_dwordx4 {vr(PQ+8*p,4)}, v6, {S(SWS)}, s{sT0} offen sc1")
        last = I(f"buffer_store_dwordx4 {vr(PQ+8*p+4,4)}, v6, {S(SWS)}, s{sT0} offen offset:256 sc1")
        if p == 0: I(f"s_add_u32 s{sT0}, s{sT0}, 65536")
    return last

def gemm_kv(k0, k1, rds):
    for k in range(k0, k1):
        u, s = k >> 2, k & 3
        nxt = []
        for rt in range(4):
            if k + 2 < 16: nxt.append(a_rd(k + 2, rt))
            if rt == 0: wait_lg(rds[k][3])
            h = vr(32 + (k % 3) * 16 + 4 * rt, 4)
            I(f"v_mfma_f32_16x16x32_bf16 {vr(accK(rt),4)}, {ar(KF(u,s),4)}, {h}, {vr(accK(rt),4) if k else 0}")
            I(f"v_mfma_f32_16x16x32_bf16 {vr(accV(rt),4)}, {h}, {ar(VF(u,s),4)}, {vr(accV(rt),4) if k else 0}")
            I(f"v_mfma_f32_16x16x32_bf16 {vr(accQ(rt),4)}, {ar(QF(u,s),4)}, {h}, {vr(accQ(rt),4) if k else 0}")
        rds[k + 2] = nxt
    return rds

RR = 172
def kv_reduce_pre():
    I(f"s_and_b32 s{sT2}, s2, 7")
    I(f"s_lshl_b32 s{sT3}, s{sT2}, 4")
    I(f"s_add_u32 s{sT3}, s{sT3}, 2048")
    I(f"s_lshl_b32 s{sT2}, s{sT2}, 2")
    I(f"s_add_u32 s{sT2}, s{sT2}, s{sW}")
    I(f"s_lshl_b32 s{sT2}, s{sT2}, 6")
    I(f"v_and_b32 v128, 7, v{vL}")
    I(f"v_lshlrev_b32 v129, 4, v128")
    I(f"v_add_u32 v129, s{sT2}, v129")
    I(f"v_mov_b32 v130, s{sT3}")
    I(f"v_cmp_gt_u32 vcc, 4, v128")
    I(f"v_cndmask_b32 v129, v130, v129, vcc")
    I(f"v_lshrrev_b32 v130, 3, v{vL}")
    I(f"v_mul_u32_u24 v130, {KVREC}, v130")
    I(f"v_add_u32 v130, v130, v129")
    I(f"s_mul_i32 s{sP0}, s{sJ}, {32*KVREC}")
    I(f"s_add_u32 s{sP0}, s{sP0}, {WS_KVP}")
    I(f"s_mul_i32 s{sP1}, s{sJ}, {KVREC}")
    I(f"s_add_u32 s{sP1}, s{sP1}, {WS_KVF}")
    I(f"s_mov_b32 s{sP2}, 0xffffff00")
    I(f"v_cmp_gt_u32 vcc, 5, v{vL}")
    I(f"v_mov_b32 v128, {OOB}")
    I(f"v_cndmask_b32 v129, v128, v129, vcc")
def kv_reduce_loads():
    for n in range(4):
        I(f"s_add_u32 s{sT2}, s{sP0}, {n*8*KVREC}")
        last = I(f"buffer_load_dwordx4 {vr(RR+4*n,4)}, v130, {S(SWS)}, s{sT2} offen sc1")
    return last
def kv_reduce_finish(last):
    R = RR
    def checks():
        for n in range(4): check4(8, R + 4 * n, 9, 10, n == 0)
        I("v_cmp_ne_u32 vcc, 0, v8")
    wait_vm(last)
    checks()
    def body():
        kv_reduce_loads(); I("s_waitcnt vmcnt(0)"); A.vm = []; checks()
    spin_loop(body, first_done=True)
    for q in range(16):
        I(f"v_and_b32 v{R+q}, s{sP2}, v{R+q}")
    for st in (8, 4):
        for q in range(0, st, 2):
            I(f"v_pk_add_f32 {vr(R+q,2)}, {vr(R+q,2)}, {vr(R+st+q,2)}")
    for e in range(4):
        I(f"v_add_f32_dpp v{R+e}, v{R+e}, v{R+e} row_ror:8 row_mask:0xf bank_mask:0xf")
    for op in ("v_permlane16_swap_b32", "v_permlane32_swap_b32"):
        for e in range(4): I(f"v_mov_b32 v{R+4+e}, v{R+e}")
        for e in range(4): I(f"{op} v{R+e}, v{R+4+e}")
        for e in (0, 2): I(f"v_pk_add_f32 {vr(R+e,2)}, {vr(R+e,2)}, {vr(R+4+e,2)}")
    round_tag16(R, R + 4)
    I(f"buffer_store_dwordx4 {vr(R,4)}, v129, {S(SWS)}, s{sP1} offen sc1")

def pf_wo():
    I(f"s_lshl_b32 s{sB1}, s{sJ}, 14")
    I(f"s_add_u32 s{sB1}, s{sB1}, s{sW4096}")
    I(f"v_and_b32 v21, 31, v{vL}")
    I(f"v_lshlrev_b32 v21, 7, v21")
    I(f"buffer_load_dword a255, v21, {S(SWO)}, s{sB1} offen")
def pf_gu():
    I(f"s_cmp_ge_u32 s{sW}, 2")
    I(f"s_cselect_b32 s{SGU}, s{SWU}, s{SWG}")
    I(f"s_cselect_b32 s{SGU+1}, s{SWU+1}, s{SWG+1}")
    I(f"s_mov_b32 s{SGU+2}, {512*1376*2}")
    I(f"s_mov_b32 s{SGU+3}, 0x20000")
    I(f"s_lshl_b32 s{sB1}, s{sJ}, 1")
    I(f"s_and_b32 s{sB2}, s{sW}, 1")
    I(f"s_add_u32 s{sB1}, s{sB1}, s{sB2}")
    I(f"s_mul_i32 s{sB1}, s{sB1}, {8*2752}")
    I(f"s_and_b32 s{sB2}, s2, 3")
    I(f"s_mul_i32 s{sB2}, s{sB2}, {32*21846}")
    I(f"s_lshr_b32 s{sB2}, s{sB2}, 16")
    I(f"s_lshl_b32 s{sB2}, s{sB2}, 6")
    I(f"s_add_u32 s{sB1}, s{sB1}, s{sB2}")
    I(f"v_lshrrev_b32 v21, 3, v{vL}")
    I(f"v_mul_u32_u24 v21, 2752, v21")
    I(f"v_and_b32 v22, 7, v{vL}")
    I(f"v_mul_u32_u24 v22, 100, v22")
    I(f"v_add_u32 v21, v21, v22")
    I(f"buffer_load_dword a255, v21, {S(SGU)}, s{sB1} offen")
def pf_wd():
    I(f"s_mul_i32 s{sT2}, s2, {43*128}")
    I(f"s_mul_i32 s{sT3}, s{sW}, {11*128}")
    I(f"s_add_u32 s{sT2}, s{sT2}, s{sT3}")
    I(f"v_min_u32 v21, 10, v{vL}")
    I(f"v_lshlrev_b32 v21, 7, v21")
    I(f"buffer_load_dword a255, v21, {S(SWD)}, s{sT2} offen")

WOF = 192
L_WO = 64 * K
def wo_dma():
    rows128_voff(vBG, 1024, False)
    I(f"s_lshl_b32 s{sB1}, s{sW}, 17")
    I(f"s_lshl_b32 s{sB2}, s{sCtC}, 7")
    I(f"s_add_u32 s{sB1}, s{sB1}, s{sB2}")
    I(f"s_lshl_b32 s{sB2}, s{sW}, 14")
    for s in range(4):
        last = dma4(vBG, S(SWO), sB2, L_WO + s * 4096, sB1, s * 32768)
    return last
def wo_tr_pre():
    I(f"v_lshrrev_b32 v28, 2, v{vL}")
    I(f"v_lshlrev_b32 v28, 7, v28")
    I(f"v_bfe_u32 v29, v{vL}, 3, 2")
    I(f"s_and_b32 s{sB2}, s{sW}, 2")
    I(f"v_xor_b32 v29, s{sB2}, v29")
    I(f"v_lshl_add_u32 v28, v29, 5, v28")
    I(f"v_and_b32 v29, 3, v{vL}")
    I(f"v_lshl_add_u32 v28, v29, 3, v28")
    I(f"s_lshl_b32 s{sB2}, s{sW}, 14")
    I(f"s_add_u32 s{sB2}, s{sB2}, {L_WO}")
    I(f"v_add_u32 v28, s{sB2}, v28")
    for c in range(1, 4):
        I(f"v_xor_b32 v{28+c}, {c*32}, v28")
def wo_tr(last):
    wait_vm(last)
    for s in range(4):
        for c in range(4):
            f = WOF + (s * 4 + c) * 4
            I(f"ds_read_b64_tr_b16 {ar(f,2)}, v{28+c} offset:{s*4096}")
            I(f"ds_read_b64_tr_b16 {ar(f+2,2)}, v{28+c} offset:{s*4096+2048}")

def GF(c, ks): return (ks * 3 + c) * 4
GSLOT = [0, 64 * K, 0, 48 * K]
def wgu_setup():
    I(f"s_lshl_b32 s{sB1}, s{sMD}, 3")
    I(f"s_mul_i32 s{sB1}, s{sB1}, 21846")
    I(f"s_lshr_b32 s{sB1}, s{sB1}, 16")
    I(f"s_lshl_b32 s{sFt0}, s{sB1}, 1")
    for n in range(3):
        I(f"v_add_u32 v27, {64*n}, v{vL}")
        I(f"v_mul_u32_u24 v28, 5462, v27")
        I(f"v_lshrrev_b32 v28, 16, v28")
        I(f"v_mul_u32_u24 v29, 12, v28")
        I(f"v_sub_u32 v29, v27, v29")
        I(f"v_bfe_u32 v30, v28, 2, 1")
        I(f"v_lshlrev_b32 v30, 1, v30")
        I(f"v_xor_b32 v29, v29, v30")
        I(f"v_mul_u32_u24 v28, 2752, v28")
        I(f"v_lshl_add_u32 v{vBG+n}, v29, 4, v28")
        if n: I(f"v_subrev_u32 v{vBG+n}, {n*1024}, v{vBG+n}")
    I(f"s_and_b32 s{sB1}, s{sW}, 1")
    I(f"s_mul_i32 s{sB1}, s{sB1}, {64*2752}")
    I(f"s_lshl_b32 s{sB2}, s{sFt0}, 5")
    I(f"s_add_u32 s{sB1}, s{sB1}, s{sB2}")
    for q in range(4):
        I(f"s_add_u32 s{sB2}, s{sGrpD}, {q}")
        I(f"s_and_b32 s{sB2}, s{sB2}, 3")
        I(f"s_mul_i32 s{sKW+q}, s{sB2}, {128*2752}")
        I(f"s_add_u32 s{sKW+q}, s{sKW+q}, s{sB1}")
        I(f"s_lshl_b32 s{sK+q}, s{sB2}, 12")
        I(f"s_lshl_b32 s{sKM+q}, s{sB2}, 9")
    I(f"s_mul_i32 s{sB1}, s{sW}, 12288")
def wgu_traddr():
    I(f"s_lshr_b32 s{sB2}, s{sW}, 1")
    I(f"s_mul_i32 s{sTz}, s{sB2}, 3")
    I(f"s_and_b32 s{sB2}, s{sW}, 1")
    I(f"s_lshl_b32 s{sTx}, s{sB2}, 1")
    I(f"s_add_u32 s{sTx}, s{sTx}, s{sTz}")
    I(f"s_add_u32 s{sTz}, s{sTz}, 1")
    I(f"v_lshrrev_b32 v27, 2, v{vL}")
    I(f"v_mul_u32_u24 v27, 192, v27")
    I(f"v_and_b32 v31, 3, v{vL}")
    I(f"v_lshl_add_u32 v27, v31, 3, v27")
    I(f"v_and_b32 v31, 1, v{vG}")
    I(f"v_xor_b32 v30, s{sTx}, v31")
    I(f"v_lshl_add_u32 v28, v30, 5, v27")
    I(f"v_add_u32 v29, 24576, v28")
    I(f"v_xor_b32 v30, s{sTz}, v31")
    I(f"v_lshl_add_u32 v30, v30, 5, v27")
    I(f"s_mul_i32 s{sB2}, s{sB2}, 24576")
    I(f"v_add_u32 v30, s{sB2}, v30")
def wgu_dma(q):
    for p in range(4):
        I(f"s_add_u32 m0, s{sB1}, {GSLOT[q] + p*3072}")
        I(f"s_add_u32 s{sB0}, s{sKW+q}, {p*16*2752}")
        for n in range(3):
            last = I(f"buffer_load_dwordx4 v{vBG+n}, {S(SGU)}, s{sB0} offen offset:{n*1024} lds")
            pad(100)
    return last
def wgu_tr(q):
    for c in range(3):
        if GSLOT[q]:
            I(f"v_add_u32 v31, {GSLOT[q]}, v{28+c}"); b = 31
        else: b = 28 + c
        for s in range(4):
            f = GF(c, q * 4 + s)
            I(f"ds_read_b64_tr_b16 {ar(f,2)}, v{b} offset:{s*6144}")
            I(f"ds_read_b64_tr_b16 {ar(f+2,2)}, v{b} offset:{s*6144+3072}")

def wgu_tr3():
    r_ = rec(lambda: (wgu_traddr(), wgu_tr(3)))
    import re as _re
    for o, _ in r_.ops:
        I(_re.sub(r"\bv(2[7-9]|3[01])\b", lambda m: f"v{int(m.group(1)) + 20}", o[1]))

RK = 192; KB = 32
def PHR(n, r4): return 64 + (n * 4 + r4) * 4
def CAC(k, r4): return 192 + (k * 4 + r4) * 4
def rt_offsets(stride):
    I(f"s_lshr_b32 s{sT0}, s{sMC}, 3")
    I(f"s_lshl_b32 s{sT0}, s{sT0}, 1")
    I(f"s_and_b32 s{sT2}, s{sW}, 1")
    I(f"s_add_u32 s{sT0}, s{sT0}, s{sT2}")
    I(f"s_mul_i32 s{sR}, s{sT0}, {stride}")
    I(f"s_xor_b32 s{sT0}, s{sT0}, 1")
    I(f"s_mul_i32 s{sR+1}, s{sT0}, {stride}")
    I(f"s_add_u32 s{sR+2}, s{sR}, {4*stride}")
    I(f"s_add_u32 s{sR+3}, s{sR+1}, {4*stride}")
def phiq_load():
    I(f"s_lshl_b32 s{sT0}, s{sGrpC}, 4")
    I(f"s_lshl_b32 s{sT1}, s{sW}, 1")
    I(f"s_add_u32 s{sT0}, s{sT0}, s{sT1}")
    I(f"v_and_b32 v20, 1, v{vL}")
    I(f"v_bfe_u32 v21, v{vL}, 1, 1")
    I(f"v_lshl_add_u32 v20, v21, 3, v20")
    I(f"v_add_u32 v20, s{sT0}, v20")
    I(f"v_lshlrev_b32 v20, 7, v20")
    I(f"v_add_u32 v20, {WS_FQ}, v20")
    rt_offsets(32768)
    I(f"s_lshl_b32 s{sT0}, s{sGrpC}, 18")
    I(f"s_lshl_b32 s{sT1}, s{sW}, 13")
    I(f"s_add_u32 s{sT0}, s{sT0}, s{sT1}")
    I(f"s_add_u32 s{sT0}, s{sT0}, {WS_PHIQ}")
    I(f"v_add_u32 v22, s{sT0}, v{vL16}")
    I(f"v_add_u32 v27, 4096, v22")
    return poll_issue(20, 21)
def phiq_loads(ids, h):
    for s_ in range(4):
        for rho in range(2):
            r4 = 2 * h + rho
            for n in (2 * s_, 2 * s_ + 1):
                ids[h * 8 + s_ * 2 + rho] = I(f"buffer_load_dwordx4 {vr(PHR(n,r4),4)}, v{22 if n < 4 else 27}, {S(SWS)}, s{sR+r4} offen offset:{(n&3)*1024} sc1")
                pad(40)
RZ = 32
def kv_addr():
    I(f"s_lshl_b32 s{sT1}, s{sW}, 3")
    I(f"s_mul_i32 s{sP1}, s{sT1}, {KVREC}")
    I(f"s_add_u32 s{sP1}, s{sP1}, {WS_KVF}")
    I(f"v_and_b32 v14, 3, v{vT}")
    I(f"v_mul_u32_u24 v14, {KVREC}, v14")
    I(f"v_and_b32 v15, 1, v{vG}")
    I(f"v_lshl_add_u32 v14, v15, 6, v14")
    I(f"v_lshrrev_b32 v15, 1, v{vG}")
    I(f"v_lshl_add_u32 v14, v15, 4, v14")
    I(f"v_lshlrev_b32 v15, 9, v{vG}")
    I(f"v_lshl_add_u32 v15, v{vT}, 4, v15")
def kv_loads():
    for n in range(8):
        I(f"s_add_u32 s{sT0}, s{sP1}, {n*KVREC}")
        I(f"buffer_load_dwordx4 {vr(RK+8*n,4)}, v15, {S(SWS)}, s{sT0} offen sc1")
        last = I(f"buffer_load_dwordx4 {vr(RK+8*n+4,4)}, v15, {S(SWS)}, s{sT0} offen offset:256 sc1")
        if n % 4 == 0:
            q = n // 4
            I(f"buffer_load_dwordx4 {vr(RZ+8*q,4)}, v14, {S(SWS)}, s{sT0} offen offset:2048 sc1")
            I(f"buffer_load_dwordx4 {vr(RZ+8*q+4,4)}, v14, {S(SWS)}, s{sT0} offen offset:2080 sc1")
    return last
def kv_finish(last):
    def checks():
        for k in range(16): check16(16, RK + 4 * k, 17 + (k & 1), k == 0)
        for k in range(4): check16(16, RZ + 4 * k, 17 + (k & 1), False)
        I("v_cmp_ne_u32 vcc, 0, v16")
    wait_vm(last)
    checks()
    def body():
        kv_loads(); I("s_waitcnt vmcnt(0)"); A.vm = []; checks()
    spin_loop(body, first_done=True)
def kv_pack():
    for k in range(8):
        I(f"v_perm_b32 v{8+k}, v{RZ+2*k+1}, v{RZ+2*k}, s{sSelHi}")
    for k in range(32):
        I(f"v_perm_b32 v{KB+k}, v{RK+2*k+1}, v{RK+2*k}, s{sSelHi}")

def half_send(acc, lbase, va):
    for d in (1, 2, 3):
        rho, pi = d & 1, d >> 1
        I(f"s_xor_b32 s{sT0}, s{sW}, {d}")
        I(f"s_mul_i32 s{sT0}, s{sT0}, 6144")
        I(f"s_add_u32 s{sT0}, s{sT0}, {lbase + (d-1)*2048}")
        I(f"v_add_u32 v{va}, s{sT0}, v{vL16}")
        for k in range(2):
            I(f"ds_write_b128 v{va}, {vr(acc(2*pi+k, rho),4)} offset:{k*1024}")
def half_recv(acc, lbase, va):
    I(f"s_mul_i32 s{sT0}, s{sW}, 6144")
    I(f"s_add_u32 s{sT0}, s{sT0}, {lbase}")
    I(f"v_add_u32 v{va}, s{sT0}, v{vL16}")
    for d in (1, 2, 3):
        rho, pi = d & 1, d >> 1
        for k in range(2):
            last = I(f"ds_read_b128 {vr(acc(2*pi+k, rho),4)}, v{va} offset:{(d-1)*2048 + k*1024}")
    return last
def half_sum(acc, O):
    for k in range(2):
        for e in (0, 2):
            I(f"v_pk_add_f32 {vr(O+4*k+e,2)}, {vr(acc(k,0)+e,2)}, {vr(acc(k,1)+e,2)}")
            I(f"v_pk_add_f32 {vr(acc(2+k,0)+e,2)}, {vr(acc(2+k,0)+e,2)}, {vr(acc(2+k,1)+e,2)}")
    for k in range(2):
        for e in (0, 2):
            I(f"v_pk_add_f32 {vr(O+4*k+e,2)}, {vr(O+4*k+e,2)}, {vr(acc(2+k,0)+e,2)}")

L_RED = 96 * K
X1K = 24
def c_setup():
    I(f"s_lshr_b32 s{sT0}, s{sMC}, 3")
    I(f"s_lshl_b32 s{sT0}, s{sT0}, 1")
    I(f"s_and_b32 s{sT1}, s{sW}, 1")
    I(f"s_add_u32 s{sT0}, s{sT0}, s{sT1}")
    I(f"s_lshl_b32 s{sT1}, s{sGrpC}, 3")
    I(f"s_add_u32 s{sP2}, s{sT0}, s{sT1}")
    I(f"s_lshl_b32 s{sT0}, s{sP2}, 4")
    I(f"v_add_u32 v20, s{sT0}, v{vT}")
    I(f"v_lshlrev_b32 v21, 10, v20")
    I(f"v_lshl_add_u32 v21, v{vG}, 3, v21")
    I(f"s_lshl_b32 s{sT0}, s{sCtC}, 1")
    I(f"s_lshr_b32 s{sT1}, s{sW}, 1")
    I(f"s_add_u32 s{sP3}, s{sT0}, s{sT1}")
    I(f"s_lshl_b32 s{sT0}, s{sP3}, 6")
    I(f"s_add_u32 s{sT1}, s{sT0}, 65536")
    for h in range(2):
        for k in range(2):
            last = I(f"buffer_load_dwordx2 {vr(24+4*h+2*k,2)}, v21, {S(SX)}, s{sT1 if h else sT0} offen offset:{32*k}")
    I(f"s_lshl_b32 s{sT0}, s{sP3}, 7")
    I(f"s_add_u32 s{sT0}, s{sT0}, {L_MODV}")
    I(f"v_lshlrev_b32 v22, 4, v{vG}")
    I(f"v_add_u32 v22, s{sT0}, v22")
    return last

def c_epi_rd(GA, CB):
    for k in range(2):
        I(f"ds_read_b128 {vr(GA+4*k,4)}, v22 offset:{4096 + 64*k}")
        x = I(f"ds_read_b128 {vr(CB+4*k,4)}, v22 offset:{8192 + 64*k}")
    return x
def c_epi(h, acc, O, GA, CB, XF, xid):
    XR = 24 + 4 * h
    wait_vm(xid)
    for q in range(4):
        I(f"v_lshlrev_b32 v{XF+2*q}, 16, v{XR+q}")
        I(f"v_and_b32 v{XF+2*q+1}, s{sHi}, v{XR+q}")
    wait_lg()
    half_sum(acc, O)
    for q in range(0, 8, 2):
        I(f"v_pk_fma_f32 {vr(O+q,2)}, {vr(O+q,2)}, {vr(GA+q,2)}, {vr(XF+q,2)}")
    for q in range(4):
        I(f"v_cvt_pk_bf16_f32 v{XR+q}, v{O+2*q}, v{O+2*q+1}")
    I(f"s_lshl_b32 s{sT0}, s{sP2}, 14")
    I(f"s_lshl_b32 s{sT1}, s{sP3}, 10")
    for q in range(4):
        I(f"v_lshlrev_b32 v{O+2*q}, 16, v{XR+q}")
        I(f"v_and_b32 v{O+2*q+1}, s{sHi}, v{XR+q}")
    I(f"s_add_u32 s{sT0}, s{sT0}, s{sT1}")
    I(f"s_add_u32 s{sT0}, s{sT0}, {WS_X1P + h*4*16384}")
    for q in range(0, 8, 2):
        I(f"v_pk_mul_f32 {vr(XF+q,2)}, {vr(O+q,2)}, {vr(CB+q,2)}")
    for q in range(4):
        I(f"v_cvt_pk_bf16_f32 v{XF+q}, v{XF+2*q}, v{XF+2*q+1}")
    xlast = I(f"buffer_store_dwordx4 {vr(XF,4)}, v{vL16}, {S(SWS)}, s{sT0} offen sc1")
    T = GA
    I(f"v_pk_add_f32 v[{T}:{T+1}], {vr(O,2)}, {vr(O+2,2)}")
    I(f"v_pk_add_f32 v[{T+2}:{T+3}], {vr(O+4,2)}, {vr(O+6,2)}")
    I(f"v_pk_add_f32 v[{T}:{T+1}], v[{T}:{T+1}], v[{T+2}:{T+3}]")
    I(f"v_add_f32 v{T}, v{T}, v{T+1}")
    I(f"v_mul_f32 v{T+2}, 0xbe000000, v{T}")
    for q in range(0, 8, 2):
        I(f"v_pk_add_f32 {vr(O+q,2)}, {vr(O+q,2)}, v[{T+2}:{T+3}] op_sel_hi:[1,0]")
    I(f"v_pk_mul_f32 v[{T+4}:{T+5}], {vr(O,2)}, {vr(O,2)}")
    I(f"v_pk_mul_f32 v[{T+6}:{T+7}], {vr(O+2,2)}, {vr(O+2,2)}")
    I(f"v_pk_fma_f32 v[{T+4}:{T+5}], {vr(O+4,2)}, {vr(O+4,2)}, v[{T+4}:{T+5}]")
    I(f"v_pk_fma_f32 v[{T+6}:{T+7}], {vr(O+6,2)}, {vr(O+6,2)}, v[{T+6}:{T+7}]")
    I(f"v_pk_add_f32 v[{T+4}:{T+5}], v[{T+4}:{T+5}], v[{T+6}:{T+7}]")
    I(f"v_add_f32 v{T+1}, v{T+4}, v{T+5}")
    for op, inv in (("v_permlane16_swap_b32", 0x3d800000), ("v_permlane32_swap_b32", 0x3d000000)):
        I(f"v_mov_b32 v{T+2}, v{T}")
        I(f"v_mov_b32 v{T+3}, v{T+1}")
        I(f"{op} v{T}, v{T+2}")
        I(f"{op} v{T+1}, v{T+3}")
        I(f"v_sub_f32 v{T+4}, v{T}, v{T+2}")
        I(f"v_add_f32 v{T}, v{T}, v{T+2}")
        I(f"v_add_f32 v{T+1}, v{T+1}, v{T+3}")
        I(f"v_mul_f32 v{T+4}, v{T+4}, v{T+4}")
        I(f"v_fmac_f32 v{T+1}, {inv:#x}, v{T+4}")
    I(f"v_lshlrev_b32 v{O}, 8, v20")
    I(f"v_mov_b32 v{T+2}, v{vTag}")
    I(f"v_mov_b32 v{T+3}, v{vTag}")
    I(f"v_mov_b32 v{O+1}, {OOB}")
    I(f"v_cmp_gt_u32 vcc, 16, v{vL}")
    I(f"v_cndmask_b32 v{O}, v{O+1}, v{O}, vcc")
    I(f"s_lshl_b32 s{sT0}, s{sP3}, 4")
    I(f"s_add_u32 s{sT0}, s{sT0}, {WS_STAT + h*64*256}")
    I(f"buffer_store_dwordx4 v[{T}:{T+3}], v{O}, {S(SWS)}, s{sT0} offen sc1")
    return xlast
def flag_at(base, grp, m, last):
    I(f"s_lshl_b32 s{sT0}, s{grp}, 4")
    I(f"s_add_u32 s{sT0}, s{sT0}, s{m}")
    I(f"s_lshl_b32 s{sT0}, s{sT0}, 7")
    I(f"s_add_u32 s{sT0}, s{sT0}, {base}")
    set_flag(sT0, last)

def c_compute(pids, hooks):
    ZF = 8; EPS = 16
    for e in range(4): I(f"v_mov_b32 v{EPS+e}, 0x358637bd")
    def us(u): return (u & 7) >> 1, 2 * (u >> 3) + (u & 1)
    def f0(u): s, r = us(u); return PHR(2 * s, r)
    def f1(u): s, r = us(u); return PHR(2 * s + 1, r)
    def buf(u):
        if u < 8: return [CAC(c, 2 + (u & 1)) for c in range(4)]
        k = 2 * (u & 1)
        return [PHR(k, 0), PHR(k + 1, 0), PHR(k, 1), PHR(k + 1, 1)]
    def s1(u):
        s, r = us(u); N0, D0, N1, D1 = buf(u)
        return [f"v_mfma_f32_16x16x32_bf16 {vr(D0,4)}, {vr(ZF+4*(s>>1),4)}, {vr(f0(u),4)}, {vr(EPS,4)}",
                f"v_mfma_f32_16x16x32_bf16 {vr(D1,4)}, {vr(ZF+4*(s>>1),4)}, {vr(f1(u),4)}, {vr(EPS,4)}",
                f"v_mfma_f32_16x16x32_bf16 {vr(N0,4)}, {vr(KB+8*s,4)}, {vr(f0(u),4)}, 0",
                f"v_mfma_f32_16x16x32_bf16 {vr(N1,4)}, {vr(KB+8*s+4,4)}, {vr(f1(u),4)}, 0"]
    def s2(u):
        s, r = us(u); N0, D0, N1, D1 = buf(u)
        d0 = D0 + ((2 * s) & 3); d1 = D1 + ((2 * s + 1) & 3)
        o = [f"v_rcp_f32 v6, v{d0}", f"v_rcp_f32 v7, v{d1}"]
        o += [f"v_mul_f32 v{N0+e}, v{N0+e}, v6" for e in range(4)]
        o += [f"v_cvt_pk_bf16_f32 v{f0(u)}, v{N0}, v{N0+1}", f"v_cvt_pk_bf16_f32 v{f0(u)+1}, v{N0+2}, v{N0+3}"]
        o += [f"v_mul_f32 v{N1+e}, v{N1+e}, v7" for e in range(4)]
        o += [f"v_cvt_pk_bf16_f32 v{f0(u)+2}, v{N1}, v{N1+1}", f"v_cvt_pk_bf16_f32 v{f0(u)+3}, v{N1+2}, v{N1+3}"]
        return o
    def s3(u):
        s, r = us(u)
        return [f"v_mfma_f32_16x16x32_bf16 {vr(CAC(c,r),4)}, {ar(WOF+(s*4+c)*4,4)}, {vr(f0(u),4)}, {vr(CAC(c,r),4) if s else 0}" for c in range(4)]
    wait_vm(pids[0])
    for m in s1(0): I(m)
    for u in range(17):
        if u in hooks: hooks[u]()
        if u + 1 < 16: wait_vm(pids[u + 1])
        mf = (s3(u - 1) if u >= 1 else []) + (s1(u + 1) if u + 1 < 16 else [])
        va = s2(u) if u < 16 else []
        k = 0
        for m in mf:
            I(m)
            for _ in range(2):
                if k < len(va): I(va[k]); k += 1
        while k < len(va): I(va[k]); k += 1

L_U = L_MISC + 3072
def u12_all():
    I(f"v_lshrrev_b32 v6, 3, v{vT}")
    I(f"v_lshlrev_b32 v7, 10, v6")
    I(f"v_lshl_add_u32 v7, v{vG}, 4, v7")
    I(f"v_add_u32 v7, {L_UV}, v7")
    R = 64; UA = 192
    for q in range(4):
        I(f"s_lshr_b32 s{sT0}, s{sKM+q}, 1")
        I(f"v_add_u32 v13, s{sT0}, v7")
        for s in range(4):
            I(f"ds_read_b128 {vr(R+4*(4*q+s),4)}, v13 offset:{64*s}")
    I(f"s_mul_i32 s{sT0}, s{sW}, 384")
    I(f"s_add_u32 s{sT0}, s{sT0}, {L_UW}")
    I(f"v_lshlrev_b32 v6, 6, v6")
    I(f"v_lshl_add_u32 v6, v{vG}, 4, v6")
    I(f"v_add_u32 v6, s{sT0}, v6")
    I(f"v_add_u32 v55, {L_DUMMY}, v{vL16}")
    I(f"v_and_b32 v13, 7, v{vT}")
    I(f"v_cmp_eq_u32 vcc, 0, v13")
    I(f"v_cndmask_b32 v55, v55, v6, vcc")
    wait_lg()
def u12_mm(k0, k1):
    R = 64; UA = 192
    for ks in range(k0, k1):
        for c in range(3):
            acc = vr(UA + 4 * c, 4)
            I(f"v_mfma_f32_16x16x32_bf16 {acc}, {ar(GF(c,ks),4)}, {vr(R+4*ks,4)}, {acc if ks else 0}")
    if k1 == 16:
        for c in range(3):
            I(f"ds_write_b128 v55, {vr(UA+4*c,4)} offset:{128*c}")

def DF(j, c): return (192 + (j * 4 + c) * 4) if j < 4 else ((j - 4) * 4 + c) * 4
WDSLOT = {0: 6, 1: 7, 2: 0, 3: 1, 4: 2, 5: 0, 6: 3, 7: 1, 8: 4, 9: 5, 10: 6}
vWD = 12
def wd_setup():
    TMPV[:] = [6, 7, 17, 18]
    rows128_voff(vWD, 1024, True)
    I(f"s_mul_i32 s{sB1}, s{sW}, {352*1024}")
    I(f"s_lshl_b32 s{sB2}, s{sCtC}, 7")
    I(f"s_add_u32 s{sB1}, s{sB1}, s{sB2}")
    I(f"v_bfe_u32 v6, v{vL}, 2, 2")
    I(f"v_lshl_add_u32 v6, v{vG}, 3, v6")
    I(f"v_lshlrev_b32 v6, 7, v6")
    I(f"v_bfe_u32 v7, v{vL}, 3, 2")
    I(f"s_and_b32 s{sB2}, s{sW}, 2")
    I(f"v_xor_b32 v7, s{sB2}, v7")
    I(f"v_lshl_add_u32 v6, v7, 5, v6")
    I(f"v_and_b32 v7, 3, v{vL}")
    I(f"v_lshl_add_u32 v6, v7, 3, v6")
    I(f"v_add_u32 v16, s{sW4096}, v6")
    for c in range(1, 4):
        I(f"v_xor_b32 v{16+c}, {32*c}, v16")
def wd_dma(j):
    return dma4(vWD, S(SWD), sW4096, WDSLOT[j] * 16 * K, sB1, j * 32768)
def wd_tr(j, last):
    if last is not None: wait_vm(last)
    off = (WDSLOT[j] & 3) * 16 * K
    out = None
    for c in range(4):
        f = DF(j, c)
        I(f"ds_read_b64_tr_b16 {ar(f,2)}, v{16+c} offset:{off}")
        out = I(f"ds_read_b64_tr_b16 {ar(f+2,2)}, v{16+c} offset:{off+512}")
    return out
def wd_hi():
    for c in range(4): I(f"v_xor_b32 v{16+c}, {64*K}, v{16+c}")

L_XCH = 128 * K
L_RS = L_MISC
AF = 64; SR = 32
def DAC(p, c, sl): return 128 + p * 48 + (c * 4 + sl) * 4
vFl, vFt, vAs = 60, 61, 62
def d_setup():
    I(f"s_lshl_b32 s{sT0}, s{sGrpD}, 11")
    I(f"s_add_u32 s{sT0}, s{sT0}, {WS_FX}")
    I(f"v_lshlrev_b32 v{vFl}, 7, v{vT}")
    I(f"v_add_u32 v{vFl}, s{sT0}, v{vFl}")
    pid = poll_issue(vFl, vFt)
    I(f"s_lshl_b32 s{sT0}, s{sGrpD}, 3")
    I(f"s_add_u32 s{sT0}, s{sT0}, s{sW}")
    I(f"s_lshl_b32 s{sT0}, s{sT0}, 14")
    I(f"s_add_u32 s{sT0}, s{sT0}, {WS_X1P}")
    I(f"v_add_u32 v{vAs}, s{sT0}, v{vL16}")
    I(f"s_lshl_b32 s{sP0}, s{sGrpD}, 15")
    I(f"s_add_u32 s{sP0}, s{sP0}, {WS_STAT}")
    I(f"s_add_u32 s{sP0}, s{sP0}, s{sW4096}")
    I(f"s_and_b32 s{sT1}, s{sW}, 1")
    I(f"s_lshl_b32 s{sT1}, s{sT1}, 13")
    I(f"v_add_u32 v8, s{sT1}, v{vL16}")
    I(f"v_xor_b32 v9, 8192, v8")
    I(f"v_add_u32 v10, 65536, v8")
    I(f"v_add_u32 v11, 65536, v9")
    I(f"s_lshl_b32 s{sT0}, s{sW}, 7")
    I(f"s_add_u32 s{sT0}, s{sT0}, {L_RS}")
    I(f"v_lshlrev_b32 v53, 3, v{vG}")
    I(f"v_add_u32 v53, s{sT0}, v53")
    I(f"v_lshlrev_b32 v52, 3, v{vL}")
    I(f"v_add_u32 v52, {L_DUMMY}, v52")
    I(f"v_cmp_eq_u32 vcc, 0, v{vT}")
    I(f"v_cndmask_b32 v53, v52, v53, vcc")
    return pid
def d_adma(h, q):
    return dma4([vAs] * 4, S(SWS), sW4096, h * 64 * K + q * 16 * K, sK + q, h * 65536, " sc1")
def d_stat_loads(h):
    I(f"s_add_u32 s{sT3}, s{sP0}, {h*16384}")
    for k in range(4):
        sid = I(f"buffer_load_dwordx4 {vr(SR+4*k,4)}, v{vL16}, {S(SWS)}, s{sT3} offen offset:{1024*k} sc1")
    return sid
def d_stat_check(h, sid):
    def checks():
        I(f"v_xor_b32 v6, v{SR+2}, v{vTag}")
        for q in range(1, 4):
            I(f"v_bitop3_b32 v6, v6, v{SR+4*q+2}, v{vTag} bitop3:0xf6")
        I("v_cmp_ne_u32 vcc, 0, v6")
    wait_vm(sid)
    checks()
    def body():
        d_stat_loads(h); I("s_waitcnt vmcnt(0)"); A.vm = []; checks()
    spin_loop(body, first_done=True)
def d_stat(h, part):
    DP = ["row_ror:8", "row_ror:4", "row_ror:2", "row_ror:1"]
    if part == 0:
        for k in range(4): I(f"v_mov_b32 v{SR+4*k+2}, v{SR+4*k}")
        for d in DP:
            for k in range(4):
                I(f"v_add_f32_dpp v{SR+4*k+2}, v{SR+4*k+2}, v{SR+4*k+2} {d} row_mask:0xf bank_mask:0xf")
        for k in range(4):
            I(f"v_fmac_f32 v{SR+4*k}, 0xbd800000, v{SR+4*k+2}")
        for k in range(4):
            I(f"v_mul_f32 v{SR+4*k}, v{SR+4*k}, v{SR+4*k}")
        for k in range(4):
            I(f"v_fmac_f32 v{SR+4*k+1}, 0x3d000000, v{SR+4*k}")
        return
    for d in DP:
        for k in range(4):
            I(f"v_add_f32_dpp v{SR+4*k+1}, v{SR+4*k+1}, v{SR+4*k+1} {d} row_mask:0xf bank_mask:0xf")
    for k in range(4): I(f"v_mov_b32 v{SR+4*k}, 0x3727c5ac")
    for k in range(4): I(f"v_fmac_f32 v{SR+4*k}, 0x3b000000, v{SR+4*k+1}")
    for k in range(4): I(f"v_rsq_f32 v{SR+4*k}, v{SR+4*k}")
    for k in range(4): I(f"v_mul_f32 v{SR+4*k+1}, 0xbb000000, v{SR+4*k+2}")
    for k in range(4): I(f"v_mul_f32 v{SR+4*k+1}, v{SR+4*k+1}, v{SR+4*k}")
    for k in range(4): I(f"ds_write_b64 v53, {vr(SR+4*k,2)} offset:{h*512 + 32*k}")

def d_rd(p, ks, sl):
    b = AF + (ks % 3) * 16 + 4 * sl
    q, s = ks >> 2, ks & 3
    base = (8 if sl < 2 else 9) + 2 * p
    return I(f"ds_read_b128 {vr(b,4)}, v{base} offset:{q*16*K + (sl&1)*4096 + s*1024}")
def d_pass(p, aids, bgf, pre):
    wait_vm(aids[0]); barrier()
    rds = {0: [d_rd(p, 0, sl) for sl in range(4)], 1: [d_rd(p, 1, sl) for sl in range(4)]}
    for k2 in range(0, 16, 2):
        def main():
            for ks in (k2, k2 + 1):
                if ks in (4, 8, 12): I("s_barrier")
                if ks + 2 < 16 and (ks + 2) % 4 == 0:
                    wait_vm(aids[(ks + 2) >> 2]); I("s_barrier")
                nxt = []
                for sl in range(4):
                    if ks + 2 < 16: nxt.append(d_rd(p, ks + 2, sl))
                    if sl == 0: wait_lg(rds[ks][3])
                    for c in range(3):
                        acc = vr(DAC(p, c, sl), 4)
                        I(f"v_mfma_f32_16x16x32_bf16 {acc}, {ar(GF(c,ks),4)}, {vr(AF+(ks%3)*16+4*sl,4)}, {acc if ks else 0}")
                rds[ks + 2] = nxt
        if p == XST - 1 and k2 < 14: xstamp()
        pre(k2)
        rb_ = rec(bgf, k2); rm = rec(main)
        merge_mfma(A, rm, [rb_])

def d_epi_setup():
    I(f"s_and_b32 s{sT1}, s{sW}, 1")
    I(f"s_lshl_b32 s{sT1}, s{sT1}, 8")
    I(f"s_add_u32 s{sT1}, s{sT1}, {L_RS}")
    I(f"v_lshlrev_b32 v56, 3, v{vT}")
    I(f"v_add_u32 v56, s{sT1}, v56")
    I(f"s_mul_i32 s{sT0}, s{sW}, 384")
    I(f"s_add_u32 s{sT0}, s{sT0}, {L_UW}")
    I(f"v_lshlrev_b32 v57, 4, v{vG}")
    I(f"v_add_u32 v57, s{sT0}, v57")
    I(f"s_lshl_b32 s{sT0}, s{sW}, 11")
    I(f"s_add_u32 s{sT0}, s{sT0}, {L_XCH}")
    I(f"v_add_u32 v58, s{sT0}, v{vL16}")
    I(f"v_and_b32 v59, 1, v{vG}")
    I(f"v_mul_u32_u24 v59, {43*1024}, v59")
    I(f"v_lshrrev_b32 v63, 1, v{vG}")
    I(f"v_lshl_add_u32 v59, v63, 8, v59")
    I(f"v_lshl_add_u32 v59, v{vT}, 4, v59")
    I(f"s_mul_i32 s{sT0}, s{sGrpD}, {8*43*1024}")
    I(f"s_add_u32 s{sT0}, s{sT0}, {WS_HH}")
    for dst, tile in ((sP1, sTx), (sHead, sTz)):
        I(f"s_add_u32 s{dst}, s{sFt0}, s{tile}")
        I(f"s_lshl_b32 s{dst}, s{dst}, 9")
        I(f"s_add_u32 s{dst}, s{dst}, s{sT0}")
def d_epi(p):
    RS = 32; U = 40 - 0;
    U = 224
    barrier()
    I(f"v_xor_b32 v63, 256, v56")
    for sl in (2, 3, 0, 1):
        I(f"ds_read_b64 {vr(RS+2*sl,2)}, v{56 if sl < 2 else 63} offset:{p*512 + (sl&1)*128}")
    if p == 0:
        for c in (2, 0, 1):
            I(f"ds_read_b128 {vr(U+8*c,4)}, v57 offset:{128*c}")
            I(f"ds_read_b128 {vr(U+8*c+4,4)}, v57 offset:{128*c+64}")
    I(f"s_and_b32 s{sT1}, s{sW}, 1")
    I(f"s_mul_i32 s{sT1}, s{sT1}, {2*43*1024}")
    I(f"s_xor_b32 s{sT2}, s{sT1}, {2*43*1024}")
    wait_lg()
    tc = [0]
    def fix(c, sl):
        a = DAC(p, c, sl)
        for e in (0, 2):
            t = 40 + 2 * (tc[0] & 3); tc[0] += 1
            I(f"v_pk_fma_f32 {vr(t,2)}, {vr(U+8*c+e,2)}, {vr(RS+2*sl,2)}, {vr(U+8*c+4+e,2)} op_sel:[0,1,0] op_sel_hi:[1,1,1]")
            I(f"v_pk_fma_f32 {vr(a+e,2)}, {vr(a+e,2)}, {vr(RS+2*sl,2)}, {vr(t,2)} op_sel_hi:[1,0,1]")
    for sl in (2, 3):
        fix(2, sl)
        I(f"ds_write_b128 v58, {vr(DAC(p,2,sl),4)} offset:{(sl-2)*1024}")
    def hh_pack(dst, ga, ua):
        for e in (0, 2):
            I(f"v_pk_mul_f32 {vr(ga+e,2)}, {vr(ga+e,2)}, {vr(ua+e,2)}")
        I(f"v_cvt_pk_bf16_f32 v{dst}, v{ga}, v{ga+1}")
        I(f"v_cvt_pk_bf16_f32 v{dst+1}, v{ga+2}, v{ga+3}")
    def store_pair(d, slot, base_s, ga0, ua0, ga1, ua1):
        hh_pack(d, ga0, ua0)
        hh_pack(d + 2, ga1, ua1)
        I(f"s_add_u32 s{sT0}, s{base_s}, s{sT1 if slot < 2 else sT2}")
        I(f"s_add_u32 s{sT0}, s{sT0}, {p*4*43*1024}")
        I(f"v_permlane16_swap_b32 v{d}, v{d+2}")
        I(f"v_permlane16_swap_b32 v{d+1}, v{d+3}")
        return I(f"buffer_store_dwordx4 {vr(d,4)}, v59, {S(SWS)}, s{sT0} offen sc1")
    for k, sl in enumerate((0, 2)):
        for c in (0, 1):
            fix(c, sl); fix(c, sl + 1)
        store_pair(72 + 4 * k, sl, sP1, DAC(p,0,sl), DAC(p,1,sl), DAC(p,0,sl+1), DAC(p,1,sl+1))
        if k == 0:
            barrier()
            I(f"v_xor_b32 v63, 2048, v58")
            for s2 in range(2):
                I(f"ds_read_b128 {vr(DAC(p,2,2+s2),4)}, v63 offset:{s2*1024}")
    for sl in range(2): fix(2, sl)
    wait_lg()
    return store_pair(DAC(p,0,0), 0, sHead, DAC(p,2,0), DAC(p,2,2), DAC(p,2,1), DAC(p,2,3))

EQ = list(range(96, 176, 4)) + [64, 68]
def EAR(j, rho): return EQ[j * 2 + rho]
def ECC(k, r4): return 176 + (r4 * 4 + k) * 4
def e_setup():
    I(f"s_lshl_b32 s{sT0}, s{sGrpC}, 11")
    I(f"s_add_u32 s{sT0}, s{sT0}, {WS_FH}")
    I(f"v_lshlrev_b32 v{vFl}, 7, v{vT}")
    I(f"v_add_u32 v{vFl}, s{sT0}, v{vFl}")
    rt_offsets(43 * 1024)
    I(f"s_mul_i32 s{sT0}, s{sGrpC}, {8*43*1024}")
    I(f"s_mul_i32 s{sT1}, s{sW}, {11*1024}")
    I(f"s_add_u32 s{sT0}, s{sT0}, s{sT1}")
    I(f"s_add_u32 s{sT0}, s{sT0}, {WS_HH}")
    I(f"v_add_u32 v248, s{sT0}, v{vL16}")
    I(f"v_add_u32 v249, 4096, v248")
    I(f"v_add_u32 v250, 8192, v248")
    I(f"s_cmp_eq_u32 s{sW}, 3")
    I(f"s_cselect_b32 s{sT0}, 1024, 0")
    I(f"v_subrev_u32 v251, s{sT0}, v250")
    return poll_issue(vFl, vFt)
def e_ld(h, j, rho):
    base = 251 if j == 10 else 248 + (j >> 2)
    return I(f"buffer_load_dwordx4 {vr(EAR(j,rho),4)}, v{base}, {S(SWS)}, s{sR+2*h+rho} offen offset:{(j&3)*1024} sc1")
def e_mm(h, ids, trw, late, j0=0, j1=11):
    for j in range(j0, j1):
        if j in trw: wait_lg(trw[j])
        for rho in range(2):
            if (j, rho) in late: ids[late[(j, rho)]] = e_ld(h, *late[(j, rho)])
            wait_vm(ids[(j, rho)])
            for c in range(4):
                acc = vr(ECC(c, 2 * h + rho), 4)
                I(f"v_mfma_f32_16x16x32_bf16 {acc}, {ar(DF(j,c),4)}, {vr(EAR(j,rho),4)}, {acc if j else 0}")
def e_fin(h, GB):
    O = 32 + 16 * h; XF = 40 + 16 * h; XR = 24 + 4 * h
    acc = lambda k, rho: ECC(k, 2 * h + rho)
    for q in range(4):
        I(f"v_lshlrev_b32 v{XF+2*q}, 16, v{XR+q}")
        I(f"v_and_b32 v{XF+2*q+1}, s{sHi}, v{XR+q}")
    wait_lg()
    half_sum(acc, O)
    for q in range(0, 8, 2):
        I(f"v_pk_fma_f32 {vr(O+q,2)}, {vr(O+q,2)}, {vr(GB+q,2)}, {vr(XF+q,2)}")
    for q in range(4):
        I(f"v_cvt_pk_bf16_f32 v{XF+q}, v{O+2*q}, v{O+2*q+1}")
    I(f"s_lshl_b32 s{sT1}, s{sP3}, 6")
    if h: I(f"s_add_u32 s{sT1}, s{sT1}, 65536")
    I(f"v_permlane16_swap_b32 v{XF}, v{XF+2}")
    I(f"v_permlane16_swap_b32 v{XF+1}, v{XF+3}")
    I(f"buffer_store_dwordx4 {vr(XF,4)}, v21, {S(SOUT)}, s{sT1} offen sc1")

def write_epoch():
    I(f"s_lshl_b32 s{sT0}, s2, 8")
    I(f"v_or_b32 v6, s{sT0}, v{vTid}")
    I(f"v_cmp_eq_u32 vcc, 0, v6")
    I(f"v_mov_b32 v7, {OOB}")
    I(f"v_cndmask_b32 v7, v7, {WS_EPOCH}, vcc")
    I(f"buffer_store_dword v{vTag}, v7, {S(SWS)}, 0 offen")

def body():
    aids = prologue()
    stamp()
    xids = x_issue()
    consts()
    wq_addr()
    h_addr()
    phaseA_compute(aids)
    stamp()
    wphi_issue()
    wids = {}
    r1 = rec(layernorm, xids)
    r2 = rec(lambda: (wq_dma(0), wq_dma(1), gm_issue([0], 40)))
    merge(A, [r1, r2], [(0, 1), (0, 0.9)])
    wids[0], wids[1], gid = r2.ret
    stamp()
    wait_vm(wids[0]); barrier()
    r1 = rec(wq_tr, 0); r2 = rec(lambda: (wq_dma(2), pf_wo())[0])
    merge(A, [r1, r2]); wids[2] = r2.ret
    stamp()
    gm_finish([0], 40, gid)
    barrier()
    stamp()
    r1 = rec(make_h_first); r2 = rec(wq_tr, 1)
    merge(A, [r1, r2], [(0, 1), (0.12, 0.6)])
    wphi_pack()
    barrier()
    cur = {k: [a_rd(k, rt) for rt in range(4)] for k in range(2)}
    rm = rec(gemm_kv, 0, 4, cur); rc = rec(wq_dma, 3); rd_ = rec(lambda: (epi_k_pre(), pad(150))); re_ = rec(lambda: (pf_gu(), pf_wd()))
    merge_mfma(A, rm, [rc, rd_, re_], [(0, 0.68), (0, 0.68), (0.7, 1)]); wids[3] = rc.ret
    wait_vm(wids[2]); I("s_barrier")
    TMPV[:] = [6, 7, 128, 129]
    rwo = rec(wo_dma)
    nset = rwo.first_dma
    setup = Rec(); setup.ops = rwo.ops[:nset]; rwo.ops = rwo.ops[nset:]
    rm = rec(gemm_kv, 4, 6, rm.ret); rc = rec(wq_tr, 2)
    merge_mfma(A, rm, [rc, setup], [(0, 0.8), (0, 1)])
    wait_vm(wids[3]); barrier()
    rm = rec(gemm_kv, 6, 10, rm.ret); rb_ = rec(make_h_do, 3, 240, False, -1); rc = rec(wq_tr, 3)
    merge_mfma(A, rm, [rb_, rc], [(0, 0.95), (0, 0.95)])
    barrier()
    rm = rec(gemm_kv, 10, 16, rm.ret); rc = rec(lambda: (wgu_setup(), wo_tr_pre())); rd_ = rec(kv_reduce_pre)
    merge_mfma(A, rm, [rwo, rd_, rc], [(0, 0.5), (0, 0.5), (0.52, 1)])
    wo_last = rwo.ret
    if STOP == 1:
        A.fence(16)
        dbg_dump([vr(accQ(k), 4) for k in range(4)] + [vr(accK(k), 4) for k in range(4)] + [vr(accV(k), 4) for k in range(4)], 0)
        return
    I("s_barrier")
    stamp()
    g = {}
    rm = rec(epi_k); rb_ = rec(wgu_dma, 0)
    merge(A, [rm, rb_], [(0, 1), (0, 0.7)])
    g[0] = rb_.ret
    wo_tr(wo_last)
    barrier()
    stamp()
    rm = rec(epi_q); rc = rec(kv_reduce_loads); rb_ = rec(wgu_dma, 1)
    merge(A, [rm, rc, rb_], [(0, 1), (0.62, 0.75), (0.0, 0.6)])
    g[1] = rb_.ret
    stamp()
    kv_reduce_finish(rc.ret)
    wgu_traddr()
    stamp()
    set_flag(sT1, rm.ret)
    stamp()
    if STOP == 2: return
    gid = gm_issue([1, 2], 192)
    wgu_tr(0); wgu_tr(1)
    barrier()
    r1 = rec(lambda: (wgu_dma(2), wgu_dma(3))); r2 = rec(lambda: (kv_addr(), phiq_load())[1])
    merge(A, [r1, r2], [(0, 1), (0.3, 1)])
    g[2], g[3] = r1.ret; pid = r2.ret
    gm_finish([1, 2], 192, gid)
    kid = kv_loads()
    wait_vm(g[3]); barrier()
    stamp()
    pids = {}
    poll_finish(20, 21, pid)
    r1 = rec(phiq_loads, pids, 0); r2 = rec(lambda: (wgu_tr(2), wgu_tr(3)))
    merge(A, [r1, r2])
    stamp()
    kv_finish(kid)
    kv_pack()
    stamp()
    st = {}
    accA = lambda k, rho: CAC(k, rho)
    accB = lambda k, rho: CAC(k, 2 + rho)
    rg = rec(phiq_loads, pids, 1)
    parts = [rg.ops[k*8:(k+1)*8] for k in range(4)]
    def hg(k):
        def f():
            r_ = Rec(); r_.ops = parts[k]; merge(A, [r_])
        return f
    def h4(): st["x"] = c_setup()
    def h9(): half_send(accA, L_RED, 6)
    def h10():
        barrier()
        half_recv(accA, L_RED, 6); c_epi_rd(144, 160)
    def h11():
        st["xa"] = c_epi(0, accA, 128, 144, 160, 176, st["x"])
    def h15(): flag_at(WS_FX, sGrpC, sMC, st["xa"])
    c_compute(pids, {0: hg(0), 1: hg(1), 2: hg(2), 3: hg(3), 5: h4, 9: h9, 10: h10, 11: h11, 15: h15})
    stamp()
    half_send(accB, L_RED + 24 * K, 6)
    c_epi_rd(144, 160)
    barrier()
    half_recv(accB, L_RED + 24 * K, 6)
    xb = c_epi(1, accB, 128, 144, 160, 176, st["x"])
    stamp()
    if STOP == 3:
        flag_at(WS_FX + 0x10000, sGrpC, sMC, xb)
        return
    pid = d_setup()
    u12_all()
    rm = rec(u12_mm, 0, 9); rb_ = rec(lambda: (wd_setup(), d_epi_setup()))
    merge_mfma(A, rm, [rb_])
    flag_at(WS_FX + 0x10000, sGrpC, sMC, xb)
    poll_finish(vFl, vFt, pid)
    stamp()
    aA = [d_adma(0, 0)]
    rm = rec(u12_mm, 9, 16); rb_ = rec(lambda: (d_stat_loads(0), [d_adma(0, q) for q in (1, 2, 3)]))
    merge_mfma(A, rm, [rb_])
    sid = rb_.ret[0]; aA += rb_.ret[1]
    I(f"v_add_u32 v{vFl}, 0x10000, v{vFl}")
    stamp()
    wd = {}; aB = []; dd = {}
    def bgA(ks):
        if ks == 0: wd[0] = wd_dma(0); dd["p"] = poll_issue(vFl, vFt)
        if ks == 2: wd[1] = wd_dma(1)
        if ks == 4: wd[2] = wd_dma(2)
        if ks == 6: aB.append(d_adma(1, 0)); d_stat(0, 0)
        if ks == 8:
            aB.append(d_adma(1, 1)); wd_hi(); wd_tr(0, wd[0]); dd["t"] = wd_tr(1, wd[1]); wd_hi()
        if ks == 10: wait_lg(dd["t"]); aB.append(d_adma(1, 2)); wd[3] = wd_dma(3)
        if ks == 12: aB.append(d_adma(1, 3)); dd["t"] = wd_tr(2, wd[2])
        if ks == 14: wd[4] = wd_dma(4); d_stat(0, 1)
    def preA(ks):
        if ks == 6: poll_finish(vFl, vFt, dd["p"]); d_stat_check(0, sid)
    d_pass(0, aA, bgA, preA)
    stamp()
    ha = d_epi(0)
    stamp()
    def bgB(ks):
        if ks == 0: dd["s"] = d_stat_loads(1); wd[5] = wd_dma(5); dd["t"] = wd_tr(3, wd[3])
        if ks == 2: wd[6] = wd_dma(6)
        if ks == 4: wait_lg(dd["t"]); wd[7] = wd_dma(7)
        if ks == 6: wd[8] = wd_dma(8)
        if ks == 8: wd[9] = wd_dma(9)
        if ks == 10: dd["e"] = e_setup()
        if ks == 12: wd[10] = wd_dma(10); d_stat(1, 0)
        if ks == 14: d_stat(1, 1)
    def preB(ks):
        if ks == 4: flag_at(WS_FH, sGrpD, sMD, ha)
        if ks == 10: d_stat_check(1, dd["s"])
    d_pass(1, aB, bgB, preB)
    stamp()
    poll_finish(vFl, vFt, dd["e"])
    ea = {}
    for j in range(6):
        for rho in range(2): ea[(j, rho)] = e_ld(0, j, rho)
    hb = d_epi(1)
    if STOP == 4:
        flag_at(WS_FH + 0x10000, sGrpD, sMD, hb)
        return
    stamp()
    I(f"v_add_u32 v{vFl}, 0x10000, v{vFl}")
    trw = {}
    def trs(j0, j1):
        for j in range(j0, j1):
            if j == 8: wd_hi()
            trw[j] = wd_tr(j, None)
    order = [(j, rho) for j in range(11) for rho in range(2)]
    rb_ = rec(trs, 4, 8); rm = rec(e_mm, 0, ea, trw, {order[k]: order[12 + k] for k in range(8)}, 0, 4)
    merge_mfma(A, rm, [rb_])
    flag_at(WS_FH + 0x10000, sGrpD, sMD, hb)
    rb_ = rec(lambda: (trs(8, 11), pad(300), poll_issue(vFl, vFt))[2]); rm = rec(e_mm, 0, ea, trw, {order[8 + k]: order[20 + k] for k in range(2)}, 4, 11)
    merge_mfma(A, rm, [rb_], [(0, 1.0)])
    dd["f"] = rb_.ret
    stamp()
    accEa = lambda k, rho: ECC(k, rho)
    accEb = lambda k, rho: ECC(k, 2 + rho)
    poll_finish(vFl, vFt, dd["f"])
    eb = {}
    for jr in order[:14]: eb[jr] = e_ld(1, *jr)
    barrier()
    half_send(accEa, 0, 6)
    GB = 240
    for k in range(2):
        I(f"ds_read_b128 {vr(GB+4*k,4)}, v22 offset:{10240 + 64*k}")
    I(f"v_lshlrev_b32 v21, 10, v20")
    I(f"v_and_b32 v7, 1, v{vG}")
    I(f"v_lshl_add_u32 v21, v7, 5, v21")
    I(f"v_lshrrev_b32 v7, 1, v{vG}")
    I(f"v_lshl_add_u32 v21, v7, 4, v21")
    barrier()
    half_recv(accEa, 0, 6)
    e_fin(0, GB)
    stamp()
    e_mm(1, eb, {}, {order[k]: order[14 + k] for k in range(8)})
    stamp()
    half_send(accEb, 24 * K, 6)
    barrier()
    half_recv(accEb, 24 * K, 6)
    e_fin(1, GB)
    stamp()

hdr = open(f"cdna_kernels/{NAME}.s.ref").read().split("; Override launch")[0]
A.raw(hdr.rstrip())
A.raw(f"; @launch grid=(256,1,1) block=(256,1,1) lds={LDS_BYTES}")
A.raw('.amdgcn_target "amdgcn-amd-amdhsa--gfx950"')
A.raw(".text")
A.raw(f".globl {NAME}_kernel")
A.raw(".p2align 8")
A.raw(f".type {NAME}_kernel,@function")
A.raw(f"{NAME}_kernel:")
body()
write_epoch()
stamp_out()
A.raw("L_end:")
I("s_endpgm")
A.raw("L_code_end:")
A.raw('.section .rodata,"a"')
A.raw(".p2align 6")
A.raw(f".amdhsa_kernel {NAME}_kernel")
A.raw("  .amdhsa_next_free_vgpr 512")
A.raw("  .amdhsa_next_free_sgpr 102")
A.raw("  .amdhsa_accum_offset 256")
A.raw("  .amdhsa_group_segment_fixed_size 0")
A.raw("  .amdhsa_kernarg_size 104")
A.raw("  .amdhsa_user_sgpr_count 2")
A.raw("  .amdhsa_user_sgpr_kernarg_segment_ptr 1")
A.raw("  .amdhsa_system_sgpr_workgroup_id_x 1")
A.raw(".end_amdhsa_kernel")
out = sys.argv[1] if len(sys.argv) > 1 else f"cdna_kernels/{NAME}.s"
open(out, "w").write(A.text())
print("instructions:", A.ninstr, "stamps:", stamp_idx[0], "->", out)
```

```python
import sys
from asmlib import *

NAME = "adaLN_cond__linear_kernel_hedgehog__glu_gated_bilinear__prompt"
STOP = int(sys.argv[2]) if len(sys.argv) > 2 else 99
STAMP = int(sys.argv[3]) if len(sys.argv) > 3 else 0
XST = int(sys.argv[4]) if len(sys.argv) > 4 else 0

WS_EPOCH = 0
WS_FQ = 0x80000
WS_FX = 0x88000
WS_FH = 0x90000
WS_MODF = 0x10000
WS_KVF = 0x20000
WS_STAT = 0x340000
WS_KVP = 0x100000
WS_PHIQ = 0x400000
WS_X1P = 0x800000
WS_HH = 0xA00000
WS_DBG = 0x1000000
WS_STAMP = 0x1F00000
WS_SIZE = 0x2000000
OOB = 0x7ffffff0
KVREC = 2176
K = 1024
L_MODV = 144 * K
L_MISC = 156 * K
L_UW = L_MODV
L_DUMMY = L_MODV + 2048
L_UV = L_MISC + 1024
LDS_BYTES = 160 * K
SPIN = 400000

sTag, sW, sJ = 4, 5, 6
sCtB, sRbB, sCtC, sRbC, sGrpC, sMC, sGrpD, sMD = 7, 8, 9, 10, 36, 37, 38, 39
sT0, sT1, sT2, sT3, sCnt = 11, 12, 13, 14, 15
sK, sKW, sKM = 16, 20, 24
sW4096 = 28
sP0, sP1, sP2, sP3 = 29, 30, 31, 32
sFt0, sHead, sB0 = 33, 34, 35
sTx, sTz, sB1, sB2 = 40, 41, 42, 43
SX, SWQKV, SWPHI, SWO, SWG, SWU, SWD, SC, SWMOD, SOUT, SWS = 44, 48, 52, 56, 60, 64, 68, 72, 76, 80, 84
SGU = 72
sR = 76
sSel = 88
sSelA, sSelB = 92, 93
sL, sL2, sNL, sNL2 = 94, 95, 96, 97
sHi = 98
sSelHi = 99
sSelLL = 3

A = Asm(); A.phmap = {}
class Em: pass
E = Em(); E.t = A
def I(t): return E.t.I(t)
def _ph(x):
    if E.t is A and x is not None and not isinstance(x, int): return A.phmap[x]
    return x
def wait_vm(x=None): E.t.wait_vm(_ph(x))
def wait_lg(x=None): E.t.wait_lg(_ph(x))
def barrier(): E.t.barrier()
def rec(fn, *a):
    r = Rec(); old = E.t; E.t = r
    ret = fn(*a)
    E.t = old
    r.ret = ret
    return r
def gbegin():
    if E.t is not A: E.t.begin()
def gend():
    if E.t is not A: E.t.end()
def pad(c):
    if E.t is not A: E.t.pad(c)

def srd(base, ptr, nbytes):
    I(f"s_mov_b32 s{base}, s{ptr}")
    I(f"s_and_b32 s{base+1}, s{ptr+1}, 0xffff")
    I(f"s_mov_b32 s{base+2}, {nbytes}")
    I(f"s_mov_b32 s{base+3}, 0x20000")
def S(b): return sr(b, 4)

vTid, vL, vG, vT, vTag, vL16 = 0, 1, 2, 3, 4, 5

stamp_idx = [0]
DBGSET = [0, 1, 2, 4, 5, 6, 8, 9, 12, 13, 14, 16, 17, 18, 19, 20]
def stamp():
    if not STAMP: return
    n = stamp_idx[0]; stamp_idx[0] += 1
    if STAMP == 4:
        if n == XST:
            I("s_memrealtime s[100:101]"); I("s_waitcnt lgkmcnt(0)"); A.lg = []; I("s_mov_b32 s0, s100")
        return
    if STAMP == 3:
        if n not in DBGSET: return
        n = DBGSET.index(n)
    I("s_memrealtime s[100:101]" if STAMP != 2 else "s_memtime s[100:101]")
    I("s_waitcnt lgkmcnt(0)")
    A.lg = []
    I("v_mov_b32 v6, s100")
    I(f"v_lshlrev_b32 v7, 1, v{vTid}")
    I(f"v_and_b32 v7, 0x180, v7")
    I(f"s_lshl_b32 s100, s2, 9")
    I(f"s_add_u32 s100, s100, {WS_STAMP + 4*n}")
    I(f"buffer_store_dword v6, v7, {S(SWS)}, s100 offen")
def stamp_out():
    if STAMP == 4:
        A.raw("L_padloop:")
        I("s_memrealtime s[100:101]"); I("s_waitcnt lgkmcnt(0)"); I("s_sub_u32 s100, s100, s0"); I("s_cmp_lt_u32 s100, 6000"); I("s_cbranch_scc1 L_padloop")
    if STAMP != 3: return
    I("s_cmp_lg_u32 s2, 100")
    I("s_cbranch_scc1 L_end")
    I(f"s_load_dwordx2 s[20:21], s[0:1], 88")
    I("s_waitcnt vmcnt(0) lgkmcnt(0)")
    srd(16, 20, 64)
    I(f"v_lshlrev_b32 v7, 2, v{vTid}")
    I(f"s_mov_b32 s100, {WS_STAMP + 100*512}")
    I(f"buffer_load_dword v6, v7, {S(SWS)}, s100 offen sc1")
    I("s_waitcnt vmcnt(0)")
    I(f"buffer_store_dword v6, v7, s[16:19], 0 offen")

def xstamp():
    if STAMP in (1, 2) and XST: stamp()
def xstamp3():
    if STAMP in (1, 2) and XST == 3: stamp()
def tag4(b):
    for i in range(4):
        I(f"v_perm_b32 v{b+i}, v{b+i}, v{vTag}, s{sSel+i}")
def check4(bad, b, t0, t1, first):
    I(f"v_perm_b32 v{t0}, v{b+1}, v{b}, s{sSelA}")
    I(f"v_perm_b32 v{t1}, v{b+3}, v{b+2}, s{sSelB}")
    if first:
        I(f"v_bitop3_b32 v{bad}, v{t0}, v{t1}, v{vTag} bitop3:0x96")
    else:
        I(f"v_bitop3_b32 v{t0}, v{t0}, v{t1}, v{vTag} bitop3:0x96")
        I(f"v_or_b32 v{bad}, v{bad}, v{t0}")

def round_tag16(b, t):
    I(f"v_cvt_pk_bf16_f32 v{t}, v{b}, v{b+1}")
    I(f"v_cvt_pk_bf16_f32 v{t+1}, v{b+2}, v{b+3}")
    I(f"v_perm_b32 v{b}, v{t}, v{vTag}, s{sSelLL}")
    I(f"v_perm_b32 v{b+1}, v{t}, v{vTag}, s{sSelHi}")
    I(f"v_perm_b32 v{b+2}, v{t+1}, v{vTag}, s{sSelLL}")
    I(f"v_perm_b32 v{b+3}, v{t+1}, v{vTag}, s{sSelHi}")
def check16(bad, b, t0, first):
    I(f"v_perm_b32 v{t0}, v{b+1}, v{b}, s{sSelLL}")
    if first: I(f"v_xor_b32 v{bad}, v{t0}, v{vTag}")
    else: I(f"v_bitop3_b32 v{bad}, v{bad}, v{t0}, v{vTag} bitop3:0xf6")

def spin_loop(body, first_done=False):
    lab = A.newlabel("Lspin"); done = A.newlabel("Ldone")
    saved_vm, saved_lg = list(A.vm), list(A.lg)
    if first_done:
        I(f"s_cbranch_vccz {done}")
    I(f"s_mov_b32 s{sCnt}, 0")
    A.fence(4)
    A.label(lab)
    body()
    I(f"s_cbranch_vccz {done}")
    I(f"s_add_u32 s{sCnt}, s{sCnt}, 1")
    I(f"s_cmp_lt_u32 s{sCnt}, {SPIN}")
    I(f"s_cbranch_scc1 {lab}")
    A.label(done)
    if first_done:
        A.vm, A.lg = saved_vm, saved_lg
    A.fence(2)

def poll_flags(vaddr, vtmp):
    def body():
        I(f"buffer_load_dword v{vtmp}, v{vaddr}, {S(SWS)}, 0 offen sc1")
        I("s_waitcnt vmcnt(0)"); A.vm = []
        I(f"v_cmp_ne_u32 vcc, v{vtmp}, v{vTag}")
    spin_loop(body)

vLane0 = 23
def poll_issue(vaddr, vtmp):
    return I(f"buffer_load_dword v{vtmp}, v{vaddr}, {S(SWS)}, 0 offen sc1")
def poll_finish(vaddr, vtmp, pid):
    wait_vm(pid)
    I(f"v_cmp_ne_u32 vcc, v{vtmp}, v{vTag}")
    def body():
        I(f"buffer_load_dword v{vtmp}, v{vaddr}, {S(SWS)}, 0 offen sc1")
        I("s_waitcnt vmcnt(0)"); A.vm = []
        I(f"v_cmp_ne_u32 vcc, v{vtmp}, v{vTag}")
    spin_loop(body, first_done=True)

def set_flag(soff_reg, last):
    wait_vm(last)
    I("s_barrier")
    I(f"buffer_store_dword v{vTag}, v{vLane0}, {S(SWS)}, s{soff_reg} offen sc1")

def xlane4(vals, op, mid=None):
    a, b, c, d = vals
    I(f"v_permlane32_swap_b32 v{a}, v{b}")
    I(f"v_permlane32_swap_b32 v{c}, v{d}")
    I(f"{op} v{a}, v{a}, v{b}")
    I(f"{op} v{c}, v{c}, v{d}")
    I(f"v_permlane16_swap_b32 v{a}, v{c}")
    I(f"{op} v{a}, v{a}, v{c}")
    if mid: mid(a)
    I(f"v_mov_b32 v{c}, v{a}")
    I(f"v_permlane16_swap_b32 v{a}, v{c}")
    I(f"v_mov_b32 v{b}, v{a}")
    I(f"v_mov_b32 v{d}, v{c}")
    I(f"v_permlane32_swap_b32 v{a}, v{b}")
    I(f"v_permlane32_swap_b32 v{c}, v{d}")

def xlane4x2(v1, op1, mid1, v2, op2, mid2):
    r1 = rec(xlane4, v1, op1, mid1); r2 = rec(xlane4, v2, op2, mid2)
    for (o1, _), (o2, _) in zip(r1.ops, r2.ops):
        I(o1[1]); I(o2[1])

def dbg_dump(regs, slot):
    I(f"v_lshlrev_b32 v6, 4, v{vTid}")
    for k, r in enumerate(regs):
        I(f"s_lshl_b32 s{sT0}, s2, 12")
        I(f"s_add_u32 s{sT0}, s{sT0}, {WS_DBG + (slot + k) * 256 * 4096}")
        I(f"buffer_store_dwordx4 {r}, v6, {S(SWS)}, s{sT0} offen")
    wait_vm()

def bf_round4(b, t):
    I(f"v_cvt_pk_bf16_f32 v{t}, v{b}, v{b+1}")
    I(f"v_cvt_pk_bf16_f32 v{t+1}, v{b+2}, v{b+3}")
    I(f"v_lshlrev_b32 v{b}, 16, v{t}")
    I(f"v_and_b32 v{b+1}, s{sHi}, v{t}")
    I(f"v_lshlrev_b32 v{b+2}, 16, v{t+1}")
    I(f"v_and_b32 v{b+3}, s{sHi}, v{t+1}")

SRDS = [(SC, 64, 1024), (SWMOD, 72, 512 * 3072 * 2), (SX, 0, 2048 * 512 * 2), (SWS, 96, WS_SIZE), (SWQKV, 8, 512 * 1536 * 2),
        (SWPHI, 16, 32 * 512), (SWO, 24, 512 * 512 * 2), (SWG, 40, 512 * 1376 * 2), (SWU, 48, 512 * 1376 * 2),
        (SWD, 56, 1376 * 512 * 2), (SOUT, 80, 2048 * 512 * 2)]
def prologue():
    I("s_cmp_ge_u32 s2, 256")
    I("s_cbranch_scc1 L_end")
    for b, off, _ in SRDS:
        I(f"s_load_dwordx2 s[{b}:{b+1}], s[0:1], {off}")
    I("s_getpc_b64 s[100:101]")
    A.raw("L_pc:")
    I(f"s_lshr_b32 s{sJ}, s2, 3")
    I(f"s_and_b32 s{sT0}, s{sJ}, 15")
    I(f"s_lshl_b32 s{sT0}, s{sT0}, 12")
    I(f"v_lshlrev_b32 v6, 4, v0")
    I(f"v_add_u32 v6, s{sT0}, v6")
    I(f"v_min_u32 v6, L_code_end-L_pc-16, v6")
    I(f"global_load_dwordx4 v[60:63], v6, s[100:101]")
    I(f"v_and_b32 v{vL}, 63, v0")
    I(f"v_lshrrev_b32 v6, 6, v0")
    I(f"v_lshrrev_b32 v{vG}, 4, v{vL}")
    I(f"v_and_b32 v{vT}, 15, v0")
    I(f"v_readfirstlane_b32 s{sW}, v6")
    I(f"v_lshlrev_b32 v{vL16}, 4, v{vL}")
    I(f"s_and_b32 s3, s2, 7")
    for b, _, n in SRDS:
        I(f"s_mov_b32 s{b+2}, {n}")
        I(f"s_mov_b32 s{b+3}, 0x20000")
    I(f"s_sub_u32 s{sT0}, s{sJ}, 24")
    I(f"s_cmp_ge_u32 s{sJ}, 24")
    I(f"s_cselect_b32 s{sT0}, s{sT0}, s{sJ}")
    I(f"s_lshr_b32 s{sT1}, s{sT0}, 2")
    I(f"s_lshl_b32 s{sT1}, s{sT1}, 3")
    I(f"s_add_u32 s{sT1}, s{sT1}, s3")
    I(f"s_lshl_b32 s{sT1}, s{sT1}, 2")
    I(f"s_and_b32 s{sT0}, s{sT0}, 3")
    I(f"s_add_u32 s{sT3}, s{sT1}, s{sT0}")
    I(f"v_lshrrev_b32 v6, 1, v0")
    I(f"v_and_b32 v6, 31, v6")
    I(f"s_lshl_b32 s{sT0}, s{sW}, 7")
    I(f"v_add_u32 v6, s{sT0}, v6")
    I(f"v_lshlrev_b32 v10, 1, v6")
    I(f"v_mul_u32_u24 v11, 6144, v6")
    I(f"v_and_b32 v9, 1, v0")
    I(f"v_lshl_add_u32 v11, v9, 4, v11")
    I(f"s_lshl_b32 s{sB0}, s{sT3}, 5")
    I(f"s_lshr_b32 s{sT0}, s3, 1")
    I(f"s_lshr_b32 s{sT2}, s{sJ}, 2")
    I(f"s_lshl_b32 s{sRbB}, s{sT0}, 3")
    I(f"s_add_u32 s{sRbB}, s{sRbB}, s{sT2}")
    I(f"s_and_b32 s{sP0}, s{sT2}, 3")
    for u in range(4):
        I(f"s_add_u32 s{sT0}, s{sP0}, {u}")
        I(f"s_and_b32 s{sT0}, s{sT0}, 3")
        I(f"s_lshl_b32 s{sK+u}, s{sT0}, 8")
    I(f"s_lshl_b32 s{sT0}, s{sRbB}, 6")
    I(f"s_lshl_b32 s{sT1}, s{sW}, 4")
    I(f"s_add_u32 s{sT0}, s{sT0}, s{sT1}")
    for i in range(4):
        I(f"s_add_u32 s{sT2}, s{sJ}, {i}")
        I(f"s_and_b32 s{sT2}, s{sT2}, 3")
        I(f"s_lshl_b32 s{sT2}, s{sT2}, 2")
        I(f"v_add_u32 v{vRow+i}, s{sT2}, v{vG}")
        I(f"v_add_u32 v{76+i}, s{sT0}, v{vRow+i}")
        I(f"v_lshlrev_b32 v{76+i}, 10, v{76+i}")
        I(f"v_lshl_add_u32 v{76+i}, v{vT}, 4, v{76+i}")
    I("s_waitcnt lgkmcnt(0)")
    ids = []
    for i in range(4):
        ids.append(I(f"buffer_load_ushort v{48+i}, v10, {S(SC)}, 0 offen offset:{64*i}"))
    for i in range(4):
        I(f"s_add_u32 s{sT1}, s{sB0}, {i*32*6144}")
        ids.append(I(f"buffer_load_dwordx4 {vr(32+4*i,4)}, v11, {S(SWMOD)}, s{sT1} offen"))
    I(f"s_load_dword s{sTag}, s[{SWS}:{SWS+1}], {WS_EPOCH}")
    return ids

def ids_rest():
    I(f"s_and_b32 s{sT1}, s3, 1")
    I(f"s_and_b32 s{sT2}, s{sJ}, 3")
    I(f"s_lshl_b32 s{sCtB}, s{sT1}, 2")
    I(f"s_add_u32 s{sCtB}, s{sCtB}, s{sT2}")
    I(f"s_and_b32 s{sT1}, s3, 3")
    I(f"s_lshl_b32 s{sMD}, s{sT1}, 2")
    I(f"s_add_u32 s{sMD}, s{sMD}, s{sT2}")
    I(f"s_lshr_b32 s{sT2}, s{sJ}, 2")
    I(f"s_lshr_b32 s{sT0}, s3, 2")
    I(f"s_lshl_b32 s{sGrpD}, s{sT0}, 3")
    I(f"s_add_u32 s{sGrpD}, s{sGrpD}, s{sT2}")
    I(f"s_lshr_b32 s{sT2}, s{sJ}, 4")
    I(f"s_lshl_b32 s{sGrpC}, s3, 1")
    I(f"s_add_u32 s{sGrpC}, s{sGrpC}, s{sT2}")
    I(f"s_and_b32 s{sMC}, s{sJ}, 15")
    I(f"s_and_b32 s{sCtC}, s{sJ}, 7")
    for u in range(4):
        I(f"s_mul_i32 s{sKW+u}, s{sK+u}, {128*3072//256}")
        I(f"s_lshl_b32 s{sKM+u}, s{sK+u}, 1")
    I(f"s_lshl_b32 s{sW4096}, s{sW}, 12")
def tlb_touch():
    I(f"v_and_b32 v10, 7, v{vL}")
    I(f"v_lshlrev_b32 v10, 21, v10")
    I(f"buffer_load_dword a255, v10, {S(SWS)}, 0 offen offset:64")
    I(f"v_and_b32 v10, 1, v{vL}")
    I(f"v_lshlrev_b32 v10, 20, v10")
    for b in (SWO, SWG, SWU, SWD, SOUT):
        I(f"buffer_load_dword a255, v10, {S(b)}, 0 offen")

def consts():
    for i in range(4):
        I(f"s_mov_b32 s{sSel+i}, {0x07060500 | i:#x}")
    I(f"s_mov_b32 s{sSelA}, 0x0c0c0400")
    I(f"s_mov_b32 s{sSelB}, 0x04000c0c")
    I(f"s_mov_b32 s{sL}, 0x3fb8aa3b")
    I(f"s_mov_b32 s{sL2}, 0x3fb8aa3b")
    I(f"s_mov_b32 s{sNL}, 0xbfb8aa3b")
    I(f"s_mov_b32 s{sNL2}, 0xbfb8aa3b")
    I(f"s_mov_b32 s{sHi}, 0xffff0000")
    I(f"s_mov_b32 s{sSelHi}, 0x07060302")
    I(f"s_mov_b32 s{sSelLL}, 0x05040100")
    I(f"v_cmp_eq_u32 vcc, 0, v{vTid}")
    I(f"v_mov_b32 v{vLane0}, {OOB}")
    I(f"v_cndmask_b32 v{vLane0}, v{vLane0}, 0, vcc")

XH = 64
RAW = 192
vRow = 16
def x_issue():
    ids = {}
    for i in range(4):
        for u in range(4):
            ids[(i, u)] = I(f"buffer_load_dwordx4 {vr(RAW + (i*4+u)*4, 4)}, v{76+i}, {S(SX)}, s{sK+u} offen")
            pad(50)
    tlb_touch()
    return ids

def phaseA_compute(ids):
    I(f"v_and_b32 v6, 1, v{vL}")
    I(f"v_lshlrev_b32 v6, 5, v6")
    I(f"v_lshl_add_u32 v6, v{vG}, 3, v6")
    I(f"s_lshl_b32 s{sT0}, s{sW}, 6")
    I(f"s_add_u32 s{sT0}, s{sT0}, {L_MISC}")
    I(f"v_add_u32 v6, s{sT0}, v6")
    I(f"v_lshlrev_b32 v7, 3, v{vTid}")
    I(f"v_add_u32 v7, {L_MISC + 1024}, v7")
    I(f"v_and_b32 v8, 14, v{vL}")
    I(f"v_cmp_eq_u32 vcc, 0, v8")
    I(f"v_cndmask_b32 v6, v7, v6, vcc")
    I(f"v_and_b32 v7, 3, v{vL}")
    wait_vm(ids[3])
    for i in range(4): I(f"v_lshlrev_b32 v{48+i}, 16, v{48+i}")
    for i in range(4): I(f"v_mul_f32 v{52+i}, s{sNL}, v{48+i}")
    for i in range(4): I(f"v_min_f32 v{52+i}, 0x42f00000, v{52+i}")
    for i in range(4): I(f"v_exp_f32 v{52+i}, v{52+i}")
    for i in range(4): I(f"v_add_f32 v{52+i}, 1.0, v{52+i}")
    for i in range(4): I(f"v_rcp_f32 v{56+i}, v{52+i}")
    for i in range(4): I(f"v_mul_f32 v{72+i}, v{48+i}, v{56+i}")
    for i in range(4): I(f"v_fma_f32 v{48+i}, -v{72+i}, v{52+i}, v{48+i}")
    for i in range(4): I(f"v_fma_f32 v{48+i}, v{48+i}, v{56+i}, v{72+i}")
    bf_round4(48, 52)
    AC = 64
    for i in range(4):
        wait_vm(ids[4 + i])
        for d in range(4):
            I(f"v_lshlrev_b32 v52, 16, v{32+4*i+d}")
            I(f"v_and_b32 v53, s{sHi}, v{32+4*i+d}")
            if i == 0:
                I(f"v_mul_f32 v{AC+2*d}, v{48+i}, v52")
                I(f"v_mul_f32 v{AC+1+2*d}, v{48+i}, v53")
            else:
                I(f"v_fmac_f32 v{AC+2*d}, v{48+i}, v52")
                I(f"v_fmac_f32 v{AC+1+2*d}, v{48+i}, v53")
    for e in range(4): I(f"v_permlane32_swap_b32 v{AC+e}, v{AC+4+e}")
    for e in range(4): I(f"v_add_f32 v{AC+e}, v{AC+e}, v{AC+4+e}")
    for e in range(2): I(f"v_permlane16_swap_b32 v{AC+e}, v{AC+2+e}")
    for e in range(2): I(f"v_add_f32 v{AC+e}, v{AC+e}, v{AC+2+e}")
    for r in (8, 4, 2):
        for e in range(2):
            I(f"v_add_f32_dpp v{AC+e}, v{AC+e}, v{AC+e} row_ror:{r} row_mask:0xf bank_mask:0xf")
    I(f"ds_write_b64 v6, {vr(AC,2)}")
    I(f"v_lshlrev_b32 v7, 4, v7")
    I(f"v_add_u32 v6, {L_MISC}, v7")
    I("s_waitcnt lgkmcnt(0)"); A.lg = []
    I("s_barrier")
    for w in range(4):
        I(f"ds_read_b128 {vr(32+4*w,4)}, v6 offset:{64*w}")
    I(f"s_add_u32 s{sTag}, s{sTag}, 0x9e3779b1")
    I(f"v_mov_b32 v{vTag}, s{sTag}")
    I(f"s_lshr_b32 s{sT0}, s{sT3}, 5")
    I(f"s_cmp_eq_u32 s{sT0}, 1")
    I(f"s_cselect_b32 s{sT1}, 1.0, 0")
    I(f"s_cmp_eq_u32 s{sT0}, 4")
    I(f"s_cselect_b32 s{sT1}, 1.0, s{sT1}")
    I(f"v_cmp_gt_u32 vcc, 4, v{vTid}")
    I(f"v_mov_b32 v6, {OOB}")
    I(f"v_cndmask_b32 v7, v6, v7, vcc")
    I(f"s_lshl_b32 s{sT0}, s{sT3}, 6")
    I(f"s_add_u32 s{sT0}, s{sT0}, {WS_MODF}")
    wait_lg()
    for e in (0, 2):
        I(f"v_pk_add_f32 {vr(32+e,2)}, {vr(32+e,2)}, {vr(36+e,2)}")
        I(f"v_pk_add_f32 {vr(40+e,2)}, {vr(40+e,2)}, {vr(44+e,2)}")
    for e in (0, 2):
        I(f"v_pk_add_f32 {vr(32+e,2)}, {vr(32+e,2)}, {vr(40+e,2)}")
    bf_round4(32, 36)
    for e in range(4): I(f"v_add_f32 v{32+e}, s{sT1}, v{32+e}")
    round_tag16(32, 36)
    I(f"buffer_store_dwordx4 v[32:35], v7, {S(SWS)}, s{sT0} offen sc1")

def rows128_voff(vb, pitch, std, extra_s=None):
    r_ = rec(_rows128_voff, vb, pitch, std, extra_s)
    import re as _re
    for o, _ in r_.ops:
        I(_re.sub(r"\bv([6-9])\b", lambda m: f"v{TMPV[int(m.group(1)) - 6]}", o[1]))
TMPV = [6, 7, 8, 9]
def _rows128_voff(vb, pitch, std, extra_s=None):
    I(f"v_lshrrev_b32 v6, 3, v{vL}")
    I(f"v_bfe_u32 v7, v{vL}, 4, {1 if std else 2}")
    I(f"v_bfe_u32 v8, v{vL}, 1, 2")
    I(f"v_xor_b32 v8, v8, v7")
    I(f"v_and_b32 v9, 1, v{vL}")
    I(f"v_lshlrev_b32 v9, 4, v9")
    I(f"v_lshl_add_u32 v9, v8, 5, v9")
    I(f"v_mul_u32_u24 v6, {pitch}, v6")
    if extra_s is not None: I(f"v_add_u32 v6, s{extra_s}, v6")
    I(f"v_add_u32 v{vb}, v6, v9")
    if std:
        I(f"v_xor_b32 v9, 64, v9")
        I(f"v_add_u32 v{vb+1}, v6, v9")
        I(f"v_add_u32 v{vb+1}, {8*pitch - 1024}, v{vb+1}")
    else:
        I(f"v_add_u32 v{vb+1}, {8*pitch - 1024}, v{vb}")
    I(f"v_add_u32 v{vb+2}, {2*(8*pitch - 1024)}, v{vb}")
    I(f"v_add_u32 v{vb+3}, {2*(8*pitch - 1024)}, v{vb+1}")

def dma4(vb, srd_, m0_s, m0_imm, so_s, so_imm, flags=""):
    if E.t is not A and not hasattr(E.t, "first_dma"): E.t.first_dma = len(E.t.ops)
    I(f"s_add_u32 m0, s{m0_s}, {m0_imm}")
    I(f"s_add_u32 s{sB0}, s{so_s}, {so_imm}")
    for i in range(4):
        last = I(f"buffer_load_dwordx4 v{vb[i] if isinstance(vb, list) else vb+i}, {srd_}, s{sB0} offen offset:{i*1024}{flags} lds")
        pad(100)
    return last

vBG = 24
def KF(u, s): return (u * 4 + s) * 4
def VF(u, s): return 64 + (u * 4 + s) * 4
def QF(u, s): return 128 + (u * 4 + s) * 4
USLOT = [0, 96 * K, 48 * K, 96 * K]
def wq_addr():
    I(f"s_mul_i32 s{sT0}, s{sW}, {32*3072}")
    I(f"s_lshl_b32 s{sT1}, s{sCtB}, 7")
    I(f"s_add_u32 s{sT0}, s{sT0}, s{sT1}")
    rows128_voff(vBG, 3072, True, sT0)
    I(f"v_bfe_u32 v6, v{vL}, 2, 2")
    I(f"v_lshl_add_u32 v6, v{vG}, 3, v6")
    I(f"v_lshlrev_b32 v6, 7, v6")
    I(f"v_bfe_u32 v7, v{vL}, 3, 2")
    I(f"v_xor_b32 v7, s{sW}, v7")
    I(f"v_lshl_add_u32 v6, v7, 5, v6")
    I(f"v_and_b32 v7, 3, v{vL}")
    I(f"v_lshl_add_u32 v28, v7, 3, v6")
    I(f"v_add_u32 v29, {48*K}, v28")
    I(f"v_add_u32 v30, {96*K}, v28")
def wq_dma(u, subs=(0, 1, 2)):
    for sub in subs:
        sg = (1, 2, 0)[sub]
        last = dma4(vBG, S(SWQKV), sW4096, USLOT[u] + sub * 16 * K, sKW + u, sg * 1024)
    return last
def wq_tr(u):
    base = 28 + USLOT[u] // (48 * K)
    for s in range(4):
        for sub in range(3):
            f = (KF, VF, QF)[sub](u, s)
            I(f"ds_read_b64_tr_b16 {ar(f,2)}, v{base} offset:{sub*16*K + s*4096}")
            I(f"ds_read_b64_tr_b16 {ar(f+2,2)}, v{base} offset:{sub*16*K + s*4096 + 512}")

def ln_one(xids, i):
    if True:
        wait_vm(xids[(i, 3)])
        xb = XH + i * 32
        for q in range(16):
            I(f"v_lshlrev_b32 v{xb+2*q}, 16, v{RAW+i*16+q}")
            I(f"v_and_b32 v{xb+2*q+1}, s{sHi}, v{RAW+i*16+q}")
        I(f"v_pk_add_f32 v[32:33], {vr(xb,2)}, {vr(xb+2,2)}")
        I(f"v_pk_add_f32 v[34:35], {vr(xb+4,2)}, {vr(xb+6,2)}")
        for q in range(4, 16, 2):
            I(f"v_pk_add_f32 v[32:33], v[32:33], {vr(xb+2*q,2)}")
            I(f"v_pk_add_f32 v[34:35], v[34:35], {vr(xb+2*q+2,2)}")
        I("v_pk_add_f32 v[32:33], v[32:33], v[34:35]")
        I("v_add_f32 v32, v32, v33")
        for r in (8, 4, 2, 1):
            I(f"v_add_f32_dpp v32, v32, v32 row_ror:{r} row_mask:0xf bank_mask:0xf")
        I("v_mul_f32 v32, 0xbb000000, v32")
        for q in range(16):
            I(f"v_pk_add_f32 {vr(xb+2*q,2)}, {vr(xb+2*q,2)}, v[32:33] op_sel_hi:[1,0]")
        I(f"v_pk_mul_f32 v[34:35], {vr(xb,2)}, {vr(xb,2)}")
        I(f"v_pk_mul_f32 v[36:37], {vr(xb+2,2)}, {vr(xb+2,2)}")
        for q in range(2, 16, 2):
            I(f"v_pk_fma_f32 v[34:35], {vr(xb+2*q,2)}, {vr(xb+2*q,2)}, v[34:35]")
            I(f"v_pk_fma_f32 v[36:37], {vr(xb+2*q+2,2)}, {vr(xb+2*q+2,2)}, v[36:37]")
        I("v_pk_add_f32 v[34:35], v[34:35], v[36:37]")
        I("v_add_f32 v34, v34, v35")
        for r in (8, 4, 2, 1):
            I(f"v_add_f32_dpp v34, v34, v34 row_ror:{r} row_mask:0xf bank_mask:0xf")
        I("v_mov_b32 v35, 0x3727c5ac")
        I("v_fmac_f32 v35, 0x3b000000, v34")
        I("v_rsq_f32 v34, v35")
        for q in range(16):
            I(f"v_pk_mul_f32 {vr(xb+2*q,2)}, {vr(xb+2*q,2)}, v[34:35] op_sel_hi:[1,0]")

def layernorm(xids):
    import re as _re
    for p in (0, 2):
        ra = rec(ln_one, xids, p); rb = rec(ln_one, xids, p + 1)
        def shift(t):
            t = _re.sub(r"v\[(3[2-7]):(3[2-7])\]", lambda m: f"v[{int(m.group(1))+22}:{int(m.group(2))+22}]", t)
            return _re.sub(r"\bv(3[2-7])\b", lambda m: f"v{int(m.group(1))+22}", t)
        wait_vm(xids[(p + 1, 3)])
        for (a, _), (b, _) in zip(ra.ops, rb.ops):
            if a[0] != "I": continue
            I(a[1]); I(shift(b[1]))

def gm_loads(sets, G0):
    out = None
    for k, n in enumerate(sets):
        I(f"s_mov_b32 s{sB2}, {WS_MODF + n*4096}")
        out = I(f"buffer_load_dwordx4 {vr(G0+4*k,4)}, v11, {S(SWS)}, s{sB2} offen sc1")
    return out
def gm_issue(sets, G0):
    I(f"v_lshlrev_b32 v11, 4, v{vTid}")
    return gm_loads(sets, G0)
def gm_finish(sets, G0, last):
    def checks():
        for k in range(len(sets)):
            check16(8, G0 + 4 * k, 9, k == 0)
            check16(8, G0 + 4 * k + 2, 9, False)
        I("v_cmp_ne_u32 vcc, 0, v8")
    wait_vm(last)
    checks()
    def body():
        gm_loads(sets, G0); I("s_waitcnt vmcnt(0)"); A.vm = []; checks()
    spin_loop(body, first_done=True)
    if sets == [0]:
        I(f"v_lshrrev_b32 v6, 5, v{vTid}")
        I(f"v_lshlrev_b32 v6, 9, v6")
        I(f"v_and_b32 v8, 1, v{vTid}")
        I(f"v_lshl_add_u32 v6, v8, 8, v6")
        I(f"v_bfe_u32 v8, v{vTid}, 1, 4")
        I(f"v_lshl_add_u32 v6, v8, 4, v6")
        I(f"v_add_u32 v6, {L_MODV}, v6")
    else:
        I(f"v_add_u32 v6, {L_MODV}, v11")
    for k, n in enumerate(sets):
        for e in range(4):
            I(f"v_and_b32 v{G0+4*k+e}, s{sHi}, v{G0+4*k+e}")
        I(f"ds_write_b128 v6, {vr(G0+4*k,4)} offset:{n*4096}")
    if sets == [1, 2]:
        I(f"v_cmp_gt_u32 vcc, 128, v{vTid}")
        for e in range(4):
            I(f"v_cndmask_b32 v{G0+e}, v{G0+e}, v{G0+4+e}, vcc")
        I(f"v_perm_b32 v{G0+4}, v{G0+1}, v{G0}, s{sSelHi}")
        I(f"v_perm_b32 v{G0+5}, v{G0+3}, v{G0+2}, s{sSelHi}")
        I(f"v_lshrrev_b32 v6, 3, v{vTid}")
        I(f"v_lshlrev_b32 v6, 6, v6")
        I(f"v_and_b32 v8, 3, v{vTid}")
        I(f"v_lshl_add_u32 v6, v8, 4, v6")
        I(f"v_bfe_u32 v8, v{vTid}, 2, 1")
        I(f"v_lshl_add_u32 v6, v8, 3, v6")
        I(f"v_add_u32 v6, {L_UV}, v6")
        I(f"ds_write_b64 v6, {vr(G0+4,2)}")

def h_addr():
    for i in range(4):
        I(f"v_xor_b32 v6, v{vT}, v{vRow+i}")
        I(f"v_lshlrev_b32 v6, 4, v6")
        I(f"v_lshl_add_u32 v6, v{vRow+i}, 8, v6")
        I(f"v_add_u32 v{vRow+i}, s{sW4096}, v6")
    I(f"v_lshlrev_b32 v20, 4, v{vT}")
    I(f"v_add_u32 v20, {L_MODV}, v20")
    for s in range(4):
        I(f"v_add_u32 v6, {4*s}, v{vG}")
        I(f"v_xor_b32 v6, v6, v{vT}")
        I(f"v_lshlrev_b32 v6, 4, v6")
        I(f"v_lshl_add_u32 v{12+s}, v{vT}, 8, v6")

def make_h_rd(u, mb):
    I(f"v_add_u32 v6, s{sKM+u}, v20")
    I(f"ds_read_b128 {vr(mb,4)}, v6 offset:2048")
    I(f"ds_read_b128 {vr(mb+4,4)}, v6 offset:2304")
    I(f"ds_read_b128 {vr(mb+8,4)}, v6")
    return I(f"ds_read_b128 {vr(mb+12,4)}, v6 offset:256")
def make_h_do(u, mb, pk, x):
    wait_lg(x)
    for i in range(4):
        b = XH + (i * 4 + u) * 8
        if pk:
            for e in range(0, 8, 2):
                I(f"v_pk_fma_f32 {vr(b+e,2)}, {vr(b+e,2)}, {vr(mb+e,2)}, {vr(mb+8+e,2)}")
        else:
            for e in range(8):
                I(f"v_fma_f32 v{b+e}, v{b+e}, v{mb+e}, v{mb+8+e}")
        for e in range(4):
            I(f"v_cvt_pk_bf16_f32 v{b+e}, v{b+2*e}, v{b+2*e+1}")
        I(f"ds_write_b128 v{vRow+i}, {vr(b,4)} offset:{u*16*K}")
def make_h_first():
    xs = [make_h_rd(u, 192 + 16 * u) for u in range(4)]
    pad(100)
    for u in range(3): make_h_do(u, 192 + 16 * u, True, xs[u])

ACC = 192
def accK(rt): return ACC + rt * 4
def accV(rt): return ACC + 16 + rt * 4
def accQ(rt): return ACC + 32 + rt * 4
def a_rd(k, rt):
    u, s = k >> 2, k & 3
    b = 32 + (k % 3) * 16 + 4 * rt
    return I(f"ds_read_b128 {vr(b,4)}, v{12+s} offset:{u*16*K + rt*4096}")

def gemm_kv_chunk(u, cur):
    for s in range(4):
        k = 4 * u + s
        nxt = []
        for rt in range(4):
            if s < 3: nxt.append(a_rd(k + 1, rt))
            wait_lg(cur[rt])
            h = vr(32 + (k & 1) * 16 + 4 * rt, 4)
            I(f"v_mfma_f32_16x16x32_bf16 {vr(accK(rt),4)}, {ar(KF(u,s),4)}, {h}, {vr(accK(rt),4) if k else 0}")
            I(f"v_mfma_f32_16x16x32_bf16 {vr(accV(rt),4)}, {h}, {ar(VF(u,s),4)}, {vr(accV(rt),4) if k else 0}")
        cur = nxt

def gemm_q():
    cur = [a_rd(0, rt) for rt in range(4)]
    for k in range(16):
        nxt = []
        for rt in range(4):
            if k < 15: nxt.append(a_rd(k + 1, rt))
            if rt % 2 == 0: wait_lg(cur[rt + 1])
            h = vr(32 + (k & 1) * 16 + 4 * rt, 4)
            I(f"v_mfma_f32_16x16x32_bf16 {vr(accQ(rt),4)}, {ar(QF(k>>2,k&3),4)}, {h}, {vr(accQ(rt),4) if k else 0}")
        cur = nxt

APHI = 136
def wphi_issue():
    I(f"s_lshl_b32 s{sHead}, s{sCtB}, 2")
    I(f"s_add_u32 s{sHead}, s{sHead}, s{sW}")
    I(f"s_lshl_b32 s{sT0}, s{sHead}, 9")
    I(f"v_bfe_u32 v6, v{vL}, 3, 2")
    I(f"v_and_b32 v7, 3, v{vL}")
    I(f"v_lshl_add_u32 v6, v6, 2, v7")
    I(f"v_lshlrev_b32 v6, 1, v6")
    I(f"v_lshrrev_b32 v7, 5, v{vL}")
    I(f"v_lshl_add_u32 v6, v7, 8, v6")
    for j in range(8):
        last = I(f"buffer_load_ushort v{44+j}, v6, {S(SWPHI)}, s{sT0} offen offset:{32*j}")
    return last
def wphi_pack():
    I(f"v_bfe_u32 v6, v{vL}, 2, 1")
    I(f"v_mul_u32_u24 v6, 0x8000, v6")
    I(f"v_lshl_or_b32 v6, v6, 16, v6")
    for e in range(4):
        I(f"v_lshl_or_b32 v{44+e}, v{45+2*e}, 16, v{44+2*e}")
    for e in range(4):
        I(f"v_xor_b32 v{APHI+e}, v6, v{44+e}")

def softmax(acc, OUT, fill=None):
    P = [64, 80]; XB = [96, 100]; M = [104, 112]
    for p in range(2):
        for h in range(2):
            a = acc(2 * p + h)
            I(f"v_cvt_pk_bf16_f32 v{XB[p]+2*h}, v{a}, v{a+1}")
            I(f"v_cvt_pk_bf16_f32 v{XB[p]+2*h+1}, v{a+2}, v{a+3}")
    for p in range(2):
        I(f"v_permlane16_swap_b32 v{XB[p]}, v{XB[p]+2}")
        I(f"v_permlane16_swap_b32 v{XB[p]+1}, v{XB[p]+3}")
    for p in range(2):
        I(f"v_mfma_f32_32x32x16_bf16 {vr(P[p],16)}, {vr(APHI,4)}, {vr(XB[p],4)}, 0")
    if fill: fill()
    def chain(p):
        b = P[p]; m = M[p]
        for q in range(5): I(f"v_max3_f32 v{m+q}, v{b+3*q}, v{b+3*q+1}, v{b+3*q+2}")
        I(f"v_max3_f32 v{m}, v{m}, v{m+1}, v{m+2}")
        I(f"v_max3_f32 v{m+3}, v{m+3}, v{m+4}, v{b+15}")
        I(f"v_max_f32 v{m}, v{m}, v{m+3}")
        I(f"v_mul_f32 v{m}, s{sNL}, v{m}")
        for q in range(0, 16, 2):
            I(f"v_pk_fma_f32 {vr(b+q,2)}, {vr(b+q,2)}, {sr(sL,2)}, {vr(m,2)} op_sel_hi:[1,1,0]")
        for q in range(16): I(f"v_exp_f32 v{b+q}, v{b+q}")
        for q in range(4): I(f"v_pk_add_f32 {vr(m+2*q,2)}, {vr(b+4*q,2)}, {vr(b+4*q+2,2)}")
        I(f"v_pk_add_f32 {vr(m,2)}, {vr(m,2)}, {vr(m+2,2)}")
        I(f"v_pk_add_f32 {vr(m+4,2)}, {vr(m+4,2)}, {vr(m+6,2)}")
        I(f"v_pk_add_f32 {vr(m,2)}, {vr(m,2)}, {vr(m+4,2)}")
        I(f"v_add_f32 v{m}, v{m}, v{m+1}")
        I(f"v_rcp_f32 v{m}, v{m}")
        for q in range(0, 16, 2):
            I(f"v_pk_mul_f32 {vr(b+q,2)}, {vr(b+q,2)}, {vr(m,2)} op_sel_hi:[1,0]")
        for q in range(8): I(f"v_cvt_pk_bf16_f32 v{OUT+8*p+q}, v{b+2*q}, v{b+2*q+1}")
    r0 = rec(chain, 0); r1 = rec(chain, 1)
    lag = 6
    o0 = [o[1] for o, _ in r0.ops]; o1 = [o[1] for o, _ in r1.ops]
    for k in range(len(o0) + lag):
        if k < len(o0): I(o0[k])
        if k >= lag: I(o1[k - lag])

L_PT = 128 * K
def epi_k_pre():
    ONES = 168
    I(f"s_add_u32 s{sT1}, s{sW4096}, {L_PT}")
    I(f"v_and_b32 v8, 31, v{vL}")
    I(f"v_lshlrev_b32 v8, 6, v8")
    I(f"v_lshrrev_b32 v9, 5, v{vL}")
    I(f"v_lshlrev_b32 v9, 1, v9")
    I(f"v_bfe_u32 v10, v{vL}, 1, 2")
    I(f"v_xor_b32 v9, v9, v10")
    I(f"v_lshl_add_u32 v8, v9, 4, v8")
    I(f"v_add_u32 v8, s{sT1}, v8")
    I(f"v_xor_b32 v143, 16, v8")
    I(f"v_lshrrev_b32 v9, 2, v{vL}")
    I(f"v_lshlrev_b32 v9, 6, v9")
    I(f"v_bfe_u32 v10, v{vL}, 1, 1")
    I(f"v_bfe_u32 v11, v{vL}, 3, 2")
    I(f"v_xor_b32 v10, v10, v11")
    I(f"v_lshl_add_u32 v9, v10, 4, v9")
    I(f"v_and_b32 v10, 1, v{vL}")
    I(f"v_lshl_add_u32 v9, v10, 3, v9")
    I(f"v_add_u32 v9, s{sT1}, v9")
    I(f"v_xor_b32 v10, 32, v9")
    for e in range(4): I(f"v_mov_b32 v{ONES+e}, 0x3f803f80")
def epi_k():
    PK = 144; VFR = 160; ONES = 168
    def fill():
        for kp in range(2):
            for hh in range(2):
                a = accV(2 * kp + hh)
                I(f"v_cvt_pk_bf16_f32 v{VFR+4*kp+2*hh}, v{a}, v{a+1}")
                I(f"v_cvt_pk_bf16_f32 v{VFR+4*kp+2*hh+1}, v{a+2}, v{a+3}")
    softmax(accK, PK, fill)
    for p in range(2):
        I(f"ds_write_b128 v8, {vr(PK+8*p,4)} offset:{p*2048}")
        I(f"ds_write_b128 v143, {vr(PK+8*p+4,4)} offset:{p*2048}")
    PT = 64
    for T in range(2):
        for kp in range(2):
            f = PT + (T * 2 + kp) * 4
            I(f"ds_read_b64_tr_b16 {vr(f,2)}, v{9+T} offset:{kp*2048}")
            x = I(f"ds_read_b64_tr_b16 {vr(f+2,2)}, v{9+T} offset:{kp*2048 + 1024}")
    I(f"s_lshl_b32 s{sT0}, s{sHead}, 5")
    I(f"s_add_u32 s{sT0}, s{sT0}, s{sRbB}")
    I(f"s_mul_i32 s{sT0}, s{sT0}, {KVREC}")
    I(f"s_add_u32 s{sT0}, s{sT0}, {WS_KVP}")
    I(f"v_lshlrev_b32 v8, 5, v{vG}")
    I(f"v_lshl_add_u32 v8, v{vT}, 4, v8")
    I(f"v_mov_b32 v9, {OOB}")
    I(f"v_cmp_gt_u32 vcc, 2, v{vT}")
    I(f"v_cndmask_b32 v8, v9, v8, vcc")
    I(f"v_cmp_eq_u32 vcc, 1, v{vT}")
    wait_lg(x)
    KV = 172; Z = 180
    for kp in range(2):
        for T in range(2):
            f = vr(PT + (T * 2 + kp) * 4, 4)
            I(f"v_mfma_f32_16x16x32_bf16 {vr(KV+4*T,4)}, {f}, {vr(VFR+4*kp,4)}, {vr(KV+4*T,4) if kp else 0}")
    for kp in range(2):
        for T in range(2):
            f = vr(PT + (T * 2 + kp) * 4, 4)
            I(f"v_mfma_f32_16x16x32_bf16 {vr(Z+4*T,4)}, {f}, {vr(ONES,4)}, {vr(Z+4*T,4) if kp else 0}")
    tag4(KV); tag4(KV + 4)
    I(f"buffer_store_dwordx4 {vr(KV,4)}, v{vL16}, {S(SWS)}, s{sT0} offen sc1")
    I(f"buffer_store_dwordx4 {vr(KV+4,4)}, v{vL16}, {S(SWS)}, s{sT0} offen offset:1024 sc1")
    for e in range(4):
        I(f"v_cndmask_b32 v{Z+e}, v{Z+e}, v{Z+4+e}, vcc")
    tag4(Z)
    I(f"buffer_store_dwordx4 {vr(Z,4)}, v8, {S(SWS)}, s{sT0} offen offset:2048 sc1")

def epi_q():
    PQ = 144
    def fill():
        I(f"s_lshl_b32 s{sT0}, s{sRbB}, 7")
        I(f"s_add_u32 s{sT0}, s{sT0}, s{sHead}")
        I(f"s_lshl_b32 s{sT0}, s{sT0}, 10")
        I(f"s_add_u32 s{sT0}, s{sT0}, {WS_PHIQ}")
        I(f"s_lshl_b32 s{sT1}, s{sRbB}, 3")
        I(f"s_add_u32 s{sT1}, s{sT1}, s{sCtB}")
        I(f"s_lshl_b32 s{sT1}, s{sT1}, 7")
        I(f"s_add_u32 s{sT1}, s{sT1}, {WS_FQ}")
        I(f"v_and_b32 v6, 1, v{vG}")
        I(f"v_lshlrev_b32 v6, 15, v6")
        I(f"v_lshrrev_b32 v7, 1, v{vG}")
        I(f"v_lshl_add_u32 v6, v7, 9, v6")
        I(f"v_lshl_add_u32 v6, v{vT}, 4, v6")
    softmax(accQ, PQ, fill)
    for p in range(2):
        I(f"buffer_store_dwordx4 {vr(PQ+8*p,4)}, v6, {S(SWS)}, s{sT0} offen sc1")
        last = I(f"buffer_store_dwordx4 {vr(PQ+8*p+4,4)}, v6, {S(SWS)}, s{sT0} offen offset:256 sc1")
        if p == 0: I(f"s_add_u32 s{sT0}, s{sT0}, 65536")
    return last

def gemm_kv(k0, k1, rds):
    for k in range(k0, k1):
        u, s = k >> 2, k & 3
        nxt = []
        for rt in range(4):
            if k + 2 < 16: nxt.append(a_rd(k + 2, rt))
            if rt == 0: wait_lg(rds[k][3])
            h = vr(32 + (k % 3) * 16 + 4 * rt, 4)
            I(f"v_mfma_f32_16x16x32_bf16 {vr(accK(rt),4)}, {ar(KF(u,s),4)}, {h}, {vr(accK(rt),4) if k else 0}")
            I(f"v_mfma_f32_16x16x32_bf16 {vr(accV(rt),4)}, {h}, {ar(VF(u,s),4)}, {vr(accV(rt),4) if k else 0}")
            I(f"v_mfma_f32_16x16x32_bf16 {vr(accQ(rt),4)}, {ar(QF(u,s),4)}, {h}, {vr(accQ(rt),4) if k else 0}")
        rds[k + 2] = nxt
    return rds

RR = 172
def kv_reduce_pre():
    I(f"s_and_b32 s{sT0}, s2, 7")
    I(f"s_lshl_b32 s{sT1}, s{sT0}, 4")
    I(f"s_add_u32 s{sT1}, s{sT1}, 2048")
    I(f"s_lshl_b32 s{sT0}, s{sT0}, 2")
    I(f"s_add_u32 s{sT0}, s{sT0}, s{sW}")
    I(f"s_lshl_b32 s{sT0}, s{sT0}, 6")
    I(f"v_and_b32 v128, 7, v{vL}")
    I(f"v_lshlrev_b32 v129, 4, v128")
    I(f"v_add_u32 v129, s{sT0}, v129")
    I(f"v_mov_b32 v130, s{sT1}")
    I(f"v_cmp_gt_u32 vcc, 4, v128")
    I(f"v_cndmask_b32 v129, v130, v129, vcc")
    I(f"v_lshrrev_b32 v130, 3, v{vL}")
    I(f"v_mul_u32_u24 v130, {KVREC}, v130")
    I(f"v_add_u32 v130, v130, v129")
    I(f"s_mul_i32 s{sP0}, s{sJ}, {32*KVREC}")
    I(f"s_add_u32 s{sP0}, s{sP0}, {WS_KVP}")
    I(f"s_mul_i32 s{sP1}, s{sJ}, {KVREC}")
    I(f"s_add_u32 s{sP1}, s{sP1}, {WS_KVF}")
    I(f"s_mov_b32 s{sP2}, 0xffffff00")
    I(f"v_cmp_gt_u32 vcc, 5, v{vL}")
    I(f"v_mov_b32 v128, {OOB}")
    I(f"v_cndmask_b32 v129, v128, v129, vcc")
def kv_reduce_loads():
    for n in range(4):
        I(f"s_add_u32 s{sT2}, s{sP0}, {n*8*KVREC}")
        last = I(f"buffer_load_dwordx4 {vr(RR+4*n,4)}, v130, {S(SWS)}, s{sT2} offen sc1")
    return last
def kv_reduce_finish(last):
    R = RR
    def checks():
        for n in range(4): check4(8, R + 4 * n, 9, 10, n == 0)
        I("v_cmp_ne_u32 vcc, 0, v8")
    wait_vm(last)
    checks()
    def body():
        kv_reduce_loads(); I("s_waitcnt vmcnt(0)"); A.vm = []; checks()
    spin_loop(body, first_done=True)
    for q in range(16):
        I(f"v_and_b32 v{R+q}, s{sP2}, v{R+q}")
    for st in (8, 4):
        for q in range(0, st, 2):
            I(f"v_pk_add_f32 {vr(R+q,2)}, {vr(R+q,2)}, {vr(R+st+q,2)}")
    for e in range(4):
        I(f"v_add_f32_dpp v{R+e}, v{R+e}, v{R+e} row_ror:8 row_mask:0xf bank_mask:0xf")
    for op in ("v_permlane16_swap_b32", "v_permlane32_swap_b32"):
        for e in range(4): I(f"v_mov_b32 v{R+4+e}, v{R+e}")
        for e in range(4): I(f"{op} v{R+e}, v{R+4+e}")
        for e in (0, 2): I(f"v_pk_add_f32 {vr(R+e,2)}, {vr(R+e,2)}, {vr(R+4+e,2)}")
    round_tag16(R, R + 4)
    I(f"buffer_store_dwordx4 {vr(R,4)}, v129, {S(SWS)}, s{sP1} offen sc1")

def pf_wo():
    I(f"s_lshl_b32 s{sB1}, s{sJ}, 14")
    I(f"s_add_u32 s{sB1}, s{sB1}, s{sW4096}")
    I(f"v_and_b32 v21, 31, v{vL}")
    I(f"v_lshlrev_b32 v21, 7, v21")
    I(f"buffer_load_dword a255, v21, {S(SWO)}, s{sB1} offen")
def pf_gu():
    I(f"s_cmp_ge_u32 s{sW}, 2")
    I(f"s_cselect_b32 s{SGU}, s{SWU}, s{SWG}")
    I(f"s_cselect_b32 s{SGU+1}, s{SWU+1}, s{SWG+1}")
    I(f"s_mov_b32 s{SGU+2}, {512*1376*2}")
    I(f"s_mov_b32 s{SGU+3}, 0x20000")
    I(f"s_lshl_b32 s{sB1}, s{sJ}, 1")
    I(f"s_and_b32 s{sB2}, s{sW}, 1")
    I(f"s_add_u32 s{sB1}, s{sB1}, s{sB2}")
    I(f"s_mul_i32 s{sB1}, s{sB1}, {8*2752}")
    I(f"s_and_b32 s{sB2}, s2, 3")
    I(f"s_mul_i32 s{sB2}, s{sB2}, {32*21846}")
    I(f"s_lshr_b32 s{sB2}, s{sB2}, 16")
    I(f"s_lshl_b32 s{sB2}, s{sB2}, 6")
    I(f"s_add_u32 s{sB1}, s{sB1}, s{sB2}")
    I(f"v_lshrrev_b32 v21, 3, v{vL}")
    I(f"v_mul_u32_u24 v21, 2752, v21")
    I(f"v_and_b32 v22, 7, v{vL}")
    I(f"v_mul_u32_u24 v22, 100, v22")
    I(f"v_add_u32 v21, v21, v22")
    I(f"buffer_load_dword a255, v21, {S(SGU)}, s{sB1} offen")
def pf_wd():
    I(f"s_mul_i32 s{sT2}, s2, {43*128}")
    I(f"s_mul_i32 s{sT3}, s{sW}, {11*128}")
    I(f"s_add_u32 s{sT2}, s{sT2}, s{sT3}")
    I(f"v_min_u32 v21, 10, v{vL}")
    I(f"v_lshlrev_b32 v21, 7, v21")
    I(f"buffer_load_dword a255, v21, {S(SWD)}, s{sT2} offen")

WOF = 192
L_WO = 64 * K
def wo_dma():
    for n in range(4): I(f"v_accvgpr_read_b32 v{vBG+n}, a{243+n}")
    I(f"s_lshl_b32 s{sB1}, s{sW}, 17")
    I(f"s_lshl_b32 s{sB2}, s{sCtC}, 7")
    I(f"s_add_u32 s{sB1}, s{sB1}, s{sB2}")
    I(f"s_lshl_b32 s{sB2}, s{sW}, 14")
    for s in range(4):
        last = dma4(vBG, S(SWO), sB2, L_WO + s * 4096, sB1, s * 32768)
    return last
def wo_tr_v():
    I(f"v_lshrrev_b32 v28, 2, v{vL}")
    I(f"v_lshlrev_b32 v28, 7, v28")
    I(f"v_bfe_u32 v29, v{vL}, 3, 2")
    I(f"s_and_b32 s{sB2}, s{sW}, 2")
    I(f"v_xor_b32 v29, s{sB2}, v29")
    I(f"v_lshl_add_u32 v28, v29, 5, v28")
    I(f"v_and_b32 v29, 3, v{vL}")
    I(f"v_lshl_add_u32 v28, v29, 3, v28")
    I(f"s_lshl_b32 s{sB2}, s{sW}, 14")
    I(f"s_add_u32 s{sB2}, s{sB2}, {L_WO}")
    I(f"v_add_u32 v28, s{sB2}, v28")
def wo_tr_pre():
    I("v_accvgpr_read_b32 v28, a247")
    for c in range(1, 4):
        I(f"v_xor_b32 v{28+c}, {c*32}, v28")
def wo_tr(last):
    wait_vm(last)
    for s in range(4):
        for c in range(4):
            f = WOF + (s * 4 + c) * 4
            I(f"ds_read_b64_tr_b16 {ar(f,2)}, v{28+c} offset:{s*4096}")
            I(f"ds_read_b64_tr_b16 {ar(f+2,2)}, v{28+c} offset:{s*4096+2048}")

def ren(fn, mp):
    import re as _re
    r_ = rec(fn)
    for o, _ in r_.ops:
        if o[0] == "I": I(_re.sub(r"\bv(\d+)\b", lambda m: f"v{mp.get(int(m.group(1)), int(m.group(1)))}", o[1]))
def early_setup():
    mp = {k: k + 76 for k in list(range(6, 12)) + list(range(24, 32))}
    mp.update({128: 90, 129: 91, 130: 92, 143: 93, 168: 94, 169: 94, 170: 94, 171: 94})
    ren(wgu_setup_v, mp)
    for n in range(3): I(f"v_accvgpr_write_b32 a{240+n}, v{100+n}")
    ren(lambda: rows128_voff(vBG, 1024, False), mp)
    for n in range(4): I(f"v_accvgpr_write_b32 a{243+n}, v{100+n}")
    ren(wo_tr_v, mp)
    I(f"v_accvgpr_write_b32 a247, v104")
    ren(epi_k_pre, mp)
    I(f"v_accvgpr_write_b32 a248, v84")
    I(f"v_accvgpr_write_b32 a249, v85")
    ren(kv_reduce_pre, mp)
    I(f"v_accvgpr_write_b32 a250, v91")
    I(f"v_accvgpr_write_b32 a251, v92")
def unpark_rest():
    I("v_accvgpr_read_b32 v8, a248")
    I("v_accvgpr_read_b32 v9, a249")
    I("v_accvgpr_read_b32 v129, a250")
    I("v_accvgpr_read_b32 v130, a251")
    I("v_xor_b32 v143, 16, v8")
    I("v_xor_b32 v10, 32, v9")
    for e in range(4): I(f"v_mov_b32 v{168+e}, 0x3f803f80")

def GF(c, ks): return (ks * 3 + c) * 4
GSLOT = [0, 64 * K, 0, 48 * K]
def wgu_setup_v():
    for n in range(3):
        I(f"v_add_u32 v27, {64*n}, v{vL}")
        I(f"v_mul_u32_u24 v28, 5462, v27")
        I(f"v_lshrrev_b32 v28, 16, v28")
        I(f"v_mul_u32_u24 v29, 12, v28")
        I(f"v_sub_u32 v29, v27, v29")
        I(f"v_bfe_u32 v30, v28, 2, 1")
        I(f"v_lshlrev_b32 v30, 1, v30")
        I(f"v_xor_b32 v29, v29, v30")
        I(f"v_mul_u32_u24 v28, 2752, v28")
        I(f"v_lshl_add_u32 v{vBG+n}, v29, 4, v28")
        if n: I(f"v_subrev_u32 v{vBG+n}, {n*1024}, v{vBG+n}")
def wgu_setup():
    I(f"s_lshl_b32 s{sB1}, s{sMD}, 3")
    I(f"s_mul_i32 s{sB1}, s{sB1}, 21846")
    I(f"s_lshr_b32 s{sB1}, s{sB1}, 16")
    I(f"s_lshl_b32 s{sFt0}, s{sB1}, 1")
    for n in range(3): I(f"v_accvgpr_read_b32 v{vBG+n}, a{240+n}")
    I(f"s_and_b32 s{sB1}, s{sW}, 1")
    I(f"s_mul_i32 s{sB1}, s{sB1}, {64*2752}")
    I(f"s_lshl_b32 s{sB2}, s{sFt0}, 5")
    I(f"s_add_u32 s{sB1}, s{sB1}, s{sB2}")
    for q in range(4):
        I(f"s_add_u32 s{sB2}, s{sGrpD}, {q}")
        I(f"s_and_b32 s{sB2}, s{sB2}, 3")
        I(f"s_mul_i32 s{sKW+q}, s{sB2}, {128*2752}")
        I(f"s_add_u32 s{sKW+q}, s{sKW+q}, s{sB1}")
        I(f"s_lshl_b32 s{sK+q}, s{sB2}, 12")
        I(f"s_lshl_b32 s{sKM+q}, s{sB2}, 9")
    I(f"s_mul_i32 s{sB1}, s{sW}, 12288")
def wgu_traddr():
    I(f"s_lshr_b32 s{sB2}, s{sW}, 1")
    I(f"s_mul_i32 s{sTz}, s{sB2}, 3")
    I(f"s_and_b32 s{sB2}, s{sW}, 1")
    I(f"s_lshl_b32 s{sTx}, s{sB2}, 1")
    I(f"s_add_u32 s{sTx}, s{sTx}, s{sTz}")
    I(f"s_add_u32 s{sTz}, s{sTz}, 1")
    I(f"v_lshrrev_b32 v27, 2, v{vL}")
    I(f"v_mul_u32_u24 v27, 192, v27")
    I(f"v_and_b32 v31, 3, v{vL}")
    I(f"v_lshl_add_u32 v27, v31, 3, v27")
    I(f"v_and_b32 v31, 1, v{vG}")
    I(f"v_xor_b32 v30, s{sTx}, v31")
    I(f"v_lshl_add_u32 v28, v30, 5, v27")
    I(f"v_add_u32 v29, 24576, v28")
    I(f"v_xor_b32 v30, s{sTz}, v31")
    I(f"v_lshl_add_u32 v30, v30, 5, v27")
    I(f"s_mul_i32 s{sB2}, s{sB2}, 24576")
    I(f"v_add_u32 v30, s{sB2}, v30")
def wgu_dma(q):
    for p in range(4):
        I(f"s_add_u32 m0, s{sB1}, {GSLOT[q] + p*3072}")
        I(f"s_add_u32 s{sB0}, s{sKW+q}, {p*16*2752}")
        for n in range(3):
            last = I(f"buffer_load_dwordx4 v{vBG+n}, {S(SGU)}, s{sB0} offen offset:{n*1024} lds")
            pad(100)
    return last
def wgu_tr(q):
    for c in range(3):
        if GSLOT[q]:
            I(f"v_add_u32 v31, {GSLOT[q]}, v{28+c}"); b = 31
        else: b = 28 + c
        for s in range(4):
            f = GF(c, q * 4 + s)
            I(f"ds_read_b64_tr_b16 {ar(f,2)}, v{b} offset:{s*6144}")
            I(f"ds_read_b64_tr_b16 {ar(f+2,2)}, v{b} offset:{s*6144+3072}")

def wgu_tr3():
    r_ = rec(lambda: (wgu_traddr(), wgu_tr(3)))
    import re as _re
    for o, _ in r_.ops:
        I(_re.sub(r"\bv(2[7-9]|3[01])\b", lambda m: f"v{int(m.group(1)) + 20}", o[1]))

RK = 192; KB = 32
def PHR(n, r4): return 64 + (n * 4 + r4) * 4
def CAC(k, r4): return 192 + (k * 4 + r4) * 4
def rt_offsets(stride):
    I(f"s_lshr_b32 s{sT0}, s{sMC}, 3")
    I(f"s_lshl_b32 s{sT0}, s{sT0}, 1")
    I(f"s_and_b32 s{sT2}, s{sW}, 1")
    I(f"s_add_u32 s{sT0}, s{sT0}, s{sT2}")
    I(f"s_mul_i32 s{sR}, s{sT0}, {stride}")
    I(f"s_xor_b32 s{sT0}, s{sT0}, 1")
    I(f"s_mul_i32 s{sR+1}, s{sT0}, {stride}")
    I(f"s_add_u32 s{sR+2}, s{sR}, {4*stride}")
    I(f"s_add_u32 s{sR+3}, s{sR+1}, {4*stride}")
def phiq_load():
    I(f"s_lshl_b32 s{sT0}, s{sGrpC}, 4")
    I(f"s_lshl_b32 s{sT1}, s{sW}, 1")
    I(f"s_add_u32 s{sT0}, s{sT0}, s{sT1}")
    I(f"v_and_b32 v20, 1, v{vL}")
    I(f"v_bfe_u32 v21, v{vL}, 1, 1")
    I(f"v_lshl_add_u32 v20, v21, 3, v20")
    I(f"v_add_u32 v20, s{sT0}, v20")
    I(f"v_lshlrev_b32 v20, 7, v20")
    I(f"v_add_u32 v20, {WS_FQ}, v20")
    rt_offsets(32768)
    I(f"s_lshl_b32 s{sT0}, s{sGrpC}, 18")
    I(f"s_lshl_b32 s{sT1}, s{sW}, 13")
    I(f"s_add_u32 s{sT0}, s{sT0}, s{sT1}")
    I(f"s_add_u32 s{sT0}, s{sT0}, {WS_PHIQ}")
    I(f"v_add_u32 v22, s{sT0}, v{vL16}")
    I(f"v_add_u32 v27, 4096, v22")
    return poll_issue(20, 21)
def phiq_loads(ids, h):
    for s_ in range(4):
        for rho in range(2):
            r4 = 2 * h + rho
            for n in (2 * s_, 2 * s_ + 1):
                ids[h * 8 + s_ * 2 + rho] = I(f"buffer_load_dwordx4 {vr(PHR(n,r4),4)}, v{22 if n < 4 else 27}, {S(SWS)}, s{sR+r4} offen offset:{(n&3)*1024} sc1")
                pad(40)
RZ = 32
def kv_addr():
    I(f"s_lshl_b32 s{sT1}, s{sW}, 3")
    I(f"s_mul_i32 s{sP1}, s{sT1}, {KVREC}")
    I(f"s_add_u32 s{sP1}, s{sP1}, {WS_KVF}")
    I(f"v_and_b32 v14, 3, v{vT}")
    I(f"v_mul_u32_u24 v14, {KVREC}, v14")
    I(f"v_and_b32 v15, 1, v{vG}")
    I(f"v_lshl_add_u32 v14, v15, 6, v14")
    I(f"v_lshrrev_b32 v15, 1, v{vG}")
    I(f"v_lshl_add_u32 v14, v15, 4, v14")
    I(f"v_lshlrev_b32 v15, 9, v{vG}")
    I(f"v_lshl_add_u32 v15, v{vT}, 4, v15")
def kv_loads():
    for n in range(8):
        I(f"s_add_u32 s{sT0}, s{sP1}, {n*KVREC}")
        I(f"buffer_load_dwordx4 {vr(RK+8*n,4)}, v15, {S(SWS)}, s{sT0} offen sc1")
        last = I(f"buffer_load_dwordx4 {vr(RK+8*n+4,4)}, v15, {S(SWS)}, s{sT0} offen offset:256 sc1")
        if n % 4 == 0:
            q = n // 4
            I(f"buffer_load_dwordx4 {vr(RZ+8*q,4)}, v14, {S(SWS)}, s{sT0} offen offset:2048 sc1")
            I(f"buffer_load_dwordx4 {vr(RZ+8*q+4,4)}, v14, {S(SWS)}, s{sT0} offen offset:2080 sc1")
    return last
def kv_finish(last):
    def checks():
        for k in range(16): check16(16, RK + 4 * k, 17 + (k & 1), k == 0)
        for k in range(4): check16(16, RZ + 4 * k, 17 + (k & 1), False)
        I("v_cmp_ne_u32 vcc, 0, v16")
    wait_vm(last)
    checks()
    def body():
        kv_loads(); I("s_waitcnt vmcnt(0)"); A.vm = []; checks()
    spin_loop(body, first_done=True)
def kv_pack():
    for k in range(8):
        I(f"v_perm_b32 v{8+k}, v{RZ+2*k+1}, v{RZ+2*k}, s{sSelHi}")
    for k in range(32):
        I(f"v_perm_b32 v{KB+k}, v{RK+2*k+1}, v{RK+2*k}, s{sSelHi}")

def half_send(acc, lbase, va):
    for d in (1, 2, 3):
        rho, pi = d & 1, d >> 1
        I(f"s_xor_b32 s{sT0}, s{sW}, {d}")
        I(f"s_mul_i32 s{sT0}, s{sT0}, 6144")
        I(f"s_add_u32 s{sT0}, s{sT0}, {lbase + (d-1)*2048}")
        I(f"v_add_u32 v{va}, s{sT0}, v{vL16}")
        for k in range(2):
            I(f"ds_write_b128 v{va}, {vr(acc(2*pi+k, rho),4)} offset:{k*1024}")
def half_recv(acc, lbase, va):
    I(f"s_mul_i32 s{sT0}, s{sW}, 6144")
    I(f"s_add_u32 s{sT0}, s{sT0}, {lbase}")
    I(f"v_add_u32 v{va}, s{sT0}, v{vL16}")
    for d in (1, 2, 3):
        rho, pi = d & 1, d >> 1
        for k in range(2):
            last = I(f"ds_read_b128 {vr(acc(2*pi+k, rho),4)}, v{va} offset:{(d-1)*2048 + k*1024}")
    return last
def half_sum(acc, O):
    for k in range(2):
        for e in (0, 2):
            I(f"v_pk_add_f32 {vr(O+4*k+e,2)}, {vr(acc(k,0)+e,2)}, {vr(acc(k,1)+e,2)}")
            I(f"v_pk_add_f32 {vr(acc(2+k,0)+e,2)}, {vr(acc(2+k,0)+e,2)}, {vr(acc(2+k,1)+e,2)}")
    for k in range(2):
        for e in (0, 2):
            I(f"v_pk_add_f32 {vr(O+4*k+e,2)}, {vr(O+4*k+e,2)}, {vr(acc(2+k,0)+e,2)}")

L_RED = 96 * K
X1K = 24
def c_setup():
    I(f"s_lshr_b32 s{sT0}, s{sMC}, 3")
    I(f"s_lshl_b32 s{sT0}, s{sT0}, 1")
    I(f"s_and_b32 s{sT1}, s{sW}, 1")
    I(f"s_add_u32 s{sT0}, s{sT0}, s{sT1}")
    I(f"s_lshl_b32 s{sT1}, s{sGrpC}, 3")
    I(f"s_add_u32 s{sP2}, s{sT0}, s{sT1}")
    I(f"s_lshl_b32 s{sT0}, s{sP2}, 4")
    I(f"v_add_u32 v20, s{sT0}, v{vT}")
    I(f"v_lshlrev_b32 v21, 10, v20")
    I(f"v_lshl_add_u32 v21, v{vG}, 3, v21")
    I(f"s_lshl_b32 s{sT0}, s{sCtC}, 1")
    I(f"s_lshr_b32 s{sT1}, s{sW}, 1")
    I(f"s_add_u32 s{sP3}, s{sT0}, s{sT1}")
    I(f"s_lshl_b32 s{sT0}, s{sP3}, 6")
    I(f"s_add_u32 s{sT1}, s{sT0}, 65536")
    for h in range(2):
        for k in range(2):
            last = I(f"buffer_load_dwordx2 {vr(24+4*h+2*k,2)}, v21, {S(SX)}, s{sT1 if h else sT0} offen offset:{32*k}")
    I(f"s_lshl_b32 s{sT0}, s{sP3}, 7")
    I(f"s_add_u32 s{sT0}, s{sT0}, {L_MODV}")
    I(f"v_lshlrev_b32 v22, 4, v{vG}")
    I(f"v_add_u32 v22, s{sT0}, v22")
    return last

def c_epi_rd(GA, CB):
    for k in range(2):
        I(f"ds_read_b128 {vr(GA+4*k,4)}, v22 offset:{4096 + 64*k}")
        x = I(f"ds_read_b128 {vr(CB+4*k,4)}, v22 offset:{8192 + 64*k}")
    return x
def c_epi(h, acc, O, GA, CB, XF, xid):
    XR = 24 + 4 * h
    wait_vm(xid)
    for q in range(4):
        I(f"v_lshlrev_b32 v{XF+2*q}, 16, v{XR+q}")
        I(f"v_and_b32 v{XF+2*q+1}, s{sHi}, v{XR+q}")
    wait_lg()
    half_sum(acc, O)
    for q in range(0, 8, 2):
        I(f"v_pk_fma_f32 {vr(O+q,2)}, {vr(O+q,2)}, {vr(GA+q,2)}, {vr(XF+q,2)}")
    for q in range(4):
        I(f"v_cvt_pk_bf16_f32 v{XR+q}, v{O+2*q}, v{O+2*q+1}")
    I(f"s_lshl_b32 s{sT0}, s{sP2}, 14")
    I(f"s_lshl_b32 s{sT1}, s{sP3}, 10")
    for q in range(4):
        I(f"v_lshlrev_b32 v{O+2*q}, 16, v{XR+q}")
        I(f"v_and_b32 v{O+2*q+1}, s{sHi}, v{XR+q}")
    I(f"s_add_u32 s{sT0}, s{sT0}, s{sT1}")
    I(f"s_add_u32 s{sT0}, s{sT0}, {WS_X1P + h*4*16384}")
    for q in range(0, 8, 2):
        I(f"v_pk_mul_f32 {vr(XF+q,2)}, {vr(O+q,2)}, {vr(CB+q,2)}")
    for q in range(4):
        I(f"v_cvt_pk_bf16_f32 v{XF+q}, v{XF+2*q}, v{XF+2*q+1}")
    xlast = I(f"buffer_store_dwordx4 {vr(XF,4)}, v{vL16}, {S(SWS)}, s{sT0} offen sc1")
    T = GA
    I(f"v_pk_add_f32 v[{T}:{T+1}], {vr(O,2)}, {vr(O+2,2)}")
    I(f"v_pk_add_f32 v[{T+2}:{T+3}], {vr(O+4,2)}, {vr(O+6,2)}")
    I(f"v_pk_add_f32 v[{T}:{T+1}], v[{T}:{T+1}], v[{T+2}:{T+3}]")
    I(f"v_add_f32 v{T}, v{T}, v{T+1}")
    I(f"v_mul_f32 v{T+2}, 0xbe000000, v{T}")
    for q in range(0, 8, 2):
        I(f"v_pk_add_f32 {vr(O+q,2)}, {vr(O+q,2)}, v[{T+2}:{T+3}] op_sel_hi:[1,0]")
    I(f"v_pk_mul_f32 v[{T+4}:{T+5}], {vr(O,2)}, {vr(O,2)}")
    I(f"v_pk_mul_f32 v[{T+6}:{T+7}], {vr(O+2,2)}, {vr(O+2,2)}")
    I(f"v_pk_fma_f32 v[{T+4}:{T+5}], {vr(O+4,2)}, {vr(O+4,2)}, v[{T+4}:{T+5}]")
    I(f"v_pk_fma_f32 v[{T+6}:{T+7}], {vr(O+6,2)}, {vr(O+6,2)}, v[{T+6}:{T+7}]")
    I(f"v_pk_add_f32 v[{T+4}:{T+5}], v[{T+4}:{T+5}], v[{T+6}:{T+7}]")
    I(f"v_add_f32 v{T+1}, v{T+4}, v{T+5}")
    for op, inv in (("v_permlane16_swap_b32", 0x3d800000), ("v_permlane32_swap_b32", 0x3d000000)):
        I(f"v_mov_b32 v{T+2}, v{T}")
        I(f"v_mov_b32 v{T+3}, v{T+1}")
        I(f"{op} v{T}, v{T+2}")
        I(f"{op} v{T+1}, v{T+3}")
        I(f"v_sub_f32 v{T+4}, v{T}, v{T+2}")
        I(f"v_add_f32 v{T}, v{T}, v{T+2}")
        I(f"v_add_f32 v{T+1}, v{T+1}, v{T+3}")
        I(f"v_mul_f32 v{T+4}, v{T+4}, v{T+4}")
        I(f"v_fmac_f32 v{T+1}, {inv:#x}, v{T+4}")
    I(f"v_lshlrev_b32 v{O}, 8, v20")
    I(f"v_mov_b32 v{T+2}, v{vTag}")
    I(f"v_mov_b32 v{T+3}, v{vTag}")
    I(f"v_mov_b32 v{O+1}, {OOB}")
    I(f"v_cmp_gt_u32 vcc, 16, v{vL}")
    I(f"v_cndmask_b32 v{O}, v{O+1}, v{O}, vcc")
    I(f"s_lshl_b32 s{sT0}, s{sP3}, 4")
    I(f"s_add_u32 s{sT0}, s{sT0}, {WS_STAT + h*64*256}")
    I(f"buffer_store_dwordx4 v[{T}:{T+3}], v{O}, {S(SWS)}, s{sT0} offen sc1")
    return xlast
def flag_at(base, grp, m, last):
    I(f"s_lshl_b32 s{sT0}, s{grp}, 4")
    I(f"s_add_u32 s{sT0}, s{sT0}, s{m}")
    I(f"s_lshl_b32 s{sT0}, s{sT0}, 7")
    I(f"s_add_u32 s{sT0}, s{sT0}, {base}")
    set_flag(sT0, last)

def c_compute(pids, hooks):
    ZF = 8; EPS = 16
    for e in range(4): I(f"v_mov_b32 v{EPS+e}, 0x358637bd")
    def us(u): return (u & 7) >> 1, 2 * (u >> 3) + (u & 1)
    def f0(u): s, r = us(u); return PHR(2 * s, r)
    def f1(u): s, r = us(u); return PHR(2 * s + 1, r)
    def buf(u):
        if u < 8: return [CAC(c, 2 + (u & 1)) for c in range(4)]
        k = 2 * (u & 1)
        return [PHR(k, 0), PHR(k + 1, 0), PHR(k, 1), PHR(k + 1, 1)]
    def s1(u):
        s, r = us(u); N0, D0, N1, D1 = buf(u)
        return [f"v_mfma_f32_16x16x32_bf16 {vr(D0,4)}, {vr(ZF+4*(s>>1),4)}, {vr(f0(u),4)}, {vr(EPS,4)}",
                f"v_mfma_f32_16x16x32_bf16 {vr(D1,4)}, {vr(ZF+4*(s>>1),4)}, {vr(f1(u),4)}, {vr(EPS,4)}",
                f"v_mfma_f32_16x16x32_bf16 {vr(N0,4)}, {vr(KB+8*s,4)}, {vr(f0(u),4)}, 0",
                f"v_mfma_f32_16x16x32_bf16 {vr(N1,4)}, {vr(KB+8*s+4,4)}, {vr(f1(u),4)}, 0"]
    def s2(u):
        s, r = us(u); N0, D0, N1, D1 = buf(u)
        d0 = D0 + ((2 * s) & 3); d1 = D1 + ((2 * s + 1) & 3)
        o = [f"v_rcp_f32 v6, v{d0}", f"v_rcp_f32 v7, v{d1}"]
        o += [f"v_mul_f32 v{N0+e}, v{N0+e}, v6" for e in range(4)]
        o += [f"v_cvt_pk_bf16_f32 v{f0(u)}, v{N0}, v{N0+1}", f"v_cvt_pk_bf16_f32 v{f0(u)+1}, v{N0+2}, v{N0+3}"]
        o += [f"v_mul_f32 v{N1+e}, v{N1+e}, v7" for e in range(4)]
        o += [f"v_cvt_pk_bf16_f32 v{f0(u)+2}, v{N1}, v{N1+1}", f"v_cvt_pk_bf16_f32 v{f0(u)+3}, v{N1+2}, v{N1+3}"]
        return o
    def s3(u):
        s, r = us(u)
        return [f"v_mfma_f32_16x16x32_bf16 {vr(CAC(c,r),4)}, {ar(WOF+(s*4+c)*4,4)}, {vr(f0(u),4)}, {vr(CAC(c,r),4) if s else 0}" for c in range(4)]
    wait_vm(pids[0])
    for m in s1(0): I(m)
    for u in range(17):
        if u in hooks: hooks[u]()
        if u + 1 < 16: wait_vm(pids[u + 1])
        mf = (s3(u - 1) if u >= 1 else []) + (s1(u + 1) if u + 1 < 16 else [])
        va = s2(u) if u < 16 else []
        k = 0
        for m in mf:
            I(m)
            for _ in range(2):
                if k < len(va): I(va[k]); k += 1
        while k < len(va): I(va[k]); k += 1

L_U = L_MISC + 3072
def u12_all():
    I(f"v_lshrrev_b32 v6, 3, v{vT}")
    I(f"v_lshlrev_b32 v7, 10, v6")
    I(f"v_lshl_add_u32 v7, v{vG}, 4, v7")
    I(f"v_add_u32 v7, {L_UV}, v7")
    R = 64; UA = 192
    for q in range(4):
        I(f"s_lshr_b32 s{sT0}, s{sKM+q}, 1")
        I(f"v_add_u32 v13, s{sT0}, v7")
        for s in range(4):
            I(f"ds_read_b128 {vr(R+4*(4*q+s),4)}, v13 offset:{64*s}")
    I(f"s_mul_i32 s{sT0}, s{sW}, 384")
    I(f"s_add_u32 s{sT0}, s{sT0}, {L_UW}")
    I(f"v_lshlrev_b32 v6, 6, v6")
    I(f"v_lshl_add_u32 v6, v{vG}, 4, v6")
    I(f"v_add_u32 v6, s{sT0}, v6")
    I(f"v_add_u32 v55, {L_DUMMY}, v{vL16}")
    I(f"v_and_b32 v13, 7, v{vT}")
    I(f"v_cmp_eq_u32 vcc, 0, v13")
    I(f"v_cndmask_b32 v55, v55, v6, vcc")
    wait_lg()
def u12_mm(k0, k1):
    R = 64; UA = 192
    for ks in range(k0, k1):
        for c in range(3):
            acc = vr(UA + 4 * c, 4)
            I(f"v_mfma_f32_16x16x32_bf16 {acc}, {ar(GF(c,ks),4)}, {vr(R+4*ks,4)}, {acc if ks else 0}")
    if k1 == 16:
        for c in range(3):
            I(f"ds_write_b128 v55, {vr(UA+4*c,4)} offset:{128*c}")

def DF(j, c): return (192 + (j * 4 + c) * 4) if j < 4 else ((j - 4) * 4 + c) * 4
WDSLOT = {0: 6, 1: 7, 2: 0, 3: 1, 4: 2, 5: 0, 6: 3, 7: 1, 8: 4, 9: 5, 10: 6}
vWD = 12
def wd_setup():
    TMPV[:] = [6, 7, 17, 18]
    rows128_voff(vWD, 1024, True)
    I(f"s_mul_i32 s{sB1}, s{sW}, {352*1024}")
    I(f"s_lshl_b32 s{sB2}, s{sCtC}, 7")
    I(f"s_add_u32 s{sB1}, s{sB1}, s{sB2}")
    I(f"v_bfe_u32 v6, v{vL}, 2, 2")
    I(f"v_lshl_add_u32 v6, v{vG}, 3, v6")
    I(f"v_lshlrev_b32 v6, 7, v6")
    I(f"v_bfe_u32 v7, v{vL}, 3, 2")
    I(f"s_and_b32 s{sB2}, s{sW}, 2")
    I(f"v_xor_b32 v7, s{sB2}, v7")
    I(f"v_lshl_add_u32 v6, v7, 5, v6")
    I(f"v_and_b32 v7, 3, v{vL}")
    I(f"v_lshl_add_u32 v6, v7, 3, v6")
    I(f"v_add_u32 v16, s{sW4096}, v6")
    for c in range(1, 4):
        I(f"v_xor_b32 v{16+c}, {32*c}, v16")
def wd_dma(j):
    return dma4(vWD, S(SWD), sW4096, WDSLOT[j] * 16 * K, sB1, j * 32768)
def wd_tr(j, last):
    if last is not None: wait_vm(last)
    off = (WDSLOT[j] & 3) * 16 * K
    out = None
    for c in range(4):
        f = DF(j, c)
        I(f"ds_read_b64_tr_b16 {ar(f,2)}, v{16+c} offset:{off}")
        out = I(f"ds_read_b64_tr_b16 {ar(f+2,2)}, v{16+c} offset:{off+512}")
    return out
def wd_hi():
    for c in range(4): I(f"v_xor_b32 v{16+c}, {64*K}, v{16+c}")

L_XCH = 128 * K
L_RS = L_MISC
AF = 64; SR = 32
def DAC(p, c, sl): return 128 + p * 48 + (c * 4 + sl) * 4
vFl, vFt, vAs = 60, 61, 62
def d_setup():
    I(f"s_lshl_b32 s{sT0}, s{sGrpD}, 11")
    I(f"s_add_u32 s{sT0}, s{sT0}, {WS_FX}")
    I(f"v_lshlrev_b32 v{vFl}, 7, v{vT}")
    I(f"v_add_u32 v{vFl}, s{sT0}, v{vFl}")
    pid = poll_issue(vFl, vFt)
    I(f"s_lshl_b32 s{sT0}, s{sGrpD}, 3")
    I(f"s_add_u32 s{sT0}, s{sT0}, s{sW}")
    I(f"s_lshl_b32 s{sT0}, s{sT0}, 14")
    I(f"s_add_u32 s{sT0}, s{sT0}, {WS_X1P}")
    I(f"v_add_u32 v{vAs}, s{sT0}, v{vL16}")
    I(f"s_lshl_b32 s{sP0}, s{sGrpD}, 15")
    I(f"s_add_u32 s{sP0}, s{sP0}, {WS_STAT}")
    I(f"s_add_u32 s{sP0}, s{sP0}, s{sW4096}")
    I(f"s_and_b32 s{sT1}, s{sW}, 1")
    I(f"s_lshl_b32 s{sT1}, s{sT1}, 13")
    I(f"v_add_u32 v8, s{sT1}, v{vL16}")
    I(f"v_xor_b32 v9, 8192, v8")
    I(f"v_add_u32 v10, 65536, v8")
    I(f"v_add_u32 v11, 65536, v9")
    I(f"s_lshl_b32 s{sT0}, s{sW}, 7")
    I(f"s_add_u32 s{sT0}, s{sT0}, {L_RS}")
    I(f"v_lshlrev_b32 v53, 3, v{vG}")
    I(f"v_add_u32 v53, s{sT0}, v53")
    I(f"v_lshlrev_b32 v52, 3, v{vL}")
    I(f"v_add_u32 v52, {L_DUMMY}, v52")
    I(f"v_cmp_eq_u32 vcc, 0, v{vT}")
    I(f"v_cndmask_b32 v53, v52, v53, vcc")
    return pid
def d_adma(h, q):
    return dma4([vAs] * 4, S(SWS), sW4096, h * 64 * K + q * 16 * K, sK + q, h * 65536, " sc1")
def d_stat_loads(h):
    I(f"s_add_u32 s{sT3}, s{sP0}, {h*16384}")
    for k in range(4):
        sid = I(f"buffer_load_dwordx4 {vr(SR+4*k,4)}, v{vL16}, {S(SWS)}, s{sT3} offen offset:{1024*k} sc1")
    return sid
def d_stat_check(h, sid):
    def checks():
        I(f"v_xor_b32 v6, v{SR+2}, v{vTag}")
        for q in range(1, 4):
            I(f"v_bitop3_b32 v6, v6, v{SR+4*q+2}, v{vTag} bitop3:0xf6")
        I("v_cmp_ne_u32 vcc, 0, v6")
    wait_vm(sid)
    checks()
    def body():
        d_stat_loads(h); I("s_waitcnt vmcnt(0)"); A.vm = []; checks()
    spin_loop(body, first_done=True)
def d_stat(h, part):
    DP = ["row_ror:8", "row_ror:4", "row_ror:2", "row_ror:1"]
    if part == 0:
        for k in range(4): I(f"v_mov_b32 v{SR+4*k+2}, v{SR+4*k}")
        for d in DP:
            for k in range(4):
                I(f"v_add_f32_dpp v{SR+4*k+2}, v{SR+4*k+2}, v{SR+4*k+2} {d} row_mask:0xf bank_mask:0xf")
        for k in range(4):
            I(f"v_fmac_f32 v{SR+4*k}, 0xbd800000, v{SR+4*k+2}")
        for k in range(4):
            I(f"v_mul_f32 v{SR+4*k}, v{SR+4*k}, v{SR+4*k}")
        for k in range(4):
            I(f"v_fmac_f32 v{SR+4*k+1}, 0x3d000000, v{SR+4*k}")
        return
    for d in DP:
        for k in range(4):
            I(f"v_add_f32_dpp v{SR+4*k+1}, v{SR+4*k+1}, v{SR+4*k+1} {d} row_mask:0xf bank_mask:0xf")
    for k in range(4): I(f"v_mov_b32 v{SR+4*k}, 0x3727c5ac")
    for k in range(4): I(f"v_fmac_f32 v{SR+4*k}, 0x3b000000, v{SR+4*k+1}")
    for k in range(4): I(f"v_rsq_f32 v{SR+4*k}, v{SR+4*k}")
    for k in range(4): I(f"v_mul_f32 v{SR+4*k+1}, 0xbb000000, v{SR+4*k+2}")
    for k in range(4): I(f"v_mul_f32 v{SR+4*k+1}, v{SR+4*k+1}, v{SR+4*k}")
    for k in range(4): I(f"ds_write_b64 v53, {vr(SR+4*k,2)} offset:{h*512 + 32*k}")

def d_rd(p, ks, sl):
    b = AF + (ks % 3) * 16 + 4 * sl
    q, s = ks >> 2, ks & 3
    base = (8 if sl < 2 else 9) + 2 * p
    return I(f"ds_read_b128 {vr(b,4)}, v{base} offset:{q*16*K + (sl&1)*4096 + s*1024}")
def d_pass(p, aids, bgf, pre):
    wait_vm(aids[0]); barrier()
    rds = {0: [d_rd(p, 0, sl) for sl in range(4)], 1: [d_rd(p, 1, sl) for sl in range(4)]}
    for k2 in range(0, 16, 2):
        def main():
            for ks in (k2, k2 + 1):
                if ks in (4, 8, 12): I("s_barrier")
                if ks + 2 < 16 and (ks + 2) % 4 == 0:
                    wait_vm(aids[(ks + 2) >> 2]); I("s_barrier")
                nxt = []
                for sl in range(4):
                    if ks + 2 < 16: nxt.append(d_rd(p, ks + 2, sl))
                    if sl == 0: wait_lg(rds[ks][3])
                    for c in range(3):
                        acc = vr(DAC(p, c, sl), 4)
                        I(f"v_mfma_f32_16x16x32_bf16 {acc}, {ar(GF(c,ks),4)}, {vr(AF+(ks%3)*16+4*sl,4)}, {acc if ks else 0}")
                rds[ks + 2] = nxt
        if p == XST - 1 and k2 < 14: xstamp()
        pre(k2)
        rb_ = rec(bgf, k2); rm = rec(main)
        merge_mfma(A, rm, [rb_])

def d_epi_setup():
    I(f"s_and_b32 s{sT1}, s{sW}, 1")
    I(f"s_lshl_b32 s{sT1}, s{sT1}, 8")
    I(f"s_add_u32 s{sT1}, s{sT1}, {L_RS}")
    I(f"v_lshlrev_b32 v56, 3, v{vT}")
    I(f"v_add_u32 v56, s{sT1}, v56")
    I(f"s_mul_i32 s{sT0}, s{sW}, 384")
    I(f"s_add_u32 s{sT0}, s{sT0}, {L_UW}")
    I(f"v_lshlrev_b32 v57, 4, v{vG}")
    I(f"v_add_u32 v57, s{sT0}, v57")
    I(f"s_lshl_b32 s{sT0}, s{sW}, 11")
    I(f"s_add_u32 s{sT0}, s{sT0}, {L_XCH}")
    I(f"v_add_u32 v58, s{sT0}, v{vL16}")
    I(f"v_and_b32 v59, 1, v{vG}")
    I(f"v_mul_u32_u24 v59, {43*1024}, v59")
    I(f"v_lshrrev_b32 v63, 1, v{vG}")
    I(f"v_lshl_add_u32 v59, v63, 8, v59")
    I(f"v_lshl_add_u32 v59, v{vT}, 4, v59")
    I(f"s_mul_i32 s{sT0}, s{sGrpD}, {8*43*1024}")
    I(f"s_add_u32 s{sT0}, s{sT0}, {WS_HH}")
    for dst, tile in ((sP1, sTx), (sHead, sTz)):
        I(f"s_add_u32 s{dst}, s{sFt0}, s{tile}")
        I(f"s_lshl_b32 s{dst}, s{dst}, 9")
        I(f"s_add_u32 s{dst}, s{dst}, s{sT0}")
def d_epi(p):
    RS = 32; U = 40 - 0;
    U = 224
    barrier()
    I(f"v_xor_b32 v63, 256, v56")
    for sl in (2, 3, 0, 1):
        I(f"ds_read_b64 {vr(RS+2*sl,2)}, v{56 if sl < 2 else 63} offset:{p*512 + (sl&1)*128}")
    if p == 0:
        for c in (2, 0, 1):
            I(f"ds_read_b128 {vr(U+8*c,4)}, v57 offset:{128*c}")
            I(f"ds_read_b128 {vr(U+8*c+4,4)}, v57 offset:{128*c+64}")
    I(f"s_and_b32 s{sT1}, s{sW}, 1")
    I(f"s_mul_i32 s{sT1}, s{sT1}, {2*43*1024}")
    I(f"s_xor_b32 s{sT2}, s{sT1}, {2*43*1024}")
    wait_lg()
    tc = [0]
    def fix(c, sl):
        a = DAC(p, c, sl)
        for e in (0, 2):
            t = 40 + 2 * (tc[0] & 3); tc[0] += 1
            I(f"v_pk_fma_f32 {vr(t,2)}, {vr(U+8*c+e,2)}, {vr(RS+2*sl,2)}, {vr(U+8*c+4+e,2)} op_sel:[0,1,0] op_sel_hi:[1,1,1]")
            I(f"v_pk_fma_f32 {vr(a+e,2)}, {vr(a+e,2)}, {vr(RS+2*sl,2)}, {vr(t,2)} op_sel_hi:[1,0,1]")
    for sl in (2, 3):
        fix(2, sl)
        I(f"ds_write_b128 v58, {vr(DAC(p,2,sl),4)} offset:{(sl-2)*1024}")
    def hh_pack(dst, ga, ua):
        for e in (0, 2):
            I(f"v_pk_mul_f32 {vr(ga+e,2)}, {vr(ga+e,2)}, {vr(ua+e,2)}")
        I(f"v_cvt_pk_bf16_f32 v{dst}, v{ga}, v{ga+1}")
        I(f"v_cvt_pk_bf16_f32 v{dst+1}, v{ga+2}, v{ga+3}")
    def store_pair(d, slot, base_s, ga0, ua0, ga1, ua1):
        hh_pack(d, ga0, ua0)
        hh_pack(d + 2, ga1, ua1)
        I(f"s_add_u32 s{sT0}, s{base_s}, s{sT1 if slot < 2 else sT2}")
        I(f"s_add_u32 s{sT0}, s{sT0}, {p*4*43*1024}")
        I(f"v_permlane16_swap_b32 v{d}, v{d+2}")
        I(f"v_permlane16_swap_b32 v{d+1}, v{d+3}")
        return I(f"buffer_store_dwordx4 {vr(d,4)}, v59, {S(SWS)}, s{sT0} offen sc1")
    for k, sl in enumerate((0, 2)):
        for c in (0, 1):
            fix(c, sl); fix(c, sl + 1)
        store_pair(72 + 4 * k, sl, sP1, DAC(p,0,sl), DAC(p,1,sl), DAC(p,0,sl+1), DAC(p,1,sl+1))
        if k == 0:
            barrier()
            I(f"v_xor_b32 v63, 2048, v58")
            for s2 in range(2):
                I(f"ds_read_b128 {vr(DAC(p,2,2+s2),4)}, v63 offset:{s2*1024}")
    for sl in range(2): fix(2, sl)
    wait_lg()
    return store_pair(DAC(p,0,0), 0, sHead, DAC(p,2,0), DAC(p,2,2), DAC(p,2,1), DAC(p,2,3))

EQ = list(range(112, 176, 4)) + list(range(96, 112, 4)) + [64, 68]
def EAR(j, rho): return EQ[j * 2 + rho]
def ECC(k, r4): return 176 + (r4 * 4 + k) * 4
def e_setup():
    I(f"s_lshl_b32 s{sT0}, s{sGrpC}, 11")
    I(f"s_add_u32 s{sT0}, s{sT0}, {WS_FH}")
    I(f"v_lshlrev_b32 v{vFl}, 7, v{vT}")
    I(f"v_add_u32 v{vFl}, s{sT0}, v{vFl}")
    rt_offsets(43 * 1024)
    I(f"s_mul_i32 s{sT0}, s{sGrpC}, {8*43*1024}")
    I(f"s_mul_i32 s{sT1}, s{sW}, {11*1024}")
    I(f"s_add_u32 s{sT0}, s{sT0}, s{sT1}")
    I(f"s_add_u32 s{sT0}, s{sT0}, {WS_HH}")
    I(f"v_add_u32 v248, s{sT0}, v{vL16}")
    I(f"v_add_u32 v249, 4096, v248")
    I(f"v_add_u32 v250, 8192, v248")
    I(f"s_cmp_eq_u32 s{sW}, 3")
    I(f"s_cselect_b32 s{sT0}, 1024, 0")
    I(f"v_subrev_u32 v251, s{sT0}, v250")
    return poll_issue(vFl, vFt)
def e_ld(h, j, rho):
    base = 251 if j == 10 else 248 + (j >> 2)
    return I(f"buffer_load_dwordx4 {vr(EAR(j,rho),4)}, v{base}, {S(SWS)}, s{sR+2*h+rho} offen offset:{(j&3)*1024} sc1")
def e_mm(h, ids, trw, late, j0=0, j1=11):
    for j in range(j0, j1):
        if j in trw: wait_lg(trw[j])
        for rho in range(2):
            if (j, rho) in late: ids[late[(j, rho)]] = e_ld(h, *late[(j, rho)])
            wait_vm(ids[(j, rho)])
            for c in range(4):
                acc = vr(ECC(c, 2 * h + rho), 4)
                I(f"v_mfma_f32_16x16x32_bf16 {acc}, {ar(DF(j,c),4)}, {vr(EAR(j,rho),4)}, {acc if j else 0}")
def e_fin(h, GB):
    O = 32 + 16 * h; XF = 40 + 16 * h; XR = 24 + 4 * h
    acc = lambda k, rho: ECC(k, 2 * h + rho)
    for q in range(4):
        I(f"v_lshlrev_b32 v{XF+2*q}, 16, v{XR+q}")
        I(f"v_and_b32 v{XF+2*q+1}, s{sHi}, v{XR+q}")
    wait_lg()
    half_sum(acc, O)
    for q in range(0, 8, 2):
        I(f"v_pk_fma_f32 {vr(O+q,2)}, {vr(O+q,2)}, {vr(GB+q,2)}, {vr(XF+q,2)}")
    for q in range(4):
        I(f"v_cvt_pk_bf16_f32 v{XF+q}, v{O+2*q}, v{O+2*q+1}")
    I(f"s_lshl_b32 s{sT1}, s{sP3}, 6")
    if h: I(f"s_add_u32 s{sT1}, s{sT1}, 65536")
    I(f"v_permlane16_swap_b32 v{XF}, v{XF+2}")
    I(f"v_permlane16_swap_b32 v{XF+1}, v{XF+3}")
    I(f"buffer_store_dwordx4 {vr(XF,4)}, v21, {S(SOUT)}, s{sT1} offen sc1")

def write_epoch():
    I(f"s_lshl_b32 s{sT0}, s2, 8")
    I(f"v_or_b32 v6, s{sT0}, v{vTid}")
    I(f"v_cmp_eq_u32 vcc, 0, v6")
    I(f"v_mov_b32 v7, {OOB}")
    I(f"v_cndmask_b32 v7, v7, {WS_EPOCH}, vcc")
    I(f"buffer_store_dword v{vTag}, v7, {S(SWS)}, 0 offen")

def body():
    aids = prologue()
    stamp()
    r1 = rec(x_issue); r2 = rec(lambda: (ids_rest(), consts(), wq_addr(), h_addr(), early_setup()))
    merge(A, [r1, r2], [(0.5, 1.2), (0, 1)])
    xids = r1.ret
    phaseA_compute(aids)
    stamp()
    wphi_issue()
    wids = {}
    r1 = rec(layernorm, xids)
    r2 = rec(lambda: (wq_dma(0), wq_dma(1), gm_issue([0], 40)))
    merge(A, [r1, r2], [(0, 1), (0, 0.9)])
    wids[0], wids[1], gid = r2.ret
    stamp()
    wait_vm(wids[0]); barrier()
    r1 = rec(wq_tr, 0); r2 = rec(lambda: (wq_dma(2), pf_wo())[0])
    merge(A, [r1, r2]); wids[2] = r2.ret
    stamp()
    gm_finish([0], 40, gid)
    barrier()
    stamp()
    r1 = rec(make_h_first); r2 = rec(wq_tr, 1)
    merge(A, [r1, r2], [(0, 1), (0.12, 0.6)])
    wphi_pack()
    barrier()
    cur = {k: [a_rd(k, rt) for rt in range(4)] for k in range(2)}
    rm = rec(gemm_kv, 0, 4, cur); rc = rec(wq_dma, 3); rd_ = rec(unpark_rest); re_ = rec(lambda: (pf_gu(), pf_wd()))
    merge_mfma(A, rm, [rc, rd_, re_], [(0, 0.68), (0, 0.68), (0.7, 1)]); wids[3] = rc.ret
    wait_vm(wids[2]); I("s_barrier")
    rwo = rec(wo_dma)
    nset = rwo.first_dma
    setup = Rec(); setup.ops = rwo.ops[:nset]; rwo.ops = rwo.ops[nset:]
    rm = rec(gemm_kv, 4, 6, rm.ret); rc = rec(wq_tr, 2)
    merge_mfma(A, rm, [rc, setup], [(0, 0.8), (0, 1)])
    wait_vm(wids[3]); barrier()
    rm = rec(gemm_kv, 6, 10, rm.ret); rb_ = rec(make_h_do, 3, 240, False, -1); rc = rec(wq_tr, 3)
    merge_mfma(A, rm, [rb_, rc], [(0, 0.95), (0, 0.95)])
    barrier()
    rm = rec(gemm_kv, 10, 16, rm.ret); rc = rec(lambda: (wgu_setup(), wo_tr_pre()))
    merge_mfma(A, rm, [rwo, rc], [(0, 0.65), (0.67, 1)])
    wo_last = rwo.ret
    if STOP == 1:
        A.fence(16)
        dbg_dump([vr(accQ(k), 4) for k in range(4)] + [vr(accK(k), 4) for k in range(4)] + [vr(accV(k), 4) for k in range(4)], 0)
        return
    I("s_barrier")
    stamp()
    g = {}
    rm = rec(epi_k); rb_ = rec(wgu_dma, 0)
    merge(A, [rm, rb_], [(0, 1), (0, 0.7)])
    g[0] = rb_.ret
    wo_tr(wo_last)
    barrier()
    stamp()
    rm = rec(epi_q); rc = rec(kv_reduce_loads); rb_ = rec(wgu_dma, 1)
    merge(A, [rm, rc, rb_], [(0, 1), (0.62, 0.75), (0.0, 0.6)])
    g[1] = rb_.ret
    stamp()
    kv_reduce_finish(rc.ret)
    wgu_traddr()
    stamp()
    set_flag(sT1, rm.ret)
    stamp()
    if STOP == 2: return
    gid = gm_issue([1, 2], 192)
    wgu_tr(0); wgu_tr(1)
    barrier()
    r1 = rec(lambda: (wgu_dma(2), wgu_dma(3))); r2 = rec(lambda: (kv_addr(), phiq_load())[1])
    merge(A, [r1, r2], [(0, 1), (0.3, 1)])
    g[2], g[3] = r1.ret; pid = r2.ret
    gm_finish([1, 2], 192, gid)
    kid = kv_loads()
    wait_vm(g[3]); barrier()
    stamp()
    pids = {}
    poll_finish(20, 21, pid)
    r1 = rec(phiq_loads, pids, 0); r2 = rec(lambda: (wgu_tr(2), wgu_tr(3)))
    merge(A, [r1, r2])
    stamp()
    kv_finish(kid)
    kv_pack()
    stamp()
    st = {}
    accA = lambda k, rho: CAC(k, rho)
    accB = lambda k, rho: CAC(k, 2 + rho)
    rg = rec(phiq_loads, pids, 1)
    parts = [rg.ops[k*8:(k+1)*8] for k in range(4)]
    def hg(k):
        def f():
            r_ = Rec(); r_.ops = parts[k]; merge(A, [r_])
        return f
    def h4(): st["x"] = c_setup()
    def h9(): half_send(accA, L_RED, 6)
    def h10():
        barrier()
        half_recv(accA, L_RED, 6); c_epi_rd(144, 160)
    def h11():
        st["xa"] = c_epi(0, accA, 128, 144, 160, 176, st["x"])
    def h15(): flag_at(WS_FX, sGrpC, sMC, st["xa"])
    c_compute(pids, {0: hg(0), 1: hg(1), 2: hg(2), 3: hg(3), 5: h4, 9: h9, 10: h10, 11: h11, 15: h15})
    stamp()
    half_send(accB, L_RED + 24 * K, 6)
    c_epi_rd(144, 160)
    barrier()
    half_recv(accB, L_RED + 24 * K, 6)
    xb = c_epi(1, accB, 128, 144, 160, 176, st["x"])
    stamp()
    if STOP == 3:
        flag_at(WS_FX + 0x10000, sGrpC, sMC, xb)
        return
    pid = d_setup()
    u12_all()
    rm = rec(u12_mm, 0, 9); rb_ = rec(lambda: (wd_setup(), d_epi_setup()))
    merge_mfma(A, rm, [rb_])
    flag_at(WS_FX + 0x10000, sGrpC, sMC, xb)
    poll_finish(vFl, vFt, pid)
    stamp()
    aA = [d_adma(0, 0)]
    rm = rec(u12_mm, 9, 16); rb_ = rec(lambda: (d_stat_loads(0), [d_adma(0, q) for q in (1, 2, 3)]))
    merge_mfma(A, rm, [rb_])
    sid = rb_.ret[0]; aA += rb_.ret[1]
    I(f"v_add_u32 v{vFl}, 0x10000, v{vFl}")
    stamp()
    wd = {}; aB = []; dd = {}
    def bgA(ks):
        if ks == 0: wd[0] = wd_dma(0); dd["p"] = poll_issue(vFl, vFt)
        if ks == 2: wd[1] = wd_dma(1)
        if ks == 4: wd[2] = wd_dma(2)
        if ks == 6: aB.append(d_adma(1, 0)); d_stat(0, 0)
        if ks == 8:
            aB.append(d_adma(1, 1)); wd_hi(); wd_tr(0, wd[0]); dd["t"] = wd_tr(1, wd[1]); wd_hi()
        if ks == 10: wait_lg(dd["t"]); aB.append(d_adma(1, 2)); wd[3] = wd_dma(3)
        if ks == 12: aB.append(d_adma(1, 3)); dd["t"] = wd_tr(2, wd[2])
        if ks == 14: wd[4] = wd_dma(4); d_stat(0, 1)
    def preA(ks):
        if ks == 6: poll_finish(vFl, vFt, dd["p"]); d_stat_check(0, sid)
    d_pass(0, aA, bgA, preA)
    stamp()
    ha = d_epi(0)
    stamp()
    def bgB(ks):
        if ks == 0: dd["s"] = d_stat_loads(1); wd[5] = wd_dma(5); dd["t"] = wd_tr(3, wd[3])
        if ks == 2: wd[6] = wd_dma(6)
        if ks == 4: wait_lg(dd["t"]); wd[7] = wd_dma(7)
        if ks == 6: wd[8] = wd_dma(8)
        if ks == 8: wd[9] = wd_dma(9)
        if ks == 8: d_stat(1, 0)
        if ks == 10: dd["e"] = e_setup(); d_stat(1, 1)
        if ks == 12: wd[10] = wd_dma(10)
        if ks == 14:
            for j in range(4):
                for rho in range(2): ea[(j, rho)] = e_ld(0, j, rho); pad(60)
    def preB(ks):
        if ks == 4: flag_at(WS_FH, sGrpD, sMD, ha)
        if ks == 8: d_stat_check(1, dd["s"])
        if ks == 14: poll_finish(vFl, vFt, dd["e"])
    ea = {}
    d_pass(1, aB, bgB, preB)
    stamp()
    def more():
        for j in range(4, 8):
            for rho in range(2): ea[(j, rho)] = e_ld(0, j, rho); pad(60)
    rm = rec(d_epi, 1); rb_ = rec(more)
    merge(A, [rm, rb_], [(0, 1), (0.1, 0.9)])
    hb = rm.ret
    if STOP == 4:
        flag_at(WS_FH + 0x10000, sGrpD, sMD, hb)
        return
    stamp()
    I(f"v_add_u32 v{vFl}, 0x10000, v{vFl}")
    trw = {}
    def trs(j0, j1):
        for j in range(j0, j1):
            if j == 8: wd_hi()
            trw[j] = wd_tr(j, None)
    order = [(j, rho) for j in range(11) for rho in range(2)]
    rb_ = rec(trs, 4, 8); rm = rec(e_mm, 0, ea, trw, {order[k]: order[16 + k] for k in range(6)}, 0, 4)
    merge_mfma(A, rm, [rb_])
    flag_at(WS_FH + 0x10000, sGrpD, sMD, hb)
    rb_ = rec(lambda: (trs(8, 11), pad(300), poll_issue(vFl, vFt))[2]); rm = rec(e_mm, 0, ea, trw, {}, 4, 11)
    merge_mfma(A, rm, [rb_], [(0, 1.0)])
    dd["f"] = rb_.ret
    stamp()
    accEa = lambda k, rho: ECC(k, rho)
    accEb = lambda k, rho: ECC(k, 2 + rho)
    poll_finish(vFl, vFt, dd["f"])
    eb = {}
    for jr in order[:14]: eb[jr] = e_ld(1, *jr)
    barrier()
    half_send(accEa, 0, 6)
    GB = 240
    for k in range(2):
        I(f"ds_read_b128 {vr(GB+4*k,4)}, v22 offset:{10240 + 64*k}")
    I(f"v_lshlrev_b32 v21, 10, v20")
    I(f"v_and_b32 v7, 1, v{vG}")
    I(f"v_lshl_add_u32 v21, v7, 5, v21")
    I(f"v_lshrrev_b32 v7, 1, v{vG}")
    I(f"v_lshl_add_u32 v21, v7, 4, v21")
    barrier()
    half_recv(accEa, 0, 6)
    e_fin(0, GB)
    stamp()
    e_mm(1, eb, {}, {order[k]: order[14 + k] for k in range(8)})
    stamp()
    half_send(accEb, 24 * K, 6)
    barrier()
    half_recv(accEb, 24 * K, 6)
    e_fin(1, GB)
    stamp()

hdr = open(f"cdna_kernels/{NAME}.s.ref").read().split("; Override launch")[0]
A.raw(hdr.rstrip())
A.raw(f"; @launch grid=(256,1,1) block=(256,1,1) lds={LDS_BYTES}")
A.raw('.amdgcn_target "amdgcn-amd-amdhsa--gfx950"')
A.raw(".text")
A.raw(f".globl {NAME}_kernel")
A.raw(".p2align 8")
A.raw(f".type {NAME}_kernel,@function")
A.raw(f"{NAME}_kernel:")
body()
write_epoch()
stamp_out()
A.raw("L_end:")
I("s_endpgm")
A.raw("L_code_end:")
A.raw('.section .rodata,"a"')
A.raw(".p2align 6")
A.raw(f".amdhsa_kernel {NAME}_kernel")
A.raw("  .amdhsa_next_free_vgpr 512")
A.raw("  .amdhsa_next_free_sgpr 102")
A.raw("  .amdhsa_accum_offset 256")
A.raw("  .amdhsa_group_segment_fixed_size 0")
A.raw("  .amdhsa_kernarg_size 104")
A.raw("  .amdhsa_user_sgpr_count 2")
A.raw("  .amdhsa_user_sgpr_kernarg_segment_ptr 1")
A.raw("  .amdhsa_system_sgpr_workgroup_id_x 1")
A.raw(".end_amdhsa_kernel")
out = sys.argv[1] if len(sys.argv) > 1 else f"cdna_kernels/{NAME}.s"
open(out, "w").write(A.text())
print("instructions:", A.ninstr, "stamps:", stamp_idx[0], "->", out)
```

```python
import sys
from asmlib import *

NAME = "adaLN_cond__linear_kernel_hedgehog__glu_gated_bilinear__prompt"
STOP = int(sys.argv[2]) if len(sys.argv) > 2 else 99
STAMP = int(sys.argv[3]) if len(sys.argv) > 3 else 0
XST = int(sys.argv[4]) if len(sys.argv) > 4 else 0

WS_EPOCH = 0
WS_FQ = 0x80000
WS_FX = 0x88000
WS_FH = 0x90000
WS_MODF = 0x10000
WS_KVF = 0x20000
WS_STAT = 0x340000
WS_KVP = 0x100000
WS_PHIQ = 0x400000
WS_X1P = 0x800000
WS_HH = 0xA00000
WS_DBG = 0x1000000
WS_STAMP = 0x1F00000
WS_SIZE = 0x2000000
OOB = 0x7ffffff0
KVREC = 2176
K = 1024
L_MODV = 144 * K
L_MISC = 156 * K
L_UW = L_MODV
L_DUMMY = L_MODV + 2048
L_UV = L_MISC + 1024
LDS_BYTES = 160 * K
SPIN = 400000

sTag, sW, sJ = 4, 5, 6
sCtB, sRbB, sCtC, sRbC, sGrpC, sMC, sGrpD, sMD = 7, 8, 9, 10, 36, 37, 38, 39
sT0, sT1, sT2, sT3, sCnt = 11, 12, 13, 14, 15
sK, sKW, sKM = 16, 20, 24
sW4096 = 28
sP0, sP1, sP2, sP3 = 29, 30, 31, 32
sFt0, sHead, sB0 = 33, 34, 35
sTx, sTz, sB1, sB2 = 40, 41, 42, 43
SX, SWQKV, SWPHI, SWO, SWG, SWU, SWD, SC, SWMOD, SOUT, SWS = 44, 48, 52, 56, 60, 64, 68, 72, 76, 80, 84
SGU = 72
sR = 76
sSel = 88
sSelA, sSelB = 92, 93
sL, sL2, sNL, sNL2 = 94, 95, 96, 97
sHi = 98
sSelHi = 99
sSelLL = 3

A = Asm(); A.phmap = {}
class Em: pass
E = Em(); E.t = A
def I(t): return E.t.I(t)
def _ph(x):
    if E.t is A and x is not None and not isinstance(x, int): return A.phmap[x]
    return x
def wait_vm(x=None): E.t.wait_vm(_ph(x))
def wait_lg(x=None): E.t.wait_lg(_ph(x))
def barrier(): E.t.barrier()
def rec(fn, *a):
    r = Rec(); old = E.t; E.t = r
    ret = fn(*a)
    E.t = old
    r.ret = ret
    return r
def gbegin():
    if E.t is not A: E.t.begin()
def gend():
    if E.t is not A: E.t.end()
def pad(c):
    if E.t is not A: E.t.pad(c)

def srd(base, ptr, nbytes):
    I(f"s_mov_b32 s{base}, s{ptr}")
    I(f"s_and_b32 s{base+1}, s{ptr+1}, 0xffff")
    I(f"s_mov_b32 s{base+2}, {nbytes}")
    I(f"s_mov_b32 s{base+3}, 0x20000")
def S(b): return sr(b, 4)

vTid, vL, vG, vT, vTag, vL16 = 0, 1, 2, 3, 4, 5

stamp_idx = [0]
DBGSET = [0, 1, 2, 4, 5, 6, 8, 9, 12, 13, 14, 16, 17, 18, 19, 20]
def stamp():
    if not STAMP: return
    n = stamp_idx[0]; stamp_idx[0] += 1
    if STAMP == 4:
        if n == XST:
            I("s_memrealtime s[100:101]"); I("s_waitcnt lgkmcnt(0)"); A.lg = []; I("s_mov_b32 s0, s100")
        return
    if STAMP == 3:
        if n not in DBGSET: return
        n = DBGSET.index(n)
    I("s_memrealtime s[100:101]" if STAMP != 2 else "s_memtime s[100:101]")
    I("s_waitcnt lgkmcnt(0)")
    A.lg = []
    I("v_mov_b32 v6, s100")
    I(f"v_lshlrev_b32 v7, 1, v{vTid}")
    I(f"v_and_b32 v7, 0x180, v7")
    I(f"s_lshl_b32 s100, s2, 9")
    I(f"s_add_u32 s100, s100, {WS_STAMP + 4*n}")
    I(f"buffer_store_dword v6, v7, {S(SWS)}, s100 offen")
def stamp_out():
    if STAMP == 4:
        A.raw("L_padloop:")
        I("s_memrealtime s[100:101]"); I("s_waitcnt lgkmcnt(0)"); I("s_sub_u32 s100, s100, s0"); I("s_cmp_lt_u32 s100, 6000"); I("s_cbranch_scc1 L_padloop")
    if STAMP != 3: return
    I("s_cmp_lg_u32 s2, 100")
    I("s_cbranch_scc1 L_end")
    I(f"s_load_dwordx2 s[20:21], s[0:1], 88")
    I("s_waitcnt vmcnt(0) lgkmcnt(0)")
    srd(16, 20, 64)
    I(f"v_lshlrev_b32 v7, 2, v{vTid}")
    I(f"s_mov_b32 s100, {WS_STAMP + 100*512}")
    I(f"buffer_load_dword v6, v7, {S(SWS)}, s100 offen sc1")
    I("s_waitcnt vmcnt(0)")
    I(f"buffer_store_dword v6, v7, s[16:19], 0 offen")

def xstamp():
    if STAMP in (1, 2) and XST: stamp()
def xstamp3():
    if STAMP in (1, 2) and XST == 3: stamp()
def tag4(b):
    for i in range(4):
        I(f"v_perm_b32 v{b+i}, v{b+i}, v{vTag}, s{sSel+i}")
def check4(bad, b, t0, t1, first):
    I(f"v_perm_b32 v{t0}, v{b+1}, v{b}, s{sSelA}")
    I(f"v_perm_b32 v{t1}, v{b+3}, v{b+2}, s{sSelB}")
    if first:
        I(f"v_bitop3_b32 v{bad}, v{t0}, v{t1}, v{vTag} bitop3:0x96")
    else:
        I(f"v_bitop3_b32 v{t0}, v{t0}, v{t1}, v{vTag} bitop3:0x96")
        I(f"v_or_b32 v{bad}, v{bad}, v{t0}")

def round_tag16(b, t):
    I(f"v_cvt_pk_bf16_f32 v{t}, v{b}, v{b+1}")
    I(f"v_cvt_pk_bf16_f32 v{t+1}, v{b+2}, v{b+3}")
    I(f"v_perm_b32 v{b}, v{t}, v{vTag}, s{sSelLL}")
    I(f"v_perm_b32 v{b+1}, v{t}, v{vTag}, s{sSelHi}")
    I(f"v_perm_b32 v{b+2}, v{t+1}, v{vTag}, s{sSelLL}")
    I(f"v_perm_b32 v{b+3}, v{t+1}, v{vTag}, s{sSelHi}")
def check16(bad, b, t0, first):
    I(f"v_perm_b32 v{t0}, v{b+1}, v{b}, s{sSelLL}")
    if first: I(f"v_xor_b32 v{bad}, v{t0}, v{vTag}")
    else: I(f"v_bitop3_b32 v{bad}, v{bad}, v{t0}, v{vTag} bitop3:0xf6")

def spin_loop(body, first_done=False):
    lab = A.newlabel("Lspin"); done = A.newlabel("Ldone")
    saved_vm, saved_lg = list(A.vm), list(A.lg)
    if first_done:
        I(f"s_cbranch_vccz {done}")
    I(f"s_mov_b32 s{sCnt}, 0")
    A.fence(4)
    A.label(lab)
    body()
    I(f"s_cbranch_vccz {done}")
    I(f"s_add_u32 s{sCnt}, s{sCnt}, 1")
    I(f"s_cmp_lt_u32 s{sCnt}, {SPIN}")
    I(f"s_cbranch_scc1 {lab}")
    A.label(done)
    if first_done:
        A.vm, A.lg = saved_vm, saved_lg
    A.fence(2)

def poll_flags(vaddr, vtmp):
    def body():
        I(f"buffer_load_dword v{vtmp}, v{vaddr}, {S(SWS)}, 0 offen sc1")
        I("s_waitcnt vmcnt(0)"); A.vm = []
        I(f"v_cmp_ne_u32 vcc, v{vtmp}, v{vTag}")
    spin_loop(body)

vLane0 = 23
def poll_issue(vaddr, vtmp):
    return I(f"buffer_load_dword v{vtmp}, v{vaddr}, {S(SWS)}, 0 offen sc1")
def poll_finish(vaddr, vtmp, pid):
    wait_vm(pid)
    I(f"v_cmp_ne_u32 vcc, v{vtmp}, v{vTag}")
    def body():
        I(f"buffer_load_dword v{vtmp}, v{vaddr}, {S(SWS)}, 0 offen sc1")
        I("s_waitcnt vmcnt(0)"); A.vm = []
        I(f"v_cmp_ne_u32 vcc, v{vtmp}, v{vTag}")
    spin_loop(body, first_done=True)

def set_flag(soff_reg, last):
    wait_vm(last)
    I("s_barrier")
    I(f"buffer_store_dword v{vTag}, v{vLane0}, {S(SWS)}, s{soff_reg} offen sc1")

def xlane4(vals, op, mid=None):
    a, b, c, d = vals
    I(f"v_permlane32_swap_b32 v{a}, v{b}")
    I(f"v_permlane32_swap_b32 v{c}, v{d}")
    I(f"{op} v{a}, v{a}, v{b}")
    I(f"{op} v{c}, v{c}, v{d}")
    I(f"v_permlane16_swap_b32 v{a}, v{c}")
    I(f"{op} v{a}, v{a}, v{c}")
    if mid: mid(a)
    I(f"v_mov_b32 v{c}, v{a}")
    I(f"v_permlane16_swap_b32 v{a}, v{c}")
    I(f"v_mov_b32 v{b}, v{a}")
    I(f"v_mov_b32 v{d}, v{c}")
    I(f"v_permlane32_swap_b32 v{a}, v{b}")
    I(f"v_permlane32_swap_b32 v{c}, v{d}")

def xlane4x2(v1, op1, mid1, v2, op2, mid2):
    r1 = rec(xlane4, v1, op1, mid1); r2 = rec(xlane4, v2, op2, mid2)
    for (o1, _), (o2, _) in zip(r1.ops, r2.ops):
        I(o1[1]); I(o2[1])

def dbg_dump(regs, slot):
    I(f"v_lshlrev_b32 v6, 4, v{vTid}")
    for k, r in enumerate(regs):
        I(f"s_lshl_b32 s{sT0}, s2, 12")
        I(f"s_add_u32 s{sT0}, s{sT0}, {WS_DBG + (slot + k) * 256 * 4096}")
        I(f"buffer_store_dwordx4 {r}, v6, {S(SWS)}, s{sT0} offen")
    wait_vm()

def bf_round4(b, t):
    I(f"v_cvt_pk_bf16_f32 v{t}, v{b}, v{b+1}")
    I(f"v_cvt_pk_bf16_f32 v{t+1}, v{b+2}, v{b+3}")
    I(f"v_lshlrev_b32 v{b}, 16, v{t}")
    I(f"v_and_b32 v{b+1}, s{sHi}, v{t}")
    I(f"v_lshlrev_b32 v{b+2}, 16, v{t+1}")
    I(f"v_and_b32 v{b+3}, s{sHi}, v{t+1}")

SRDS = [(SC, 64, 1024), (SWMOD, 72, 512 * 3072 * 2), (SX, 0, 2048 * 512 * 2), (SWS, 96, WS_SIZE), (SWQKV, 8, 512 * 1536 * 2),
        (SWPHI, 16, 32 * 512), (SWO, 24, 512 * 512 * 2), (SWG, 40, 512 * 1376 * 2), (SWU, 48, 512 * 1376 * 2),
        (SWD, 56, 1376 * 512 * 2), (SOUT, 80, 2048 * 512 * 2)]
def prologue():
    I("s_cmp_ge_u32 s2, 256")
    I("s_cbranch_scc1 L_end")
    for b, off, _ in SRDS:
        I(f"s_load_dwordx2 s[{b}:{b+1}], s[0:1], {off}")
    I("s_getpc_b64 s[100:101]")
    A.raw("L_pc:")
    I(f"s_lshr_b32 s{sJ}, s2, 3")
    I(f"s_and_b32 s{sT0}, s{sJ}, 15")
    I(f"s_lshl_b32 s{sT0}, s{sT0}, 12")
    I(f"v_lshlrev_b32 v6, 4, v0")
    I(f"v_add_u32 v6, s{sT0}, v6")
    I(f"v_min_u32 v6, L_code_end-L_pc-16, v6")
    I(f"global_load_dwordx4 v[60:63], v6, s[100:101]")
    I(f"v_and_b32 v{vL}, 63, v0")
    I(f"v_lshrrev_b32 v6, 6, v0")
    I(f"v_lshrrev_b32 v{vG}, 4, v{vL}")
    I(f"v_and_b32 v{vT}, 15, v0")
    I(f"v_readfirstlane_b32 s{sW}, v6")
    I(f"v_lshlrev_b32 v{vL16}, 4, v{vL}")
    I(f"s_and_b32 s3, s2, 7")
    for b, _, n in SRDS:
        I(f"s_mov_b32 s{b+2}, {n}")
        I(f"s_mov_b32 s{b+3}, 0x20000")
    I(f"s_sub_u32 s{sT0}, s{sJ}, 24")
    I(f"s_cmp_ge_u32 s{sJ}, 24")
    I(f"s_cselect_b32 s{sT0}, s{sT0}, s{sJ}")
    I(f"s_lshr_b32 s{sT1}, s{sT0}, 2")
    I(f"s_lshl_b32 s{sT1}, s{sT1}, 3")
    I(f"s_add_u32 s{sT1}, s{sT1}, s3")
    I(f"s_lshl_b32 s{sT1}, s{sT1}, 2")
    I(f"s_and_b32 s{sT0}, s{sT0}, 3")
    I(f"s_add_u32 s{sT3}, s{sT1}, s{sT0}")
    I(f"v_lshrrev_b32 v6, 1, v0")
    I(f"v_and_b32 v6, 31, v6")
    I(f"s_lshl_b32 s{sT0}, s{sW}, 7")
    I(f"v_add_u32 v6, s{sT0}, v6")
    I(f"v_lshlrev_b32 v10, 1, v6")
    I(f"v_mul_u32_u24 v11, 6144, v6")
    I(f"v_and_b32 v9, 1, v0")
    I(f"v_lshl_add_u32 v11, v9, 4, v11")
    I(f"s_lshl_b32 s{sB0}, s{sT3}, 5")
    I(f"s_lshr_b32 s{sT0}, s3, 1")
    I(f"s_lshr_b32 s{sT2}, s{sJ}, 2")
    I(f"s_lshl_b32 s{sRbB}, s{sT0}, 3")
    I(f"s_add_u32 s{sRbB}, s{sRbB}, s{sT2}")
    I(f"s_and_b32 s{sP0}, s{sT2}, 3")
    for u in range(4):
        I(f"s_add_u32 s{sT0}, s{sP0}, {u}")
        I(f"s_and_b32 s{sT0}, s{sT0}, 3")
        I(f"s_lshl_b32 s{sK+u}, s{sT0}, 8")
    I(f"s_lshl_b32 s{sT0}, s{sRbB}, 6")
    I(f"s_lshl_b32 s{sT1}, s{sW}, 4")
    I(f"s_add_u32 s{sT0}, s{sT0}, s{sT1}")
    for i in range(4):
        I(f"s_add_u32 s{sT2}, s{sJ}, {i}")
        I(f"s_and_b32 s{sT2}, s{sT2}, 3")
        I(f"s_lshl_b32 s{sT2}, s{sT2}, 2")
        I(f"v_add_u32 v{vRow+i}, s{sT2}, v{vG}")
        I(f"v_add_u32 v{76+i}, s{sT0}, v{vRow+i}")
        I(f"v_lshlrev_b32 v{76+i}, 10, v{76+i}")
        I(f"v_lshl_add_u32 v{76+i}, v{vT}, 4, v{76+i}")
    I("s_waitcnt lgkmcnt(0)")
    ids = []
    for i in range(4):
        ids.append(I(f"buffer_load_ushort v{48+i}, v10, {S(SC)}, 0 offen offset:{64*i}"))
    for i in range(4):
        I(f"s_add_u32 s{sT1}, s{sB0}, {i*32*6144}")
        ids.append(I(f"buffer_load_dwordx4 {vr(32+4*i,4)}, v11, {S(SWMOD)}, s{sT1} offen"))
    I(f"s_load_dword s{sTag}, s[{SWS}:{SWS+1}], {WS_EPOCH}")
    return ids

def ids_rest():
    I(f"s_and_b32 s{sT1}, s3, 1")
    I(f"s_and_b32 s{sT2}, s{sJ}, 3")
    I(f"s_lshl_b32 s{sCtB}, s{sT1}, 2")
    I(f"s_add_u32 s{sCtB}, s{sCtB}, s{sT2}")
    I(f"s_and_b32 s{sT1}, s3, 3")
    I(f"s_lshl_b32 s{sMD}, s{sT1}, 2")
    I(f"s_add_u32 s{sMD}, s{sMD}, s{sT2}")
    I(f"s_lshr_b32 s{sT2}, s{sJ}, 2")
    I(f"s_lshr_b32 s{sT0}, s3, 2")
    I(f"s_lshl_b32 s{sGrpD}, s{sT0}, 3")
    I(f"s_add_u32 s{sGrpD}, s{sGrpD}, s{sT2}")
    I(f"s_lshr_b32 s{sT2}, s{sJ}, 4")
    I(f"s_lshl_b32 s{sGrpC}, s3, 1")
    I(f"s_add_u32 s{sGrpC}, s{sGrpC}, s{sT2}")
    I(f"s_and_b32 s{sMC}, s{sJ}, 15")
    I(f"s_and_b32 s{sCtC}, s{sJ}, 7")
    for u in range(4):
        I(f"s_mul_i32 s{sKW+u}, s{sK+u}, {128*3072//256}")
        I(f"s_lshl_b32 s{sKM+u}, s{sK+u}, 1")
    I(f"s_lshl_b32 s{sW4096}, s{sW}, 12")
def tlb_touch():
    I(f"v_and_b32 v10, 7, v{vL}")
    I(f"v_lshlrev_b32 v10, 21, v10")
    I(f"buffer_load_dword a255, v10, {S(SWS)}, 0 offen offset:64")
    I(f"v_and_b32 v10, 1, v{vL}")
    I(f"v_lshlrev_b32 v10, 20, v10")
    for b in (SWO, SWG, SWU, SWD, SOUT):
        I(f"buffer_load_dword a255, v10, {S(b)}, 0 offen")

def consts():
    for i in range(4):
        I(f"s_mov_b32 s{sSel+i}, {0x07060500 | i:#x}")
    I(f"s_mov_b32 s{sSelA}, 0x0c0c0400")
    I(f"s_mov_b32 s{sSelB}, 0x04000c0c")
    I(f"s_mov_b32 s{sL}, 0x3fb8aa3b")
    I(f"s_mov_b32 s{sL2}, 0x3fb8aa3b")
    I(f"s_mov_b32 s{sNL}, 0xbfb8aa3b")
    I(f"s_mov_b32 s{sNL2}, 0xbfb8aa3b")
    I(f"s_mov_b32 s{sHi}, 0xffff0000")
    I(f"s_mov_b32 s{sSelHi}, 0x07060302")
    I(f"s_mov_b32 s{sSelLL}, 0x05040100")
    I(f"v_cmp_eq_u32 vcc, 0, v{vTid}")
    I(f"v_mov_b32 v{vLane0}, {OOB}")
    I(f"v_cndmask_b32 v{vLane0}, v{vLane0}, 0, vcc")

XH = 64
import os
XS0, XS1 = [float(x) for x in os.environ.get('XS', '0.3,1.0').split(',')]
RAW = 192
vRow = 16
def x_issue():
    ids = {}
    for i in range(4):
        for u in range(4):
            ids[(i, u)] = I(f"buffer_load_dwordx4 {vr(RAW + (i*4+u)*4, 4)}, v{76+i}, {S(SX)}, s{sK+u} offen")
            pad(50)
    tlb_touch()
    return ids

def phaseA_compute(ids):
    I(f"v_and_b32 v6, 1, v{vL}")
    I(f"v_lshlrev_b32 v6, 5, v6")
    I(f"v_lshl_add_u32 v6, v{vG}, 3, v6")
    I(f"s_lshl_b32 s{sT0}, s{sW}, 6")
    I(f"s_add_u32 s{sT0}, s{sT0}, {L_MISC}")
    I(f"v_add_u32 v6, s{sT0}, v6")
    I(f"v_lshlrev_b32 v7, 3, v{vTid}")
    I(f"v_add_u32 v7, {L_MISC + 1024}, v7")
    I(f"v_and_b32 v8, 14, v{vL}")
    I(f"v_cmp_eq_u32 vcc, 0, v8")
    I(f"v_cndmask_b32 v6, v7, v6, vcc")
    I(f"v_and_b32 v7, 3, v{vL}")
    wait_vm(ids[3])
    for i in range(4): I(f"v_lshlrev_b32 v{48+i}, 16, v{48+i}")
    for i in range(4): I(f"v_mul_f32 v{52+i}, s{sNL}, v{48+i}")
    for i in range(4): I(f"v_min_f32 v{52+i}, 0x42f00000, v{52+i}")
    for i in range(4): I(f"v_exp_f32 v{52+i}, v{52+i}")
    for i in range(4): I(f"v_add_f32 v{52+i}, 1.0, v{52+i}")
    for i in range(4): I(f"v_rcp_f32 v{56+i}, v{52+i}")
    for i in range(4): I(f"v_mul_f32 v{72+i}, v{48+i}, v{56+i}")
    for i in range(4): I(f"v_fma_f32 v{48+i}, -v{72+i}, v{52+i}, v{48+i}")
    for i in range(4): I(f"v_fma_f32 v{48+i}, v{48+i}, v{56+i}, v{72+i}")
    bf_round4(48, 52)
    AC = 64
    for i in range(4):
        wait_vm(ids[4 + i])
        for d in range(4):
            I(f"v_lshlrev_b32 v52, 16, v{32+4*i+d}")
            I(f"v_and_b32 v53, s{sHi}, v{32+4*i+d}")
            if i == 0:
                I(f"v_mul_f32 v{AC+2*d}, v{48+i}, v52")
                I(f"v_mul_f32 v{AC+1+2*d}, v{48+i}, v53")
            else:
                I(f"v_fmac_f32 v{AC+2*d}, v{48+i}, v52")
                I(f"v_fmac_f32 v{AC+1+2*d}, v{48+i}, v53")
    for e in range(4): I(f"v_permlane32_swap_b32 v{AC+e}, v{AC+4+e}")
    for e in range(4): I(f"v_add_f32 v{AC+e}, v{AC+e}, v{AC+4+e}")
    for e in range(2): I(f"v_permlane16_swap_b32 v{AC+e}, v{AC+2+e}")
    for e in range(2): I(f"v_add_f32 v{AC+e}, v{AC+e}, v{AC+2+e}")
    for r in (8, 4, 2):
        for e in range(2):
            I(f"v_add_f32_dpp v{AC+e}, v{AC+e}, v{AC+e} row_ror:{r} row_mask:0xf bank_mask:0xf")
    I(f"ds_write_b64 v6, {vr(AC,2)}")
    I(f"v_lshlrev_b32 v7, 4, v7")
    I(f"v_add_u32 v6, {L_MISC}, v7")
def phaseA_2():
    I("s_waitcnt lgkmcnt(0)"); A.lg = []
    I("s_barrier")
    for w in range(4):
        I(f"ds_read_b128 {vr(32+4*w,4)}, v6 offset:{64*w}")
    I(f"s_add_u32 s{sTag}, s{sTag}, 0x9e3779b1")
    I(f"v_mov_b32 v{vTag}, s{sTag}")
    I(f"s_lshr_b32 s{sT0}, s{sT3}, 5")
    I(f"s_cmp_eq_u32 s{sT0}, 1")
    I(f"s_cselect_b32 s{sT1}, 1.0, 0")
    I(f"s_cmp_eq_u32 s{sT0}, 4")
    I(f"s_cselect_b32 s{sT1}, 1.0, s{sT1}")
    I(f"v_cmp_gt_u32 vcc, 4, v{vTid}")
    I(f"v_mov_b32 v6, {OOB}")
    I(f"v_cndmask_b32 v7, v6, v7, vcc")
    I(f"s_lshl_b32 s{sT0}, s{sT3}, 6")
    I(f"s_add_u32 s{sT0}, s{sT0}, {WS_MODF}")
    wait_lg()
    for e in (0, 2):
        I(f"v_pk_add_f32 {vr(32+e,2)}, {vr(32+e,2)}, {vr(36+e,2)}")
        I(f"v_pk_add_f32 {vr(40+e,2)}, {vr(40+e,2)}, {vr(44+e,2)}")
    for e in (0, 2):
        I(f"v_pk_add_f32 {vr(32+e,2)}, {vr(32+e,2)}, {vr(40+e,2)}")
    bf_round4(32, 36)
    for e in range(4): I(f"v_add_f32 v{32+e}, s{sT1}, v{32+e}")
    round_tag16(32, 36)
    I(f"buffer_store_dwordx4 v[32:35], v7, {S(SWS)}, s{sT0} offen sc1")

def rows128_voff(vb, pitch, std, extra_s=None):
    r_ = rec(_rows128_voff, vb, pitch, std, extra_s)
    import re as _re
    for o, _ in r_.ops:
        I(_re.sub(r"\bv([6-9])\b", lambda m: f"v{TMPV[int(m.group(1)) - 6]}", o[1]))
TMPV = [6, 7, 8, 9]
def _rows128_voff(vb, pitch, std, extra_s=None):
    I(f"v_lshrrev_b32 v6, 3, v{vL}")
    I(f"v_bfe_u32 v7, v{vL}, 4, {1 if std else 2}")
    I(f"v_bfe_u32 v8, v{vL}, 1, 2")
    I(f"v_xor_b32 v8, v8, v7")
    I(f"v_and_b32 v9, 1, v{vL}")
    I(f"v_lshlrev_b32 v9, 4, v9")
    I(f"v_lshl_add_u32 v9, v8, 5, v9")
    I(f"v_mul_u32_u24 v6, {pitch}, v6")
    if extra_s is not None: I(f"v_add_u32 v6, s{extra_s}, v6")
    I(f"v_add_u32 v{vb}, v6, v9")
    if std:
        I(f"v_xor_b32 v9, 64, v9")
        I(f"v_add_u32 v{vb+1}, v6, v9")
        I(f"v_add_u32 v{vb+1}, {8*pitch - 1024}, v{vb+1}")
    else:
        I(f"v_add_u32 v{vb+1}, {8*pitch - 1024}, v{vb}")
    I(f"v_add_u32 v{vb+2}, {2*(8*pitch - 1024)}, v{vb}")
    I(f"v_add_u32 v{vb+3}, {2*(8*pitch - 1024)}, v{vb+1}")

def dma4(vb, srd_, m0_s, m0_imm, so_s, so_imm, flags=""):
    if E.t is not A and not hasattr(E.t, "first_dma"): E.t.first_dma = len(E.t.ops)
    I(f"s_add_u32 m0, s{m0_s}, {m0_imm}")
    I(f"s_add_u32 s{sB0}, s{so_s}, {so_imm}")
    for i in range(4):
        last = I(f"buffer_load_dwordx4 v{vb[i] if isinstance(vb, list) else vb+i}, {srd_}, s{sB0} offen offset:{i*1024}{flags} lds")
        pad(100)
    return last

vBG = 24
def KF(u, s): return (u * 4 + s) * 4
def VF(u, s): return 64 + (u * 4 + s) * 4
def QF(u, s): return 128 + (u * 4 + s) * 4
USLOT = [0, 96 * K, 48 * K, 96 * K]
def wq_addr():
    I(f"s_mul_i32 s{sT0}, s{sW}, {32*3072}")
    I(f"s_lshl_b32 s{sT1}, s{sCtB}, 7")
    I(f"s_add_u32 s{sT0}, s{sT0}, s{sT1}")
    rows128_voff(vBG, 3072, True, sT0)
    I(f"v_bfe_u32 v6, v{vL}, 2, 2")
    I(f"v_lshl_add_u32 v6, v{vG}, 3, v6")
    I(f"v_lshlrev_b32 v6, 7, v6")
    I(f"v_bfe_u32 v7, v{vL}, 3, 2")
    I(f"v_xor_b32 v7, s{sW}, v7")
    I(f"v_lshl_add_u32 v6, v7, 5, v6")
    I(f"v_and_b32 v7, 3, v{vL}")
    I(f"v_lshl_add_u32 v28, v7, 3, v6")
    I(f"v_add_u32 v29, {48*K}, v28")
    I(f"v_add_u32 v30, {96*K}, v28")
def wq_dma(u, subs=(0, 1, 2)):
    for sub in subs:
        sg = (1, 2, 0)[sub]
        last = dma4(vBG, S(SWQKV), sW4096, USLOT[u] + sub * 16 * K, sKW + u, sg * 1024)
    return last
def wq_tr(u):
    base = 28 + USLOT[u] // (48 * K)
    for s in range(4):
        for sub in range(3):
            f = (KF, VF, QF)[sub](u, s)
            I(f"ds_read_b64_tr_b16 {ar(f,2)}, v{base} offset:{sub*16*K + s*4096}")
            I(f"ds_read_b64_tr_b16 {ar(f+2,2)}, v{base} offset:{sub*16*K + s*4096 + 512}")

def ln_one(xids, i):
    if True:
        wait_vm(xids[(i, 3)])
        xb = XH + i * 32
        for q in range(16):
            I(f"v_lshlrev_b32 v{xb+2*q}, 16, v{RAW+i*16+q}")
            I(f"v_and_b32 v{xb+2*q+1}, s{sHi}, v{RAW+i*16+q}")
        I(f"v_pk_add_f32 v[32:33], {vr(xb,2)}, {vr(xb+2,2)}")
        I(f"v_pk_add_f32 v[34:35], {vr(xb+4,2)}, {vr(xb+6,2)}")
        for q in range(4, 16, 2):
            I(f"v_pk_add_f32 v[32:33], v[32:33], {vr(xb+2*q,2)}")
            I(f"v_pk_add_f32 v[34:35], v[34:35], {vr(xb+2*q+2,2)}")
        I("v_pk_add_f32 v[32:33], v[32:33], v[34:35]")
        I("v_add_f32 v32, v32, v33")
        for r in (8, 4, 2, 1):
            I(f"v_add_f32_dpp v32, v32, v32 row_ror:{r} row_mask:0xf bank_mask:0xf")
        I("v_mul_f32 v32, 0xbb000000, v32")
        for q in range(16):
            I(f"v_pk_add_f32 {vr(xb+2*q,2)}, {vr(xb+2*q,2)}, v[32:33] op_sel_hi:[1,0]")
        I(f"v_pk_mul_f32 v[34:35], {vr(xb,2)}, {vr(xb,2)}")
        I(f"v_pk_mul_f32 v[36:37], {vr(xb+2,2)}, {vr(xb+2,2)}")
        for q in range(2, 16, 2):
            I(f"v_pk_fma_f32 v[34:35], {vr(xb+2*q,2)}, {vr(xb+2*q,2)}, v[34:35]")
            I(f"v_pk_fma_f32 v[36:37], {vr(xb+2*q+2,2)}, {vr(xb+2*q+2,2)}, v[36:37]")
        I("v_pk_add_f32 v[34:35], v[34:35], v[36:37]")
        I("v_add_f32 v34, v34, v35")
        for r in (8, 4, 2, 1):
            I(f"v_add_f32_dpp v34, v34, v34 row_ror:{r} row_mask:0xf bank_mask:0xf")
        I("v_mov_b32 v35, 0x3727c5ac")
        I("v_fmac_f32 v35, 0x3b000000, v34")
        I("v_rsq_f32 v34, v35")
        for q in range(16):
            I(f"v_pk_mul_f32 {vr(xb+2*q,2)}, {vr(xb+2*q,2)}, v[34:35] op_sel_hi:[1,0]")

def layernorm(xids):
    import re as _re
    for p in (0, 2):
        ra = rec(ln_one, xids, p); rb = rec(ln_one, xids, p + 1)
        def shift(t):
            t = _re.sub(r"v\[(3[2-7]):(3[2-7])\]", lambda m: f"v[{int(m.group(1))+22}:{int(m.group(2))+22}]", t)
            return _re.sub(r"\bv(3[2-7])\b", lambda m: f"v{int(m.group(1))+22}", t)
        wait_vm(xids[(p + 1, 3)])
        for (a, _), (b, _) in zip(ra.ops, rb.ops):
            if a[0] != "I": continue
            I(a[1]); I(shift(b[1]))

def gm_loads(sets, G0):
    out = None
    for k, n in enumerate(sets):
        I(f"s_mov_b32 s{sB2}, {WS_MODF + n*4096}")
        out = I(f"buffer_load_dwordx4 {vr(G0+4*k,4)}, v11, {S(SWS)}, s{sB2} offen sc1")
    return out
def gm_issue(sets, G0):
    I(f"v_lshlrev_b32 v11, 4, v{vTid}")
    return gm_loads(sets, G0)
def gm_finish(sets, G0, last):
    def checks():
        for k in range(len(sets)):
            check16(8, G0 + 4 * k, 9, k == 0)
            check16(8, G0 + 4 * k + 2, 9, False)
        I("v_cmp_ne_u32 vcc, 0, v8")
    wait_vm(last)
    checks()
    def body():
        gm_loads(sets, G0); I("s_waitcnt vmcnt(0)"); A.vm = []; checks()
    spin_loop(body, first_done=True)
    if sets == [0]:
        I(f"v_lshrrev_b32 v6, 5, v{vTid}")
        I(f"v_lshlrev_b32 v6, 9, v6")
        I(f"v_and_b32 v8, 1, v{vTid}")
        I(f"v_lshl_add_u32 v6, v8, 8, v6")
        I(f"v_bfe_u32 v8, v{vTid}, 1, 4")
        I(f"v_lshl_add_u32 v6, v8, 4, v6")
        I(f"v_add_u32 v6, {L_MODV}, v6")
    else:
        I(f"v_add_u32 v6, {L_MODV}, v11")
    for k, n in enumerate(sets):
        for e in range(4):
            I(f"v_and_b32 v{G0+4*k+e}, s{sHi}, v{G0+4*k+e}")
        I(f"ds_write_b128 v6, {vr(G0+4*k,4)} offset:{n*4096}")
    if sets == [1, 2]:
        I(f"v_cmp_gt_u32 vcc, 128, v{vTid}")
        for e in range(4):
            I(f"v_cndmask_b32 v{G0+e}, v{G0+e}, v{G0+4+e}, vcc")
        I(f"v_perm_b32 v{G0+4}, v{G0+1}, v{G0}, s{sSelHi}")
        I(f"v_perm_b32 v{G0+5}, v{G0+3}, v{G0+2}, s{sSelHi}")
        I(f"v_lshrrev_b32 v6, 3, v{vTid}")
        I(f"v_lshlrev_b32 v6, 6, v6")
        I(f"v_and_b32 v8, 3, v{vTid}")
        I(f"v_lshl_add_u32 v6, v8, 4, v6")
        I(f"v_bfe_u32 v8, v{vTid}, 2, 1")
        I(f"v_lshl_add_u32 v6, v8, 3, v6")
        I(f"v_add_u32 v6, {L_UV}, v6")
        I(f"ds_write_b64 v6, {vr(G0+4,2)}")

def h_addr():
    for i in range(4):
        I(f"v_xor_b32 v6, v{vT}, v{vRow+i}")
        I(f"v_lshlrev_b32 v6, 4, v6")
        I(f"v_lshl_add_u32 v6, v{vRow+i}, 8, v6")
        I(f"v_add_u32 v{vRow+i}, s{sW4096}, v6")
    I(f"v_lshlrev_b32 v20, 4, v{vT}")
    I(f"v_add_u32 v20, {L_MODV}, v20")
    for s in range(4):
        I(f"v_add_u32 v6, {4*s}, v{vG}")
        I(f"v_xor_b32 v6, v6, v{vT}")
        I(f"v_lshlrev_b32 v6, 4, v6")
        I(f"v_lshl_add_u32 v{12+s}, v{vT}, 8, v6")

def make_h_rd(u, mb):
    I(f"v_add_u32 v6, s{sKM+u}, v20")
    I(f"ds_read_b128 {vr(mb,4)}, v6 offset:2048")
    I(f"ds_read_b128 {vr(mb+4,4)}, v6 offset:2304")
    I(f"ds_read_b128 {vr(mb+8,4)}, v6")
    return I(f"ds_read_b128 {vr(mb+12,4)}, v6 offset:256")
def make_h_do(u, mb, pk, x):
    wait_lg(x)
    for i in range(4):
        b = XH + (i * 4 + u) * 8
        if pk:
            for e in range(0, 8, 2):
                I(f"v_pk_fma_f32 {vr(b+e,2)}, {vr(b+e,2)}, {vr(mb+e,2)}, {vr(mb+8+e,2)}")
        else:
            for e in range(8):
                I(f"v_fma_f32 v{b+e}, v{b+e}, v{mb+e}, v{mb+8+e}")
        for e in range(4):
            I(f"v_cvt_pk_bf16_f32 v{b+e}, v{b+2*e}, v{b+2*e+1}")
        I(f"ds_write_b128 v{vRow+i}, {vr(b,4)} offset:{u*16*K}")
def make_h_first():
    xs = [make_h_rd(u, 192 + 16 * u) for u in range(4)]
    pad(100)
    for u in range(3): make_h_do(u, 192 + 16 * u, True, xs[u])

ACC = 192
def accK(rt): return ACC + rt * 4
def accV(rt): return ACC + 16 + rt * 4
def accQ(rt): return ACC + 32 + rt * 4
def a_rd(k, rt):
    u, s = k >> 2, k & 3
    b = 32 + (k % 3) * 16 + 4 * rt
    return I(f"ds_read_b128 {vr(b,4)}, v{12+s} offset:{u*16*K + rt*4096}")

def gemm_kv_chunk(u, cur):
    for s in range(4):
        k = 4 * u + s
        nxt = []
        for rt in range(4):
            if s < 3: nxt.append(a_rd(k + 1, rt))
            wait_lg(cur[rt])
            h = vr(32 + (k & 1) * 16 + 4 * rt, 4)
            I(f"v_mfma_f32_16x16x32_bf16 {vr(accK(rt),4)}, {ar(KF(u,s),4)}, {h}, {vr(accK(rt),4) if k else 0}")
            I(f"v_mfma_f32_16x16x32_bf16 {vr(accV(rt),4)}, {h}, {ar(VF(u,s),4)}, {vr(accV(rt),4) if k else 0}")
        cur = nxt

def gemm_q():
    cur = [a_rd(0, rt) for rt in range(4)]
    for k in range(16):
        nxt = []
        for rt in range(4):
            if k < 15: nxt.append(a_rd(k + 1, rt))
            if rt % 2 == 0: wait_lg(cur[rt + 1])
            h = vr(32 + (k & 1) * 16 + 4 * rt, 4)
            I(f"v_mfma_f32_16x16x32_bf16 {vr(accQ(rt),4)}, {ar(QF(k>>2,k&3),4)}, {h}, {vr(accQ(rt),4) if k else 0}")
        cur = nxt

APHI = 136
def wphi_issue():
    I(f"s_lshl_b32 s{sHead}, s{sCtB}, 2")
    I(f"s_add_u32 s{sHead}, s{sHead}, s{sW}")
    I(f"s_lshl_b32 s{sT0}, s{sHead}, 9")
    I(f"v_bfe_u32 v6, v{vL}, 3, 2")
    I(f"v_and_b32 v7, 3, v{vL}")
    I(f"v_lshl_add_u32 v6, v6, 2, v7")
    I(f"v_lshlrev_b32 v6, 1, v6")
    I(f"v_lshrrev_b32 v7, 5, v{vL}")
    I(f"v_lshl_add_u32 v6, v7, 8, v6")
    for j in range(8):
        last = I(f"buffer_load_ushort v{44+j}, v6, {S(SWPHI)}, s{sT0} offen offset:{32*j}")
    return last
def wphi_pack():
    I(f"v_bfe_u32 v6, v{vL}, 2, 1")
    I(f"v_mul_u32_u24 v6, 0x8000, v6")
    I(f"v_lshl_or_b32 v6, v6, 16, v6")
    for e in range(4):
        I(f"v_lshl_or_b32 v{44+e}, v{45+2*e}, 16, v{44+2*e}")
    for e in range(4):
        I(f"v_xor_b32 v{APHI+e}, v6, v{44+e}")

def softmax(acc, OUT, fill=None):
    P = [64, 80]; XB = [96, 100]; M = [104, 112]
    for p in range(2):
        for h in range(2):
            a = acc(2 * p + h)
            I(f"v_cvt_pk_bf16_f32 v{XB[p]+2*h}, v{a}, v{a+1}")
            I(f"v_cvt_pk_bf16_f32 v{XB[p]+2*h+1}, v{a+2}, v{a+3}")
    for p in range(2):
        I(f"v_permlane16_swap_b32 v{XB[p]}, v{XB[p]+2}")
        I(f"v_permlane16_swap_b32 v{XB[p]+1}, v{XB[p]+3}")
    for p in range(2):
        I(f"v_mfma_f32_32x32x16_bf16 {vr(P[p],16)}, {vr(APHI,4)}, {vr(XB[p],4)}, 0")
    if fill: fill()
    def chain(p):
        b = P[p]; m = M[p]
        for q in range(5): I(f"v_max3_f32 v{m+q}, v{b+3*q}, v{b+3*q+1}, v{b+3*q+2}")
        I(f"v_max3_f32 v{m}, v{m}, v{m+1}, v{m+2}")
        I(f"v_max3_f32 v{m+3}, v{m+3}, v{m+4}, v{b+15}")
        I(f"v_max_f32 v{m}, v{m}, v{m+3}")
        I(f"v_mul_f32 v{m}, s{sNL}, v{m}")
        for q in range(0, 16, 2):
            I(f"v_pk_fma_f32 {vr(b+q,2)}, {vr(b+q,2)}, {sr(sL,2)}, {vr(m,2)} op_sel_hi:[1,1,0]")
        for q in range(16): I(f"v_exp_f32 v{b+q}, v{b+q}")
        for q in range(4): I(f"v_pk_add_f32 {vr(m+2*q,2)}, {vr(b+4*q,2)}, {vr(b+4*q+2,2)}")
        I(f"v_pk_add_f32 {vr(m,2)}, {vr(m,2)}, {vr(m+2,2)}")
        I(f"v_pk_add_f32 {vr(m+4,2)}, {vr(m+4,2)}, {vr(m+6,2)}")
        I(f"v_pk_add_f32 {vr(m,2)}, {vr(m,2)}, {vr(m+4,2)}")
        I(f"v_add_f32 v{m}, v{m}, v{m+1}")
        I(f"v_rcp_f32 v{m}, v{m}")
        for q in range(0, 16, 2):
            I(f"v_pk_mul_f32 {vr(b+q,2)}, {vr(b+q,2)}, {vr(m,2)} op_sel_hi:[1,0]")
        for q in range(8): I(f"v_cvt_pk_bf16_f32 v{OUT+8*p+q}, v{b+2*q}, v{b+2*q+1}")
    r0 = rec(chain, 0); r1 = rec(chain, 1)
    lag = 6
    o0 = [o[1] for o, _ in r0.ops]; o1 = [o[1] for o, _ in r1.ops]
    for k in range(len(o0) + lag):
        if k < len(o0): I(o0[k])
        if k >= lag: I(o1[k - lag])

L_PT = 128 * K
def epi_k_pre():
    ONES = 168
    I(f"s_add_u32 s{sT1}, s{sW4096}, {L_PT}")
    I(f"v_and_b32 v8, 31, v{vL}")
    I(f"v_lshlrev_b32 v8, 6, v8")
    I(f"v_lshrrev_b32 v9, 5, v{vL}")
    I(f"v_lshlrev_b32 v9, 1, v9")
    I(f"v_bfe_u32 v10, v{vL}, 1, 2")
    I(f"v_xor_b32 v9, v9, v10")
    I(f"v_lshl_add_u32 v8, v9, 4, v8")
    I(f"v_add_u32 v8, s{sT1}, v8")
    I(f"v_xor_b32 v143, 16, v8")
    I(f"v_lshrrev_b32 v9, 2, v{vL}")
    I(f"v_lshlrev_b32 v9, 6, v9")
    I(f"v_bfe_u32 v10, v{vL}, 1, 1")
    I(f"v_bfe_u32 v11, v{vL}, 3, 2")
    I(f"v_xor_b32 v10, v10, v11")
    I(f"v_lshl_add_u32 v9, v10, 4, v9")
    I(f"v_and_b32 v10, 1, v{vL}")
    I(f"v_lshl_add_u32 v9, v10, 3, v9")
    I(f"v_add_u32 v9, s{sT1}, v9")
    I(f"v_xor_b32 v10, 32, v9")
    for e in range(4): I(f"v_mov_b32 v{ONES+e}, 0x3f803f80")
def epi_k():
    PK = 144; VFR = 160; ONES = 168
    def fill():
        for kp in range(2):
            for hh in range(2):
                a = accV(2 * kp + hh)
                I(f"v_cvt_pk_bf16_f32 v{VFR+4*kp+2*hh}, v{a}, v{a+1}")
                I(f"v_cvt_pk_bf16_f32 v{VFR+4*kp+2*hh+1}, v{a+2}, v{a+3}")
    softmax(accK, PK, fill)
    for p in range(2):
        I(f"ds_write_b128 v8, {vr(PK+8*p,4)} offset:{p*2048}")
        I(f"ds_write_b128 v143, {vr(PK+8*p+4,4)} offset:{p*2048}")
    PT = 64
    for T in range(2):
        for kp in range(2):
            f = PT + (T * 2 + kp) * 4
            I(f"ds_read_b64_tr_b16 {vr(f,2)}, v{9+T} offset:{kp*2048}")
            x = I(f"ds_read_b64_tr_b16 {vr(f+2,2)}, v{9+T} offset:{kp*2048 + 1024}")
    I(f"s_lshl_b32 s{sT0}, s{sHead}, 5")
    I(f"s_add_u32 s{sT0}, s{sT0}, s{sRbB}")
    I(f"s_mul_i32 s{sT0}, s{sT0}, {KVREC}")
    I(f"s_add_u32 s{sT0}, s{sT0}, {WS_KVP}")
    I(f"v_lshlrev_b32 v8, 5, v{vG}")
    I(f"v_lshl_add_u32 v8, v{vT}, 4, v8")
    I(f"v_mov_b32 v9, {OOB}")
    I(f"v_cmp_gt_u32 vcc, 2, v{vT}")
    I(f"v_cndmask_b32 v8, v9, v8, vcc")
    I(f"v_cmp_eq_u32 vcc, 1, v{vT}")
    wait_lg(x)
    KV = 172; Z = 180
    for kp in range(2):
        for T in range(2):
            f = vr(PT + (T * 2 + kp) * 4, 4)
            I(f"v_mfma_f32_16x16x32_bf16 {vr(KV+4*T,4)}, {f}, {vr(VFR+4*kp,4)}, {vr(KV+4*T,4) if kp else 0}")
    for kp in range(2):
        for T in range(2):
            f = vr(PT + (T * 2 + kp) * 4, 4)
            I(f"v_mfma_f32_16x16x32_bf16 {vr(Z+4*T,4)}, {f}, {vr(ONES,4)}, {vr(Z+4*T,4) if kp else 0}")
    tag4(KV); tag4(KV + 4)
    I(f"buffer_store_dwordx4 {vr(KV,4)}, v{vL16}, {S(SWS)}, s{sT0} offen sc1")
    I(f"buffer_store_dwordx4 {vr(KV+4,4)}, v{vL16}, {S(SWS)}, s{sT0} offen offset:1024 sc1")
    for e in range(4):
        I(f"v_cndmask_b32 v{Z+e}, v{Z+e}, v{Z+4+e}, vcc")
    tag4(Z)
    I(f"buffer_store_dwordx4 {vr(Z,4)}, v8, {S(SWS)}, s{sT0} offen offset:2048 sc1")

def epi_q():
    PQ = 144
    def fill():
        I(f"s_lshl_b32 s{sT0}, s{sRbB}, 7")
        I(f"s_add_u32 s{sT0}, s{sT0}, s{sHead}")
        I(f"s_lshl_b32 s{sT0}, s{sT0}, 10")
        I(f"s_add_u32 s{sT0}, s{sT0}, {WS_PHIQ}")
        I(f"s_lshl_b32 s{sT1}, s{sRbB}, 3")
        I(f"s_add_u32 s{sT1}, s{sT1}, s{sCtB}")
        I(f"s_lshl_b32 s{sT1}, s{sT1}, 7")
        I(f"s_add_u32 s{sT1}, s{sT1}, {WS_FQ}")
        I(f"v_and_b32 v6, 1, v{vG}")
        I(f"v_lshlrev_b32 v6, 15, v6")
        I(f"v_lshrrev_b32 v7, 1, v{vG}")
        I(f"v_lshl_add_u32 v6, v7, 9, v6")
        I(f"v_lshl_add_u32 v6, v{vT}, 4, v6")
    softmax(accQ, PQ, fill)
    for p in range(2):
        I(f"buffer_store_dwordx4 {vr(PQ+8*p,4)}, v6, {S(SWS)}, s{sT0} offen sc1")
        last = I(f"buffer_store_dwordx4 {vr(PQ+8*p+4,4)}, v6, {S(SWS)}, s{sT0} offen offset:256 sc1")
        if p == 0: I(f"s_add_u32 s{sT0}, s{sT0}, 65536")
    return last

def gemm_kv(k0, k1, rds):
    for k in range(k0, k1):
        u, s = k >> 2, k & 3
        nxt = []
        for rt in range(4):
            if k + 2 < 16: nxt.append(a_rd(k + 2, rt))
            if rt == 0: wait_lg(rds[k][3])
            h = vr(32 + (k % 3) * 16 + 4 * rt, 4)
            I(f"v_mfma_f32_16x16x32_bf16 {vr(accK(rt),4)}, {ar(KF(u,s),4)}, {h}, {vr(accK(rt),4) if k else 0}")
            I(f"v_mfma_f32_16x16x32_bf16 {vr(accV(rt),4)}, {h}, {ar(VF(u,s),4)}, {vr(accV(rt),4) if k else 0}")
            I(f"v_mfma_f32_16x16x32_bf16 {vr(accQ(rt),4)}, {ar(QF(u,s),4)}, {h}, {vr(accQ(rt),4) if k else 0}")
        rds[k + 2] = nxt
    return rds

RR = 172
def kv_reduce_pre():
    I(f"s_and_b32 s{sT0}, s2, 7")
    I(f"s_lshl_b32 s{sT1}, s{sT0}, 4")
    I(f"s_add_u32 s{sT1}, s{sT1}, 2048")
    I(f"s_lshl_b32 s{sT0}, s{sT0}, 2")
    I(f"s_add_u32 s{sT0}, s{sT0}, s{sW}")
    I(f"s_lshl_b32 s{sT0}, s{sT0}, 6")
    I(f"v_and_b32 v128, 7, v{vL}")
    I(f"v_lshlrev_b32 v129, 4, v128")
    I(f"v_add_u32 v129, s{sT0}, v129")
    I(f"v_mov_b32 v130, s{sT1}")
    I(f"v_cmp_gt_u32 vcc, 4, v128")
    I(f"v_cndmask_b32 v129, v130, v129, vcc")
    I(f"v_lshrrev_b32 v130, 3, v{vL}")
    I(f"v_mul_u32_u24 v130, {KVREC}, v130")
    I(f"v_add_u32 v130, v130, v129")
    I(f"s_mul_i32 s{sP0}, s{sJ}, {32*KVREC}")
    I(f"s_add_u32 s{sP0}, s{sP0}, {WS_KVP}")
    I(f"s_mul_i32 s{sP1}, s{sJ}, {KVREC}")
    I(f"s_add_u32 s{sP1}, s{sP1}, {WS_KVF}")
    I(f"s_mov_b32 s{sP2}, 0xffffff00")
    I(f"v_cmp_gt_u32 vcc, 5, v{vL}")
    I(f"v_mov_b32 v128, {OOB}")
    I(f"v_cndmask_b32 v129, v128, v129, vcc")
def kv_reduce_loads():
    for n in range(4):
        I(f"s_add_u32 s{sT2}, s{sP0}, {n*8*KVREC}")
        last = I(f"buffer_load_dwordx4 {vr(RR+4*n,4)}, v130, {S(SWS)}, s{sT2} offen sc1")
    return last
def kv_reduce_finish(last):
    R = RR
    def checks():
        for n in range(4): check4(8, R + 4 * n, 9, 10, n == 0)
        I("v_cmp_ne_u32 vcc, 0, v8")
    wait_vm(last)
    checks()
    def body():
        kv_reduce_loads(); I("s_waitcnt vmcnt(0)"); A.vm = []; checks()
    spin_loop(body, first_done=True)
    for q in range(16):
        I(f"v_and_b32 v{R+q}, s{sP2}, v{R+q}")
    for st in (8, 4):
        for q in range(0, st, 2):
            I(f"v_pk_add_f32 {vr(R+q,2)}, {vr(R+q,2)}, {vr(R+st+q,2)}")
    for e in range(4):
        I(f"v_add_f32_dpp v{R+e}, v{R+e}, v{R+e} row_ror:8 row_mask:0xf bank_mask:0xf")
    for op in ("v_permlane16_swap_b32", "v_permlane32_swap_b32"):
        for e in range(4): I(f"v_mov_b32 v{R+4+e}, v{R+e}")
        for e in range(4): I(f"{op} v{R+e}, v{R+4+e}")
        for e in (0, 2): I(f"v_pk_add_f32 {vr(R+e,2)}, {vr(R+e,2)}, {vr(R+4+e,2)}")
    round_tag16(R, R + 4)
    I(f"buffer_store_dwordx4 {vr(R,4)}, v129, {S(SWS)}, s{sP1} offen sc1")

def pf_wo():
    I(f"s_lshl_b32 s{sB1}, s{sJ}, 14")
    I(f"s_add_u32 s{sB1}, s{sB1}, s{sW4096}")
    I(f"v_and_b32 v21, 31, v{vL}")
    I(f"v_lshlrev_b32 v21, 7, v21")
    I(f"buffer_load_dword a255, v21, {S(SWO)}, s{sB1} offen")
def pf_gu():
    I(f"s_cmp_ge_u32 s{sW}, 2")
    I(f"s_cselect_b32 s{SGU}, s{SWU}, s{SWG}")
    I(f"s_cselect_b32 s{SGU+1}, s{SWU+1}, s{SWG+1}")
    I(f"s_mov_b32 s{SGU+2}, {512*1376*2}")
    I(f"s_mov_b32 s{SGU+3}, 0x20000")
    I(f"s_lshl_b32 s{sB1}, s{sJ}, 1")
    I(f"s_and_b32 s{sB2}, s{sW}, 1")
    I(f"s_add_u32 s{sB1}, s{sB1}, s{sB2}")
    I(f"s_mul_i32 s{sB1}, s{sB1}, {8*2752}")
    I(f"s_and_b32 s{sB2}, s2, 3")
    I(f"s_mul_i32 s{sB2}, s{sB2}, {32*21846}")
    I(f"s_lshr_b32 s{sB2}, s{sB2}, 16")
    I(f"s_lshl_b32 s{sB2}, s{sB2}, 6")
    I(f"s_add_u32 s{sB1}, s{sB1}, s{sB2}")
    I(f"v_lshrrev_b32 v21, 3, v{vL}")
    I(f"v_mul_u32_u24 v21, 2752, v21")
    I(f"v_and_b32 v22, 7, v{vL}")
    I(f"v_mul_u32_u24 v22, 100, v22")
    I(f"v_add_u32 v21, v21, v22")
    I(f"buffer_load_dword a255, v21, {S(SGU)}, s{sB1} offen")
def pf_wd():
    I(f"s_mul_i32 s{sT2}, s2, {43*128}")
    I(f"s_mul_i32 s{sT3}, s{sW}, {11*128}")
    I(f"s_add_u32 s{sT2}, s{sT2}, s{sT3}")
    I(f"v_min_u32 v21, 10, v{vL}")
    I(f"v_lshlrev_b32 v21, 7, v21")
    I(f"buffer_load_dword a255, v21, {S(SWD)}, s{sT2} offen")

WOF = 192
L_WO = 64 * K
def wo_dma():
    for n in range(4): I(f"v_accvgpr_read_b32 v{vBG+n}, a{243+n}")
    I(f"s_lshl_b32 s{sB1}, s{sW}, 17")
    I(f"s_lshl_b32 s{sB2}, s{sCtC}, 7")
    I(f"s_add_u32 s{sB1}, s{sB1}, s{sB2}")
    I(f"s_lshl_b32 s{sB2}, s{sW}, 14")
    for s in range(4):
        last = dma4(vBG, S(SWO), sB2, L_WO + s * 4096, sB1, s * 32768)
    return last
def wo_tr_v():
    I(f"v_lshrrev_b32 v28, 2, v{vL}")
    I(f"v_lshlrev_b32 v28, 7, v28")
    I(f"v_bfe_u32 v29, v{vL}, 3, 2")
    I(f"s_and_b32 s{sB2}, s{sW}, 2")
    I(f"v_xor_b32 v29, s{sB2}, v29")
    I(f"v_lshl_add_u32 v28, v29, 5, v28")
    I(f"v_and_b32 v29, 3, v{vL}")
    I(f"v_lshl_add_u32 v28, v29, 3, v28")
    I(f"s_lshl_b32 s{sB2}, s{sW}, 14")
    I(f"s_add_u32 s{sB2}, s{sB2}, {L_WO}")
    I(f"v_add_u32 v28, s{sB2}, v28")
def wo_tr_pre():
    I("v_accvgpr_read_b32 v28, a247")
    for c in range(1, 4):
        I(f"v_xor_b32 v{28+c}, {c*32}, v28")
def wo_tr(last):
    wait_vm(last)
    for s in range(4):
        for c in range(4):
            f = WOF + (s * 4 + c) * 4
            I(f"ds_read_b64_tr_b16 {ar(f,2)}, v{28+c} offset:{s*4096}")
            I(f"ds_read_b64_tr_b16 {ar(f+2,2)}, v{28+c} offset:{s*4096+2048}")

def ren(fn, mp):
    import re as _re
    r_ = rec(fn)
    for o, _ in r_.ops:
        if o[0] == "I": I(_re.sub(r"\bv(\d+)\b", lambda m: f"v{mp.get(int(m.group(1)), int(m.group(1)))}", o[1]))
def early_setup():
    mp = {k: k + 76 for k in list(range(6, 12)) + list(range(24, 32))}
    mp.update({128: 90, 129: 91, 130: 92, 143: 93, 168: 94, 169: 94, 170: 94, 171: 94})
    ren(wgu_setup_v, mp)
    for n in range(3): I(f"v_accvgpr_write_b32 a{240+n}, v{100+n}")
    ren(lambda: rows128_voff(vBG, 1024, False), mp)
    for n in range(4): I(f"v_accvgpr_write_b32 a{243+n}, v{100+n}")
    ren(wo_tr_v, mp)
    I(f"v_accvgpr_write_b32 a247, v104")
    ren(epi_k_pre, mp)
    I(f"v_accvgpr_write_b32 a248, v84")
    I(f"v_accvgpr_write_b32 a249, v85")
    ren(kv_reduce_pre, mp)
    I(f"v_accvgpr_write_b32 a250, v91")
    I(f"v_accvgpr_write_b32 a251, v92")
def unpark_rest():
    I("v_accvgpr_read_b32 v8, a248")
    I("v_accvgpr_read_b32 v9, a249")
    I("v_accvgpr_read_b32 v129, a250")
    I("v_accvgpr_read_b32 v130, a251")
    I("v_xor_b32 v143, 16, v8")
    I("v_xor_b32 v10, 32, v9")
    for e in range(4): I(f"v_mov_b32 v{168+e}, 0x3f803f80")

def GF(c, ks): return (ks * 3 + c) * 4
GSLOT = [0, 64 * K, 0, 48 * K]
def wgu_setup_v():
    for n in range(3):
        I(f"v_add_u32 v27, {64*n}, v{vL}")
        I(f"v_mul_u32_u24 v28, 5462, v27")
        I(f"v_lshrrev_b32 v28, 16, v28")
        I(f"v_mul_u32_u24 v29, 12, v28")
        I(f"v_sub_u32 v29, v27, v29")
        I(f"v_bfe_u32 v30, v28, 2, 1")
        I(f"v_lshlrev_b32 v30, 1, v30")
        I(f"v_xor_b32 v29, v29, v30")
        I(f"v_mul_u32_u24 v28, 2752, v28")
        I(f"v_lshl_add_u32 v{vBG+n}, v29, 4, v28")
        if n: I(f"v_subrev_u32 v{vBG+n}, {n*1024}, v{vBG+n}")
def wgu_setup():
    I(f"s_lshl_b32 s{sB1}, s{sMD}, 3")
    I(f"s_mul_i32 s{sB1}, s{sB1}, 21846")
    I(f"s_lshr_b32 s{sB1}, s{sB1}, 16")
    I(f"s_lshl_b32 s{sFt0}, s{sB1}, 1")
    for n in range(3): I(f"v_accvgpr_read_b32 v{vBG+n}, a{240+n}")
    I(f"s_and_b32 s{sB1}, s{sW}, 1")
    I(f"s_mul_i32 s{sB1}, s{sB1}, {64*2752}")
    I(f"s_lshl_b32 s{sB2}, s{sFt0}, 5")
    I(f"s_add_u32 s{sB1}, s{sB1}, s{sB2}")
    for q in range(4):
        I(f"s_add_u32 s{sB2}, s{sGrpD}, {q}")
        I(f"s_and_b32 s{sB2}, s{sB2}, 3")
        I(f"s_mul_i32 s{sKW+q}, s{sB2}, {128*2752}")
        I(f"s_add_u32 s{sKW+q}, s{sKW+q}, s{sB1}")
        I(f"s_lshl_b32 s{sK+q}, s{sB2}, 12")
        I(f"s_lshl_b32 s{sKM+q}, s{sB2}, 9")
    I(f"s_mul_i32 s{sB1}, s{sW}, 12288")
def wgu_traddr():
    I(f"s_lshr_b32 s{sB2}, s{sW}, 1")
    I(f"s_mul_i32 s{sTz}, s{sB2}, 3")
    I(f"s_and_b32 s{sB2}, s{sW}, 1")
    I(f"s_lshl_b32 s{sTx}, s{sB2}, 1")
    I(f"s_add_u32 s{sTx}, s{sTx}, s{sTz}")
    I(f"s_add_u32 s{sTz}, s{sTz}, 1")
    I(f"v_lshrrev_b32 v27, 2, v{vL}")
    I(f"v_mul_u32_u24 v27, 192, v27")
    I(f"v_and_b32 v31, 3, v{vL}")
    I(f"v_lshl_add_u32 v27, v31, 3, v27")
    I(f"v_and_b32 v31, 1, v{vG}")
    I(f"v_xor_b32 v30, s{sTx}, v31")
    I(f"v_lshl_add_u32 v28, v30, 5, v27")
    I(f"v_add_u32 v29, 24576, v28")
    I(f"v_xor_b32 v30, s{sTz}, v31")
    I(f"v_lshl_add_u32 v30, v30, 5, v27")
    I(f"s_mul_i32 s{sB2}, s{sB2}, 24576")
    I(f"v_add_u32 v30, s{sB2}, v30")
def wgu_dma(q):
    for p in range(4):
        I(f"s_add_u32 m0, s{sB1}, {GSLOT[q] + p*3072}")
        I(f"s_add_u32 s{sB0}, s{sKW+q}, {p*16*2752}")
        for n in range(3):
            last = I(f"buffer_load_dwordx4 v{vBG+n}, {S(SGU)}, s{sB0} offen offset:{n*1024} lds")
            pad(100)
    return last
def wgu_tr(q):
    for c in range(3):
        if GSLOT[q]:
            I(f"v_add_u32 v31, {GSLOT[q]}, v{28+c}"); b = 31
        else: b = 28 + c
        for s in range(4):
            f = GF(c, q * 4 + s)
            I(f"ds_read_b64_tr_b16 {ar(f,2)}, v{b} offset:{s*6144}")
            I(f"ds_read_b64_tr_b16 {ar(f+2,2)}, v{b} offset:{s*6144+3072}")

def wgu_tr3():
    r_ = rec(lambda: (wgu_traddr(), wgu_tr(3)))
    import re as _re
    for o, _ in r_.ops:
        I(_re.sub(r"\bv(2[7-9]|3[01])\b", lambda m: f"v{int(m.group(1)) + 20}", o[1]))

RK = 192; KB = 32
def PHR(n, r4): return 64 + (n * 4 + r4) * 4
def CAC(k, r4): return 192 + (k * 4 + r4) * 4
def rt_offsets(stride):
    I(f"s_lshr_b32 s{sT0}, s{sMC}, 3")
    I(f"s_lshl_b32 s{sT0}, s{sT0}, 1")
    I(f"s_and_b32 s{sT2}, s{sW}, 1")
    I(f"s_add_u32 s{sT0}, s{sT0}, s{sT2}")
    I(f"s_mul_i32 s{sR}, s{sT0}, {stride}")
    I(f"s_xor_b32 s{sT0}, s{sT0}, 1")
    I(f"s_mul_i32 s{sR+1}, s{sT0}, {stride}")
    I(f"s_add_u32 s{sR+2}, s{sR}, {4*stride}")
    I(f"s_add_u32 s{sR+3}, s{sR+1}, {4*stride}")
def phiq_load():
    I(f"s_lshl_b32 s{sT0}, s{sGrpC}, 4")
    I(f"s_lshl_b32 s{sT1}, s{sW}, 1")
    I(f"s_add_u32 s{sT0}, s{sT0}, s{sT1}")
    I(f"v_and_b32 v20, 1, v{vL}")
    I(f"v_bfe_u32 v21, v{vL}, 1, 1")
    I(f"v_lshl_add_u32 v20, v21, 3, v20")
    I(f"v_add_u32 v20, s{sT0}, v20")
    I(f"v_lshlrev_b32 v20, 7, v20")
    I(f"v_add_u32 v20, {WS_FQ}, v20")
    rt_offsets(32768)
    I(f"s_lshl_b32 s{sT0}, s{sGrpC}, 18")
    I(f"s_lshl_b32 s{sT1}, s{sW}, 13")
    I(f"s_add_u32 s{sT0}, s{sT0}, s{sT1}")
    I(f"s_add_u32 s{sT0}, s{sT0}, {WS_PHIQ}")
    I(f"v_add_u32 v22, s{sT0}, v{vL16}")
    I(f"v_add_u32 v27, 4096, v22")
    return poll_issue(20, 21)
def phiq_loads(ids, h):
    for s_ in range(4):
        for rho in range(2):
            r4 = 2 * h + rho
            for n in (2 * s_, 2 * s_ + 1):
                ids[h * 8 + s_ * 2 + rho] = I(f"buffer_load_dwordx4 {vr(PHR(n,r4),4)}, v{22 if n < 4 else 27}, {S(SWS)}, s{sR+r4} offen offset:{(n&3)*1024} sc1")
                pad(40)
RZ = 32
def kv_addr():
    I(f"s_lshl_b32 s{sT1}, s{sW}, 3")
    I(f"s_mul_i32 s{sP1}, s{sT1}, {KVREC}")
    I(f"s_add_u32 s{sP1}, s{sP1}, {WS_KVF}")
    I(f"v_and_b32 v14, 3, v{vT}")
    I(f"v_mul_u32_u24 v14, {KVREC}, v14")
    I(f"v_and_b32 v15, 1, v{vG}")
    I(f"v_lshl_add_u32 v14, v15, 6, v14")
    I(f"v_lshrrev_b32 v15, 1, v{vG}")
    I(f"v_lshl_add_u32 v14, v15, 4, v14")
    I(f"v_lshlrev_b32 v15, 9, v{vG}")
    I(f"v_lshl_add_u32 v15, v{vT}, 4, v15")
def kv_loads():
    for n in range(8):
        I(f"s_add_u32 s{sT0}, s{sP1}, {n*KVREC}")
        I(f"buffer_load_dwordx4 {vr(RK+8*n,4)}, v15, {S(SWS)}, s{sT0} offen sc1")
        last = I(f"buffer_load_dwordx4 {vr(RK+8*n+4,4)}, v15, {S(SWS)}, s{sT0} offen offset:256 sc1")
        if n % 4 == 0:
            q = n // 4
            I(f"buffer_load_dwordx4 {vr(RZ+8*q,4)}, v14, {S(SWS)}, s{sT0} offen offset:2048 sc1")
            I(f"buffer_load_dwordx4 {vr(RZ+8*q+4,4)}, v14, {S(SWS)}, s{sT0} offen offset:2080 sc1")
    return last
def kv_finish(last):
    def checks():
        for k in range(16): check16(16, RK + 4 * k, 17 + (k & 1), k == 0)
        for k in range(4): check16(16, RZ + 4 * k, 17 + (k & 1), False)
        I("v_cmp_ne_u32 vcc, 0, v16")
    wait_vm(last)
    checks()
    def body():
        kv_loads(); I("s_waitcnt vmcnt(0)"); A.vm = []; checks()
    spin_loop(body, first_done=True)
def kv_pack():
    for k in range(8):
        I(f"v_perm_b32 v{8+k}, v{RZ+2*k+1}, v{RZ+2*k}, s{sSelHi}")
    for k in range(32):
        I(f"v_perm_b32 v{KB+k}, v{RK+2*k+1}, v{RK+2*k}, s{sSelHi}")

def half_send(acc, lbase, va):
    for d in (1, 2, 3):
        rho, pi = d & 1, d >> 1
        I(f"s_xor_b32 s{sT0}, s{sW}, {d}")
        I(f"s_mul_i32 s{sT0}, s{sT0}, 6144")
        I(f"s_add_u32 s{sT0}, s{sT0}, {lbase + (d-1)*2048}")
        I(f"v_add_u32 v{va}, s{sT0}, v{vL16}")
        for k in range(2):
            I(f"ds_write_b128 v{va}, {vr(acc(2*pi+k, rho),4)} offset:{k*1024}")
def half_recv(acc, lbase, va):
    I(f"s_mul_i32 s{sT0}, s{sW}, 6144")
    I(f"s_add_u32 s{sT0}, s{sT0}, {lbase}")
    I(f"v_add_u32 v{va}, s{sT0}, v{vL16}")
    for d in (1, 2, 3):
        rho, pi = d & 1, d >> 1
        for k in range(2):
            last = I(f"ds_read_b128 {vr(acc(2*pi+k, rho),4)}, v{va} offset:{(d-1)*2048 + k*1024}")
    return last
def half_sum(acc, O):
    for k in range(2):
        for e in (0, 2):
            I(f"v_pk_add_f32 {vr(O+4*k+e,2)}, {vr(acc(k,0)+e,2)}, {vr(acc(k,1)+e,2)}")
            I(f"v_pk_add_f32 {vr(acc(2+k,0)+e,2)}, {vr(acc(2+k,0)+e,2)}, {vr(acc(2+k,1)+e,2)}")
    for k in range(2):
        for e in (0, 2):
            I(f"v_pk_add_f32 {vr(O+4*k+e,2)}, {vr(O+4*k+e,2)}, {vr(acc(2+k,0)+e,2)}")

L_RED = 96 * K
X1K = 24
def c_setup():
    I(f"s_lshr_b32 s{sT0}, s{sMC}, 3")
    I(f"s_lshl_b32 s{sT0}, s{sT0}, 1")
    I(f"s_and_b32 s{sT1}, s{sW}, 1")
    I(f"s_add_u32 s{sT0}, s{sT0}, s{sT1}")
    I(f"s_lshl_b32 s{sT1}, s{sGrpC}, 3")
    I(f"s_add_u32 s{sP2}, s{sT0}, s{sT1}")
    I(f"s_lshl_b32 s{sT0}, s{sP2}, 4")
    I(f"v_add_u32 v20, s{sT0}, v{vT}")
    I(f"v_lshlrev_b32 v21, 10, v20")
    I(f"v_lshl_add_u32 v21, v{vG}, 3, v21")
    I(f"s_lshl_b32 s{sT0}, s{sCtC}, 1")
    I(f"s_lshr_b32 s{sT1}, s{sW}, 1")
    I(f"s_add_u32 s{sP3}, s{sT0}, s{sT1}")
    I(f"s_lshl_b32 s{sT0}, s{sP3}, 6")
    I(f"s_add_u32 s{sT1}, s{sT0}, 65536")
    for h in range(2):
        for k in range(2):
            last = I(f"buffer_load_dwordx2 {vr(24+4*h+2*k,2)}, v21, {S(SX)}, s{sT1 if h else sT0} offen offset:{32*k}")
    I(f"s_lshl_b32 s{sT0}, s{sP3}, 7")
    I(f"s_add_u32 s{sT0}, s{sT0}, {L_MODV}")
    I(f"v_lshlrev_b32 v22, 4, v{vG}")
    I(f"v_add_u32 v22, s{sT0}, v22")
    return last

def c_epi_rd(GA, CB):
    for k in range(2):
        I(f"ds_read_b128 {vr(GA+4*k,4)}, v22 offset:{4096 + 64*k}")
        x = I(f"ds_read_b128 {vr(CB+4*k,4)}, v22 offset:{8192 + 64*k}")
    return x
def c_epi(h, acc, O, GA, CB, XF, xid):
    XR = 24 + 4 * h
    wait_vm(xid)
    for q in range(4):
        I(f"v_lshlrev_b32 v{XF+2*q}, 16, v{XR+q}")
        I(f"v_and_b32 v{XF+2*q+1}, s{sHi}, v{XR+q}")
    wait_lg()
    half_sum(acc, O)
    for q in range(0, 8, 2):
        I(f"v_pk_fma_f32 {vr(O+q,2)}, {vr(O+q,2)}, {vr(GA+q,2)}, {vr(XF+q,2)}")
    for q in range(4):
        I(f"v_cvt_pk_bf16_f32 v{XR+q}, v{O+2*q}, v{O+2*q+1}")
    I(f"s_lshl_b32 s{sT0}, s{sP2}, 14")
    I(f"s_lshl_b32 s{sT1}, s{sP3}, 10")
    for q in range(4):
        I(f"v_lshlrev_b32 v{O+2*q}, 16, v{XR+q}")
        I(f"v_and_b32 v{O+2*q+1}, s{sHi}, v{XR+q}")
    I(f"s_add_u32 s{sT0}, s{sT0}, s{sT1}")
    I(f"s_add_u32 s{sT0}, s{sT0}, {WS_X1P + h*4*16384}")
    for q in range(0, 8, 2):
        I(f"v_pk_mul_f32 {vr(XF+q,2)}, {vr(O+q,2)}, {vr(CB+q,2)}")
    for q in range(4):
        I(f"v_cvt_pk_bf16_f32 v{XF+q}, v{XF+2*q}, v{XF+2*q+1}")
    xlast = I(f"buffer_store_dwordx4 {vr(XF,4)}, v{vL16}, {S(SWS)}, s{sT0} offen sc1")
    T = GA
    I(f"v_pk_add_f32 v[{T}:{T+1}], {vr(O,2)}, {vr(O+2,2)}")
    I(f"v_pk_add_f32 v[{T+2}:{T+3}], {vr(O+4,2)}, {vr(O+6,2)}")
    I(f"v_pk_add_f32 v[{T}:{T+1}], v[{T}:{T+1}], v[{T+2}:{T+3}]")
    I(f"v_add_f32 v{T}, v{T}, v{T+1}")
    I(f"v_mul_f32 v{T+2}, 0xbe000000, v{T}")
    for q in range(0, 8, 2):
        I(f"v_pk_add_f32 {vr(O+q,2)}, {vr(O+q,2)}, v[{T+2}:{T+3}] op_sel_hi:[1,0]")
    I(f"v_pk_mul_f32 v[{T+4}:{T+5}], {vr(O,2)}, {vr(O,2)}")
    I(f"v_pk_mul_f32 v[{T+6}:{T+7}], {vr(O+2,2)}, {vr(O+2,2)}")
    I(f"v_pk_fma_f32 v[{T+4}:{T+5}], {vr(O+4,2)}, {vr(O+4,2)}, v[{T+4}:{T+5}]")
    I(f"v_pk_fma_f32 v[{T+6}:{T+7}], {vr(O+6,2)}, {vr(O+6,2)}, v[{T+6}:{T+7}]")
    I(f"v_pk_add_f32 v[{T+4}:{T+5}], v[{T+4}:{T+5}], v[{T+6}:{T+7}]")
    I(f"v_add_f32 v{T+1}, v{T+4}, v{T+5}")
    for op, inv in (("v_permlane16_swap_b32", 0x3d800000), ("v_permlane32_swap_b32", 0x3d000000)):
        I(f"v_mov_b32 v{T+2}, v{T}")
        I(f"v_mov_b32 v{T+3}, v{T+1}")
        I(f"{op} v{T}, v{T+2}")
        I(f"{op} v{T+1}, v{T+3}")
        I(f"v_sub_f32 v{T+4}, v{T}, v{T+2}")
        I(f"v_add_f32 v{T}, v{T}, v{T+2}")
        I(f"v_add_f32 v{T+1}, v{T+1}, v{T+3}")
        I(f"v_mul_f32 v{T+4}, v{T+4}, v{T+4}")
        I(f"v_fmac_f32 v{T+1}, {inv:#x}, v{T+4}")
    I(f"v_lshlrev_b32 v{O}, 8, v20")
    I(f"v_mov_b32 v{T+2}, v{vTag}")
    I(f"v_mov_b32 v{T+3}, v{vTag}")
    I(f"v_mov_b32 v{O+1}, {OOB}")
    I(f"v_cmp_gt_u32 vcc, 16, v{vL}")
    I(f"v_cndmask_b32 v{O}, v{O+1}, v{O}, vcc")
    I(f"s_lshl_b32 s{sT0}, s{sP3}, 4")
    I(f"s_add_u32 s{sT0}, s{sT0}, {WS_STAT + h*64*256}")
    I(f"buffer_store_dwordx4 v[{T}:{T+3}], v{O}, {S(SWS)}, s{sT0} offen sc1")
    return xlast
def flag_at(base, grp, m, last):
    I(f"s_lshl_b32 s{sT0}, s{grp}, 4")
    I(f"s_add_u32 s{sT0}, s{sT0}, s{m}")
    I(f"s_lshl_b32 s{sT0}, s{sT0}, 7")
    I(f"s_add_u32 s{sT0}, s{sT0}, {base}")
    set_flag(sT0, last)

def c_compute(pids, hooks):
    ZF = 8; EPS = 16
    for e in range(4): I(f"v_mov_b32 v{EPS+e}, 0x358637bd")
    def us(u): return (u & 7) >> 1, 2 * (u >> 3) + (u & 1)
    def f0(u): s, r = us(u); return PHR(2 * s, r)
    def f1(u): s, r = us(u); return PHR(2 * s + 1, r)
    def buf(u):
        if u < 8: return [CAC(c, 2 + (u & 1)) for c in range(4)]
        k = 2 * (u & 1)
        return [PHR(k, 0), PHR(k + 1, 0), PHR(k, 1), PHR(k + 1, 1)]
    def s1(u):
        s, r = us(u); N0, D0, N1, D1 = buf(u)
        return [f"v_mfma_f32_16x16x32_bf16 {vr(D0,4)}, {vr(ZF+4*(s>>1),4)}, {vr(f0(u),4)}, {vr(EPS,4)}",
                f"v_mfma_f32_16x16x32_bf16 {vr(D1,4)}, {vr(ZF+4*(s>>1),4)}, {vr(f1(u),4)}, {vr(EPS,4)}",
                f"v_mfma_f32_16x16x32_bf16 {vr(N0,4)}, {vr(KB+8*s,4)}, {vr(f0(u),4)}, 0",
                f"v_mfma_f32_16x16x32_bf16 {vr(N1,4)}, {vr(KB+8*s+4,4)}, {vr(f1(u),4)}, 0"]
    def s2(u):
        s, r = us(u); N0, D0, N1, D1 = buf(u)
        d0 = D0 + ((2 * s) & 3); d1 = D1 + ((2 * s + 1) & 3)
        o = [f"v_rcp_f32 v6, v{d0}", f"v_rcp_f32 v7, v{d1}"]
        o += [f"v_mul_f32 v{N0+e}, v{N0+e}, v6" for e in range(4)]
        o += [f"v_cvt_pk_bf16_f32 v{f0(u)}, v{N0}, v{N0+1}", f"v_cvt_pk_bf16_f32 v{f0(u)+1}, v{N0+2}, v{N0+3}"]
        o += [f"v_mul_f32 v{N1+e}, v{N1+e}, v7" for e in range(4)]
        o += [f"v_cvt_pk_bf16_f32 v{f0(u)+2}, v{N1}, v{N1+1}", f"v_cvt_pk_bf16_f32 v{f0(u)+3}, v{N1+2}, v{N1+3}"]
        return o
    def s3(u):
        s, r = us(u)
        return [f"v_mfma_f32_16x16x32_bf16 {vr(CAC(c,r),4)}, {ar(WOF+(s*4+c)*4,4)}, {vr(f0(u),4)}, {vr(CAC(c,r),4) if s else 0}" for c in range(4)]
    wait_vm(pids[0])
    for m in s1(0): I(m)
    for u in range(17):
        if u in hooks: hooks[u]()
        if u + 1 < 16: wait_vm(pids[u + 1])
        mf = (s3(u - 1) if u >= 1 else []) + (s1(u + 1) if u + 1 < 16 else [])
        va = s2(u) if u < 16 else []
        k = 0
        for m in mf:
            I(m)
            for _ in range(2):
                if k < len(va): I(va[k]); k += 1
        while k < len(va): I(va[k]); k += 1

L_U = L_MISC + 3072
def u12_all():
    I(f"v_lshrrev_b32 v6, 3, v{vT}")
    I(f"v_lshlrev_b32 v7, 10, v6")
    I(f"v_lshl_add_u32 v7, v{vG}, 4, v7")
    I(f"v_add_u32 v7, {L_UV}, v7")
    R = 64; UA = 192
    for q in range(4):
        I(f"s_lshr_b32 s{sT0}, s{sKM+q}, 1")
        I(f"v_add_u32 v13, s{sT0}, v7")
        for s in range(4):
            I(f"ds_read_b128 {vr(R+4*(4*q+s),4)}, v13 offset:{64*s}")
    I(f"s_mul_i32 s{sT0}, s{sW}, 384")
    I(f"s_add_u32 s{sT0}, s{sT0}, {L_UW}")
    I(f"v_lshlrev_b32 v6, 6, v6")
    I(f"v_lshl_add_u32 v6, v{vG}, 4, v6")
    I(f"v_add_u32 v6, s{sT0}, v6")
    I(f"v_add_u32 v55, {L_DUMMY}, v{vL16}")
    I(f"v_and_b32 v13, 7, v{vT}")
    I(f"v_cmp_eq_u32 vcc, 0, v13")
    I(f"v_cndmask_b32 v55, v55, v6, vcc")
    wait_lg()
def u12_mm(k0, k1):
    R = 64; UA = 192
    for ks in range(k0, k1):
        for c in range(3):
            acc = vr(UA + 4 * c, 4)
            I(f"v_mfma_f32_16x16x32_bf16 {acc}, {ar(GF(c,ks),4)}, {vr(R+4*ks,4)}, {acc if ks else 0}")
    if k1 == 16:
        for c in range(3):
            I(f"ds_write_b128 v55, {vr(UA+4*c,4)} offset:{128*c}")

def DF(j, c): return (192 + (j * 4 + c) * 4) if j < 4 else ((j - 4) * 4 + c) * 4
WDSLOT = {0: 6, 1: 7, 2: 0, 3: 1, 4: 2, 5: 0, 6: 3, 7: 1, 8: 4, 9: 5, 10: 6}
vWD = 12
def wd_setup():
    TMPV[:] = [6, 7, 17, 18]
    rows128_voff(vWD, 1024, True)
    I(f"s_mul_i32 s{sB1}, s{sW}, {352*1024}")
    I(f"s_lshl_b32 s{sB2}, s{sCtC}, 7")
    I(f"s_add_u32 s{sB1}, s{sB1}, s{sB2}")
    I(f"v_bfe_u32 v6, v{vL}, 2, 2")
    I(f"v_lshl_add_u32 v6, v{vG}, 3, v6")
    I(f"v_lshlrev_b32 v6, 7, v6")
    I(f"v_bfe_u32 v7, v{vL}, 3, 2")
    I(f"s_and_b32 s{sB2}, s{sW}, 2")
    I(f"v_xor_b32 v7, s{sB2}, v7")
    I(f"v_lshl_add_u32 v6, v7, 5, v6")
    I(f"v_and_b32 v7, 3, v{vL}")
    I(f"v_lshl_add_u32 v6, v7, 3, v6")
    I(f"v_add_u32 v16, s{sW4096}, v6")
    for c in range(1, 4):
        I(f"v_xor_b32 v{16+c}, {32*c}, v16")
def wd_dma(j):
    return dma4(vWD, S(SWD), sW4096, WDSLOT[j] * 16 * K, sB1, j * 32768)
def wd_tr(j, last):
    if last is not None: wait_vm(last)
    off = (WDSLOT[j] & 3) * 16 * K
    out = None
    for c in range(4):
        f = DF(j, c)
        I(f"ds_read_b64_tr_b16 {ar(f,2)}, v{16+c} offset:{off}")
        out = I(f"ds_read_b64_tr_b16 {ar(f+2,2)}, v{16+c} offset:{off+512}")
    return out
def wd_hi():
    for c in range(4): I(f"v_xor_b32 v{16+c}, {64*K}, v{16+c}")

L_XCH = 128 * K
L_RS = L_MISC
AF = 64; SR = 32
def DAC(p, c, sl): return 128 + p * 48 + (c * 4 + sl) * 4
vFl, vFt, vAs = 60, 61, 62
def d_setup():
    I(f"s_lshl_b32 s{sT0}, s{sGrpD}, 11")
    I(f"s_add_u32 s{sT0}, s{sT0}, {WS_FX}")
    I(f"v_lshlrev_b32 v{vFl}, 7, v{vT}")
    I(f"v_add_u32 v{vFl}, s{sT0}, v{vFl}")
    pid = poll_issue(vFl, vFt)
    I(f"s_lshl_b32 s{sT0}, s{sGrpD}, 3")
    I(f"s_add_u32 s{sT0}, s{sT0}, s{sW}")
    I(f"s_lshl_b32 s{sT0}, s{sT0}, 14")
    I(f"s_add_u32 s{sT0}, s{sT0}, {WS_X1P}")
    I(f"v_add_u32 v{vAs}, s{sT0}, v{vL16}")
    I(f"s_lshl_b32 s{sP0}, s{sGrpD}, 15")
    I(f"s_add_u32 s{sP0}, s{sP0}, {WS_STAT}")
    I(f"s_add_u32 s{sP0}, s{sP0}, s{sW4096}")
    I(f"s_and_b32 s{sT1}, s{sW}, 1")
    I(f"s_lshl_b32 s{sT1}, s{sT1}, 13")
    I(f"v_add_u32 v8, s{sT1}, v{vL16}")
    I(f"v_xor_b32 v9, 8192, v8")
    I(f"v_add_u32 v10, 65536, v8")
    I(f"v_add_u32 v11, 65536, v9")
    I(f"s_lshl_b32 s{sT0}, s{sW}, 7")
    I(f"s_add_u32 s{sT0}, s{sT0}, {L_RS}")
    I(f"v_lshlrev_b32 v53, 3, v{vG}")
    I(f"v_add_u32 v53, s{sT0}, v53")
    I(f"v_lshlrev_b32 v52, 3, v{vL}")
    I(f"v_add_u32 v52, {L_DUMMY}, v52")
    I(f"v_cmp_eq_u32 vcc, 0, v{vT}")
    I(f"v_cndmask_b32 v53, v52, v53, vcc")
    return pid
def d_adma(h, q):
    return dma4([vAs] * 4, S(SWS), sW4096, h * 64 * K + q * 16 * K, sK + q, h * 65536, " sc1")
def d_stat_loads(h):
    I(f"s_add_u32 s{sT3}, s{sP0}, {h*16384}")
    for k in range(4):
        sid = I(f"buffer_load_dwordx4 {vr(SR+4*k,4)}, v{vL16}, {S(SWS)}, s{sT3} offen offset:{1024*k} sc1")
    return sid
def d_stat_check(h, sid):
    def checks():
        I(f"v_xor_b32 v6, v{SR+2}, v{vTag}")
        for q in range(1, 4):
            I(f"v_bitop3_b32 v6, v6, v{SR+4*q+2}, v{vTag} bitop3:0xf6")
        I("v_cmp_ne_u32 vcc, 0, v6")
    wait_vm(sid)
    checks()
    def body():
        d_stat_loads(h); I("s_waitcnt vmcnt(0)"); A.vm = []; checks()
    spin_loop(body, first_done=True)
def d_stat(h, part):
    DP = ["row_ror:8", "row_ror:4", "row_ror:2", "row_ror:1"]
    if part == 0:
        for k in range(4): I(f"v_mov_b32 v{SR+4*k+2}, v{SR+4*k}")
        for d in DP:
            for k in range(4):
                I(f"v_add_f32_dpp v{SR+4*k+2}, v{SR+4*k+2}, v{SR+4*k+2} {d} row_mask:0xf bank_mask:0xf")
        for k in range(4):
            I(f"v_fmac_f32 v{SR+4*k}, 0xbd800000, v{SR+4*k+2}")
        for k in range(4):
            I(f"v_mul_f32 v{SR+4*k}, v{SR+4*k}, v{SR+4*k}")
        for k in range(4):
            I(f"v_fmac_f32 v{SR+4*k+1}, 0x3d000000, v{SR+4*k}")
        return
    for d in DP:
        for k in range(4):
            I(f"v_add_f32_dpp v{SR+4*k+1}, v{SR+4*k+1}, v{SR+4*k+1} {d} row_mask:0xf bank_mask:0xf")
    for k in range(4): I(f"v_mov_b32 v{SR+4*k}, 0x3727c5ac")
    for k in range(4): I(f"v_fmac_f32 v{SR+4*k}, 0x3b000000, v{SR+4*k+1}")
    for k in range(4): I(f"v_rsq_f32 v{SR+4*k}, v{SR+4*k}")
    for k in range(4): I(f"v_mul_f32 v{SR+4*k+1}, 0xbb000000, v{SR+4*k+2}")
    for k in range(4): I(f"v_mul_f32 v{SR+4*k+1}, v{SR+4*k+1}, v{SR+4*k}")
    for k in range(4): I(f"ds_write_b64 v53, {vr(SR+4*k,2)} offset:{h*512 + 32*k}")

def d_rd(p, ks, sl):
    b = AF + (ks % 3) * 16 + 4 * sl
    q, s = ks >> 2, ks & 3
    base = (8 if sl < 2 else 9) + 2 * p
    return I(f"ds_read_b128 {vr(b,4)}, v{base} offset:{q*16*K + (sl&1)*4096 + s*1024}")
def d_pass(p, aids, bgf, pre):
    wait_vm(aids[0]); barrier()
    rds = {0: [d_rd(p, 0, sl) for sl in range(4)], 1: [d_rd(p, 1, sl) for sl in range(4)]}
    for k2 in range(0, 16, 2):
        def main():
            for ks in (k2, k2 + 1):
                if ks in (4, 8, 12): I("s_barrier")
                if ks + 2 < 16 and (ks + 2) % 4 == 0:
                    wait_vm(aids[(ks + 2) >> 2]); I("s_barrier")
                nxt = []
                for sl in range(4):
                    if ks + 2 < 16: nxt.append(d_rd(p, ks + 2, sl))
                    if sl == 0: wait_lg(rds[ks][3])
                    for c in range(3):
                        acc = vr(DAC(p, c, sl), 4)
                        I(f"v_mfma_f32_16x16x32_bf16 {acc}, {ar(GF(c,ks),4)}, {vr(AF+(ks%3)*16+4*sl,4)}, {acc if ks else 0}")
                rds[ks + 2] = nxt
        if p == XST - 1 and k2 < 14: xstamp()
        pre(k2)
        rb_ = rec(bgf, k2); rm = rec(main)
        merge_mfma(A, rm, [rb_])

def d_epi_setup():
    I(f"s_and_b32 s{sT1}, s{sW}, 1")
    I(f"s_lshl_b32 s{sT1}, s{sT1}, 8")
    I(f"s_add_u32 s{sT1}, s{sT1}, {L_RS}")
    I(f"v_lshlrev_b32 v56, 3, v{vT}")
    I(f"v_add_u32 v56, s{sT1}, v56")
    I(f"s_mul_i32 s{sT0}, s{sW}, 384")
    I(f"s_add_u32 s{sT0}, s{sT0}, {L_UW}")
    I(f"v_lshlrev_b32 v57, 4, v{vG}")
    I(f"v_add_u32 v57, s{sT0}, v57")
    I(f"s_lshl_b32 s{sT0}, s{sW}, 11")
    I(f"s_add_u32 s{sT0}, s{sT0}, {L_XCH}")
    I(f"v_add_u32 v58, s{sT0}, v{vL16}")
    I(f"v_and_b32 v59, 1, v{vG}")
    I(f"v_mul_u32_u24 v59, {43*1024}, v59")
    I(f"v_lshrrev_b32 v63, 1, v{vG}")
    I(f"v_lshl_add_u32 v59, v63, 8, v59")
    I(f"v_lshl_add_u32 v59, v{vT}, 4, v59")
    I(f"s_mul_i32 s{sT0}, s{sGrpD}, {8*43*1024}")
    I(f"s_add_u32 s{sT0}, s{sT0}, {WS_HH}")
    for dst, tile in ((sP1, sTx), (sHead, sTz)):
        I(f"s_add_u32 s{dst}, s{sFt0}, s{tile}")
        I(f"s_lshl_b32 s{dst}, s{dst}, 9")
        I(f"s_add_u32 s{dst}, s{dst}, s{sT0}")
def d_epi(p):
    RS = 32; U = 40 - 0;
    U = 224
    barrier()
    I(f"v_xor_b32 v63, 256, v56")
    for sl in (2, 3, 0, 1):
        I(f"ds_read_b64 {vr(RS+2*sl,2)}, v{56 if sl < 2 else 63} offset:{p*512 + (sl&1)*128}")
    if p == 0:
        for c in (2, 0, 1):
            I(f"ds_read_b128 {vr(U+8*c,4)}, v57 offset:{128*c}")
            I(f"ds_read_b128 {vr(U+8*c+4,4)}, v57 offset:{128*c+64}")
    I(f"s_and_b32 s{sT1}, s{sW}, 1")
    I(f"s_mul_i32 s{sT1}, s{sT1}, {2*43*1024}")
    I(f"s_xor_b32 s{sT2}, s{sT1}, {2*43*1024}")
    wait_lg()
    tc = [0]
    def fix(c, sl):
        a = DAC(p, c, sl)
        for e in (0, 2):
            t = 40 + 2 * (tc[0] & 3); tc[0] += 1
            I(f"v_pk_fma_f32 {vr(t,2)}, {vr(U+8*c+e,2)}, {vr(RS+2*sl,2)}, {vr(U+8*c+4+e,2)} op_sel:[0,1,0] op_sel_hi:[1,1,1]")
            I(f"v_pk_fma_f32 {vr(a+e,2)}, {vr(a+e,2)}, {vr(RS+2*sl,2)}, {vr(t,2)} op_sel_hi:[1,0,1]")
    for sl in (2, 3):
        fix(2, sl)
        I(f"ds_write_b128 v58, {vr(DAC(p,2,sl),4)} offset:{(sl-2)*1024}")
    def hh_pack(dst, ga, ua):
        for e in (0, 2):
            I(f"v_pk_mul_f32 {vr(ga+e,2)}, {vr(ga+e,2)}, {vr(ua+e,2)}")
        I(f"v_cvt_pk_bf16_f32 v{dst}, v{ga}, v{ga+1}")
        I(f"v_cvt_pk_bf16_f32 v{dst+1}, v{ga+2}, v{ga+3}")
    def store_pair(d, slot, base_s, ga0, ua0, ga1, ua1):
        hh_pack(d, ga0, ua0)
        hh_pack(d + 2, ga1, ua1)
        I(f"s_add_u32 s{sT0}, s{base_s}, s{sT1 if slot < 2 else sT2}")
        I(f"s_add_u32 s{sT0}, s{sT0}, {p*4*43*1024}")
        I(f"v_permlane16_swap_b32 v{d}, v{d+2}")
        I(f"v_permlane16_swap_b32 v{d+1}, v{d+3}")
        return I(f"buffer_store_dwordx4 {vr(d,4)}, v59, {S(SWS)}, s{sT0} offen sc1")
    for k, sl in enumerate((0, 2)):
        for c in (0, 1):
            fix(c, sl); fix(c, sl + 1)
        store_pair(72 + 4 * k, sl, sP1, DAC(p,0,sl), DAC(p,1,sl), DAC(p,0,sl+1), DAC(p,1,sl+1))
        if k == 0:
            barrier()
            I(f"v_xor_b32 v63, 2048, v58")
            for s2 in range(2):
                I(f"ds_read_b128 {vr(DAC(p,2,2+s2),4)}, v63 offset:{s2*1024}")
    for sl in range(2): fix(2, sl)
    wait_lg()
    return store_pair(DAC(p,0,0), 0, sHead, DAC(p,2,0), DAC(p,2,2), DAC(p,2,1), DAC(p,2,3))

EQ = list(range(112, 176, 4)) + list(range(96, 112, 4)) + [64, 68]
def EAR(j, rho): return EQ[j * 2 + rho]
def ECC(k, r4): return 176 + (r4 * 4 + k) * 4
def e_setup():
    I(f"s_lshl_b32 s{sT0}, s{sGrpC}, 11")
    I(f"s_add_u32 s{sT0}, s{sT0}, {WS_FH}")
    I(f"v_lshlrev_b32 v{vFl}, 7, v{vT}")
    I(f"v_add_u32 v{vFl}, s{sT0}, v{vFl}")
    rt_offsets(43 * 1024)
    I(f"s_mul_i32 s{sT0}, s{sGrpC}, {8*43*1024}")
    I(f"s_mul_i32 s{sT1}, s{sW}, {11*1024}")
    I(f"s_add_u32 s{sT0}, s{sT0}, s{sT1}")
    I(f"s_add_u32 s{sT0}, s{sT0}, {WS_HH}")
    I(f"v_add_u32 v248, s{sT0}, v{vL16}")
    I(f"v_add_u32 v249, 4096, v248")
    I(f"v_add_u32 v250, 8192, v248")
    I(f"s_cmp_eq_u32 s{sW}, 3")
    I(f"s_cselect_b32 s{sT0}, 1024, 0")
    I(f"v_subrev_u32 v251, s{sT0}, v250")
    return poll_issue(vFl, vFt)
def e_ld(h, j, rho):
    base = 251 if j == 10 else 248 + (j >> 2)
    return I(f"buffer_load_dwordx4 {vr(EAR(j,rho),4)}, v{base}, {S(SWS)}, s{sR+2*h+rho} offen offset:{(j&3)*1024} sc1")
def e_mm(h, ids, trw, late, j0=0, j1=11):
    for j in range(j0, j1):
        if j in trw: wait_lg(trw[j])
        for rho in range(2):
            if (j, rho) in late: ids[late[(j, rho)]] = e_ld(h, *late[(j, rho)])
            wait_vm(ids[(j, rho)])
            for c in range(4):
                acc = vr(ECC(c, 2 * h + rho), 4)
                I(f"v_mfma_f32_16x16x32_bf16 {acc}, {ar(DF(j,c),4)}, {vr(EAR(j,rho),4)}, {acc if j else 0}")
def e_fin(h, GB):
    O = 32 + 16 * h; XF = 40 + 16 * h; XR = 24 + 4 * h
    acc = lambda k, rho: ECC(k, 2 * h + rho)
    for q in range(4):
        I(f"v_lshlrev_b32 v{XF+2*q}, 16, v{XR+q}")
        I(f"v_and_b32 v{XF+2*q+1}, s{sHi}, v{XR+q}")
    wait_lg()
    half_sum(acc, O)
    for q in range(0, 8, 2):
        I(f"v_pk_fma_f32 {vr(O+q,2)}, {vr(O+q,2)}, {vr(GB+q,2)}, {vr(XF+q,2)}")
    for q in range(4):
        I(f"v_cvt_pk_bf16_f32 v{XF+q}, v{O+2*q}, v{O+2*q+1}")
    I(f"s_lshl_b32 s{sT1}, s{sP3}, 6")
    if h: I(f"s_add_u32 s{sT1}, s{sT1}, 65536")
    I(f"v_permlane16_swap_b32 v{XF}, v{XF+2}")
    I(f"v_permlane16_swap_b32 v{XF+1}, v{XF+3}")
    I(f"buffer_store_dwordx4 {vr(XF,4)}, v21, {S(SOUT)}, s{sT1} offen sc1")

def write_epoch():
    I(f"s_lshl_b32 s{sT0}, s2, 8")
    I(f"v_or_b32 v6, s{sT0}, v{vTid}")
    I(f"v_cmp_eq_u32 vcc, 0, v6")
    I(f"v_mov_b32 v7, {OOB}")
    I(f"v_cndmask_b32 v7, v7, {WS_EPOCH}, vcc")
    I(f"buffer_store_dword v{vTag}, v7, {S(SWS)}, 0 offen")

def body():
    aids = prologue()
    stamp()
    r1 = rec(x_issue); r2 = rec(lambda: (ids_rest(), consts(), wq_addr(), h_addr(), early_setup()))
    merge(A, [r2])
    r3 = rec(phaseA_compute, aids)
    merge(A, [r3, r1], [(0, 1), (XS0, XS1)])
    xids = r1.ret
    phaseA_2()
    stamp()
    wphi_issue()
    wids = {}
    r1 = rec(layernorm, xids)
    r2 = rec(lambda: (wq_dma(0), wq_dma(1), gm_issue([0], 40)))
    merge(A, [r1, r2], [(0, 1), (0, 0.9)])
    wids[0], wids[1], gid = r2.ret
    stamp()
    wait_vm(wids[0]); barrier()
    r1 = rec(wq_tr, 0); r2 = rec(lambda: (wq_dma(2), pf_wo())[0])
    merge(A, [r1, r2]); wids[2] = r2.ret
    stamp()
    gm_finish([0], 40, gid)
    barrier()
    stamp()
    r1 = rec(make_h_first); r2 = rec(wq_tr, 1)
    merge(A, [r1, r2], [(0, 1), (0.12, 0.6)])
    wphi_pack()
    barrier()
    cur = {k: [a_rd(k, rt) for rt in range(4)] for k in range(2)}
    rm = rec(gemm_kv, 0, 4, cur); rc = rec(wq_dma, 3); rd_ = rec(unpark_rest); re_ = rec(lambda: (pf_gu(), pf_wd()))
    merge_mfma(A, rm, [rc, rd_, re_], [(0, 0.68), (0, 0.68), (0.7, 1)]); wids[3] = rc.ret
    wait_vm(wids[2]); I("s_barrier")
    rwo = rec(wo_dma)
    nset = rwo.first_dma
    setup = Rec(); setup.ops = rwo.ops[:nset]; rwo.ops = rwo.ops[nset:]
    rm = rec(gemm_kv, 4, 6, rm.ret); rc = rec(wq_tr, 2)
    merge_mfma(A, rm, [rc, setup], [(0, 0.8), (0, 1)])
    wait_vm(wids[3]); barrier()
    rm = rec(gemm_kv, 6, 10, rm.ret); rb_ = rec(make_h_do, 3, 240, False, -1); rc = rec(wq_tr, 3)
    merge_mfma(A, rm, [rb_, rc], [(0, 0.95), (0, 0.95)])
    barrier()
    rm = rec(gemm_kv, 10, 16, rm.ret); rc = rec(lambda: (wgu_setup(), wo_tr_pre()))
    merge_mfma(A, rm, [rwo, rc], [(0, 0.65), (0.67, 1)])
    wo_last = rwo.ret
    if STOP == 1:
        A.fence(16)
        dbg_dump([vr(accQ(k), 4) for k in range(4)] + [vr(accK(k), 4) for k in range(4)] + [vr(accV(k), 4) for k in range(4)], 0)
        return
    I("s_barrier")
    stamp()
    g = {}
    rm = rec(epi_k); rb_ = rec(wgu_dma, 0)
    merge(A, [rm, rb_], [(0, 1), (0, 0.7)])
    g[0] = rb_.ret
    wo_tr(wo_last)
    barrier()
    stamp()
    rm = rec(epi_q); rc = rec(kv_reduce_loads); rb_ = rec(wgu_dma, 1)
    merge(A, [rm, rc, rb_], [(0, 1), (0.62, 0.75), (0.0, 0.6)])
    g[1] = rb_.ret
    stamp()
    kv_reduce_finish(rc.ret)
    wgu_traddr()
    stamp()
    set_flag(sT1, rm.ret)
    stamp()
    if STOP == 2: return
    gid = gm_issue([1, 2], 192)
    wgu_tr(0); wgu_tr(1)
    barrier()
    r1 = rec(lambda: (wgu_dma(2), wgu_dma(3))); r2 = rec(lambda: (kv_addr(), phiq_load())[1])
    merge(A, [r1, r2], [(0, 1), (0.3, 1)])
    g[2], g[3] = r1.ret; pid = r2.ret
    gm_finish([1, 2], 192, gid)
    kid = kv_loads()
    wait_vm(g[3]); barrier()
    stamp()
    pids = {}
    poll_finish(20, 21, pid)
    r1 = rec(phiq_loads, pids, 0); r2 = rec(lambda: (wgu_tr(2), wgu_tr(3)))
    merge(A, [r1, r2])
    stamp()
    kv_finish(kid)
    kv_pack()
    stamp()
    st = {}
    accA = lambda k, rho: CAC(k, rho)
    accB = lambda k, rho: CAC(k, 2 + rho)
    rg = rec(phiq_loads, pids, 1)
    parts = [rg.ops[k*8:(k+1)*8] for k in range(4)]
    def hg(k):
        def f():
            r_ = Rec(); r_.ops = parts[k]; merge(A, [r_])
        return f
    def h4(): st["x"] = c_setup()
    def h9(): half_send(accA, L_RED, 6)
    def h10():
        barrier()
        half_recv(accA, L_RED, 6); c_epi_rd(144, 160)
    def h11():
        st["xa"] = c_epi(0, accA, 128, 144, 160, 176, st["x"])
    def h15(): flag_at(WS_FX, sGrpC, sMC, st["xa"])
    c_compute(pids, {0: hg(0), 1: hg(1), 2: hg(2), 3: hg(3), 5: h4, 9: h9, 10: h10, 11: h11, 15: h15})
    stamp()
    half_send(accB, L_RED + 24 * K, 6)
    c_epi_rd(144, 160)
    barrier()
    half_recv(accB, L_RED + 24 * K, 6)
    xb = c_epi(1, accB, 128, 144, 160, 176, st["x"])
    stamp()
    if STOP == 3:
        flag_at(WS_FX + 0x10000, sGrpC, sMC, xb)
        return
    pid = d_setup()
    u12_all()
    rm = rec(u12_mm, 0, 9); rb_ = rec(lambda: (wd_setup(), d_epi_setup()))
    merge_mfma(A, rm, [rb_])
    flag_at(WS_FX + 0x10000, sGrpC, sMC, xb)
    poll_finish(vFl, vFt, pid)
    stamp()
    aA = [d_adma(0, 0)]
    rm = rec(u12_mm, 9, 16); rb_ = rec(lambda: (d_stat_loads(0), [d_adma(0, q) for q in (1, 2, 3)]))
    merge_mfma(A, rm, [rb_])
    sid = rb_.ret[0]; aA += rb_.ret[1]
    I(f"v_add_u32 v{vFl}, 0x10000, v{vFl}")
    stamp()
    wd = {}; aB = []; dd = {}
    def bgA(ks):
        if ks == 0: wd[0] = wd_dma(0); dd["p"] = poll_issue(vFl, vFt)
        if ks == 2: wd[1] = wd_dma(1)
        if ks == 4: wd[2] = wd_dma(2)
        if ks == 6: aB.append(d_adma(1, 0)); d_stat(0, 0)
        if ks == 8:
            aB.append(d_adma(1, 1)); wd_hi(); wd_tr(0, wd[0]); dd["t"] = wd_tr(1, wd[1]); wd_hi()
        if ks == 10: wait_lg(dd["t"]); aB.append(d_adma(1, 2)); wd[3] = wd_dma(3)
        if ks == 12: aB.append(d_adma(1, 3)); dd["t"] = wd_tr(2, wd[2])
        if ks == 14: wd[4] = wd_dma(4); d_stat(0, 1)
    def preA(ks):
        if ks == 6: poll_finish(vFl, vFt, dd["p"]); d_stat_check(0, sid)
    d_pass(0, aA, bgA, preA)
    stamp()
    ha = d_epi(0)
    stamp()
    def bgB(ks):
        if ks == 0: dd["s"] = d_stat_loads(1); wd[5] = wd_dma(5); dd["t"] = wd_tr(3, wd[3])
        if ks == 2: wd[6] = wd_dma(6)
        if ks == 4: wait_lg(dd["t"]); wd[7] = wd_dma(7)
        if ks == 6: wd[8] = wd_dma(8)
        if ks == 8: wd[9] = wd_dma(9)
        if ks == 8: d_stat(1, 0)
        if ks == 10: dd["e"] = e_setup(); d_stat(1, 1)
        if ks == 12: wd[10] = wd_dma(10)
        if ks == 14:
            for j in range(4):
                for rho in range(2): ea[(j, rho)] = e_ld(0, j, rho); pad(60)
    def preB(ks):
        if ks == 4: flag_at(WS_FH, sGrpD, sMD, ha)
        if ks == 8: d_stat_check(1, dd["s"])
        if ks == 14: poll_finish(vFl, vFt, dd["e"])
    ea = {}
    d_pass(1, aB, bgB, preB)
    stamp()
    def more():
        for j in range(4, 8):
            for rho in range(2): ea[(j, rho)] = e_ld(0, j, rho); pad(60)
    rm = rec(d_epi, 1); rb_ = rec(more)
    merge(A, [rm, rb_], [(0, 1), (0.1, 0.9)])
    hb = rm.ret
    if STOP == 4:
        flag_at(WS_FH + 0x10000, sGrpD, sMD, hb)
        return
    stamp()
    I(f"v_add_u32 v{vFl}, 0x10000, v{vFl}")
    trw = {}
    def trs(j0, j1):
        for j in range(j0, j1):
            if j == 8: wd_hi()
            trw[j] = wd_tr(j, None)
    order = [(j, rho) for j in range(11) for rho in range(2)]
    rb_ = rec(trs, 4, 8); rm = rec(e_mm, 0, ea, trw, {order[k]: order[16 + k] for k in range(6)}, 0, 4)
    merge_mfma(A, rm, [rb_])
    flag_at(WS_FH + 0x10000, sGrpD, sMD, hb)
    rb_ = rec(lambda: (trs(8, 11), pad(300), poll_issue(vFl, vFt))[2]); rm = rec(e_mm, 0, ea, trw, {}, 4, 11)
    merge_mfma(A, rm, [rb_], [(0, 1.0)])
    dd["f"] = rb_.ret
    stamp()
    accEa = lambda k, rho: ECC(k, rho)
    accEb = lambda k, rho: ECC(k, 2 + rho)
    poll_finish(vFl, vFt, dd["f"])
    eb = {}
    for jr in order[:14]: eb[jr] = e_ld(1, *jr)
    barrier()
    half_send(accEa, 0, 6)
    GB = 240
    for k in range(2):
        I(f"ds_read_b128 {vr(GB+4*k,4)}, v22 offset:{10240 + 64*k}")
    I(f"v_lshlrev_b32 v21, 10, v20")
    I(f"v_and_b32 v7, 1, v{vG}")
    I(f"v_lshl_add_u32 v21, v7, 5, v21")
    I(f"v_lshrrev_b32 v7, 1, v{vG}")
    I(f"v_lshl_add_u32 v21, v7, 4, v21")
    barrier()
    half_recv(accEa, 0, 6)
    e_fin(0, GB)
    stamp()
    e_mm(1, eb, {}, {order[k]: order[14 + k] for k in range(8)})
    stamp()
    half_send(accEb, 24 * K, 6)
    barrier()
    half_recv(accEb, 24 * K, 6)
    e_fin(1, GB)
    stamp()

hdr = open(f"cdna_kernels/{NAME}.s.ref").read().split("; Override launch")[0]
A.raw(hdr.rstrip())
A.raw(f"; @launch grid=(256,1,1) block=(256,1,1) lds={LDS_BYTES}")
A.raw('.amdgcn_target "amdgcn-amd-amdhsa--gfx950"')
A.raw(".text")
A.raw(f".globl {NAME}_kernel")
A.raw(".p2align 8")
A.raw(f".type {NAME}_kernel,@function")
A.raw(f"{NAME}_kernel:")
body()
write_epoch()
stamp_out()
A.raw("L_end:")
I("s_endpgm")
A.raw("L_code_end:")
A.raw('.section .rodata,"a"')
A.raw(".p2align 6")
A.raw(f".amdhsa_kernel {NAME}_kernel")
A.raw("  .amdhsa_next_free_vgpr 512")
A.raw("  .amdhsa_next_free_sgpr 102")
A.raw("  .amdhsa_accum_offset 256")
A.raw("  .amdhsa_group_segment_fixed_size 0")
A.raw("  .amdhsa_kernarg_size 104")
A.raw("  .amdhsa_user_sgpr_count 2")
A.raw("  .amdhsa_user_sgpr_kernarg_segment_ptr 1")
A.raw("  .amdhsa_system_sgpr_workgroup_id_x 1")
A.raw(".end_amdhsa_kernel")
out = sys.argv[1] if len(sys.argv) > 1 else f"cdna_kernels/{NAME}.s"
open(out, "w").write(A.text())
print("instructions:", A.ninstr, "stamps:", stamp_idx[0], "->", out)
```
